```python
import torch

def _softmax(x, axis=-1):
    return torch.softmax(x, dim=axis)
def _gelu(x):
    return torch.nn.functional.gelu(x, approximate="tanh")
def _silu(x):
    return torch.nn.functional.silu(x)
def _sigmoid(x):
    return torch.sigmoid(x)
def _layernorm(x, axis=-1, eps=1e-5):
    m = x.mean(dim=axis, keepdim=True)
    v = x.var(dim=axis, keepdim=True, unbiased=False)
    return (x - m) / torch.sqrt(v + eps)
def _scatter_add(tgt, idx, src, axis=0):
    return tgt.clone().index_add_(axis, idx, src)
def _segment_sum(src, seg, n):
    out = torch.zeros((n,) + src.shape[1:], dtype=src.dtype)
    return out.index_add_(0, seg, src)
def _pad(x, pw):
    flat = tuple(v for pair in reversed(pw) for v in pair)
    return torch.nn.functional.pad(x, flat)

kernel_name = 'concat_heads__ssm_conv_s4__linear_attn_block__prompt'

def setup_inputs():

    _w = (lambda a: (lambda t: t.to(torch.bfloat16) if t.is_floating_point() else t)(torch.as_tensor(a)))
    def _A_setup():
        B, L, D, N = 1, 2048, 448, 256
        A_re = -(lambda _x: torch.exp(torch.as_tensor(_x)))((lambda *s: torch.randn(*s, dtype=torch.bfloat16) * 3.2)(D, N))
        A_im = torch.pi * (lambda *s: torch.randn(*s, dtype=torch.bfloat16) * 0.05)(D, N)
        B_re = (lambda *s: torch.randn(*s, dtype=torch.bfloat16) * 0.2)(D, N)
        B_im = (lambda *s: torch.randn(*s, dtype=torch.bfloat16) * 0.2)(D, N)
        C_re = (lambda *s: torch.randn(*s, dtype=torch.bfloat16) * 0.2)(D, N)
        C_im = (lambda *s: torch.randn(*s, dtype=torch.bfloat16) * 0.2)(D, N)
        log_dt = (lambda *s: torch.randn(*s, dtype=torch.bfloat16) * 0.05)(D) * 0.5 - 4.0
        Dskip = (lambda *s: torch.randn(*s, dtype=torch.bfloat16) * 0.05)(D)
        return {
            "u": _w((lambda *s: torch.randn(*s, dtype=torch.bfloat16) * 0.05)(B, L, D)),
            "A_re": _w(A_re),
            "A_im": _w(A_im),
            "B_re": _w(B_re),
            "B_im": _w(B_im),
            "C_re": _w(C_re),
            "C_im": _w(C_im),
            "log_dt": _w(log_dt),
            "Dskip": _w(Dskip),
        }
    _A_in = _A_setup()

    def _B_setup():
        B, S, D = 1, 2048, 448
        return {
            "x": _w((lambda *s: torch.randn(*s, dtype=torch.bfloat16) * 0.05)(B, S, D)),
            "wqkv": _w((lambda *s: torch.randn(*s, dtype=torch.bfloat16) * 0.8)(D, 3 * D)),
            "wo": _w((lambda *s: torch.randn(*s, dtype=torch.bfloat16) * 0.1)(D, D)),
        }
    _B_in = _B_setup()

    return {
        "A_u": _A_in["u"],
        "A_A_re": _A_in["A_re"],
        "A_A_im": _A_in["A_im"],
        "A_B_re": _A_in["B_re"],
        "A_B_im": _A_in["B_im"],
        "A_C_re": _A_in["C_re"],
        "A_C_im": _A_in["C_im"],
        "A_log_dt": _A_in["log_dt"],
        "A_Dskip": _A_in["Dskip"],
        "B_x": _B_in["x"],
        "B_wqkv": _B_in["wqkv"],
        "B_wo": _B_in["wo"],
    }

def reference(A_u, A_A_re, A_A_im, A_B_re, A_B_im, A_C_re, A_C_im, A_log_dt, A_Dskip, B_x, B_wqkv, B_wo):
    def _A_ref(u, A_re, A_im, B_re, B_im, C_re, C_im, log_dt, Dskip):
        Bsz, L, D = u.shape
        dt = torch.exp(log_dt)[:, None]
        A = A_re + 1j * A_im
        Bc = B_re + 1j * B_im
        Cc = C_re + 1j * C_im
        logdA = dt * A
        dB = dt * Bc
        l = (lambda x, dt: x.to(dt))(torch.arange(L), A_re.dtype)
        P = torch.exp(logdA[:, :, None] * l[None, None, :])
        K = torch.einsum("dn,dnl,dn->dl", Cc, P, dB).real
        L2 = 2 * L
        Kp = _pad(K, ((0, 0), (0, L)))
        up = (lambda x, *d: x.permute(*d))(u, 0, 2, 1)
        up = _pad(up, ((0, 0), (0, 0), (0, L)))
        Kf = (lambda x, axes=(-2,-1): torch.fft.rfft2(x.float(), dim=axes))(Kp[:, None, :], axes=(-2, -1))
        Uf = (lambda x, axes=(-2,-1): torch.fft.rfft2(x.float(), dim=axes))(up[:, :, None, :], axes=(-2, -1))
        Yf = Uf * Kf[None, :, :, :]
        y = (lambda x, s, axes=(-2,-1): torch.fft.irfft2(x, s=s, dim=axes).to(torch.bfloat16))(Yf, (1, L2), axes=(-2, -1))[:, :, 0, :L]
        y = (lambda x, *d: x.permute(*d))(y, 0, 2, 1) + u * Dskip[None, None, :]
        return y

    def _B_ref(x, wqkv, wo):
        B, S, D = x.shape
        H = 16; Dh = D // H
        qkv = (lambda x, *d: x.permute(*d))((x @ wqkv).reshape(B, S, 3, H, Dh), 2, 0, 3, 1, 4)
        q, k, v = qkv[0], qkv[1], qkv[2]
        phi = lambda t: torch.where(t > 0, t + 1, torch.exp(t)) + 1e-6
        pq, pk = phi(q), phi(k)
        kv = torch.einsum("bhsd,bhse->bhde", pk, v)
        z = torch.einsum("bhsd->bhd", pk)
        num = torch.einsum("bhqd,bhde->bhqe", pq, kv)
        den = torch.einsum("bhqd,bhd->bhq", pq, z)[..., None] + 1e-6
        o = num / den
        return (lambda x, *d: x.permute(*d))(o, 0, 2, 1, 3).reshape(B, S, D) @ wo

    a = _A_ref(A_u, A_A_re, A_A_im, A_B_re, A_B_im, A_C_re, A_C_im, A_log_dt, A_Dskip)
    b = _B_ref(B_x, B_wqkv, B_wo)
    return torch.concatenate([a, b], axis=-1)
```

```python
import re

REG_RE = re.compile(r"^(-|abs\(|\|)?([vas])(\d+)\)?\|?$")
RNG_RE = re.compile(r"^(-|abs\(|\|)?([vas])\[(\d+):(\d+)\]\)?\|?$")
TRANS = ("v_exp_f32", "v_log_f32", "v_rcp_f32", "v_rsq_f32", "v_sqrt_f32", "v_sin_f32", "v_cos_f32", "v_rcp_iflag_f32")

def regs_of(op):
    op = op.strip()
    m = REG_RE.match(op)
    if m: return [(m.group(2), int(m.group(3)))]
    m = RNG_RE.match(op)
    if m: return [(m.group(2), i) for i in range(int(m.group(3)), int(m.group(4)) + 1)]
    if op in ("vcc", "vcc_lo", "vcc_hi"): return [("vcc", 0)]
    if op in ("exec", "exec_lo", "exec_hi"): return [("exec", 0)]
    if op == "m0": return [("m0", 0)]
    return []

def split_ops(s):
    out, depth, cur = [], 0, ""
    for ch in s:
        if ch in "[(": depth += 1
        if ch in "])": depth -= 1
        if ch == "," and depth == 0:
            out.append(cur.strip()); cur = ""
        else:
            cur += ch
    if cur.strip(): out.append(cur.strip())
    return out

class Ins:
    __slots__ = ("text", "mn", "ops", "mods", "cls", "reads", "writes", "passes", "srcC", "srcAB", "label", "target", "nopn", "data", "dpp")
    def __init__(self, text):
        self.text = text; self.label = None; self.target = None; self.nopn = 1
        self.reads = set(); self.writes = set(); self.cls = "other"; self.passes = 0
        self.srcC = set(); self.srcAB = set(); self.data = set(); self.dpp = False
        t = text.split(";")[0].strip()
        if t.endswith(":"):
            self.label = t[:-1]; self.mn = ""; self.cls = "label"; self.nopn = 0; return
        if not t or t.startswith("."):
            self.mn = ""; self.cls = "dir"; self.nopn = 0; return
        parts = t.split(None, 1)
        mn = self.mn = parts[0]
        rest = parts[1] if len(parts) > 1 else ""
        ops = split_ops(rest)
        mods = ""
        if ops:
            last = ops[-1].split(None, 1)
            if len(last) > 1 and not last[0].endswith(":"):
                ops[-1] = last[0]; mods = last[1]
        self.ops = ops; self.mods = mods
        R = lambda i: set(regs_of(ops[i])) if i < len(ops) else set()
        allr = lambda a: set().union(*[R(i) for i in range(a, len(ops))]) if len(ops) > a else set()
        if mn == "s_nop":
            self.cls = "nop"; self.nopn = int(ops[0], 0) + 1
        elif mn.startswith("s_cbranch") or mn == "s_branch":
            self.cls = "branch"; self.target = ops[0]
        elif mn == "s_endpgm":
            self.cls = "end"
        elif mn.startswith("v_mfma"):
            self.cls = "mfma"
            self.passes = 8 if "32x32x16" in mn else 4 if "16x16x32" in mn else None
            assert self.passes, mn
            self.writes = R(0); self.srcAB = R(1) | R(2); self.srcC = R(3); self.reads = self.srcAB | self.srcC
        elif mn.startswith("v_"):
            base = mn.replace("_e32", "").replace("_e64", "").replace("_dpp", "").replace("_sdwa", "")
            self.cls = "trans" if base in TRANS else "valu"
            self.dpp = "_dpp" in mn or "row_" in mods or "quad_perm" in mods or "wave_" in mods
            if base.startswith("v_cmp"):
                self.writes = R(0); self.reads = allr(1)
                assert not base.startswith("v_cmpx")
            elif base.startswith("v_permlane") and "swap" in base:
                self.writes = R(0) | R(1); self.reads = R(0) | R(1); self.cls = "permlane"
            elif base in ("v_add_co_u32", "v_sub_co_u32", "v_addc_co_u32", "v_subb_co_u32"):
                self.writes = R(0) | R(1); self.reads = allr(2)
            elif base in ("v_readfirstlane_b32", "v_readlane_b32"):
                self.writes = R(0); self.reads = allr(1); self.cls = "readlane"
            else:
                self.writes = R(0); self.reads = allr(1)
                if base in ("v_fmac_f32", "v_pk_fmac_f16") or self.dpp or "d16" in base:
                    self.reads |= R(0)
                if base == "v_cndmask_b32" and len(ops) == 3:
                    self.reads |= {("vcc", 0)}
        elif mn.startswith("ds_"):
            self.cls = "ds"
            if mn.startswith("ds_read") or mn.startswith("ds_bpermute") or mn.startswith("ds_permute") or mn.startswith("ds_swizzle"):
                self.writes = R(0); self.reads = allr(1)
            else:
                self.reads = allr(0)
            if "addtid" in mn: self.reads |= {("m0", 0)}
        elif mn.startswith("buffer_") or mn.startswith("global_"):
            self.cls = "vmem"
            islds = re.search(r"\blds\b", mods) is not None or "_lds_" in mn
            if "load" in mn and not islds:
                self.writes = R(0); self.reads = allr(1)
            else:
                self.reads = allr(0)
                if islds: self.reads |= {("m0", 0)}
                if "store" in mn and ("x4" in mn or "x3" in mn):
                    self.data = R(0) if mn.startswith("buffer_") else R(1)
            if "atomic" in mn and "sc0" in mods:
                self.writes = R(0)
        elif mn.startswith("s_load") or mn.startswith("s_buffer_load") or mn.startswith("s_memtime") or mn.startswith("s_memrealtime") or mn.startswith("s_atomic"):
            self.cls = "smem"; self.writes = R(0); self.reads = allr(1)
        elif mn.startswith("s_"):
            self.cls = "salu"
            if mn.startswith("s_cmp") or mn in ("s_waitcnt", "s_barrier", "s_setprio", "s_sleep", "s_bitcmp1_b32", "s_bitcmp0_b32"):
                self.reads = allr(0)
            else:
                self.writes = R(0); self.reads = allr(1)
                if "saveexec" in mn: self.writes |= {("exec", 0)}
        else:
            raise ValueError("unknown instr: " + text)

VALUISH = ("valu", "trans", "permlane", "readlane")
def is_vreg(r): return r[0] in ("v", "a")
def is_sreg(r): return r[0] in ("s", "vcc")

def need(p, c):
    n = 0
    if p.cls in VALUISH:
        vw = {r for r in p.writes if is_vreg(r)}
        sw = {r for r in p.writes if is_sreg(r)}
        if c.cls == "mfma" and vw & c.reads: n = max(n, 2)
        if c.cls == "readlane" and vw & c.reads: n = max(n, 1)
        if c.cls == "permlane" and vw & c.reads: n = max(n, 2)
        if c.dpp and vw & c.reads: n = max(n, 2)
        if p.cls == "trans" and c.cls in ("valu", "permlane", "readlane") and vw & c.reads: n = max(n, 1)
        if ("sdwa" in p.mn or "op_sel" in p.mods and "pk" not in p.mn) and c.cls in VALUISH and vw & (c.reads | c.writes): n = max(n, 1)
        if sw:
            if c.cls in VALUISH and sw & c.reads: n = max(n, 4 if c.cls == "readlane" else 2)
            if c.cls == "vmem" and sw & c.reads: n = max(n, 5)
            if c.cls == "mfma" and sw & c.reads: n = max(n, 2)
    if p.cls == "mfma":
        D = p.writes
        big = {4: 8, 8: 12}[p.passes]
        if c.cls == "mfma":
            if D & c.srcAB: n = max(n, big)
            if D & c.srcC:
                if not (D == c.srcC and c.passes == p.passes): n = max(n, {4: 6, 8: 10}[p.passes])
            if D & c.writes and D != c.srcC: n = max(n, big)
        elif c.cls in VALUISH or c.cls in ("vmem", "ds"):
            if D & (c.reads | c.writes): n = max(n, big)
        if c.cls in VALUISH and p.srcC & c.writes: n = max(n, {4: 3, 8: 7}[p.passes])
    if p.cls == "salu" and ("m0", 0) in p.writes and ("m0", 0) in c.reads and c.cls in ("ds", "vmem"):
        n = max(n, 1)
    if p.cls == "vmem" and p.data and p.data & c.writes:
        n = max(n, 2 if c.cls in VALUISH or c.cls == "mfma" else 1)
    return n

class Asm:
    def __init__(self):
        self.ins = []
    def __call__(self, text):
        for ln in text.split("\n"):
            ln = ln.strip()
            if ln: self.ins.append(Ins(ln))
    def label(self, n): self.ins.append(Ins(n + ":"))
    def fix(self):
        W = 14
        changed = True
        while changed:
            changed = False
            ins = self.ins
            srcs = {}
            for i, x in enumerate(ins):
                if x.cls == "branch": srcs.setdefault(x.target, []).append(i)
            i = 0
            while i < len(ins):
                c = ins[i]
                if c.cls in ("label", "dir", "nop"):
                    i += 1; continue
                worst = 0
                stack = [(i - 1, 0)]
                seen = set()
                while stack:
                    j, dist = stack.pop()
                    while j >= 0 and dist < W:
                        if (j, dist) in seen: break
                        seen.add((j, dist))
                        p = ins[j]
                        if p.cls == "label":
                            for b in srcs.get(p.label, []):
                                stack.append((b, dist))
                            k = j - 1
                            while k >= 0 and ins[k].cls in ("label", "dir"): k -= 1
                            if k >= 0 and (ins[k].mn == "s_branch" or ins[k].cls == "end"):
                                if ins[j - 1].cls in ("label", "dir"):
                                    j -= 1; continue
                                break
                            j -= 1; continue
                        if p.cls == "dir":
                            j -= 1; continue
                        if p.cls == "end": break
                        nn = need(p, c) - dist
                        if nn > worst: worst = nn
                        dist += p.nopn
                        j -= 1
                if worst > 0:
                    ins.insert(i, Ins(f"s_nop {worst - 1}"))
                    changed = True
                    break
                i += 1
        return self
    def text(self):
        out = []
        for x in self.ins:
            out.append(x.text if x.cls in ("label", "dir") else "    " + x.text)
        return "\n".join(out) + "\n"
    def maxreg(self, kind):
        m = -1
        for x in self.ins:
            for r in x.reads | x.writes:
                if r[0] == kind: m = max(m, r[1])
        return m

def vr(b, n=1, k="v"):
    return f"{k}{b}" if n == 1 else f"{k}[{b}:{b + n - 1}]"
def sr(b, n=1): return vr(b, n, "s")
def ar(b, n=1): return vr(b, n, "a")
```

```python
import sys
from asmlib import *
import k1, importlib
NAME = "concat_heads__ssm_conv_s4__linear_attn_block__prompt"
def kernel(name, a, lds_note=""):
    a.fix()
    nv = a.maxreg("v") + 1; na = a.maxreg("a") + 1; ns = a.maxreg("s") + 1
    ao = (nv + 3) // 4 * 4
    tot = ao + na if na else nv
    body = f".globl {name}\n.p2align 8\n.type {name},@function\n{name}:\n" + a.text()
    kd = f""".amdhsa_kernel {name}
  .amdhsa_next_free_vgpr {tot}
  .amdhsa_next_free_sgpr {max(ns, 16)}
  .amdhsa_accum_offset {ao}
  .amdhsa_group_segment_fixed_size 0
  .amdhsa_kernarg_size 120
  .amdhsa_user_sgpr_count 2
  .amdhsa_user_sgpr_kernarg_segment_ptr 1
  .amdhsa_system_sgpr_workgroup_id_x 1
.end_amdhsa_kernel
"""
    return body, kd
def assemble(kernels):
    hdr = open("cdna_kernels/" + NAME + ".s.ref").read().split("; Override launch geometry")[0]
    out = hdr
    for (n, a, g, b, l) in kernels:
        out += f"; @launch kernel={n} grid=({g},1,1) block=({b},1,1) lds={l}\n"
    out += '.amdgcn_target "amdgcn-amd-amdhsa--gfx950"\n.text\n'
    kds = ""
    for (n, a, g, b, l) in kernels:
        body, kd = kernel(n, a)
        out += body
        kds += ".p2align 6\n" + kd
    out += '.section .rodata,"a"\n' + kds
    return out
```

```python
import struct
from asmlib import *
from stamp import Stamper

WS_PQ  = 0x000000
WS_KVA = 0x200000
WS_WOF = 0x220000
WS_KF  = 0x300000
WS_UT  = 0x500000
WS_SIZE = 0x700000

LOG2E = 0x3fb8aa3b
INV2PI = 0x3e22f983
def f2u(x): return hex(struct.unpack("<I", struct.pack("<f", x))[0])
ROWB = 272
WREG = 53 * ROWB
TTAB = 59392
TSTR = 1536

def cmul(a, d, x, y):
    assert d != x and d != y and d % 2 == 0 and x % 2 == 0 and y % 2 == 0
    a(f"v_pk_mul_f32 {vr(d,2)}, {vr(x,2)}, {vr(y,2)} op_sel:[0,0] op_sel_hi:[0,1]")
    a(f"v_pk_fma_f32 {vr(d,2)}, {vr(x,2)}, {vr(y,2)}, {vr(d,2)} op_sel:[1,1,0] op_sel_hi:[1,0,1] neg_lo:[1,0,0]")

def srd(a, S, lo, hi, n):
    a(f"s_mov_b32 s{S}, s{lo}\ns_mov_b32 s{S+1}, s{hi}\ns_mov_b32 s{S+2}, {n}\ns_mov_b32 s{S+3}, 0x20000")

def gen_k1():
    a = Asm()
    SX, SW, SWS = 48, 52, 56
    sC1, sC2 = 60, 62
    sWV, sRB, sP, sTY, sKC, sT0, sT1, sT2, sT3, sSL, sIT, sXO, sWO, sCH, sWM0, sXM0, sNCH, sKB = range(64, 82)
    st = Stamper(a, 0, 44, sWV)
    a("s_cmp_ge_u32 s2, 256\ns_cbranch_scc1 L1_end")
    st.start()
    a(f"""
    s_load_dwordx16 s[16:31], s[0:1], 0
    s_load_dwordx8 s[32:39], s[0:1], 64
    s_load_dwordx4 s[40:43], s[0:1], 96
    s_load_dwordx2 s[44:45], s[0:1], 112
    v_lshrrev_b32 v1, 6, v0
    v_and_b32 v2, 63, v0
    v_readfirstlane_b32 s{sWV}, v1
    s_and_b32 s{sT0}, s2, 7
    s_lshr_b32 s{sT1}, s2, 3
    s_lshr_b32 s{sTY}, s2, 7
    s_lshr_b32 s{sRB}, s{sT0}, 1
    s_lshl_b32 s{sRB}, s{sRB}, 2
    s_bfe_u32 s{sT2}, s{sT1}, 0x20002
    s_add_u32 s{sRB}, s{sRB}, s{sT2}
    s_and_b32 s{sP}, s{sT0}, 1
    s_lshl_b32 s{sP}, s{sP}, 2
    s_and_b32 s{sT3}, s{sT1}, 3
    s_add_u32 s{sP}, s{sP}, s{sT3}
    s_lshl_b32 s{sKC}, s{sT3}, 1
    s_add_u32 s{sKC}, s{sKC}, s{sTY}
    s_mul_i32 s{sT2}, s{sT2}, 3
    s_add_u32 s{sKC}, s{sKC}, s{sT2}
    s_cmp_ge_u32 s{sKC}, 14
    s_cselect_b32 s{sT2}, 14, 0
    s_sub_u32 s{sKC}, s{sKC}, s{sT2}
    s_cmp_ge_u32 s{sKC}, 7
    s_cselect_b32 s{sT2}, 7, 0
    s_sub_u32 s{sKC}, s{sKC}, s{sT2}
    s_cmp_lt_u32 s2, 192
    s_cselect_b32 s{sNCH}, 2, 1
    s_mov_b32 s{sC1}, {LOG2E}
    s_mov_b32 s{sC1+1}, {LOG2E}
    s_mov_b32 s{sC2}, {f2u(1e-6)}
    s_mov_b32 s{sC2+1}, {f2u(1e-6)}
    """)
    P0 = 4
    vXD, vWD = 20, 24
    vXA, vWA = 28, 32
    vXR, vWR = 33, 37
    vSJA = 38
    SJ = 40
    SJ2 = 208
    vT = 68
    a(f"v_mov_b32 v{vSJA}, 0")
    a(f"""
    v_lshlrev_b32 v3, 1, v0
    s_lshl_b32 s{sT0}, s2, 9
    v_add_u32 v3, s{sT0}, v3
    s_lshl_b32 s{sT0}, s2, 1
    v_mov_b32 v{vT}, s{sT0}
    v_lshrrev_b32 v{vT+1}, 3, v2
    v_and_b32 v{vT+2}, 7, v2
    v_lshrrev_b32 v{vT+3}, 4, v2
    s_waitcnt lgkmcnt(0)
    """)
    st(0)
    srd(a, SWS, 44, 45, WS_SIZE)
    a(f"""
    s_cmp_eq_u32 s{sTY}, 0
    s_cbranch_scc1 L1_nozero
    s_cmp_lg_u32 s{sRB}, 0
    s_cbranch_scc1 L1_nozero
    v_mov_b32 v{SJ}, 0
    v_mov_b32 v{SJ+1}, 0
    v_mov_b32 v{SJ+2}, 0
    v_mov_b32 v{SJ+3}, 0
    v_lshlrev_b32 v{vT+4}, 4, v0
    s_lshl_b32 s{sT0}, s{sP}, 13
    s_add_u32 s{sT0}, s{sT0}, {WS_KVA}
    s_add_u32 s{sT1}, s{sT0}, 4096
    buffer_store_dwordx4 {vr(SJ,4)}, v{vT+4}, s[{SWS}:{SWS+3}], s{sT0} offen sc0 sc1
    buffer_store_dwordx4 {vr(SJ,4)}, v{vT+4}, s[{SWS}:{SWS+3}], s{sT1} offen sc0 sc1
    L1_nozero:
    """)
    for i in range(6):
        a(f"global_load_short_d16_hi v{P0+i}, v3, s[{18+2*i}:{19+2*i}]")
    a(f"global_load_short_d16_hi v{P0+6}, v{vT}, s[30:31]")
    a(f"global_load_short_d16_hi v{P0+7}, v{vT}, s[32:33]")
    a(f"""
    s_cmp_eq_u32 s{sNCH}, 1
    s_cbranch_scc1 L1_nop1
    v_add_u32 v3, {256*512}, v3
    """)
    for i in range(6):
        a(f"global_load_short_d16_hi v{P0+8+i}, v3, s[{18+2*i}:{19+2*i}]")
    a(f"global_load_short_d16_hi v{P0+14}, v{vT}, s[30:31] offset:512")
    a(f"global_load_short_d16_hi v{P0+15}, v{vT}, s[32:33] offset:512")
    a("L1_nop1:")
    a(f"""
    s_cmp_ge_u32 s2, 128
    s_cbranch_scc1 L1_noside
    s_cmp_ge_u32 s2, 112
    s_cbranch_scc1 L1_wopack
    s_mul_i32 s{sT0}, s2, 9363
    s_lshr_b32 s{sT0}, s{sT0}, 16
    s_mul_i32 s{sT1}, s{sT0}, 7
    s_sub_u32 s{sT1}, s2, s{sT1}
    s_lshl_b32 s{sT2}, s{sT0}, 2
    s_add_u32 s{sT2}, s{sT2}, s{sWV}
    s_mul_i32 s{sT3}, s{sT2}, {32*896}
    s_lshl_b32 s{sSL}, s{sT1}, 7
    s_add_u32 s{sT3}, s{sT3}, s{sSL}
    v_lshlrev_b32 v{vT+4}, 1, v2
    v_add_u32 v{vT+4}, s{sT3}, v{vT+4}
    """)
    for i in range(32):
        if i and i % 4 == 0:
            a(f"v_add_u32 v{vT+4}, {4*896}, v{vT+4}")
        a(f"global_load_{'short_d16_hi' if i&1 else 'ushort'} v{(SJ2 if i&1 else SJ)+i//2}, v{vT+4}, s[16:17] offset:{(i%4)*896}")
    a(f"""
    s_lshl_b32 s{sT1}, s{sT1}, 18
    s_lshl_b32 s{sT2}, s{sT2}, 6
    s_add_u32 s{sT1}, s{sT1}, s{sT2}
    s_add_u32 s{sT1}, s{sT1}, {WS_UT}
    v_lshlrev_b32 v{vSJA}, 12, v2
    v_add_u32 v{vSJA}, s{sT1}, v{vSJA}
    s_branch L1_noside
    L1_wopack:
    """)
    srd(a, SX, 38, 39, 448 * 896)
    a(f"""
    s_sub_u32 s{sT0}, s2, 112
    s_and_b32 s{sT1}, s{sWV}, 1
    s_lshr_b32 s{sT2}, s{sWV}, 1
    v_bfe_u32 v{vT+4}, v2, 2, 1
    v_lshlrev_b32 v{vT+4}, 4, v{vT+4}
    v_bfe_u32 v{vT+5}, v2, 3, 2
    v_lshl_add_u32 v{vT+4}, v{vT+5}, 2, v{vT+4}
    v_and_b32 v{vT+5}, 3, v2
    v_add_u32 v{vT+4}, v{vT+4}, v{vT+5}
    v_lshlrev_b32 v{vT+4}, 1, v{vT+4}
    v_lshrrev_b32 v{vT+5}, 5, v2
    v_mul_u32_u24 v{vT+5}, {4*896}, v{vT+5}
    v_add_u32 v{vT+4}, v{vT+4}, v{vT+5}
    s_mul_i32 s{sT3}, s{sT0}, {28*896}
    s_mul_i32 s{sSL}, s{sT1}, {16*896}
    s_add_u32 s{sT3}, s{sT3}, s{sSL}
    s_lshl_b32 s{sSL}, s{sT2}, 6
    s_add_u32 s{sT3}, s{sT3}, s{sSL}
    v_add_u32 v{vT+4}, s{sT3}, v{vT+4}
    v_add_u32 v{vT+6}, {8*896}, v{vT+4}
    s_lshl_b32 s{sSL}, s{sT1}, 5
    v_and_b32 v{vT+5}, s{sSL}, v2
    v_cmp_ne_u32 vcc, 0, v{vT+5}
    v_mov_b32 v{vT+5}, 0x7fff0000
    v_cndmask_b32 v{vT+6}, v{vT+6}, v{vT+5}, vcc
    s_mov_b32 s{sT3}, 0
    """)
    for cb in range(7):
        for j in range(8):
            a(f"buffer_load_{'short_d16_hi' if j&1 else 'ushort'} v{(SJ2 if j&1 else SJ)+cb*4+j//2}, v{vT+4 if j<4 else vT+6}, s[{SX}:{SX+3}], s{sT3} offen offset:{(j&3)*896}")
        if cb < 6: a(f"s_add_u32 s{sT3}, s{sT3}, 128")
    a(f"""
    s_lshl_b32 s{sT0}, s{sT0}, 2
    s_lshl_b32 s{sT1}, s{sT1}, 1
    s_add_u32 s{sT0}, s{sT0}, s{sT1}
    s_add_u32 s{sT0}, s{sT0}, s{sT2}
    s_lshl_b32 s{sT0}, s{sT0}, 10
    s_add_u32 s{sT0}, s{sT0}, {WS_WOF}
    v_lshlrev_b32 v{vSJA}, 4, v2
    v_add_u32 v{vSJA}, s{sT0}, v{vSJA}
    L1_noside:
    """)
    srd(a, SX, 34, 35, 2048 * 896)
    srd(a, SW, 36, 37, 448 * 2688)
    a(f"""
    v_xor_b32 v{vT+6}, v{vT+2}, v{vT+3}
    v_lshlrev_b32 v{vT+6}, 4, v{vT+6}
    v_mul_u32_u24 v{vT+7}, 896, v{vT+1}
    s_lshl_b32 s{sT0}, s{sRB}, 2
    s_add_u32 s{sT0}, s{sT0}, s{sWV}
    s_mul_i32 s{sT0}, s{sT0}, {32*896}
    v_add3_u32 v{vXD}, v{vT+6}, v{vT+7}, s{sT0}
    v_xor_b32 v{vT+6}, 64, v{vT+6}
    v_add3_u32 v{vXD+1}, v{vT+6}, v{vT+7}, s{sT0}
    v_add_u32 v{vXD+1}, {7168-1024}, v{vXD+1}
    v_add_u32 v{vXD+2}, {2*(7168-1024)}, v{vXD}
    v_add_u32 v{vXD+3}, {2*(7168-1024)}, v{vXD+1}
    v_and_b32 v{vT+6}, 1, v{vT+3}
    v_lshlrev_b32 v{vT+6}, 2, v{vT+6}
    v_xor_b32 v{vT+6}, v{vT+6}, v{vT+2}
    v_min_u32 v{vT+6}, 6, v{vT+6}
    v_lshlrev_b32 v{vT+6}, 4, v{vT+6}
    v_mul_u32_u24 v{vT+7}, 2688, v{vT+1}
    s_lshr_b32 s{sT0}, s{sWV}, 1
    s_add_u32 s{sT0}, s{sT0}, 1
    s_mul_i32 s{sT0}, s{sT0}, 896
    s_and_b32 s{sT1}, s{sWV}, 1
    s_mul_i32 s{sT1}, s{sT1}, {32*2688}
    s_add_u32 s{sT0}, s{sT0}, s{sT1}
    s_mul_i32 s{sT1}, s{sWV}, {16*2688}
    s_lshl_b32 s{sXM0}, s{sWV}, 12
    s_lshl_b32 s{sT2}, s{sWV}, 11
    s_cmp_eq_u32 s{sTY}, 0
    s_cselect_b32 s{sT0}, s{sT1}, s{sT0}
    s_cselect_b32 s{sWM0}, s{sT2}, s{sXM0}
    s_add_u32 s{sWM0}, s{sWM0}, 16384
    s_mul_i32 s{sT1}, s{sP}, 112
    s_add_u32 s{sT0}, s{sT0}, s{sT1}
    v_add3_u32 v{vWD}, v{vT+6}, v{vT+7}, s{sT0}
    v_add_u32 v{vWD+1}, {8*2688-1024}, v{vWD}
    v_add_u32 v{vWD+2}, {2*(8*2688-1024)}, v{vWD}
    v_add_u32 v{vWD+3}, {3*(8*2688-1024)}, v{vWD}
    """)
    def dma_chunk(slot, tag, kv=None):
        a(f"""
        s_lshl_b32 s{sXO}, s{sKC}, 7
        s_mul_i32 s{sWO}, s{sKC}, {64*2688}
        s_add_u32 m0, s{sXM0}, {slot}
        """)
        for j in range(4):
            a(f"buffer_load_dwordx4 v{vXD+j}, s[{SX}:{SX+3}], s{sXO} offen offset:{1024*j} lds")
        a(f"s_add_u32 m0, s{sWM0}, {slot}")
        for j in range(2):
            a(f"buffer_load_dwordx4 v{vWD+j}, s[{SW}:{SW+3}], s{sWO} offen offset:{1024*j} lds")
        if kv is None:
            a(f"s_cmp_eq_u32 s{sTY}, 0")
            a(f"s_cbranch_scc1 L1_dq{tag}")
        if kv is not False:
            for j in range(2, 4):
                a(f"buffer_load_dwordx4 v{vWD+j}, s[{SW}:{SW+3}], s{sWO} offen offset:{1024*j} lds")
        if kv is None: a(f"L1_dq{tag}:")
        a(f"""
        s_add_u32 s{sKC}, s{sKC}, 1
        s_cmp_eq_u32 s{sKC}, 7
        s_cselect_b32 s{sKC}, 0, s{sKC}
        """)
    a(f"s_mov_b32 s{sSL}, 65536")
    a("L1_pre:")
    dma_chunk(f"s{sSL}", "a")
    a(f"""
    s_add_u32 s{sSL}, s{sSL}, 32768
    s_cmp_lt_u32 s{sSL}, 163840
    s_cbranch_scc1 L1_pre
    """)
    a(f"""
    v_and_b32 v{vT+6}, 31, v2
    v_lshrrev_b32 v{vT+7}, 5, v2
    v_bfe_u32 v{vT+8}, v2, 1, 3
    v_xor_b32 v{vT+8}, v{vT+8}, v{vT+7}
    v_lshlrev_b32 v{vT+8}, 4, v{vT+8}
    v_lshl_add_u32 v{vT+8}, v{vT+6}, 7, v{vT+8}
    s_lshr_b32 s{sT0}, s{sWV}, 1
    s_lshl_b32 s{sT0}, s{sT0}, 13
    v_add_u32 v{vXA}, s{sT0}, v{vT+8}
    v_xor_b32 v{vXA+1}, 32, v{vXA}
    v_xor_b32 v{vXA+2}, 64, v{vXA}
    v_xor_b32 v{vXA+3}, 96, v{vXA}
    v_bfe_u32 v{vT+6}, v2, 2, 2
    v_lshl_add_u32 v{vT+6}, v{vT+7}, 3, v{vT+6}
    v_lshlrev_b32 v{vT+6}, 7, v{vT+6}
    v_and_b32 v{vT+8}, 3, v2
    v_lshlrev_b32 v{vT+8}, 3, v{vT+8}
    v_bfe_u32 v{vT+9}, v2, 4, 1
    v_lshl_add_u32 v{vT+8}, v{vT+9}, 5, v{vT+8}
    s_and_b32 s{sT0}, s{sWV}, 1
    s_mul_i32 s{sT0}, s{sT0}, 56
    v_add_u32 v{vT+8}, s{sT0}, v{vT+8}
    v_bfe_u32 v{vT+9}, v2, 3, 1
    v_lshlrev_b32 v{vT+9}, 6, v{vT+9}
    v_xor_b32 v{vT+8}, v{vT+8}, v{vT+9}
    v_add_u32 v{vT+6}, v{vT+6}, v{vT+8}
    v_add_u32 v{vWA}, 16384, v{vT+6}
    """)
    KA, KB, DS0 = 80, 81, 82
    ACC = 104
    FR = 136
    E1, E8, E256, E2, E4, Wc, X0, X1, G0, G1, Y0, Y1 = [160 + 2 * i for i in range(12)]
    t0, t1, t2, t3, pk = 184, 185, 186, 187, 188
    EA = 192
    P = P0
    a(f"""
    s_mul_i32 s{sKB}, s{sWV}, {WREG}
    v_and_b32 v{t0}, 31, v2
    v_lshrrev_b32 v{t1}, 5, v2
    v_lshlrev_b32 v{t1}, 4, v{t1}
    v_add_u32 v{t1}, s{sKB}, v{t1}
    v_min_u32 v{t2}, 20, v{t0}
    v_mul_u32_u24 v{t2}, {ROWB}, v{t2}
    v_add_u32 v{KA}, v{t2}, v{t1}
    v_mul_u32_u24 v{t2}, {ROWB}, v{t0}
    v_add_u32 v{KB}, v{t2}, v{t1}
    v_mov_b32 v{DS0}, 0
    s_mov_b32 s{sCH}, 0
    s_mov_b32 m0, s{sKB}
    s_cmp_eq_u32 s{sTY}, 0
    s_cbranch_scc1 L1_wq
    s_waitcnt vmcnt(24)
    L1_wq:
    s_waitcnt vmcnt(50)
    """)
    st(1)
    a(f"""
    L1_kg:
    v_mul_f32 v{t0}, {LOG2E}, v{P+6}
    v_exp_f32 v{t0}, v{t0}
    v_cvt_pk_bf16_f32 v{t0}, v{t0}, v{t0}
    v_lshlrev_b32 v{t0}, 16, v{t0}
    v_mul_f32 v{t1}, v{t0}, v{P}
    v_mul_f32 v{t2}, v{t0}, v{P+1}
    v_mul_f32 v{t1}, {LOG2E}, v{t1}
    v_mul_f32 v{t2}, {INV2PI}, v{t2}
    v_mul_f32 v{P+2}, v{t0}, v{P+2}
    v_mul_f32 v{P+3}, v{t0}, v{P+3}
    """)
    cmul(a, Wc, P + 4, P + 2)
    for (E, m, cj) in ((E8, 8.0, True), (E1, 1.0, False), (E256, 256.0, False)):
        a(f"""
        v_mul_f32 v{t0}, {f2u(m)}, v{t1}
        v_mul_f32 v{t3}, {f2u(m)}, v{t2}
        v_exp_f32 v{t0}, v{t0}
        v_fract_f32 v{t3}, v{t3}
        v_cos_f32 v{E}, v{t3}
        v_sin_f32 v{E+1}, v{t3}
        v_mul_f32 v{E}, v{E}, v{t0}
        v_mul_f32_e64 v{E+1}, {'-' if cj else ''}v{E+1}, v{t0}
        """)
    cnt = [0]
    def put(row, src):
        r = pk + (cnt[0] & 3); cnt[0] += 1
        a(f"v_cvt_pk_bf16_f32 v{r}, v{src}, v{src+1}")
        a(f"ds_write_addtid_b32 v{r} offset:{row * ROWB}")
    a(f"v_mov_b32 v{t0}, 0x3f80")
    a(f"ds_write_addtid_b32 v{t0} offset:{21*ROWB}")
    put(22, E8); put(0, Wc)
    cmul(a, E2, E1, E1); cmul(a, E4, E2, E2)
    fine, cur = [], E8
    for f in range(2, 32):
        nxt = X0 if cur != X0 else X1
        fine.append((nxt, cur, E8, 21 + f)); cur = nxt
    coarse, cur = [], Wc
    for c in range(1, 8):
        nxt = Y0 if cur != Y0 else Y1
        coarse.append((nxt, cur, E1, c)); cur = nxt
    coarse.append((G0, Wc, E256, 8)); cur = G0
    for c in range(1, 4):
        nxt = Y0 if cur != Y0 else Y1
        coarse.append((nxt, cur, E2, 8 + c)); cur = nxt
    coarse += [(G1, G0, E256, 12), (Y0, G1, E4, 13), (G0, G1, E256, 14), (Y0, G0, E4, 15)]
    g = G0
    for i in range(5):
        n = G1 if g == G0 else G0
        coarse.append((n, g, E256, 16 + i)); g = n
    seq = []
    for i in range(max(len(fine), len(coarse))):
        if i < len(fine): seq.append(fine[i])
        if i < len(coarse): seq.append(coarse[i])
    for (d, x, y, row) in seq:
        cmul(a, d, x, y); put(row, d)
    a("s_waitcnt lgkmcnt(0)")
    for jj in range(2):
        a(f"ds_read_b128 {vr(FR+8*jj,4)}, v{KA} offset:{32*jj}")
        a(f"ds_read_b128 {vr(FR+8*jj+4,4)}, v{KB} offset:{21*ROWB+32*jj}")
    for j in range(8):
        fb = FR + 8 * (j & 1)
        a(f"s_waitcnt lgkmcnt({2 if j < 7 else 0})")
        a(f"v_mfma_f32_32x32x16_bf16 {vr(ACC+16,16)}, {vr(fb,4)}, {vr(fb+4,4)}, {'0' if j == 0 else vr(ACC+16,16)}")
        if j + 2 < 8:
            a(f"ds_read_b128 {vr(fb,4)}, v{KA} offset:{32*(j+2)}")
            a(f"ds_read_b128 {vr(fb+4,4)}, v{KB} offset:{21*ROWB+32*(j+2)}")
    a(f"""
    s_add_u32 s{sCH}, s{sCH}, 1
    s_cmp_ge_u32 s{sCH}, s{sNCH}
    s_cbranch_scc1 L1_kgdone
    v_mov_b32 v{DS0}, v{P+7}
    """)
    for i in range(8): a(f"v_mov_b32 v{P+i}, v{P+8+i}")
    for i in range(12): a(f"v_mov_b32 v{ACC+i}, v{ACC+16+i}")
    a("s_branch L1_kg")
    a("L1_kgdone:")
    st(2)
    AD = FR
    a(f"""
    v_and_b32 v{t2}, 31, v2
    s_cmp_eq_u32 s{sWV}, 1
    s_cselect_b32 s{sT1}, 4, 8
    s_cselect_b32 s{sT2}, 2, 8
    s_cselect_b32 s{sT3}, 256, 0
    s_cselect_b32 s{sXO}, 384, 4
    s_cmp_eq_u32 s{sWV}, 2
    s_cselect_b32 s{sT1}, 1, s{sT1}
    s_cselect_b32 s{sT2}, 1, s{sT2}
    s_cselect_b32 s{sT3}, 512, s{sT3}
    s_cselect_b32 s{sXO}, 640, s{sXO}
    s_cselect_b32 s{sWO}, 32, 1
    v_mul_u32_u24 v{AD}, s{sT1}, v{t2}
    v_add_u32 v{AD}, s{sT3}, v{AD}
    v_mul_u32_u24 v{AD+1}, s{sT2}, v{t2}
    v_add_u32 v{AD+1}, s{sXO}, v{AD+1}
    v_cmp_gt_u32 vcc, 32, v2
    s_lshl_b32 s{sT1}, s{sWO}, 1
    s_cmp_eq_u32 s{sWV}, 0
    s_cselect_b32 s{sT2}, 2, 64
    v_mov_b32 v{t2}, s{sT2}
    v_mov_b32 v{t3}, s{sT1}
    v_cndmask_b32 v{AD}, v{AD+1}, v{AD}, vcc
    v_cndmask_b32 v{t3}, v{t2}, v{t3}, vcc
    v_add_u32 v{AD+1}, s{sWO}, v{AD}
    v_add_u32 v{AD+2}, v{AD}, v{t3}
    v_add_u32 v{AD+3}, s{sWO}, v{AD+2}
    """)
    for i in range(4): a(f"v_lshlrev_b32 v{AD+i}, 1, v{AD+i}")
    a(f"""
    v_lshlrev_b32 v{t0}, 4, v2
    v_add_u32 v{t1}, s{sKB}, v{t0}
    """)
    for q in range(3):
        a(f"ds_write_b128 v{t1}, {vr(ACC+16+4*q,4)} offset:{q*1024}")
    for q in range(3):
        a(f"ds_write_b128 v{t1}, {vr(ACC+4*q,4)} offset:{(3+q)*1024}")
    a(f"""
    v_lshlrev_b32 v{t2}, 3, v0
    v_sub_u32 v{t2}, 2047, v{t2}
    v_cmp_gt_u32 vcc, 128, v{t2}
    """)
    for e in range(8):
        a(f"v_subrev_u32 v{EA+e}, {e}, v{t2}")
        a(f"v_cvt_f32_u32 v{FR+8+e}, v{EA+e}")
    for e in range(0, 8, 2):
        a(f"v_cvt_pk_bf16_f32 v{FR+8+e}, v{FR+8+e}, v{FR+9+e}")
        a(f"v_lshrrev_b32 v{FR+9+e}, 16, v{FR+8+e}")
        a(f"v_and_b32 v{FR+8+e}, 0xffff, v{FR+8+e}")
    for e in range(8):
        a(f"v_subrev_u32 v{FR+8+e}, 17024, v{FR+8+e}")
        a(f"v_cndmask_b32 v{EA+e}, v{FR+8+e}, v{EA+e}, vcc")
        a(f"v_lshlrev_b32 v{EA+e}, 1, v{EA+e}")
    a(f"""
    s_waitcnt lgkmcnt(0)
    s_barrier
    s_cmp_lg_u32 s{sWV}, 3
    s_cbranch_scc1 L1_red
    s_cmp_eq_u32 s{sTY}, 0
    s_cbranch_scc1 L1_nored
    s_cmp_lg_u32 s{sRB}, 0
    s_cbranch_scc1 L1_nored
    s_lshl_b32 s{sT1}, s{sP}, 2
    v_mov_b32 v{t2}, s{sT1}
    v_mov_b32 v{t3}, 1
    s_mov_b64 exec, 1
    global_store_dword v{t2}, v{t3}, s[42:43] sc0 sc1
    s_mov_b64 exec, -1
    s_branch L1_nored
    L1_red:
    s_lshl_b32 s{sT1}, s{sWV}, 10
    v_add_u32 v{t1}, s{sT1}, v{t0}
    """)
    RD = ACC
    for c in range(2):
        for w in range(4):
            a(f"ds_read_b128 {vr(RD+16*c+4*w,4)}, v{t1} offset:{w*WREG + c*3072}")
    a(f"""
    v_cmp_eq_u32 vcc, 0, v0
    v_cndmask_b32 v{P+7}, 0, v{P+7}, vcc
    v_cndmask_b32 v{DS0}, 0, v{DS0}, vcc
    """)
    for c in range(2):
        a("s_waitcnt lgkmcnt(4)")
        b = RD + 16 * c
        a(f"""
        v_add_f32 v{b}, v{P+7 if c == 0 else DS0}, v{b}
        v_pk_add_f32 {vr(b,2)}, {vr(b,2)}, {vr(b+4,2)}
        v_pk_add_f32 {vr(b+2,2)}, {vr(b+2,2)}, {vr(b+6,2)}
        v_pk_add_f32 {vr(b+8,2)}, {vr(b+8,2)}, {vr(b+12,2)}
        v_pk_add_f32 {vr(b+10,2)}, {vr(b+10,2)}, {vr(b+14,2)}
        v_pk_add_f32 {vr(b,2)}, {vr(b,2)}, {vr(b+8,2)}
        v_pk_add_f32 {vr(b+2,2)}, {vr(b+2,2)}, {vr(b+10,2)}
        v_cvt_pk_bf16_f32 v{b}, v{b}, v{b+1}
        v_cvt_pk_bf16_f32 v{b+1}, v{b+2}, v{b+3}
        ds_write_b16 v{AD}, v{b} offset:{TTAB + c*TSTR}
        ds_write_b16_d16_hi v{AD+1}, v{b} offset:{TTAB + c*TSTR}
        ds_write_b16 v{AD+2}, v{b+1} offset:{TTAB + c*TSTR}
        ds_write_b16_d16_hi v{AD+3}, v{b+1} offset:{TTAB + c*TSTR}
        """)
    a(f"""
    L1_nored:
    s_waitcnt lgkmcnt(0)
    s_barrier
    """)
    for c in range(2):
        for e in range(8):
            a(f"ds_read_u16{'_d16_hi' if e&1 else ''} v{RD+(8 if e&1 else 0)+4*c+e//2}, v{EA+e} offset:{TTAB + c*TSTR}")
    a(f"""
    v_lshlrev_b32 v{t0}, 4, v0
    s_lshl_b32 s{sT1}, s2, 12
    s_add_u32 s{sT1}, s{sT1}, {WS_KF}
    s_add_u32 s{sT2}, s{sT1}, {256*4096}
    s_cmp_eq_u32 s{sNCH}, 1
    s_cselect_b32 s{sT2}, s{sT1}, s{sT2}
    s_waitcnt lgkmcnt(0)
    s_barrier
    """)
    for i in range(8): a(f"v_or_b32 v{RD+i}, v{RD+i}, v{RD+8+i}")
    a(f"""
    buffer_store_dwordx4 {vr(RD,4)}, v{t0}, s[{SWS}:{SWS+3}], s{sT2} offen
    s_cbranch_scc1 L1_one
    buffer_store_dwordx4 {vr(RD+4,4)}, v{t0}, s[{SWS}:{SWS+3}], s{sT1} offen
    L1_one:
    s_mov_b32 s{sSL}, 0
    L1_pre2:
    """)
    dma_chunk(f"s{sSL}", "b")
    a(f"""
    s_add_u32 s{sSL}, s{sSL}, 32768
    s_cmp_lt_u32 s{sSL}, 65536
    s_cbranch_scc1 L1_pre2
    s_cmp_ge_u32 s2, 128
    s_cbranch_scc1 L1_kv
    s_waitcnt vmcnt(30)
    s_cmp_ge_u32 s2, 112
    s_cbranch_scc1 L1_wost
    """)
    for i in range(4):
        for k in range(4): a(f"v_or_b32 v{SJ+4*i+k}, v{SJ+4*i+k}, v{SJ2+4*i+k}")
        a(f"buffer_store_dwordx4 {vr(SJ+4*i,4)}, v{vSJA}, s[{SWS}:{SWS+3}], 0 offen offset:{16*i}")
    a(f"""
    s_branch L1_q
    L1_wost:
    s_mov_b32 s{sT1}, 0
    """)
    for cb in range(7):
        for k in range(4): a(f"v_or_b32 v{SJ+4*cb+k}, v{SJ+4*cb+k}, v{SJ2+4*cb+k}")
        a(f"buffer_store_dwordx4 {vr(SJ+4*cb,4)}, v{vSJA}, s[{SWS}:{SWS+3}], s{sT1} offen")
        if cb < 6: a(f"s_add_u32 s{sT1}, s{sT1}, 65536")
    GA = 104
    XF, WF = 168, 184
    def gemm(kv):
        tag = "kv" if kv else "q"
        per = 8 if kv else 6
        ex = 0 if kv else 4
        nt = 2 if kv else 1
        a(f"L1_{tag}:")
        st(3)
        for i in range(32 * nt): a(f"v_mov_b32 v{GA+i}, 0")
        a(f"""
        s_mov_b32 s{sIT}, 0
        s_mov_b32 s{sSL}, 65536
        L1_{tag}_loop:
        s_cmp_lt_u32 s{sIT}, 6
        s_cbranch_scc1 L1_{tag}_wa
        s_waitcnt vmcnt(0)
        L1_{tag}_wa:
        s_cmp_lt_u32 s{sIT}, 5
        s_cbranch_scc1 L1_{tag}_wb
        s_waitcnt vmcnt({per})
        L1_{tag}_wb:
        s_cmp_lt_u32 s{sIT}, 4
        s_cbranch_scc1 L1_{tag}_wc
        s_waitcnt vmcnt({2*per+ex})
        L1_{tag}_wc:
        s_cmp_lt_u32 s{sIT}, 1
        s_cbranch_scc1 L1_{tag}_wd
        s_waitcnt vmcnt({3*per+ex})
        L1_{tag}_wd:
        s_waitcnt vmcnt({4*per+1+ex})
        s_barrier
        """)
        for i in range(4): a(f"v_add_u32 v{vXR+i}, s{sSL}, v{vXA+i}")
        a(f"v_add_u32 v{vWR}, s{sSL}, v{vWA}")
        def loads(ks):
            b = ks & 1
            for t in range(2):
                a(f"ds_read_b128 {vr(XF+8*b+4*t,4)}, v{vXR+ks} offset:{4096*t}")
            for n in range(nt):
                for i in range(2):
                    a(f"ds_read_b64_tr_b16 {vr(WF+8*b+4*n+2*i,2)}, v{vWR} offset:{ks*2048 + i*512 + n*8192}")
        nl = 2 + 2 * nt
        loads(0); loads(1)
        a(f"""
        s_sub_u32 s{sT1}, s{sIT}, 1
        s_cmp_ge_u32 s{sT1}, 2
        s_cbranch_scc1 L1_{tag}_nodma
        s_sub_u32 s{sT1}, s{sSL}, 32768
        """)
        dma_chunk(f"s{sT1}", "c" + tag, kv)
        a(f"L1_{tag}_nodma:")
        for ks in range(4):
            b = ks & 1
            a(f"s_waitcnt lgkmcnt({nl if ks < 3 else 0})")
            for t in range(2):
                for n in range(nt):
                    acc = vr(GA + 16 * (n * 2 + t), 16)
                    xf, wf = vr(XF + 8 * b + 4 * t, 4), vr(WF + 8 * b + 4 * n, 4)
                    if kv: a(f"v_mfma_f32_32x32x16_bf16 {acc}, {xf}, {wf}, {acc}")
                    else:  a(f"v_mfma_f32_32x32x16_bf16 {acc}, {wf}, {xf}, {acc}")
            if ks + 2 < 4: loads(ks + 2)
        a(f"""
        s_add_u32 s{sSL}, s{sSL}, 32768
        s_cmp_eq_u32 s{sSL}, 163840
        s_cselect_b32 s{sSL}, 0, s{sSL}
        s_add_u32 s{sIT}, s{sIT}, 1
        s_cmp_lt_u32 s{sIT}, 7
        s_cbranch_scc1 L1_{tag}_loop
        """)
    def phi(base, n, dst):
        T = 200
        for i in range(0, n, 2):
            t = T + 2 * ((i // 2) & 3)
            x = base + i
            a(f"""
            v_pk_mul_f32 {vr(t,2)}, {vr(x,2)}, s[{sC1}:{sC1+1}]
            v_max_f32 v{x}, 0, v{x}
            v_min_f32 v{t}, 0, v{t}
            v_min_f32 v{t+1}, 0, v{t+1}
            v_exp_f32 v{t}, v{t}
            v_exp_f32 v{t+1}, v{t+1}
            v_max_f32 v{x+1}, 0, v{x+1}
            v_pk_add_f32 {vr(x,2)}, {vr(x,2)}, s[{sC2}:{sC2+1}]
            v_pk_add_f32 {vr(x,2)}, {vr(x,2)}, {vr(t,2)}
            v_cvt_pk_bf16_f32 v{dst + i//2}, v{x}, v{x+1}
            """)
    gemm(False)
    st(4)
    PK = 168
    a(f"""
    s_lshl_b32 s{sT0}, s{sRB}, 2
    s_and_b32 s{sT1}, s{sWV}, 2
    s_add_u32 s{sT0}, s{sT0}, s{sT1}
    s_lshl_b32 s{sT0}, s{sT0}, 4
    s_lshl_b32 s{sT1}, s{sP}, 1
    s_add_u32 s{sT0}, s{sT0}, s{sT1}
    s_and_b32 s{sT1}, s{sWV}, 1
    s_add_u32 s{sT0}, s{sT0}, s{sT1}
    s_lshl_b32 s{sT0}, s{sT0}, 11
    s_add_u32 s{sT1}, s{sT0}, 32768
    v_lshlrev_b32 v{vT}, 4, v2
    """)
    for t in range(2):
        phi(GA + 16 * t, 16, PK + 8 * t)
        for ks in range(2):
            a(f"buffer_store_dwordx4 {vr(PK+8*t+4*ks,4)}, v{vT}, s[{SWS}:{SWS+3}], s{sT0 if t == 0 else sT1} offen offset:{WS_PQ + 1024*ks}")
    st(5)
    st.end()
    a("s_endpgm")
    gemm(True)
    st(4)
    PV, KVD = 184, 40
    a(f"""
    s_lshl_b32 s{sT1}, s{sP}, 2
    v_mov_b32 v{vT+1}, s{sT1}
    global_load_dword v{vT+2}, v{vT+1}, s[42:43] sc0 sc1
    """)
    for t in range(2):
        for i in range(8):
            a(f"v_cvt_pk_bf16_f32 v{PV+8*t+i}, v{GA+32+16*t+2*i}, v{GA+32+16*t+2*i+1}")
    a(f"s_mov_b32 exec_lo, {1<<28}\ns_mov_b32 exec_hi, {1<<28}")
    for i in range(16): a(f"v_mov_b32 v{PV+i}, 0x3f803f80")
    a("s_mov_b64 exec, -1")
    for t in range(2):
        phi(GA + 16 * t, 16, PK + 8 * t)
        for u in range(2):
            first = t == 0 and u == 0
            a(f"v_mfma_f32_32x32x16_bf16 {vr(KVD,16)}, {vr(PK+8*t+4*u,4)}, {vr(PV+8*t+4*u,4)}, {'0' if first else vr(KVD,16)}")
    a(f"""
    v_lshlrev_b32 v{vT}, 4, v2
    s_lshl_b32 s{sT0}, s{sWV}, 12
    v_add_u32 v{vT}, s{sT0}, v{vT}
    s_and_b32 s{sT0}, s{sWV}, 1
    s_lshl_b32 s{sT0}, s{sT0}, 12
    s_lshr_b32 s{sT1}, s{sWV}, 1
    s_lshl_b32 s{sT1}, s{sT1}, 11
    s_add_u32 s{sT0}, s{sT0}, s{sT1}
    v_lshlrev_b32 v{vT+3}, 2, v2
    v_add_u32 v{vT+3}, s{sT0}, v{vT+3}
    s_lshl_b32 s{sT1}, s{sP}, 13
    s_add_u32 s{sT1}, s{sT1}, {WS_KVA}
    s_mov_b32 exec_lo, 0
    """)
    for i in range(12, 16): a(f"v_mov_b32 v{KVD+i}, 0")
    a("s_mov_b64 exec, -1")
    for q in range(4):
        a(f"ds_write_b128 v{vT}, {vr(KVD+4*q,4)} offset:{1024*q}")
    a("s_waitcnt lgkmcnt(0)\ns_barrier")
    for i in range(8):
        a(f"ds_read2st64_b32 {vr(GA+2*i,2)}, v{vT+3} offset0:{i} offset1:{32+i}")
    a(f"""
    L1_poll:
    s_waitcnt vmcnt(0)
    v_readfirstlane_b32 s{sT2}, v{vT+2}
    s_cmp_eq_u32 s{sT2}, 1
    s_cbranch_scc1 L1_flagok
    s_sleep 2
    global_load_dword v{vT+2}, v{vT+1}, s[42:43] sc0 sc1
    s_branch L1_poll
    L1_flagok:
    """)
    for i in range(8):
        a(f"s_waitcnt lgkmcnt({7-i})")
        a(f"v_add_f32 v{GA+2*i}, v{GA+2*i}, v{GA+2*i+1}")
        a(f"buffer_atomic_add_f32 v{GA+2*i}, v{vT+3}, s[{SWS}:{SWS+3}], s{sT1} offen offset:{256*i} sc1")
    st(5)
    st.end()
    a("L1_end:\ns_endpgm")
    return a
```

```python
from asmlib import *
from stamp import Stamper
from k1 import WS_PQ, WS_KVA, WS_WOF, WS_KF, WS_UT, WS_SIZE, srd, f2u

CS = 4160
UB = 4 * CS + 16
CB = 20800
NCONV = 112
K2_LDS = 32768 + 65536 + 4 * 4608

def gen_k2():
    a = Asm()
    SO, SK, SU = 16, 20, 24
    sWV, sT0, sT1, sT2, sT3, sCG, sBL, sIT, sRB, sCBK = range(28, 38)
    st = Stamper(a, 1, 6, sWV)
    a("s_cmp_ge_u32 s2, 224\ns_cbranch_scc1 L2_end")
    st.start()
    a(f"""
    s_load_dwordx2 s[4:5], s[0:1], 96
    s_load_dwordx2 s[6:7], s[0:1], 112
    v_lshrrev_b32 v1, 6, v0
    v_and_b32 v2, 63, v0
    v_readfirstlane_b32 s{sWV}, v1
    v_lshlrev_b32 v3, 4, v2
    s_cmp_ge_u32 s2, {NCONV}
    s_cbranch_scc1 L2_fin
    """)
    D = 8
    TMP = 32
    vKW, vKA, vUA, vU0, vZ = 56, 57, 58, 59, 60
    ACC = 64
    KF0, UF0 = 96, 160
    a(f"""
    s_and_b32 s{sT0}, s2, 7
    s_mul_i32 s{sCG}, s{sT0}, 14
    s_lshr_b32 s{sT0}, s2, 3
    s_add_u32 s{sCG}, s{sCG}, s{sT0}
    s_lshl_b32 s{sT0}, s{sCG}, 2
    s_add_u32 s{sT0}, s{sT0}, s{sWV}
    s_lshl_b32 s{sT0}, s{sT0}, 12
    s_mul_i32 s{sBL}, s{sWV}, {CB}
    s_add_u32 s{sT1}, s{sT0}, {WS_KF}
    s_add_u32 s{sT2}, s{sT0}, {WS_UT}
    s_add_u32 m0, s{sBL}, {UB}
    s_mov_b32 s{SK+2}, 4096
    s_mov_b32 s{SK+3}, 0x20000
    s_waitcnt lgkmcnt(0)
    s_add_u32 s{SK}, s6, s{sT1}
    s_addc_u32 s{SK+1}, s7, 0
    """)
    st(0)
    for i in range(4):
        a(f"buffer_load_dwordx4 {vr(D+6*i,4)}, v3, s[{SK}:{SK+3}], 0 offen offset:{1024*i}")
        a(f"buffer_load_dwordx2 {vr(D+6*i+4,2)}, v3, s[{SK}:{SK+3}], 0 offen offset:{1024*i+16}")
    srd(a, SU, 6, 7, WS_SIZE)
    for i in range(4):
        a(f"buffer_load_dwordx4 v3, s[{SU}:{SU+3}], s{sT2} offen offset:{1024*i} lds")
    srd(a, SO, 4, 5, 2048 * 1792)
    a(f"""
    v_add_u32 v{vKW}, s{sBL}, v3
    v_bfe_u32 v4, v2, 1, 2
    v_mul_u32_u24 v4, {CS}, v4
    v_and_b32 v5, 1, v2
    v_lshl_add_u32 v4, v5, 4, v4
    v_add_u32 v4, 4096, v4
    v_mov_b32 v5, {UB-16}
    v_cmp_gt_u32 vcc, 8, v2
    v_mov_b32 v{TMP}, 0
    v_mov_b32 v{TMP+1}, 0
    v_cndmask_b32 v4, v5, v4, vcc
    v_mov_b32 v{TMP+2}, 0
    v_mov_b32 v{TMP+3}, 0
    v_add_u32 v4, s{sBL}, v4
    ds_write_b128 v4, {vr(TMP,4)}
    v_and_b32 v4, 15, v2
    v_lshrrev_b32 v5, 4, v2
    v_sub_u32 v6, 3, v4
    v_and_b32 v6, 3, v6
    v_mul_u32_u24 v6, {CS}, v6
    v_lshl_add_u32 v6, v5, 4, v6
    v_lshrrev_b32 v7, 2, v4
    v_lshlrev_b32 v7, 3, v7
    v_sub_u32 v6, v6, v7
    s_add_u32 s{sT0}, s{sBL}, {2*(2028-1792)}
    v_add_u32 v{vKA}, s{sT0}, v6
    v_lshlrev_b32 v6, 5, v4
    v_lshl_add_u32 v6, v5, 4, v6
    s_add_u32 s{sT0}, s{sBL}, {UB-32}
    v_add_u32 v{vUA}, s{sT0}, v6
    s_add_u32 s{sT3}, s{sBL}, {UB-16}
    v_max_u32 v{vU0}, s{sT3}, v{vUA}
    """)
    for i in range(32): a(f"v_mov_b32 v{ACC+i}, 0")
    for i in range(4):
        b = D + 6 * i
        t = TMP + 12 * (i & 1)
        a(f"s_waitcnt vmcnt({4 + 2*(3-i)})")
        a(f"ds_write_b128 v{vKW}, {vr(b,4)} offset:{1024*i}")
        for k in range(4): a(f"v_alignbit_b32 v{t+k}, v{b+k+1}, v{b+k}, 16")
        a(f"ds_write_b128 v{vKW}, {vr(t,4)} offset:{CS+1024*i}")
        for k in range(4): a(f"v_mov_b32 v{t+4+k}, v{b+k+1}")
        a(f"ds_write_b128 v{vKW}, {vr(t+4,4)} offset:{2*CS+1024*i}")
        for k in range(4): a(f"v_alignbit_b32 v{t+8+k}, v{b+k+2}, v{b+k+1}, 16")
        a(f"ds_write_b128 v{vKW}, {vr(t+8,4)} offset:{3*CS+1024*i}")
    a("s_waitcnt vmcnt(0) lgkmcnt(0)")
    st(1)
    def loadlist(s):
        L = []
        K, U = KF0 + 32 * s, UF0 + 32 * s
        for x in range(8):
            L.append(f"ds_read_b128 {vr(U+4*x,4)}, v{vU0 if x == 0 else vUA} offset:{512*x}")
            L.append(f"ds_read_b64 {vr(K+4*x,2)}, v{vKA} offset:{512*(7-x)}")
            L.append(f"ds_read_b64 {vr(K+4*x+2,2)}, v{vKA} offset:{512*(7-x)+8}")
        return L
    def step():
        a(f"v_subrev_u32 v{vKA}, 64, v{vKA}")
        a(f"v_subrev_u32 v{vUA}, 64, v{vUA}")
        a(f"v_max_i32 v{vU0}, s{sT3}, v{vUA}")
    for l in loadlist(0): a(l)
    step()
    a(f"s_mov_b32 s{sIT}, 0")
    a("L2_cv:")
    for s in range(2):
        L = loadlist(1 - s)
        K, U = KF0 + 32 * s, UF0 + 32 * s
        a("s_waitcnt lgkmcnt(0)")
        pairs = [(c, m) for tot in range(8) for c in range(tot + 1) for m in [tot - c]]
        pairs = sorted(pairs, key=lambda cm: (max(cm), cm[0] + cm[1]))
        for n, (c, m) in enumerate(pairs):
            acc = vr(ACC + 4 * (c + m), 4)
            a(f"v_mfma_f32_16x16x32_bf16 {acc}, {vr(K+4*c,4)}, {vr(U+4*m,4)}, {acc}")
            if n < len(L): a(L[n])
            if n == len(L): step()
    a(f"""
    s_add_u32 s{sIT}, s{sIT}, 1
    s_cmp_lt_u32 s{sIT}, 4
    s_cbranch_scc1 L2_cv
    """)
    st(2)
    a(f"""
    v_and_b32 v4, 15, v2
    v_lshrrev_b32 v5, 4, v2
    v_lshlrev_b32 v6, 5, v4
    v_lshl_add_u32 v6, v5, 3, v6
    v_add_u32 v6, s{sBL}, v6
    v_bfe_u32 v7, v2, 2, 2
    v_mul_u32_u24 v7, {CB}, v7
    v_lshl_add_u32 v7, v5, 5, v7
    v_and_b32 v4, 3, v2
    v_lshl_add_u32 v7, v4, 3, v7
    s_lshl_b32 s{sT0}, s{sWV}, 10
    v_add_u32 v7, s{sT0}, v7
    v_mul_u32_u24 v8, 1792, v2
    s_mul_i32 s{sT0}, s{sWV}, {512*1792}
    s_lshl_b32 s{sT1}, s{sCG}, 3
    s_add_u32 s{sT0}, s{sT0}, s{sT1}
    s_waitcnt lgkmcnt(0)
    """)
    for mt in range(8):
        a(f"v_cvt_pk_bf16_f32 v{KF0+2*mt}, v{ACC+4*mt}, v{ACC+4*mt+1}")
        a(f"v_cvt_pk_bf16_f32 v{KF0+2*mt+1}, v{ACC+4*mt+2}, v{ACC+4*mt+3}")
        a(f"ds_write_b64 v6, {vr(KF0+2*mt,2)} offset:{512*mt}")
    a("s_waitcnt lgkmcnt(0)\ns_barrier")
    st(3)
    for it in range(8):
        a(f"ds_read_b64_tr_b16 {vr(UF0+2*it,2)}, v7 offset:{128*it}")
    for it in range(8):
        a(f"s_waitcnt lgkmcnt({7-it})")
        a(f"buffer_store_dwordx2 {vr(UF0+2*it,2)}, v8, s[{SO}:{SO+3}], s{sT0} offen")
        if it < 7: a(f"s_add_u32 s{sT0}, s{sT0}, {64*1792}")
    st(4)
    st.end()
    a("s_endpgm")
    A1 = 16
    O = 48
    DN = 56
    A2 = 64
    KT = 96
    KVF, WOFR = 160, 176
    KVL, WOL, STG = 0, 32768, 98304
    a(f"""
    L2_fin:
    s_sub_u32 s{sT0}, s2, {NCONV}
    s_and_b32 s{sRB}, s{sT0}, 7
    s_lshl_b32 s{sRB}, s{sRB}, 1
    s_lshr_b32 s{sCBK}, s{sT0}, 3
    s_cmp_ge_u32 s{sCBK}, 7
    s_cselect_b32 s{sT1}, 1, 0
    s_cselect_b32 s{sT2}, 7, 0
    s_add_u32 s{sRB}, s{sRB}, s{sT1}
    s_sub_u32 s{sCBK}, s{sCBK}, s{sT2}
    s_lshl_b32 s{sT0}, s{sWV}, 14
    s_add_u32 s{sT1}, s{sT0}, {WS_KVA}
    s_lshl_b32 s{sT2}, s{sCBK}, 16
    s_add_u32 s{sT2}, s{sT2}, s{sT0}
    s_add_u32 s{sT2}, s{sT2}, {WS_WOF}
    s_lshl_b32 s{sT3}, s{sRB}, 2
    s_add_u32 s{sT3}, s{sT3}, s{sWV}
    s_lshl_b32 s{sBL}, s{sT3}, 15
    s_add_u32 s{sBL}, s{sBL}, {WS_PQ}
    s_add_u32 s{sIT}, s{sT0}, {WOL}
    s_waitcnt lgkmcnt(0)
    """)
    st(0)
    srd(a, SU, 6, 7, WS_SIZE)
    for i in range(16):
        a(f"buffer_load_dwordx4 {vr(KT+4*i,4)}, v3, s[{SU}:{SU+3}], s{sT1} offen offset:{1024*(i&3)}")
        if i & 3 == 3 and i < 15: a(f"s_add_u32 s{sT1}, s{sT1}, 4096")
    for i in range(16):
        if i & 3 == 0: a(f"s_mov_b32 m0, s{sIT}")
        a(f"buffer_load_dwordx4 v3, s[{SU}:{SU+3}], s{sT2} offen offset:{1024*(i&3)} lds")
        if i & 3 == 3 and i < 15:
            a(f"s_add_u32 s{sT2}, s{sT2}, 4096\ns_add_u32 s{sIT}, s{sIT}, 4096")
    for i in range(32):
        a(f"buffer_load_dwordx4 {ar(4*i,4)}, v3, s[{SU}:{SU+3}], s{sBL} offen offset:{1024*(i&3)}")
        if i & 3 == 3 and i < 31: a(f"s_add_u32 s{sBL}, s{sBL}, 4096")
    srd(a, SO, 4, 5, 2048 * 1792)
    a(f"""
    s_lshl_b32 s{sT0}, s{sWV}, 13
    v_add_u32 v4, s{sT0}, v3
    s_mov_b32 s{sT1}, {f2u(1e-6)}
    """)
    for i in range(32): a(f"v_mov_b32 v{A2+i}, 0")
    for f in range(8):
        a(f"s_waitcnt vmcnt({min(63, 48 + 14 - 2*f)})")
        b = KT + 8 * f
        for k in range(4): a(f"v_cvt_pk_bf16_f32 v{b+k}, v{b+2*k}, v{b+2*k+1}")
        a(f"ds_write_b128 v4, {vr(b,4)} offset:{KVL + 1024*f}")
    st(1)
    a("s_waitcnt vmcnt(32) lgkmcnt(0)\ns_barrier")
    st(2)
    def ld_kv(h):
        for ks in range(2):
            a(f"ds_read_b128 {vr(KVF+8*(h&1)+4*ks,4)}, v3 offset:{KVL + 2048*h + 1024*ks}")
    def ld_wo(h):
        for i in range(4):
            a(f"ds_read_b128 {vr(WOFR+16*(h&1)+4*i,4)}, v5 offset:{4096*h + 1024*i}")
    def s1(h):
        A = vr(A1 + 16 * (h & 1), 16)
        a(f"v_mfma_f32_32x32x16_bf16 {A}, {vr(KVF+8*(h&1),4)}, {ar(8*h,4)}, 0")
        a(f"v_mfma_f32_32x32x16_bf16 {A}, {vr(KVF+8*(h&1)+4,4)}, {ar(8*h+4,4)}, {A}")
    a(f"v_add_u32 v5, {WOL}, v3")
    ld_kv(0); ld_kv(1); ld_wo(0)
    a("s_waitcnt vmcnt(30) lgkmcnt(6)")
    s1(0)
    for h in range(16):
        A = A1 + 16 * (h & 1)
        if h + 1 < 16:
            a(f"s_waitcnt vmcnt({28-2*h}) lgkmcnt(4)")
            s1(h + 1)
            if h + 2 < 16: ld_kv(h + 2)
            ld_wo(h + 1)
        a(f"""
        v_mov_b32 v{DN}, v{A+12}
        v_mov_b32 v{DN+2}, v{A+12}
        v_permlane32_swap_b32 v{DN}, v{DN+2}
        v_add_f32 v{DN+2}, s{sT1}, v{DN+2}
        v_rcp_f32 v{DN+2}, v{DN+2}
        """)
        for k in range(8):
            a(f"v_pk_mul_f32 {vr(A+2*k,2)}, {vr(A+2*k,2)}, {vr(DN+2,2)} op_sel_hi:[1,0]")
        for k in range(8):
            a(f"v_cvt_pk_bf16_f32 v{O+k}, v{A+2*k}, v{A+2*k+1}")
        a(f"s_waitcnt lgkmcnt({6 if h + 2 < 16 else 4 if h + 1 < 16 else 0})")
        for ks in range(2):
            for ct in range(2):
                acc = vr(A2 + 16 * ct, 16)
                a(f"v_mfma_f32_32x32x16_bf16 {acc}, {vr(WOFR+16*(h&1)+8*ks+4*ct,4)}, {vr(O+4*ks,4)}, {acc}")
    st(3)
    a(f"""
    s_mul_i32 s{sT0}, s{sWV}, 4608
    s_add_u32 s{sT0}, s{sT0}, {STG}
    v_and_b32 v4, 31, v2
    v_mul_u32_u24 v4, 144, v4
    v_lshrrev_b32 v5, 5, v2
    v_lshl_add_u32 v4, v5, 5, v4
    v_add_u32 v4, s{sT0}, v4
    v_lshrrev_b32 v5, 3, v2
    v_and_b32 v6, 7, v2
    v_mul_u32_u24 v7, 144, v5
    v_lshl_add_u32 v7, v6, 4, v7
    v_add_u32 v7, s{sT0}, v7
    v_mul_u32_u24 v8, 1792, v5
    v_lshl_add_u32 v8, v6, 4, v8
    s_mul_i32 s{sT0}, s{sT3}, {32*1792}
    s_lshl_b32 s{sT1}, s{sCBK}, 7
    s_add_u32 s{sT0}, s{sT0}, s{sT1}
    s_add_u32 s{sT0}, s{sT0}, 896
    """)
    for ct in range(2):
        for k in range(8):
            a(f"v_cvt_pk_bf16_f32 v{KT+8*ct+k}, v{A2+16*ct+2*k}, v{A2+16*ct+2*k+1}")
        for i in range(2):
            a(f"ds_write_b128 v4, {vr(KT+8*ct+4*i,4)} offset:{64*ct+16*i}")
    a("s_waitcnt lgkmcnt(0)")
    for i in range(4):
        a(f"ds_read_b128 {vr(KT+16+4*i,4)}, v7 offset:{8*144*i}")
    for i in range(4):
        a(f"s_waitcnt lgkmcnt({3-i})")
        a(f"buffer_store_dwordx4 {vr(KT+16+4*i,4)}, v8, s[{SO}:{SO+3}], s{sT0} offen")
        if i < 3: a(f"s_add_u32 s{sT0}, s{sT0}, {8*1792}")
    st(4)
    st.end()
    a("L2_end:\ns_endpgm")
    return a
```

```python
STAMP_OFF = 0x800000
ENABLED = False
class Stamper:
    def __init__(self, a, kidx, wsreg, wave_sreg):
        self.a, self.k, self.n, self.ws, self.wv = a, kidx, 0, wsreg, wave_sreg
    def start(self):
        if not ENABLED: return
        self.a("s_memrealtime s[84:85]\ns_memtime s[86:87]")
    def __call__(self, i):
        if not ENABLED: return
        self.a(f"s_memtime s[{88+2*i}:{89+2*i}]")
    def end(self):
        if not ENABLED: return
        a = self.a
        a("s_waitcnt vmcnt(0)\ns_memtime s[100:101]\ns_memrealtime s[82:83]\ns_waitcnt lgkmcnt(0)")
        a(f"s_lshl_b32 s3, s2, 2\ns_add_u32 s3, s3, s{self.wv}\ns_lshl_b32 s3, s3, 7\ns_add_u32 s3, s3, {STAMP_OFF + self.k*0x40000}")
        a("v_mov_b32 v0, s3")
        vals = [84, 82, 86] + [88 + 2 * i for i in range(6)] + [100]
        for j, s in enumerate(vals):
            a(f"v_mov_b32 v1, s{s}")
            a(f"global_store_dword v0, v1, s[{self.ws}:{self.ws+1}] offset:{4*j}")
        a("s_getreg_b32 s3, hwreg(HW_REG_XCC_ID)\nv_mov_b32 v1, s3")
        a(f"global_store_dword v0, v1, s[{self.ws}:{self.ws+1}] offset:40")
        a("s_getreg_b32 s3, hwreg(HW_REG_HW_ID)\nv_mov_b32 v1, s3")
        a(f"global_store_dword v0, v1, s[{self.ws}:{self.ws+1}] offset:44")
```

```python
import build, sys, k1, k2
from asmlib import *
def triv():
    a = Asm(); a("s_endpgm"); a("v_mov_b32 v0, 0"); a("s_endpgm"); return a
K1 = lambda: ('k1_kernel', k1.gen_k1(), 256, 256, 163840)
K2 = lambda: ('k2_kernel', k2.gen_k2(), 224, 256, k2.K2_LDS)
T = lambda n: (f't{n}_kernel', triv(), 256, 256, 0)
open("calA.s", "w").write(build.assemble([K1(), K2()]))
open("calB.s", "w").write(build.assemble([K1(), K2(), T(0)]))
open("calC.s", "w").write(build.assemble([T(0), K1(), K2()]))
open("calD.s", "w").write(build.assemble([K1(), K2(), T(0), T(1), T(2), T(3)]))
```

```python
import re

REG_RE = re.compile(r"^(-|abs\(|\|)?([vas])(\d+)\)?\|?$")
RNG_RE = re.compile(r"^(-|abs\(|\|)?([vas])\[(\d+):(\d+)\]\)?\|?$")
TRANS = ("v_exp_f32", "v_log_f32", "v_rcp_f32", "v_rsq_f32", "v_sqrt_f32", "v_sin_f32", "v_cos_f32", "v_rcp_iflag_f32")

def regs_of(op):
    op = op.strip()
    m = REG_RE.match(op)
    if m: return [(m.group(2), int(m.group(3)))]
    m = RNG_RE.match(op)
    if m: return [(m.group(2), i) for i in range(int(m.group(3)), int(m.group(4)) + 1)]
    if op in ("vcc", "vcc_lo", "vcc_hi"): return [("vcc", 0)]
    if op in ("exec", "exec_lo", "exec_hi"): return [("exec", 0)]
    if op == "m0": return [("m0", 0)]
    return []

def split_ops(s):
    out, depth, cur = [], 0, ""
    for ch in s:
        if ch in "[(": depth += 1
        if ch in "])": depth -= 1
        if ch == "," and depth == 0:
            out.append(cur.strip()); cur = ""
        else:
            cur += ch
    if cur.strip(): out.append(cur.strip())
    return out

class Ins:
    __slots__ = ("text", "mn", "ops", "mods", "cls", "reads", "writes", "passes", "srcC", "srcAB", "label", "target", "nopn", "data", "dpp")
    def __init__(self, text):
        self.text = text; self.label = None; self.target = None; self.nopn = 1
        self.reads = set(); self.writes = set(); self.cls = "other"; self.passes = 0
        self.srcC = set(); self.srcAB = set(); self.data = set(); self.dpp = False
        t = text.split(";")[0].strip()
        if t.endswith(":"):
            self.label = t[:-1]; self.mn = ""; self.cls = "label"; self.nopn = 0; return
        if not t or t.startswith("."):
            self.mn = ""; self.cls = "dir"; self.nopn = 0; return
        parts = t.split(None, 1)
        mn = self.mn = parts[0]
        rest = parts[1] if len(parts) > 1 else ""
        ops = split_ops(rest)
        mods = ""
        if ops:
            last = ops[-1].split(None, 1)
            if len(last) > 1 and not last[0].endswith(":"):
                ops[-1] = last[0]; mods = last[1]
        self.ops = ops; self.mods = mods
        R = lambda i: set(regs_of(ops[i])) if i < len(ops) else set()
        allr = lambda a: set().union(*[R(i) for i in range(a, len(ops))]) if len(ops) > a else set()
        if mn == "s_nop":
            self.cls = "nop"; self.nopn = int(ops[0], 0) + 1
        elif mn.startswith("s_cbranch") or mn == "s_branch":
            self.cls = "branch"; self.target = ops[0]
        elif mn == "s_endpgm":
            self.cls = "end"
        elif mn.startswith("v_mfma"):
            self.cls = "mfma"
            self.passes = 8 if "32x32x16" in mn else 4 if "16x16x32" in mn else None
            assert self.passes, mn
            self.writes = R(0); self.srcAB = R(1) | R(2); self.srcC = R(3); self.reads = self.srcAB | self.srcC
        elif mn.startswith("v_"):
            base = mn.replace("_e32", "").replace("_e64", "").replace("_dpp", "").replace("_sdwa", "")
            self.cls = "trans" if base in TRANS else "valu"
            self.dpp = "_dpp" in mn or "row_" in mods or "quad_perm" in mods or "wave_" in mods
            if base.startswith("v_cmp"):
                self.writes = R(0); self.reads = allr(1)
                assert not base.startswith("v_cmpx")
            elif base.startswith("v_permlane") and "swap" in base:
                self.writes = R(0) | R(1); self.reads = R(0) | R(1); self.cls = "permlane"
            elif base in ("v_add_co_u32", "v_sub_co_u32", "v_addc_co_u32", "v_subb_co_u32"):
                self.writes = R(0) | R(1); self.reads = allr(2)
            elif base in ("v_readfirstlane_b32", "v_readlane_b32"):
                self.writes = R(0); self.reads = allr(1); self.cls = "readlane"
            else:
                self.writes = R(0); self.reads = allr(1)
                if base in ("v_fmac_f32", "v_pk_fmac_f16") or self.dpp or "d16" in base:
                    self.reads |= R(0)
                if base == "v_cndmask_b32" and len(ops) == 3:
                    self.reads |= {("vcc", 0)}
        elif mn.startswith("ds_"):
            self.cls = "ds"
            if mn.startswith("ds_read") or mn.startswith("ds_bpermute") or mn.startswith("ds_permute") or mn.startswith("ds_swizzle"):
                self.writes = R(0); self.reads = allr(1)
            else:
                self.reads = allr(0)
            if "addtid" in mn: self.reads |= {("m0", 0)}
        elif mn.startswith("buffer_") or mn.startswith("global_"):
            self.cls = "vmem"
            islds = re.search(r"\blds\b", mods) is not None or "_lds_" in mn
            if "load" in mn and not islds:
                self.writes = R(0); self.reads = allr(1)
            else:
                self.reads = allr(0)
                if islds: self.reads |= {("m0", 0)}
                if "store" in mn and ("x4" in mn or "x3" in mn):
                    self.data = R(0) if mn.startswith("buffer_") else R(1)
            if "atomic" in mn and "sc0" in mods:
                self.writes = R(0)
        elif mn.startswith("s_load") or mn.startswith("s_buffer_load") or mn.startswith("s_memtime") or mn.startswith("s_memrealtime") or mn.startswith("s_atomic"):
            self.cls = "smem"; self.writes = R(0); self.reads = allr(1)
        elif mn.startswith("s_"):
            self.cls = "salu"
            if mn.startswith("s_cmp") or mn in ("s_waitcnt", "s_barrier", "s_setprio", "s_sleep", "s_bitcmp1_b32", "s_bitcmp0_b32"):
                self.reads = allr(0)
            else:
                self.writes = R(0); self.reads = allr(1)
                if "saveexec" in mn: self.writes |= {("exec", 0)}
        else:
            raise ValueError("unknown instr: " + text)

VALUISH = ("valu", "trans", "permlane", "readlane")
def is_vreg(r): return r[0] in ("v", "a")
def is_sreg(r): return r[0] in ("s", "vcc")

def need(p, c):
    n = 0
    if p.cls in VALUISH:
        vw = {r for r in p.writes if is_vreg(r)}
        sw = {r for r in p.writes if is_sreg(r)}
        if c.cls == "mfma" and vw & c.reads: n = max(n, 2)
        if c.cls == "readlane" and vw & c.reads: n = max(n, 1)
        if c.cls == "permlane" and vw & c.reads: n = max(n, 2)
        if c.dpp and vw & c.reads: n = max(n, 2)
        if p.cls == "trans" and c.cls in ("valu", "permlane", "readlane") and vw & c.reads: n = max(n, 1)
        if ("sdwa" in p.mn or "op_sel" in p.mods and "pk" not in p.mn) and c.cls in VALUISH and vw & (c.reads | c.writes): n = max(n, 1)
        if sw:
            if c.cls in VALUISH and sw & c.reads: n = max(n, 4 if c.cls == "readlane" else 2)
            if c.cls == "vmem" and sw & c.reads: n = max(n, 5)
            if c.cls == "mfma" and sw & c.reads: n = max(n, 2)
    if p.cls == "mfma":
        D = p.writes
        big = {4: 8, 8: 12}[p.passes]
        if c.cls == "mfma":
            if D & c.srcAB: n = max(n, big)
            if D & c.srcC:
                if not (D == c.srcC and c.passes == p.passes): n = max(n, {4: 6, 8: 10}[p.passes])
            if D & c.writes and D != c.srcC: n = max(n, big)
        elif c.cls in VALUISH or c.cls in ("vmem", "ds"):
            if D & (c.reads | c.writes): n = max(n, big)
        if c.cls in VALUISH and p.srcC & c.writes: n = max(n, {4: 3, 8: 7}[p.passes])
    if p.cls == "salu" and ("m0", 0) in p.writes and ("m0", 0) in c.reads and c.cls in ("ds", "vmem"):
        n = max(n, 1)
    if p.cls == "vmem" and p.data and p.data & c.writes:
        n = max(n, 2 if c.cls in VALUISH or c.cls == "mfma" else 1)
    return n

class Asm:
    def __init__(self):
        self.ins = []
    def __call__(self, text):
        for ln in text.split("\n"):
            ln = ln.strip()
            if ln: self.ins.append(Ins(ln))
    def label(self, n): self.ins.append(Ins(n + ":"))
    def fix(self):
        W = 14
        changed = True
        while changed:
            changed = False
            ins = self.ins
            srcs = {}
            for i, x in enumerate(ins):
                if x.cls == "branch": srcs.setdefault(x.target, []).append(i)
            i = 0
            while i < len(ins):
                c = ins[i]
                if c.cls in ("label", "dir", "nop"):
                    i += 1; continue
                worst = 0
                stack = [(i - 1, 0)]
                seen = set()
                while stack:
                    j, dist = stack.pop()
                    while j >= 0 and dist < W:
                        if (j, dist) in seen: break
                        seen.add((j, dist))
                        p = ins[j]
                        if p.cls == "label":
                            for b in srcs.get(p.label, []):
                                stack.append((b, dist))
                            k = j - 1
                            while k >= 0 and ins[k].cls in ("label", "dir"): k -= 1
                            if k >= 0 and (ins[k].mn == "s_branch" or ins[k].cls == "end"):
                                if ins[j - 1].cls in ("label", "dir"):
                                    j -= 1; continue
                                break
                            j -= 1; continue
                        if p.cls == "dir":
                            j -= 1; continue
                        if p.cls == "end": break
                        nn = need(p, c) - dist
                        if nn > worst: worst = nn
                        dist += p.nopn
                        j -= 1
                if worst > 0:
                    ins.insert(i, Ins(f"s_nop {worst - 1}"))
                    changed = True
                    for k in srcs: srcs[k] = [x + 1 if x >= i else x for x in srcs[k]]
                    i += 1
                i += 1
        return self
    def text(self):
        out = []
        for x in self.ins:
            out.append(x.text if x.cls in ("label", "dir") else "    " + x.text)
        return "\n".join(out) + "\n"
    def maxreg(self, kind):
        m = -1
        for x in self.ins:
            for r in x.reads | x.writes:
                if r[0] == kind: m = max(m, r[1])
        return m

def vr(b, n=1, k="v"):
    return f"{k}{b}" if n == 1 else f"{k}[{b}:{b + n - 1}]"
def sr(b, n=1): return vr(b, n, "s")
def ar(b, n=1): return vr(b, n, "a")

class Cnt:
    def __init__(self, a, kind):
        self.a, self.kind, self.q = a, kind, []
        self.max = 63 if kind == "vmcnt" else 15
    def op(self, text, tag):
        self.a(text); self.q.append(tag)
    def n_after(self, tags):
        if isinstance(tags, str): tags = [tags]
        idx = [i for i, t in enumerate(self.q) if t in tags]
        if not idx: return None
        return len(self.q) - 1 - max(idx)
    def wait(self, tags, extra=""):
        n = self.n_after(tags)
        if n is None:
            if extra: self.a(f"s_waitcnt {extra}")
            return
        n = min(n, self.max)
        self.a(f"s_waitcnt {self.kind}({n}) {extra}".strip())
        self.q = self.q[len(self.q) - n:] if n else []
    def drain(self): self.q = []
```

```python
STAMP_OFF = 0x800000
ENABLED = False
SLOTS = [88, 90, 92, 94, 96, 98, 4, 6, 8, 10, 12]
class Stamper:
    def __init__(self, a, kidx, wsreg, wave_sreg):
        self.a, self.k, self.n, self.ws, self.wv = a, kidx, 0, wsreg, wave_sreg
    def start(self):
        if not ENABLED: return
        self.a("s_memrealtime s[84:85]\ns_memtime s[86:87]\ns_mov_b32 s14, s2")
    def __call__(self, i):
        if not ENABLED: return
        r = SLOTS[i]; self.a(f"s_memtime s[{r}:{r+1}]")
    def end(self):
        if not ENABLED: return
        a = self.a
        a("s_waitcnt vmcnt(0)\ns_memtime s[100:101]\ns_memrealtime s[82:83]\ns_waitcnt lgkmcnt(0)")
        a(f"s_lshl_b32 s3, s14, 2\ns_add_u32 s3, s3, s{self.wv}\ns_lshl_b32 s3, s3, 7\ns_add_u32 s3, s3, {STAMP_OFF + self.k*0x40000}")
        a("v_mov_b32 v0, s3")
        vals = [84, 82, 86] + SLOTS + [100]
        for j, s in enumerate(vals):
            a(f"v_mov_b32 v1, s{s}")
            a(f"global_store_dword v0, v1, s[{self.ws}:{self.ws+1}] offset:{4*j}")
        a("s_getreg_b32 s3, hwreg(HW_REG_XCC_ID)\nv_mov_b32 v1, s3")
        a(f"global_store_dword v0, v1, s[{self.ws}:{self.ws+1}] offset:64")
        a("s_getreg_b32 s3, hwreg(HW_REG_HW_ID)\nv_mov_b32 v1, s3")
        a(f"global_store_dword v0, v1, s[{self.ws}:{self.ws+1}] offset:68")
```

```python
import struct
from asmlib import *
from stamp import Stamper

WS_PQ  = 0x000000
WS_KVA = 0x200000
WS_FLG = 0x210000
WS_WOF = 0x220000
WS_KF  = 0x300000
WS_UT  = 0x500000
WS_SIZE = 0x700000
F_UT, F_KF, F_Q, F_KV = [WS_FLG + 1024 * x for x in (0, 16, 32, 40)]
LDS = 81920
LOG2E = 0x3fb8aa3b
INV2PI = 0x3e22f983
def f2u(x): return hex(struct.unpack("<I", struct.pack("<f", x))[0])
EPS = f2u(1e-6)
ROWB = 272
WREG = 53 * ROWB
TTAB, TSTR = 67072, 1536
USTG = 70144
CBK, C0, C1, U0, U1 = 16704, 0, 4224, 8464, 12592
SC = "sc1"

def cmul(a, d, x, y):
    assert d != x and d != y
    a(f"v_pk_mul_f32 {vr(d,2)}, {vr(x,2)}, {vr(y,2)} op_sel:[0,0] op_sel_hi:[0,1]")
    a(f"v_pk_fma_f32 {vr(d,2)}, {vr(x,2)}, {vr(y,2)}, {vr(d,2)} op_sel:[1,1,0] op_sel_hi:[1,0,1] neg_lo:[1,0,0]")
def srd(a, S, lo, hi, n):
    a(f"s_mov_b32 s{S}, s{lo}\ns_mov_b32 s{S+1}, s{hi}\ns_mov_b32 s{S+2}, {n}\ns_mov_b32 s{S+3}, 0x20000")

SWS, SX, SW, SO = 48, 52, 56, 60
sC1 = 64
sWV, sT0, sT1, sT2, sT3, sT4, sA, sB, sC, sD, sE, sF, sG, sH, sI, sJ = range(66, 82)
WSR = f"s[{SWS}:{SWS+3}]"

class K:
    def __init__(self):
        self.a = Asm(); self.nl = 0
    def lab(self, p="L"):
        self.nl += 1; return f"{p}_{self.nl}"
    def init_issue(self, vm, t, vz):
        vm.op(f"global_load_dword v{t}, v{vz}, s[42:43] {SC}", "init")
    def init_check(self, vm, t, vz):
        a = self.a; L, Lok = self.lab("Li"), self.lab("Lio")
        vm.wait("init")
        a(f"""{L}:
        v_cmp_eq_u32 vcc, 1, v{t}
        s_cmp_eq_u64 vcc, -1
        s_cbranch_scc1 {Lok}
        s_sub_u32 s15, s15, 1
        s_cbranch_scc1 L_end
        s_sleep 2
        global_load_dword v{t}, v{vz}, s[42:43] {SC}
        s_waitcnt vmcnt(0)
        s_branch {L}
        {Lok}:""")
    def poll(self, vm, vaddr, t, n=1, issued=False):
        a = self.a; L, Lok = self.lab("Lp"), self.lab("Lpo")
        ld = f"buffer_load_dword{'x2' if n == 2 else ''} {vr(t,n)}, v{vaddr}, {WSR}, 0 offen {SC}"
        if not issued: vm.op(ld, "poll")
        vm.wait("poll")
        a(f"{L}:")
        if n == 2: a(f"v_and_b32 v{t}, v{t}, v{t+1}")
        a(f"""v_cmp_eq_u32 vcc, 1, v{t}
        s_cmp_eq_u64 vcc, -1
        s_cbranch_scc1 {Lok}
        s_sub_u32 s15, s15, 1
        s_cbranch_scc1 L_end
        s_sleep 2
        {ld}
        s_waitcnt vmcnt(0)
        s_branch {L}
        {Lok}:""")
    def poll_issue(self, vm, vaddr, t, n=1):
        vm.op(f"buffer_load_dword{'x2' if n == 2 else ''} {vr(t,n)}, v{vaddr}, {WSR}, 0 offen {SC}", "poll")
    def flag(self, vm, soff, vt):
        self.a(f"v_mov_b32 v{vt}, 0\nv_mov_b32 v{vt+1}, 1\ns_mov_b64 exec, 1")
        vm.op(f"buffer_store_dword v{vt+1}, v{vt}, {WSR}, s{soff} offen {SC}", "flag")
        self.a("s_mov_b64 exec, -1")

def gen():
    k = K(); a = k.a
    st = Stamper(a, 0, 44, sWV)
    a("s_cmp_ge_u32 s2, 512\ns_cbranch_scc1 L_end")
    st.start()
    a(f"""
    s_load_dwordx16 s[16:31], s[0:1], 0
    s_load_dwordx8 s[32:39], s[0:1], 64
    s_load_dwordx4 s[40:43], s[0:1], 96
    s_load_dwordx2 s[44:45], s[0:1], 112
    v_lshrrev_b32 v1, 6, v0
    v_and_b32 v2, 63, v0
    v_readfirstlane_b32 s{sWV}, v1
    v_lshlrev_b32 v3, 4, v2
    v_and_b32 v4, 15, v0
    v_lshlrev_b32 v4, 2, v4
    v_add_u32 v4, 64, v4
    s_mov_b32 s15, 40000
    s_cmp_lt_u32 s2, 256
    s_cbranch_scc1 L_S
    s_sub_u32 s2, s2, 256
    """)
    gen_G(k, st)
    gen_S(k, st)
    a("L_end:\ns_endpgm")
    return a

def gen_G(k, st):
    a = k.a
    import os
    if os.environ.get('SKIP_G'): a('s_endpgm')
    sRB, sP, sKX, sKW, sXO, sWO, sXM, sWM, sTY = sA, sB, sC, sD, sE, sF, sG, sH, sI
    vXD, vWD, vXA, vWA = 8, 12, 16, 20
    vT = 24
    GA = 64; XF, WF = 128, 144
    a(f"""
    s_and_b32 s{sT0}, s2, 7
    s_lshr_b32 s{sT1}, s2, 3
    s_lshr_b32 s{sTY}, s2, 7
    s_lshr_b32 s{sRB}, s{sT0}, 1
    s_lshl_b32 s{sRB}, s{sRB}, 2
    s_bfe_u32 s{sT2}, s{sT1}, 0x20002
    s_add_u32 s{sRB}, s{sRB}, s{sT2}
    s_and_b32 s{sP}, s{sT0}, 1
    s_lshl_b32 s{sP}, s{sP}, 2
    s_and_b32 s{sT3}, s{sT1}, 3
    s_add_u32 s{sP}, s{sP}, s{sT3}
    s_lshl_b32 s{sKX}, s{sT3}, 1
    s_add_u32 s{sKX}, s{sKX}, s{sTY}
    s_mul_i32 s{sT2}, s{sT2}, 3
    s_add_u32 s{sKX}, s{sKX}, s{sT2}
    s_cmp_ge_u32 s{sKX}, 14
    s_cselect_b32 s{sT2}, 14, 0
    s_sub_u32 s{sKX}, s{sKX}, s{sT2}
    s_cmp_ge_u32 s{sKX}, 7
    s_cselect_b32 s{sT2}, 7, 0
    s_sub_u32 s{sKX}, s{sKX}, s{sT2}
    s_lshl_b32 s{sXO}, s{sKX}, 7
    s_mul_i32 s{sWO}, s{sKX}, {64*2688}
    s_mov_b32 s{sC1}, {LOG2E}
    s_mov_b32 s{sC1+1}, {LOG2E}
    v_lshrrev_b32 v{vT+1}, 3, v2
    v_and_b32 v{vT+2}, 7, v2
    v_lshrrev_b32 v{vT+3}, 4, v2
    v_xor_b32 v{vT+6}, v{vT+2}, v{vT+3}
    v_lshlrev_b32 v{vT+6}, 4, v{vT+6}
    v_mul_u32_u24 v{vT+7}, 896, v{vT+1}
    s_lshl_b32 s{sT0}, s{sRB}, 2
    s_add_u32 s{sT0}, s{sT0}, s{sWV}
    s_mul_i32 s{sT0}, s{sT0}, {32*896}
    v_add3_u32 v{vXD}, v{vT+6}, v{vT+7}, s{sT0}
    v_xor_b32 v{vT+6}, 64, v{vT+6}
    v_add3_u32 v{vXD+1}, v{vT+6}, v{vT+7}, s{sT0}
    v_add_u32 v{vXD+1}, {7168-1024}, v{vXD+1}
    v_add_u32 v{vXD+2}, {2*(7168-1024)}, v{vXD}
    v_add_u32 v{vXD+3}, {2*(7168-1024)}, v{vXD+1}
    v_and_b32 v{vT+6}, 1, v{vT+3}
    v_lshlrev_b32 v{vT+6}, 2, v{vT+6}
    v_xor_b32 v{vT+6}, v{vT+6}, v{vT+2}
    v_min_u32 v{vT+6}, 6, v{vT+6}
    v_lshlrev_b32 v{vT+6}, 4, v{vT+6}
    v_mul_u32_u24 v{vT+7}, 2688, v{vT+1}
    s_lshr_b32 s{sT0}, s{sWV}, 1
    s_add_u32 s{sT0}, s{sT0}, 1
    s_mul_i32 s{sT0}, s{sT0}, 896
    s_and_b32 s{sT1}, s{sWV}, 1
    s_mul_i32 s{sT1}, s{sT1}, {32*2688}
    s_add_u32 s{sT0}, s{sT0}, s{sT1}
    s_mul_i32 s{sT1}, s{sWV}, {16*2688}
    s_lshl_b32 s{sXM}, s{sWV}, 12
    s_lshl_b32 s{sT2}, s{sWV}, 11
    s_cmp_eq_u32 s{sTY}, 0
    s_cselect_b32 s{sT0}, s{sT1}, s{sT0}
    s_cselect_b32 s{sWM}, s{sT2}, s{sXM}
    s_add_u32 s{sWM}, s{sWM}, 49152
    s_mul_i32 s{sT1}, s{sP}, 112
    s_add_u32 s{sT0}, s{sT0}, s{sT1}
    v_add3_u32 v{vWD}, v{vT+6}, v{vT+7}, s{sT0}
    v_add_u32 v{vWD+1}, {8*2688-1024}, v{vWD}
    v_add_u32 v{vWD+2}, {2*(8*2688-1024)}, v{vWD}
    v_add_u32 v{vWD+3}, {3*(8*2688-1024)}, v{vWD}
    s_waitcnt lgkmcnt(0)
    """)
    st(0)
    srd(a, SX, 34, 35, 2048 * 896)
    srd(a, SW, 36, 37, 448 * 2688)
    a(f"s_cmp_eq_u32 s{sTY}, 0\ns_cbranch_scc1 L_GQ")
    def lds_addrs():
        a(f"""
        v_and_b32 v{vT+6}, 31, v2
        v_lshrrev_b32 v{vT+7}, 5, v2
        v_bfe_u32 v{vT+8}, v2, 1, 3
        v_xor_b32 v{vT+8}, v{vT+8}, v{vT+7}
        v_lshlrev_b32 v{vT+8}, 4, v{vT+8}
        v_lshl_add_u32 v{vT+8}, v{vT+6}, 7, v{vT+8}
        s_lshr_b32 s{sT0}, s{sWV}, 1
        s_lshl_b32 s{sT0}, s{sT0}, 13
        v_add_u32 v{vXA}, s{sT0}, v{vT+8}
        v_xor_b32 v{vXA+1}, 32, v{vXA}
        v_xor_b32 v{vXA+2}, 64, v{vXA}
        v_xor_b32 v{vXA+3}, 96, v{vXA}
        v_bfe_u32 v{vT+6}, v2, 2, 2
        v_lshl_add_u32 v{vT+6}, v{vT+7}, 3, v{vT+6}
        v_lshlrev_b32 v{vT+6}, 7, v{vT+6}
        v_and_b32 v{vT+8}, 3, v2
        v_lshlrev_b32 v{vT+8}, 3, v{vT+8}
        v_bfe_u32 v{vT+9}, v2, 4, 1
        v_lshl_add_u32 v{vT+8}, v{vT+9}, 5, v{vT+8}
        s_and_b32 s{sT0}, s{sWV}, 1
        s_mul_i32 s{sT0}, s{sT0}, 56
        v_add_u32 v{vT+8}, s{sT0}, v{vT+8}
        v_bfe_u32 v{vT+9}, v2, 3, 1
        v_lshlrev_b32 v{vT+9}, 6, v{vT+9}
        v_xor_b32 v{vT+8}, v{vT+8}, v{vT+9}
        v_add_u32 v{vT+6}, v{vT+6}, v{vT+8}
        v_add_u32 v{vWA}, 49152, v{vT+6}
        """)
        srd(a, SWS, 44, 45, WS_SIZE)
        srd(a, SO, 40, 41, 2048 * 1792)
        for i in range(32): a(f"v_mov_b32 v{GA+i}, {EPS}")
    vWO, vFQ, vFK, vFT, vWS = 40, 41, 42, 44, 46
    def fin_addrs():
        a(f"""
        s_and_b32 s{sT0}, s2, 31
        s_lshl_b32 s{sT0}, s{sT0}, 4
        s_lshl_b32 s{sT1}, s{sWV}, 2
        s_add_u32 s{sT0}, s{sT0}, s{sT1}
        s_lshl_b32 s{sT0}, s{sT0}, 4
        s_add_u32 s{sT0}, s{sT0}, {F_Q}
        v_and_b32 v{vFT}, 3, v2
        v_lshlrev_b32 v{vFT}, 4, v{vFT}
        v_add_u32 v{vFQ}, s{sT0}, v{vFT}
        s_lshl_b32 s{sT0}, s{sWV}, 9
        s_add_u32 s{sT0}, s{sT0}, {F_KV}
        v_and_b32 v{vFK}, 31, v2
        v_lshlrev_b32 v{vFK}, 4, v{vFK}
        v_add_u32 v{vFK}, s{sT0}, v{vFK}
        v_and_b32 v{vT+6}, 1, v{vT+3}
        v_lshlrev_b32 v{vT+6}, 2, v{vT+6}
        v_xor_b32 v{vT+6}, v{vT+6}, v{vT+2}
        v_lshlrev_b32 v{vT+6}, 4, v{vT+6}
        v_mul_u32_u24 v{vT+7}, 896, v{vT+1}
        s_mul_i32 s{sT0}, s{sWV}, {112*896}
        s_lshr_b32 s{sT1}, s2, 5
        s_lshl_b32 s{sT1}, s{sT1}, 7
        s_add_u32 s{sT0}, s{sT0}, s{sT1}
        v_add3_u32 v{vWO}, v{vT+6}, v{vT+7}, s{sT0}
        v_add_u32 v{vWS}, s{sXM}, v3
        v_add_u32 v{vWS+1}, s{sWM}, v3
        """)
    def gemm(kv):
        vm, lg = Cnt(a, "vmcnt"), Cnt(a, "lgkmcnt")
        nt = 2 if kv else 1
        nws = 2 if kv else 4
        wsz = 16384 if kv else 8192
        stage = {}
        def ld(kind, c, regs=None):
            n = 4 if kind == "x" else 2 * nt
            vD, S, sO = (vXD, SX, sXO) if kind == "x" else (vWD, SW, sWO)
            if regs is None:
                a(f"s_add_u32 m0, s{sXM if kind == 'x' else sWM}, {16384*(c%3) if kind == 'x' else wsz*(c%nws)}")
            else: stage[(kind, c)] = regs
            for j in range(n):
                if regs is None:
                    vm.op(f"buffer_load_dwordx4 v{vD+j}, s[{S}:{S+3}], s{sO} offen offset:{1024*j} lds", f"{kind}{c}")
                else:
                    vm.op(f"buffer_load_dwordx4 {vr(regs[1]+4*j,4,regs[0])}, v{vD+j}, s[{S}:{S+3}], s{sO} offen offset:{1024*j}", f"{kind}{c}")
            step, end = (128, 896) if kind == "x" else (64 * 2688, 448 * 2688)
            a(f"s_add_u32 s{sO}, s{sO}, {step}\ns_cmp_eq_u32 s{sO}, {end}\ns_cselect_b32 s{sO}, 0, s{sO}")
        def wr(kind, c):
            regs = stage[(kind, c)]
            n = 4 if kind == "x" else 2 * nt
            vm.wait(f"{kind}{c}")
            for j in range(n):
                off = (16384 * (c % 3) if kind == "x" else wsz * (c % nws)) + 1024 * j
                lg.op(f"ds_write_b128 v{vWS + (0 if kind == 'x' else 1)}, {vr(regs[1]+4*j,4,regs[0])} offset:{off}", "wr")
        def F(c, ks):
            b = ks & 1
            for n in range(nt):
                for i in range(2):
                    lg.op(f"ds_read_b64_tr_b16 {vr(WF+8*b+4*n+2*i,2)}, v{vWA} offset:{wsz*(c%nws) + ks*2048 + i*512 + n*8192}", f"f{c}{ks}")
            for t in range(2):
                lg.op(f"ds_read_b128 {vr(XF+8*b+4*t,4)}, v{vXA+ks} offset:{16384*(c%3) + 4096*t}", f"f{c}{ks}")
        def M(c, ks):
            b = ks & 1
            lg.wait(f"f{c}{ks}")
            for n in range(nt):
                for t in range(2):
                    acc = vr(GA + 16 * (n * 2 + t), 16)
                    cin = "0" if (c == 0 and ks == 0 and n == 1) else acc
                    xf, wf = vr(XF + 8 * b + 4 * t, 4), vr(WF + 8 * b + 4 * n, 4)
                    if kv: a(f"v_mfma_f32_32x32x16_bf16 {acc}, {xf}, {wf}, {cin}")
                    else:  a(f"v_mfma_f32_32x32x16_bf16 {acc}, {wf}, {xf}, {cin}")
        ld("x", 0); ld("w", 0); ld("x", 1); ld("w", 1); ld("x", 2)
        if kv:
            ld("w", 2, ("a", 0)); ld("x", 3, ("a", 16)); ld("w", 3, ("a", 32)); ld("x", 4, ("a", 48)); ld("w", 4, ("v", 160)); ld("x", 5, ("v", 176))
            late = {0: [("w", 5, ("a", 0)), ("x", 6, ("a", 16))], 1: [("w", 6, ("a", 32))]}
            wrs = {c: [x for x in (("w", c + 2), ("x", c + 3)) if x[1] < 7] for c in range(5)}
        else:
            ld("w", 2); ld("x", 3, ("a", 0)); ld("w", 3); ld("x", 4, ("a", 16)); ld("w", 4, ("v", 160)); ld("x", 5, ("a", 32)); ld("w", 5, ("v", 168))
            ld("x", 6, ("a", 48)); ld("w", 6, ("v", 176))
            late = {}
            wrs = {c: [x for x in (("x", c + 3), ("w", c + 4)) if x[1] < 7] for c in range(4)}
        lds_addrs(); fin_addrs()
        vm.wait(["x0", "w0"]); a("s_barrier")
        st(1)
        F(0, 0); F(0, 1)
        for c in range(7):
            W = wrs.get(c - 1, [])
            M(c, 0); F(c, 2)
            if len(W) > 1: wr(*W[1])
            M(c, 1); F(c, 3)
            if c == 4: k.init_issue(vm, vFT, 4)
            M(c, 2)
            if c < 6:
                dma = [f"{kd}{c+1}" for kd in "xw" if (kd, c + 1) not in stage]
                vm.wait(dma, "lgkmcnt(0)") if dma else a("s_waitcnt lgkmcnt(0)")
                lg.drain()
                a("s_barrier")
                F(c + 1, 0)
                M(c, 3)
                F(c + 1, 1)
                for l in late.get(c - 1, []): ld(*l)
                if wrs.get(c): wr(*wrs[c][0])
            else:
                lg.wait(f"f{c}3")
                a("s_barrier")
                M(c, 3)
        return vm
    def phi(base, n, dst):
        T = vT
        for i in range(0, n, 2):
            t = T + 2 * ((i // 2) & 3)
            x = base + i
            a(f"""
            v_pk_mul_f32 {vr(t,2)}, {vr(x,2)}, s[{sC1}:{sC1+1}]
            v_max_f32 v{x}, {EPS}, v{x}
            v_exp_f32_e64 v{t}, v{t} clamp
            v_exp_f32_e64 v{t+1}, v{t+1} clamp
            v_max_f32 v{x+1}, {EPS}, v{x+1}
            v_pk_add_f32 {vr(x,2)}, {vr(x,2)}, {vr(t,2)}
            v_cvt_pk_bf16_f32 v{dst + i//2}, v{x}, v{x+1}
            """)
    def wo_dma(vm):
        srd(a, SW, 38, 39, 448 * 896)
        a(f"s_mul_i32 s{sT1}, s{sWV}, 20480\ns_mov_b32 s{sT0}, 0")
        for i in range(15):
            a(f"s_add_u32 m0, s{sT1}, {1024*i}")
            if i: a(f"s_add_u32 s{sT0}, s{sT0}, 7168")
            else: a("s_nop 0")
            vm.op(f"buffer_load_dwordx4 v{vWO}, s[{SW}:{SW+3}], s{sT0} offen lds", "wo")
    PK, PV, KVD = 128, 144, 48
    vm = gemm(True)
    st(3)
    wo_dma(vm)
    st(4)
    phi(GA, 16, PK)
    for t in range(2):
        for i in range(8):
            a(f"v_cvt_pk_bf16_f32 v{PV+8*t+i}, v{GA+32+16*t+2*i}, v{GA+32+16*t+2*i+1}")
    a(f"s_mov_b32 exec_lo, {1<<28}\ns_mov_b32 exec_hi, {1<<28}")
    for i in range(16): a(f"v_mov_b32 v{PV+i}, 0x3f803f80")
    a("s_mov_b64 exec, -1")
    for u in range(2):
        a(f"v_mfma_f32_32x32x16_bf16 {vr(KVD,16)}, {vr(PK+4*u,4)}, {vr(PV+4*u,4)}, {'0' if u == 0 else vr(KVD,16)}")
    phi(GA + 16, 16, PK + 8)
    for u in range(2):
        a(f"v_mfma_f32_32x32x16_bf16 {vr(KVD,16)}, {vr(PK+8+4*u,4)}, {vr(PV+8+4*u,4)}, {vr(KVD,16)}")
    a(f"""
    s_mul_i32 s{sT0}, s{sWV}, 20480
    s_add_u32 s{sT0}, s{sT0}, 16384
    v_add_u32 v{vT}, s{sT0}, v3
    s_and_b32 s{sT0}, s{sWV}, 1
    s_lshr_b32 s{sT1}, s{sWV}, 1
    s_lshl_b32 s{sT1}, s{sT1}, 11
    s_mul_i32 s{sT2}, s{sT0}, 20480
    s_add_u32 s{sT2}, s{sT2}, s{sT1}
    s_add_u32 s{sT2}, s{sT2}, 16384
    v_lshlrev_b32 v{vT+3}, 2, v2
    v_add_u32 v{vT+2}, s{sT2}, v{vT+3}
    s_lshl_b32 s{sT0}, s{sT0}, 12
    s_add_u32 s{sT0}, s{sT0}, s{sT1}
    s_lshl_b32 s{sT1}, s{sP}, 13
    s_add_u32 s{sT1}, s{sT1}, s{sT0}
    s_add_u32 s{sT1}, s{sT1}, {WS_KVA}
    s_lshl_b32 s{sT2}, s{sP}, 4
    s_add_u32 s{sT2}, s{sT2}, s{sRB}
    s_lshl_b32 s{sT2}, s{sT2}, 4
    s_add_u32 s{sT2}, s{sT2}, {F_KV}
    """)
    k.init_check(vm, vFT, 4)
    a("s_mov_b32 exec_lo, 0")
    for i in range(12, 16): a(f"v_mov_b32 v{KVD+i}, 0")
    a("s_mov_b64 exec, -1")
    for q in range(4):
        a(f"ds_write_b128 v{vT}, {vr(KVD+4*q,4)} offset:{1024*q}")
    a("s_waitcnt lgkmcnt(0)\ns_barrier")
    for i in range(8):
        a(f"ds_read2st64_b32 {vr(GA+2*i,2)}, v{vT+2} offset0:{i} offset1:{160+i}")
    for i in range(8):
        a(f"s_waitcnt lgkmcnt({7-i})")
        a(f"v_add_f32 v{GA+2*i}, v{GA+2*i}, v{GA+2*i+1}")
        a(f"buffer_atomic_add_f32 v{GA+2*i}, v{vT+3}, {WSR}, s{sT1} offen offset:{256*i} sc1")
    st(5)
    vm.drain()
    k.poll_issue(vm, vFQ, vFT)
    a(f"s_waitcnt vmcnt(1)\ns_barrier\ns_cmp_lg_u32 s{sWV}, 0\ns_cbranch_scc1 L_kvf")
    k.flag(vm, sT2, vT)
    a("L_kvf:")
    st(6)
    a("s_cmp_ge_u32 s2, 224\ns_cbranch_scc1 L_end\ns_waitcnt vmcnt(0)\ns_branch L_fin3")
    a("L_GQ:")
    vm = gemm(False)
    st(3)
    a(f"""
    s_lshl_b32 s{sT3}, s{sRB}, 1
    s_lshr_b32 s{sT1}, s{sWV}, 1
    s_add_u32 s{sT3}, s{sT3}, s{sT1}
    s_lshl_b32 s{sT3}, s{sT3}, 4
    s_lshl_b32 s{sT1}, s{sP}, 1
    s_add_u32 s{sT1}, s{sT1}, s{sT3}
    s_and_b32 s{sT2}, s{sWV}, 1
    s_add_u32 s{sT1}, s{sT1}, s{sT2}
    s_lshl_b32 s{sT2}, s{sT1}, 4
    s_add_u32 s{sT2}, s{sT2}, {F_Q}
    s_add_u32 s{sT1}, s{sT1}, s{sT3}
    s_lshl_b32 s{sT3}, s{sT1}, 11
    s_add_u32 s{sT4}, s{sT3}, 32768
    """)
    for t in range(2):
        phi(GA + 16 * t, 16, PK + 8 * t)
        for ks in range(2):
            vm.op(f"buffer_store_dwordx4 {vr(PK+8*t+4*ks,4)}, v3, {WSR}, s{sT3 if t == 0 else sT4} offen offset:{WS_PQ + 1024*ks} {SC}", "pqs")
    st(4)
    k.init_check(vm, vFT, 4)
    wo_dma(vm)
    st(5)
    vm.wait("pqs")
    k.flag(vm, sT2, vT)
    st(6)
    a(f"buffer_load_dword v{vFT}, v{vFQ}, {WSR}, 0 offen {SC}\ns_waitcnt vmcnt(0)")
    A1, O, A2, KB, K23, WOFR = 16, 48, 64, 128, 144, 176
    vm = Cnt(a, "vmcnt"); lg = Cnt(a, "lgkmcnt")
    a("L_fin3:")
    a(f"v_mov_b32 v12, v{vFK}\nv_mov_b32 v13, v{vFQ}\nv_mov_b32 v14, v{vFT}")
    k.poll(vm, 13, 14, issued=True)
    st(7)
    a(f"""
    s_and_b32 s{sT0}, s2, 31
    s_lshl_b32 s{sT0}, s{sT0}, 16
    s_lshl_b32 s{sT1}, s{sWV}, 13
    s_add_u32 s{sT0}, s{sT0}, s{sT1}
    s_add_u32 s{sT1}, s{sT0}, 32768
    s_add_u32 s{sT2}, s{sT0}, 4096
    s_add_u32 s{sT3}, s{sT1}, 4096
    """)
    for hl in range(4):
        for t in range(2):
            for ks in range(2):
                so = [[sT0, sT1], [sT2, sT3]][hl >> 1][t]
                vm.op(f"buffer_load_dwordx4 {ar(16*hl+8*t+4*ks,4)}, v3, {WSR}, s{so} offen offset:{WS_PQ + 2048*(hl&1) + 1024*ks} {SC}", "pq")
    a(f"""
    s_lshl_b32 s{sT0}, s{sWV}, 14
    s_add_u32 s{sT0}, s{sT0}, {WS_KVA}
    s_mul_i32 s{sT1}, s{sWV}, 20480
    v_bfe_u32 v5, v2, 2, 2
    v_lshrrev_b32 v6, 5, v2
    v_lshl_add_u32 v5, v6, 2, v5
    v_lshlrev_b32 v5, 7, v5
    v_and_b32 v6, 1, v2
    v_lshl_add_u32 v5, v6, 5, v5
    v_bfe_u32 v6, v2, 4, 1
    v_lshl_add_u32 v5, v6, 4, v5
    v_bfe_u32 v6, v2, 1, 1
    v_lshl_add_u32 v5, v6, 3, v5
    v_bfe_u32 v6, v2, 3, 1
    v_lshl_add_u32 v5, v6, 6, v5
    v_xor_b32 v15, 64, v5
    v_add_u32 v5, s{sT1}, v5
    v_add_u32 v15, s{sT1}, v15
    s_mov_b32 s{sT2}, {EPS}
    s_mov_b32 s{sC1}, -1
    s_mov_b32 s{sC1+1}, 0
    """)
    k.poll(vm, 12, 14)
    vm.drain()
    st(8)
    def kvsrc(hl): return A1 + 16 * hl if hl < 2 else K23 + 16 * (hl - 2)
    def kvb(hl): return KB + 8 * hl if hl < 2 else K23 + 16 * (hl - 2)
    for hl in range(4):
        for q in range(4):
            vm.op(f"buffer_load_dwordx4 {vr(kvsrc(hl)+4*q,4)}, v3, {WSR}, s{sT0} offen offset:{1024*q} {SC}", f"kv{hl}")
        if hl < 3: a(f"s_add_u32 s{sT0}, s{sT0}, 4096")
    def ldwo(hl):
        for ks in range(2):
            for ct in range(2):
                for i in range(2):
                    lg.op(f"ds_read_b64_tr_b16 {vr(WOFR+8*ks+4*ct+2*i,2)}, v{15 if ct else 5} offset:{128*(28*hl+16*ks+8*i)}", f"wo{hl}")
    def cvtkv(hl):
        vm.wait(f"kv{hl}")
        for i in range(8): a(f"v_cvt_pk_bf16_f32 v{kvb(hl)+i}, v{kvsrc(hl)+2*i}, v{kvsrc(hl)+2*i+1}")
    def s1(u):
        hl, t = u >> 1, u & 1
        A = vr(A1 + 16 * (u & 1), 16)
        a(f"v_mfma_f32_32x32x16_bf16 {A}, {vr(kvb(hl),4)}, {ar(16*hl+8*t,4)}, 0")
        a(f"v_mfma_f32_32x32x16_bf16 {A}, {vr(kvb(hl)+4,4)}, {ar(16*hl+8*t+4,4)}, {A}")
    DN = 6
    ldwo(0)
    cvtkv(0); cvtkv(1)
    s1(0)
    for u in range(8):
        hl, t = u >> 1, u & 1
        A = A1 + 16 * (u & 1); Ou = O + 8 * (u & 1)
        if u + 1 < 8:
            if u + 1 in (4, 6): cvtkv((u + 1) >> 1)
            s1(u + 1)
        a(f"""
        v_mov_b32 v{DN}, v{A+12}
        v_mov_b32 v{DN+2}, v{A+12}
        v_permlane32_swap_b32 v{DN}, v{DN+2}
        v_add_f32 v{DN+2}, s{sT2}, v{DN+2}
        v_rcp_f32 v{DN+2}, v{DN+2}
        """)
        for i in range(8):
            a(f"v_pk_mul_f32 {vr(A+2*i,2)}, {vr(A+2*i,2)}, {vr(DN+2,2)} op_sel_hi:[1,0]")
            a(f"v_cvt_pk_bf16_f32 v{Ou+i}, v{A+2*i}, v{A+2*i+1}")
        a(f"v_cndmask_b32 v{Ou+6}, 0, v{Ou+6}, s[{sC1}:{sC1+1}]\nv_cndmask_b32 v{Ou+7}, 0, v{Ou+7}, s[{sC1}:{sC1+1}]")
        if t == 0: lg.wait(f"wo{hl}")
        for ks in range(2):
            for ct in range(2):
                acc = vr(A2 + 32 * t + 16 * ct, 16)
                cin = "0" if (hl == 0 and ks == 0) else acc
                a(f"v_mfma_f32_32x32x16_bf16 {acc}, {vr(WOFR+8*ks+4*ct,4)}, {vr(Ou+4*ks,4)}, {cin}")
        if t == 1 and hl < 3: ldwo(hl + 1)
    a(f"""
    v_and_b32 v6, 31, v2
    v_mul_u32_u24 v6, 272, v6
    v_lshrrev_b32 v7, 5, v2
    v_lshl_add_u32 v6, v7, 6, v6
    v_add_u32 v6, s{sT1}, v6
    v_lshrrev_b32 v7, 3, v0
    v_and_b32 v8, 7, v0
    v_mul_u32_u24 v9, 272, v7
    v_lshl_add_u32 v9, v8, 5, v9
    v_add_u32 v10, 40960, v9
    v_mul_u32_u24 v11, 1792, v7
    v_lshl_add_u32 v11, v8, 4, v11
    s_and_b32 s{sT0}, s2, 31
    s_mul_i32 s{sT0}, s{sT0}, {64*1792}
    s_lshr_b32 s{sT2}, s2, 5
    s_lshl_b32 s{sT2}, s{sT2}, 7
    s_add_u32 s{sT0}, s{sT0}, s{sT2}
    s_add_u32 s{sT0}, s{sT0}, 896
    s_add_u32 s{sT2}, s{sT0}, {32*1792}
    """)
    for t in range(2):
        for ct in range(2):
            for i in range(4):
                a(f"ds_write_b128 v6, {vr(A2+32*t+16*ct+4*i,4)} offset:{32*272*t + 128*ct + 16*i}")
    st(9)
    a("s_waitcnt lgkmcnt(0)\ns_barrier")
    st(10)
    R = 64
    for t in range(2):
        for w in range(4):
            for h in range(2):
                a(f"ds_read_b128 {vr(R+32*t+8*w+4*h,4)}, v{9 if w < 2 else 10} offset:{20480*(w&1) + 32*272*t + 16*h}")
    for t in range(2):
        b = R + 32 * t
        a(f"s_waitcnt lgkmcnt({8 if t == 0 else 0})")
        for i in range(4):
            a(f"v_pk_add_f32 {vr(b+2*i,2)}, {vr(b+2*i,2)}, {vr(b+8+2*i,2)}")
            a(f"v_pk_add_f32 {vr(b+16+2*i,2)}, {vr(b+16+2*i,2)}, {vr(b+24+2*i,2)}")
        for i in range(4):
            a(f"v_pk_add_f32 {vr(b+2*i,2)}, {vr(b+2*i,2)}, {vr(b+16+2*i,2)}")
        for i in range(4):
            a(f"v_cvt_pk_bf16_f32 v{b+8+i}, v{b+2*i}, v{b+2*i+1}")
        a(f"buffer_store_dwordx4 {vr(b+8,4)}, v11, s[{SO}:{SO+3}], s{sT0 if t == 0 else sT2} offen")
    st.end(1)
    a("s_endpgm")

from v3s import gen_S
```

```python
import os
from asmlib import *
import v3
from v3 import *

def gen_S(k, st):
    a = k.a
    sJB, sIDX, sCG, sHH, sKB, sCH, sIT, sPH, sO0 = sA, sB, sC, sD, sE, sF, sG, sH, sI
    vm, lg = Cnt(a, "vmcnt"), Cnt(a, "lgkmcnt")
    P0 = 8
    UG, UG2 = 24, 32
    vT = 40
    IN = 56
    a(f"""
    L_S:
    s_setprio 1
    s_and_b32 s{sJB}, s2, 7
    s_bfe_u32 s{sIDX}, s2, 0x50003
    s_cmp_eq_u32 s{sJB}, 7
    s_cbranch_scc1 L_aux
    {'s_endpgm' if os.environ.get('SKIP_S') else ''}
    s_lshl_b32 s{sCG}, s{sJB}, 4
    s_lshr_b32 s{sT0}, s{sIDX}, 1
    s_add_u32 s{sCG}, s{sCG}, s{sT0}
    s_and_b32 s{sHH}, s{sIDX}, 1
    s_lshl_b32 s{sT0}, s{sJB}, 5
    s_add_u32 s{sT0}, s{sT0}, s{sIDX}
    s_lshl_b32 s{sT1}, s{sT0}, 10
    v_lshlrev_b32 v5, 1, v0
    v_add_u32 v5, s{sT1}, v5
    s_lshl_b32 s{sT1}, s{sT0}, 2
    v_mov_b32 v6, s{sT1}
    s_lshl_b32 s{sT1}, s{sIDX}, 2
    s_add_u32 s{sT1}, s{sT1}, s{sWV}
    s_mul_i32 s{sT1}, s{sT1}, {16*896}
    s_lshl_b32 s{sT2}, s{sJB}, 7
    s_add_u32 s{sT1}, s{sT1}, s{sT2}
    v_lshlrev_b32 v7, 1, v2
    v_add_u32 v7, s{sT1}, v7
    s_waitcnt lgkmcnt(0)
    """)
    st(0)
    for c in range(2):
        for i in range(6):
            vm.op(f"global_load_short_d16_hi v{P0+8*c+i}, v5, s[{18+2*i}:{19+2*i}] offset:{512*c}", f"p{c}")
        vm.op(f"global_load_short_d16_hi v{P0+8*c+6}, v6, s[30:31] offset:{2*c}", f"p{c}")
        vm.op(f"global_load_short_d16_hi v{P0+8*c+7}, v6, s[32:33] offset:{2*c}", f"p{c}")
    for i in range(16):
        if i and i % 4 == 0: a(f"v_add_u32 v7, {4*896}, v7")
        vm.op(f"global_load_{'short_d16_hi' if i&1 else 'ushort'} v{(UG2 if i&1 else UG)+i//2}, v7, s[16:17] offset:{(i%4)*896}", "ug")
    srd(a, SWS, 44, 45, WS_SIZE)
    srd(a, SO, 40, 41, 2048 * 1792)
    KA, KB_, DS0 = 60, 61, 62
    ACC = 64; FR = 96
    E1, E8, E256, E2, E4, Wc, X0, X1, G0, G1, Y0, Y1 = [112 + 2 * i for i in range(12)]
    t0, t1, t2, t3, pk = 136, 137, 138, 139, 140
    EA = 144
    AD = 154
    UR = 160
    vFU, vFP, vGS, vGR, vGO = 176, 177, 178, 179, 180
    a(f"""
    s_mul_i32 s{sKB}, s{sWV}, {WREG}
    v_and_b32 v{t0}, 31, v2
    v_lshrrev_b32 v{t1}, 5, v2
    v_lshlrev_b32 v{t1}, 4, v{t1}
    v_add_u32 v{t1}, s{sKB}, v{t1}
    v_min_u32 v{t2}, 20, v{t0}
    v_mul_u32_u24 v{t2}, {ROWB}, v{t2}
    v_add_u32 v{KA}, v{t2}, v{t1}
    v_mul_u32_u24 v{t2}, {ROWB}, v{t0}
    v_add_u32 v{KB_}, v{t2}, v{t1}
    s_mov_b32 m0, s{sKB}
    v_mul_u32_u24 v{vGS}, 144, v2
    s_lshl_b32 s{sT0}, s{sWV}, 5
    s_add_u32 s{sT0}, s{sT0}, {USTG}
    v_add_u32 v{vGS}, s{sT0}, v{vGS}
    v_lshrrev_b32 v{t2}, 3, v2
    v_and_b32 v{t3}, 7, v2
    v_mul_u32_u24 v{vGR}, 144, v{t2}
    v_lshl_add_u32 v{vGR}, v{t3}, 4, v{vGR}
    s_mul_i32 s{sT0}, s{sWV}, {16*144}
    s_add_u32 s{sT0}, s{sT0}, {USTG}
    v_add_u32 v{vGR}, s{sT0}, v{vGR}
    v_lshlrev_b32 v{vGO}, 12, v{t2}
    v_lshl_add_u32 v{vGO}, v{t3}, 4, v{vGO}
    s_lshl_b32 s{sT0}, s{sJB}, 2
    s_add_u32 s{sT0}, s{sT0}, s{sWV}
    s_lshl_b32 s{sT1}, s{sT0}, 16
    s_lshl_b32 s{sT2}, s{sIDX}, 7
    s_add_u32 s{sT1}, s{sT1}, s{sT2}
    s_add_u32 s{sT1}, s{sT1}, {WS_UT}
    s_add_u32 s{sT2}, s{sT1}, 32768
    s_lshl_b32 s{sT0}, s{sT0}, 5
    s_add_u32 s{sT0}, s{sT0}, s{sIDX}
    s_lshl_b32 s{sT0}, s{sT0}, 4
    s_add_u32 s{sJ}, s{sT0}, {F_UT}
    s_lshr_b32 s{sT0}, s{sCG}, 2
    s_lshl_b32 s{sT0}, s{sT0}, 9
    s_add_u32 s{sT0}, s{sT0}, {F_UT}
    v_lshlrev_b32 v{vFU}, 4, v{t0}
    v_add_u32 v{vFU}, s{sT0}, v{vFU}
    s_lshl_b32 s{sT0}, s{sJB}, 5
    s_add_u32 s{sT0}, s{sT0}, s{sIDX}
    s_xor_b32 s{sT0}, s{sT0}, 1
    s_lshl_b32 s{sT0}, s{sT0}, 6
    s_add_u32 s{sT0}, s{sT0}, {F_KF}
    v_and_b32 v{vFP}, 3, v2
    v_lshlrev_b32 v{vFP}, 2, v{vFP}
    v_add_u32 v{vFP}, s{sT0}, v{vFP}
    """)
    a(f"""
    s_cmp_eq_u32 s{sWV}, 1
    s_cselect_b32 s{sT0}, 4, 8
    s_cselect_b32 s{sT3}, 2, 8
    s_cselect_b32 s{sT4}, 256, 0
    s_cselect_b32 s{sCH}, 384, 4
    s_cmp_eq_u32 s{sWV}, 2
    s_cselect_b32 s{sT0}, 1, s{sT0}
    s_cselect_b32 s{sT3}, 1, s{sT3}
    s_cselect_b32 s{sT4}, 512, s{sT4}
    s_cselect_b32 s{sCH}, 640, s{sCH}
    s_cselect_b32 s{sIT}, 32, 1
    v_mul_u32_u24 v{AD}, s{sT0}, v{t0}
    v_add_u32 v{AD}, s{sT4}, v{AD}
    v_mul_u32_u24 v{AD+1}, s{sT3}, v{t0}
    v_add_u32 v{AD+1}, s{sCH}, v{AD+1}
    v_cmp_gt_u32 vcc, 32, v2
    s_lshl_b32 s{sT0}, s{sIT}, 1
    s_cmp_eq_u32 s{sWV}, 0
    s_cselect_b32 s{sT3}, 2, 64
    v_mov_b32 v{t2}, s{sT3}
    v_mov_b32 v{t3}, s{sT0}
    v_cndmask_b32 v{AD}, v{AD+1}, v{AD}, vcc
    v_cndmask_b32 v{t3}, v{t2}, v{t3}, vcc
    v_add_u32 v{AD+1}, s{sIT}, v{AD}
    v_add_u32 v{AD+2}, v{AD}, v{t3}
    v_add_u32 v{AD+3}, s{sIT}, v{AD+2}
    v_mov_b32 v{t3}, {TTAB}
    """)
    for i in range(4): a(f"v_lshl_add_u32 v{AD+i}, v{AD+i}, 1, v{t3}")
    a(f"v_lshlrev_b32 v{t2}, 3, v0\nv_sub_u32 v{t2}, 2047, v{t2}")
    for e in range(9):
        a(f"v_subrev_u32 v{EA+e}, {e}, v{t2}")
        a(f"v_cvt_f32_i32 v{FR+e}, v{EA+e}")
    for e in range(0, 10, 2):
        a(f"v_cvt_pk_bf16_f32 v{FR+e}, v{FR+e}, v{FR+min(e+1,8)}")
        if e < 8: a(f"v_lshrrev_b32 v{FR+e+1}, 16, v{FR+e}")
        a(f"v_and_b32 v{FR+e}, 0xffff, v{FR+e}")
    for e in range(9):
        if e in (0, 8): a(f"v_cmp_gt_i32 vcc, 128, v{EA+e}")
        a(f"v_subrev_u32 v{FR+e}, 17024, v{FR+e}")
        a(f"v_cndmask_b32 v{EA+e}, v{FR+e}, v{EA+e}, vcc")
        a(f"v_lshl_add_u32 v{EA+e}, v{EA+e}, 1, v{t3}")
    vm.wait("ug")
    st(1)
    for i in range(8): a(f"v_or_b32 v{UG+i}, v{UG+i}, v{UG2+i}")
    a(f"""
    ds_write_b128 v{vGS}, {vr(UG,4)}
    ds_write_b128 v{vGS}, {vr(UG+4,4)} offset:16
    s_waitcnt lgkmcnt(0)
    s_barrier
    ds_read_b128 {vr(UG,4)}, v{vGR}
    ds_read_b128 {vr(UG+4,4)}, v{vGR} offset:{8*144}
    """)
    def kgen(c):
        P = P0 + 8 * c
        AC = ACC + 16 * c
        a(f"""
        v_mul_f32 v{t0}, {LOG2E}, v{P+6}
        v_exp_f32 v{t0}, v{t0}
        v_cvt_pk_bf16_f32 v{t0}, v{t0}, v{t0}
        v_lshlrev_b32 v{t0}, 16, v{t0}
        v_mul_f32 v{t1}, v{t0}, v{P}
        v_mul_f32 v{t2}, v{t0}, v{P+1}
        v_mul_f32 v{t1}, {LOG2E}, v{t1}
        v_mul_f32 v{t2}, {INV2PI}, v{t2}
        v_mul_f32 v{P+2}, v{t0}, v{P+2}
        v_mul_f32 v{P+3}, v{t0}, v{P+3}
        """)
        cmul(a, Wc, P + 4, P + 2)
        for (E, m, cj) in ((E8, 8.0, True), (E1, 1.0, False), (E256, 256.0, False)):
            a(f"""
            v_mul_f32 v{t0}, {f2u(m)}, v{t1}
            v_mul_f32 v{t3}, {f2u(m)}, v{t2}
            v_exp_f32 v{t0}, v{t0}
            v_fract_f32 v{t3}, v{t3}
            v_cos_f32 v{E}, v{t3}
            v_sin_f32 v{E+1}, v{t3}
            v_mul_f32 v{E}, v{E}, v{t0}
            v_mul_f32_e64 v{E+1}, {'-' if cj else ''}v{E+1}, v{t0}
            """)
        yield "head"
        cnt = [0]
        def put(row, src):
            r = pk + (cnt[0] & 3); cnt[0] += 1
            a(f"v_cvt_pk_bf16_f32 v{r}, v{src}, v{src+1}")
            a(f"ds_write_addtid_b32 v{r} offset:{row * ROWB}")
        if c == 0:
            a(f"v_mov_b32 v{t0}, 0x3f80")
            a(f"ds_write_addtid_b32 v{t0} offset:{21*ROWB}")
        put(22, E8); put(0, Wc)
        cmul(a, E2, E1, E1); cmul(a, E4, E2, E2)
        fine, cur = [], E8
        for f in range(2, 32):
            nxt = X0 if cur != X0 else X1
            fine.append((nxt, cur, E8, 21 + f)); cur = nxt
        coarse, cur = [], Wc
        for cc in range(1, 8):
            nxt = Y0 if cur != Y0 else Y1
            coarse.append((nxt, cur, E1, cc)); cur = nxt
        coarse.append((G0, Wc, E256, 8)); cur = G0
        for cc in range(1, 4):
            nxt = Y0 if cur != Y0 else Y1
            coarse.append((nxt, cur, E2, 8 + cc)); cur = nxt
        coarse += [(G1, G0, E256, 12), (Y0, G1, E4, 13), (G0, G1, E256, 14), (Y0, G0, E4, 15)]
        g = G0
        for i in range(5):
            n = G1 if g == G0 else G0
            coarse.append((n, g, E256, 16 + i)); g = n
        seq = []
        for i in range(max(len(fine), len(coarse))):
            if i < len(fine): seq.append(fine[i])
            if i < len(coarse): seq.append(coarse[i])
        for (d, x, y, row) in seq:
            cmul(a, d, x, y); put(row, d)
        yield "tables"
        a("s_waitcnt lgkmcnt(0)")
        bufs = [FR, FR + 8, vT, vT + 8]
        for jj in range(4):
            a(f"ds_read_b128 {vr(bufs[jj],4)}, v{KA} offset:{32*jj}")
            a(f"ds_read_b128 {vr(bufs[jj]+4,4)}, v{KB_} offset:{21*ROWB+32*jj}")
        yield "reads"
        for j in range(8):
            fb = bufs[j & 3]
            a(f"s_waitcnt lgkmcnt({6 if j < 5 else 2*(7-j)})")
            a(f"v_mfma_f32_32x32x16_bf16 {vr(AC,16)}, {vr(fb,4)}, {vr(fb+4,4)}, {'0' if j == 0 else vr(AC,16)}")
            if j + 4 < 8:
                a(f"ds_read_b128 {vr(fb,4)}, v{KA} offset:{32*(j+4)}")
                a(f"ds_read_b128 {vr(fb+4,4)}, v{KB_} offset:{21*ROWB+32*(j+4)}")
        yield "done"
    g0, g1 = kgen(0), kgen(1)
    next(g0)
    a("s_waitcnt lgkmcnt(0)")
    vm.op(f"buffer_store_dwordx4 {vr(UG,4)}, v{vGO}, {WSR}, s{sT1} offen {SC}", "us")
    vm.op(f"buffer_store_dwordx4 {vr(UG+4,4)}, v{vGO}, {WSR}, s{sT2} offen {SC}", "us")
    k.init_issue(vm, IN, 4)
    next(g0)
    next(g0)
    st(2)
    k.init_check(vm, IN, 4)
    st(3)
    k.flag(vm, sJ, t0)
    next(g1)
    next(g0)
    k.poll_issue(vm, vFU, IN)
    next(g1)
    next(g1)
    st(4)
    k.poll(vm, vFU, IN, issued=True)
    st(5)
    a(f"""
    s_lshl_b32 s{sT0}, s{sCG}, 2
    s_add_u32 s{sT0}, s{sT0}, s{sWV}
    s_lshl_b32 s{sT0}, s{sT0}, 12
    s_add_u32 s{sT0}, s{sT0}, {WS_UT}
    """)
    vm.drain()
    for i in range(4):
        vm.op(f"buffer_load_dwordx4 {vr(UR+4*i,4)}, v3, {WSR}, s{sT0} offen offset:{1024*i} {SC}", "u")
    next(g1)
    st(6)
    a(f"v_add_u32 v{t1}, s{sKB}, v3")
    for c in range(2):
        for q in range(3):
            a(f"ds_write_b128 v{t1}, {vr(ACC+16*c+4*q,4)} offset:{(3*c+q)*1024}")
    a(f"""
    v_cmp_eq_u32 vcc, 0, v0
    s_lshl_b32 s{sT1}, s{sWV}, 10
    v_add_u32 v{t1}, s{sT1}, v3
    v_cndmask_b32 v{P0+7}, 0, v{P0+7}, vcc
    v_cndmask_b32 v{P0+15}, 0, v{P0+15}, vcc
    s_waitcnt lgkmcnt(0)
    s_barrier
    s_cmp_eq_u32 s{sWV}, 3
    s_cbranch_scc1 L_nored
    """)
    RD = ACC
    for c in range(2):
        for w in range(4):
            a(f"ds_read_b128 {vr(RD+16*c+4*w,4)}, v{t1} offset:{w*WREG + c*3072}")
    for c in range(2):
        a("s_waitcnt lgkmcnt(4)")
        b = RD + 16 * c
        a(f"""
        v_add_f32 v{b}, v{P0+8*c+7}, v{b}
        v_pk_add_f32 {vr(b,2)}, {vr(b,2)}, {vr(b+4,2)}
        v_pk_add_f32 {vr(b+2,2)}, {vr(b+2,2)}, {vr(b+6,2)}
        v_pk_add_f32 {vr(b+8,2)}, {vr(b+8,2)}, {vr(b+12,2)}
        v_pk_add_f32 {vr(b+10,2)}, {vr(b+10,2)}, {vr(b+14,2)}
        v_pk_add_f32 {vr(b,2)}, {vr(b,2)}, {vr(b+8,2)}
        v_pk_add_f32 {vr(b+2,2)}, {vr(b+2,2)}, {vr(b+10,2)}
        v_cvt_pk_bf16_f32 v{b}, v{b}, v{b+1}
        v_cvt_pk_bf16_f32 v{b+1}, v{b+2}, v{b+3}
        ds_write_b16 v{AD}, v{b} offset:{c*TSTR}
        ds_write_b16_d16_hi v{AD+1}, v{b} offset:{c*TSTR}
        ds_write_b16 v{AD+2}, v{b+1} offset:{c*TSTR}
        ds_write_b16_d16_hi v{AD+3}, v{b+1} offset:{c*TSTR}
        """)
    a(f"""
    L_nored:
    s_waitcnt lgkmcnt(0)
    s_barrier
    """)
    GE = 96
    for c in range(2):
        for e in range(9):
            a(f"ds_read_u16 v{GE+10*c+e}, v{EA+e} offset:{c*TSTR}")
    a(f"""
    v_lshrrev_b32 v{t0}, 3, v2
    v_mul_u32_u24 v{t0}, {CBK}, v{t0}
    v_bfe_u32 v{t1}, v2, 2, 1
    v_mul_u32_u24 v{t1}, {C1}, v{t1}
    v_and_b32 v{t2}, 3, v2
    v_lshlrev_b32 v{t2}, 4, v{t2}
    v_add3_u32 v{t0}, v{t0}, v{t1}, v{t2}
    v_add_u32 v{t0}, 4096, v{t0}
    v_bfe_u32 v{t1}, v2, 1, 2
    v_mul_u32_u24 v{t1}, {CBK}, v{t1}
    v_and_b32 v{t2}, 1, v2
    v_mul_u32_u24 v{t2}, {U1-U0}, v{t2}
    v_add3_u32 v{t1}, v{t1}, v{t2}, {0}
    v_add_u32 v{t1}, {U0-16}, v{t1}
    v_cmp_gt_u32 vcc, 32, v2
    v_mov_b32 v{vT}, 0
    v_mov_b32 v{vT+1}, 0
    v_cndmask_b32 v{t0}, v{t1}, v{t0}, vcc
    v_mov_b32 v{vT+2}, 0
    v_mov_b32 v{vT+3}, 0
    ds_write_b128 v{t0}, {vr(vT,4)}
    v_lshlrev_b32 v{t0}, 4, v0
    s_lshl_b32 s{sT0}, s{sHH}, 1
    s_mul_i32 s{sT0}, s{sT0}, {CBK}
    v_add_u32 v{t1}, s{sT0}, v{t0}
    s_lshl_b32 s{sT1}, s{sJB}, 5
    s_add_u32 s{sT1}, s{sT1}, s{sIDX}
    s_lshl_b32 s{sT2}, s{sT1}, 4
    s_add_u32 s{sT2}, s{sT2}, s{sWV}
    s_lshl_b32 s{sT2}, s{sT2}, 2
    s_add_u32 s{sJ}, s{sT2}, {F_KF}
    s_lshl_b32 s{sT1}, s{sT1}, 13
    s_add_u32 s{sT1}, s{sT1}, {WS_KF}
    s_add_u32 s{sT2}, s{sT1}, 4096
    v_cmp_eq_u32 vcc, 255, v0
    """)
    CW = 64
    for c in range(2):
        g = GE + 10 * c
        a(f"s_waitcnt lgkmcnt({10 if c == 0 else 3})")
        for i in range(4): a(f"v_lshl_or_b32 v{CW+8*c+i}, v{g+2*i+1}, 16, v{g+2*i}")
        vm.op(f"buffer_store_dwordx4 {vr(CW+8*c,4)}, v{t0}, {WSR}, s{sT1 if c == 0 else sT2} offen {SC}", "ks")
        a(f"ds_write_b128 v{t1}, {vr(CW+8*c,4)} offset:{c*CBK + C0}")
        a(f"v_cndmask_b32 v{g+8}, v{g+8}, 0, vcc")
        for i in range(4): a(f"v_lshl_or_b32 v{CW+8*c+4+i}, v{g+2*i+2}, 16, v{g+2*i+1}")
        a(f"ds_write_b128 v{t1}, {vr(CW+8*c+4,4)} offset:{c*CBK + C1}")
    a(f"s_mul_i32 s{sT0}, s{sWV}, {CBK}\nv_add_u32 v{t1}, s{sT0}, v3")
    vm.wait("u")
    UB_ = 80
    for i in range(4):
        b = UR + 4 * i; d = UB_ + 4 * i
        a(f"ds_write_b128 v{t1}, {vr(b,4)} offset:{U0 + 1024*i}")
        if i == 0: a(f"v_mov_b32 v{d}, 0")
        else:
            a(f"v_readlane_b32 s{sT0}, v{b-1}, 63")
            a(f"v_mov_b32 v{d}, s{sT0}")
        for q in range(3): a(f"v_mov_b32 v{d+1+q}, v{b+q}")
        a(f"v_mov_b32_dpp v{d}, v{b+3} wave_shr:1 row_mask:0xf bank_mask:0xf")
        a(f"ds_write_b128 v{t1}, {vr(d,4)} offset:{U1 + 1024*i}")
    vKL, vUL, vZL, vKA, vUA, vU0, vZ = 8, 9, 10, 11, 12, 13, 14
    SAVE = 16; A = 32; KF0, UF0 = 48, 112
    a(f"""
    v_and_b32 v5, 15, v2
    v_lshrrev_b32 v6, 4, v2
    v_and_b32 v7, 1, v2
    v_lshrrev_b32 v5, 1, v5
    v_sub_u32 v15, 1, v7
    v_mul_u32_u24 v{vKL}, {C1}, v15
    v_lshl_add_u32 v{vKL}, v6, 4, v{vKL}
    v_lshlrev_b32 v7, 3, v5
    v_sub_u32 v{vKL}, v{vKL}, v7
    s_and_b32 s{sT0}, s{sWV}, 1
    s_lshl_b32 s{sT0}, s{sT0}, 8
    s_sub_u32 s{sT1}, {2*(2044-1792)}, s{sT0}
    v_add_u32 v{vKL}, s{sT1}, v{vKL}
    v_mul_u32_u24 v{vZL}, {U1-U0}, v15
    v_add_u32 v{vZL}, {U0-16}, v{vZL}
    v_lshl_add_u32 v{vUL}, v5, 6, v{vZL}
    v_lshl_add_u32 v{vUL}, v6, 4, v{vUL}
    s_sub_u32 s{sT1}, 16, s{sT0}
    v_add_u32 v{vUL}, s{sT1}, v{vUL}
    s_lshr_b32 s{sT0}, s{sWV}, 1
    s_lshl_b32 s{sT1}, s{sHH}, 1
    s_add_u32 s{sT0}, s{sT0}, s{sT1}
    s_mul_i32 s{sKB}, s{sT0}, {CBK}
    s_mov_b32 s{sPH}, 0
    s_waitcnt lgkmcnt(0)
    s_barrier
    """)
    st(7)
    TS = {0: [1, 2, 5, 6], 1: [0, 3, 4, 7]}
    def loadlist(s, H):
        L = []; K_, U_ = KF0 + 32 * s, UF0 + 32 * s
        for x in range(8 if H else 7):
            L.append(f"ds_read_b128 {vr(U_+4*x,4)}, v{vU0 if x == 0 else vUA} offset:{512*x}")
            L.append(f"ds_read_b64 {vr(K_+4*x,2)}, v{vKA} offset:{512*(7-x)}")
            L.append(f"ds_read_b64 {vr(K_+4*x+2,2)}, v{vKA} offset:{512*(7-x)+8}")
        return L
    def step():
        a(f"v_subrev_u32 v{vKA}, 64, v{vKA}\nv_subrev_u32 v{vUA}, 64, v{vUA}\nv_max_i32 v{vU0}, v{vZ}, v{vUA}")
    a(f"""
    L_phase:
    v_add_u32 v{vKA}, s{sKB}, v{vKL}
    v_add_u32 v{vUA}, s{sKB}, v{vUL}
    v_add_u32 v{vZ}, s{sKB}, v{vZL}
    v_max_i32 v{vU0}, v{vZ}, v{vUA}
    s_mov_b32 s{sIT}, 0
    """)
    for i in range(16): a(f"v_mov_b32 v{A+i}, 0")
    a(f"s_cmp_eq_u32 s{sHH}, 0\ns_cbranch_scc1 L_cv0pre")
    for H in (1, 0):
        if H == 0: a("L_cv0pre:")
        for l in loadlist(0, H): a(l)
        step()
        a(f"L_cv{H}:")
        for s in range(2):
            L = loadlist(1 - s, H)
            K_, U_ = KF0 + 32 * s, UF0 + 32 * s
            a("s_waitcnt lgkmcnt(0)")
            prs = [(c, mt - c, n) for n, mt in enumerate(TS[H]) for c in range(mt + 1)]
            prs.sort(key=lambda x: (max(x[0], x[1]), x[2]))
            li = 0
            for n, (c, m, tn) in enumerate(prs):
                acc = vr(A + 4 * tn, 4)
                a(f"v_mfma_f32_16x16x32_bf16 {acc}, {vr(K_+4*c,4)}, {vr(U_+4*m,4)}, {acc}")
                tgt = min(len(L), (n + 1) * len(L) // 15 + 1)
                while li < tgt: a(L[li]); li += 1
            while li < len(L): a(L[li]); li += 1
            step()
        a(f"""
        s_add_u32 s{sIT}, s{sIT}, 1
        s_cmp_eq_u32 s{sIT}, 2
        s_cbranch_scc1 L_cvdone
        s_cmp_eq_u32 s{sPH}, 1
        s_cbranch_scc1 L_cv{H}
        s_waitcnt vmcnt(0)
        """)
        k.flag(Cnt(a, "vmcnt"), sJ, 5)
        a(f"buffer_load_dword v15, v{vFP}, {WSR}, 0 offen {SC}")
        a(f"s_branch L_cv{H}")
    a(f"""
    L_cvdone:
    s_cmp_eq_u32 s{sPH}, 1
    s_cbranch_scc1 L_cvend
    """)
    st(8)
    for i in range(16): a(f"v_mov_b32 v{SAVE+i}, v{A+i}")
    vm.drain(); vm.q = ["poll"]
    k.poll(vm, vFP, 15, issued=True)
    st(9)
    PKR = 48
    a(f"""
    s_waitcnt lgkmcnt(0)
    s_lshl_b32 s{sT0}, s{sJB}, 5
    s_add_u32 s{sT0}, s{sT0}, s{sIDX}
    s_xor_b32 s{sT0}, s{sT0}, 1
    s_lshl_b32 s{sT0}, s{sT0}, 13
    s_lshl_b32 s{sT1}, s{sWV}, 11
    s_add_u32 s{sT0}, s{sT0}, s{sT1}
    s_add_u32 s{sT0}, s{sT0}, {WS_KF}
    buffer_load_dwordx4 {vr(PKR,4)}, v3, {WSR}, s{sT0} offen {SC}
    buffer_load_dwordx4 {vr(PKR+6,4)}, v3, {WSR}, s{sT0} offen offset:1024 {SC}
    buffer_load_dword v{PKR+10}, off, {WSR}, s{sT0} offset:2048 {SC}
    s_xor_b32 s{sT1}, s{sHH}, 1
    s_lshl_b32 s{sT1}, s{sT1}, 1
    s_lshr_b32 s{sT2}, s{sWV}, 1
    s_add_u32 s{sT1}, s{sT1}, s{sT2}
    s_mul_i32 s{sKB}, s{sT1}, {CBK}
    s_and_b32 s{sT2}, s{sWV}, 1
    s_lshl_b32 s{sT1}, s{sT2}, 11
    s_add_u32 s{sT1}, s{sT1}, s{sKB}
    v_add_u32 v5, s{sT1}, v3
    s_sub_u32 s{sT2}, s{sT2}, 1
    s_mov_b32 s{sPH}, 1
    s_waitcnt vmcnt(0)
    v_and_b32 v{PKR+10}, s{sT2}, v{PKR+10}
    v_readlane_b32 s{sT0}, v{PKR+6}, 0
    ds_write_b128 v5, {vr(PKR,4)} offset:{C0}
    ds_write_b128 v5, {vr(PKR+6,4)} offset:{C0+1024}
    v_mov_b32 v{PKR+4}, s{sT0}
    v_mov_b32_dpp v{PKR+10}, v{PKR+6} wave_shl:1 row_mask:0xf bank_mask:0xf
    v_mov_b32_dpp v{PKR+4}, v{PKR} wave_shl:1 row_mask:0xf bank_mask:0xf
    """)
    for i in range(2):
        b = PKR + 6 * i
        for q in range(4): a(f"v_alignbit_b32 v{PKR+12+4*i+q}, v{b+q+1}, v{b+q}, 16")
        a(f"ds_write_b128 v5, {vr(PKR+12+4*i,4)} offset:{C1+1024*i}")
    a("s_waitcnt lgkmcnt(0)\ns_barrier\ns_branch L_phase")
    a(f"""
    L_cvend:
    s_lshr_b32 s{sT0}, s{sWV}, 1
    s_lshl_b32 s{sT1}, s{sHH}, 1
    s_add_u32 s{sT0}, s{sT0}, s{sT1}
    s_mul_i32 s{sT0}, s{sT0}, {CBK}
    s_and_b32 s{sT1}, s{sWV}, 1
    s_lshl_b32 s{sT2}, s{sT1}, 12
    s_add_u32 s{sT2}, s{sT2}, s{sT0}
    s_add_u32 s{sT2}, s{sT2}, 4096
    v_add_u32 v5, s{sT2}, v3
    s_lshl_b32 s{sT3}, s{sT1}, 13
    s_sub_u32 s{sT2}, s{sT2}, s{sT3}
    s_add_u32 s{sT2}, s{sT2}, 4096
    v_add_u32 v6, s{sT2}, v3
    s_cmp_eq_u32 s{sT1}, 0
    s_cselect_b32 s{sT0}, s{sT0}, s{sKB}
    s_waitcnt lgkmcnt(0)
    s_cbranch_scc1 L_even
    """)
    for i in range(16): a(f"v_swap_b32 v{A+i}, v{SAVE+i}")
    a("L_even:")
    for q in range(4): a(f"ds_write_b128 v5, {vr(A+4*q,4)} offset:{1024*q}")
    a(f"""
    v_bfe_u32 v7, v2, 1, 3
    v_lshlrev_b32 v7, 6, v7
    v_lshrrev_b32 v8, 4, v2
    v_lshl_add_u32 v7, v8, 4, v7
    v_and_b32 v9, 1, v2
    v_lshl_add_u32 v7, v9, 2, v7
    v_add_u32 v7, s{sT0}, v7
    v_add_u32 v9, 1024, v7
    v_bfe_u32 v10, v2, 2, 2
    v_mul_u32_u24 v10, {CBK}, v10
    v_lshl_add_u32 v10, v8, 5, v10
    v_and_b32 v8, 3, v2
    v_lshl_add_u32 v10, v8, 3, v10
    s_lshl_b32 s{sT0}, s{sWV}, 9
    v_add_u32 v10, s{sT0}, v10
    v_mul_u32_u24 v11, 1792, v2
    s_mul_i32 s{sT2}, s{sT1}, 3
    s_add_u32 s{sT3}, s{sT1}, 1
    s_cmp_eq_u32 s{sHH}, 0
    s_cselect_b32 s{sT2}, s{sT3}, s{sT2}
    s_lshr_b32 s{sT3}, s{sWV}, 1
    s_lshl_b32 s{sT3}, s{sT3}, 2
    s_add_u32 s{sT2}, s{sT2}, s{sT3}
    s_mul_i32 s{sT2}, s{sT2}, {256*1792}
    s_lshl_b32 s{sT3}, s{sCG}, 3
    s_add_u32 s{sT2}, s{sT2}, s{sT3}
    s_waitcnt lgkmcnt(0)
    s_barrier
    """)
    for q in range(4): a(f"ds_read_b128 {vr(A+4*q,4)}, v6 offset:{1024*q}")
    for q in range(4):
        a(f"s_waitcnt lgkmcnt({3 if q == 0 else 3})")
        a(f"v_pk_add_f32 {vr(SAVE+4*q,2)}, {vr(SAVE+4*q,2)}, {vr(A+4*q,2)}")
        a(f"v_pk_add_f32 {vr(SAVE+4*q+2,2)}, {vr(SAVE+4*q+2,2)}, {vr(A+4*q+2,2)}")
        a(f"v_cvt_pk_bf16_f32 v{48+2*q}, v{SAVE+4*q}, v{SAVE+4*q+1}")
        a(f"v_cvt_pk_bf16_f32 v{49+2*q}, v{SAVE+4*q+2}, v{SAVE+4*q+3}")
        a(f"ds_write2_b32 v{7 if q < 2 else 9}, v{48+2*q}, v{49+2*q} offset0:{128*(q&1)} offset1:{128*(q&1)+2}")
    a("s_waitcnt lgkmcnt(0)\ns_barrier")
    st(10)
    for it in range(4): a(f"ds_read_b64_tr_b16 {vr(56+2*it,2)}, v10 offset:{128*it}")
    for it in range(4):
        a(f"s_waitcnt lgkmcnt({3-it})")
        a(f"buffer_store_dwordx2 {vr(56+2*it,2)}, v11, s[{SO}:{SO+3}], s{sT2} offen")
        if it < 3: a(f"s_add_u32 s{sT2}, s{sT2}, {64*1792}")
    st.end()
    a("s_endpgm")
    a(f"""
    L_aux:
    s_cmp_ge_u32 s{sIDX}, 16
    s_cbranch_scc1 L_end
    s_lshl_b32 s{sT1}, s{sIDX}, 13
    s_add_u32 s{sT1}, s{sT1}, {WS_KVA}
    s_add_u32 s{sT2}, s{sT1}, 4096
    v_lshlrev_b32 v5, 4, v0
    v_mov_b32 v8, 0
    v_mov_b32 v9, 0
    v_mov_b32 v10, 0
    v_mov_b32 v11, 0
    s_lshl_b32 s{sT0}, s{sIDX}, 2
    v_mov_b32 v6, s{sT0}
    v_mov_b32 v7, 1
    s_waitcnt lgkmcnt(0)
    """)
    srd(a, SWS, 44, 45, WS_SIZE)
    a(f"""
    buffer_store_dwordx4 v[8:11], v5, {WSR}, s{sT1} offen {SC}
    buffer_store_dwordx4 v[8:11], v5, {WSR}, s{sT2} offen {SC}
    s_waitcnt vmcnt(0)
    s_barrier
    s_cmp_lg_u32 s{sWV}, 0
    s_cbranch_scc1 L_end
    s_mov_b64 exec, 1
    global_store_dword v6, v7, s[42:43] offset:64 {SC}
    """)
```

```python
import build, sys, stamp
if "--stamp" in sys.argv:
    stamp.ENABLED = True; sys.argv.remove("--stamp")
if '--dbg' in sys.argv:
    stamp.ENABLED = True; stamp.DBG = True; sys.argv.remove('--dbg')
import v3 as v2
hdr = open("cdna_kernels/" + build.NAME + ".s.ref").read().split("; Override launch geometry")[0]
name = build.NAME + "_kernel"
body, kd = build.kernel(name, v2.gen())
s = hdr + f"; @launch grid=(512,1,1) block=(256,1,1) lds={v2.LDS}\n" + '.amdgcn_target "amdgcn-amd-amdhsa--gfx950"\n.text\n' + body + '.section .rodata,"a"\n.p2align 6\n' + kd
out = sys.argv[1] if len(sys.argv) > 1 else "cdna_kernels/" + build.NAME + ".s"
open(out, "w").write(s)
```

```python
STAMP_OFF = 0x800000
ENABLED = False
DBG = False
SLOTS = [88, 90, 92, 94, 96, 98, 4, 6, 8, 10, 12]
class Stamper:
    def __init__(self, a, kidx, wsreg, wave_sreg):
        self.a, self.k, self.n, self.ws, self.wv = a, kidx, 0, wsreg, wave_sreg
    def start(self):
        if not ENABLED: return
        self.a("s_memrealtime s[84:85]\ns_memtime s[86:87]\ns_mov_b32 s14, s2")
    def __call__(self, i):
        if not ENABLED: return
        r = SLOTS[i]; self.a(f"s_memtime s[{r}:{r+1}]")
    def end(self, role=0):
        if not ENABLED: return
        a = self.a
        if DBG:
            a("s_waitcnt vmcnt(0)\ns_memtime s[100:101]\ns_memrealtime s[82:83]\ns_waitcnt lgkmcnt(0)")
            a("s_not_b32 s3, s84\ns_mov_b64 exec, 1\nv_mov_b32 v0, 0")
            items = [(0, "s82"), (1, "s3"), (2, "s84")]
            for w, r in items:
                a(f"v_mov_b32 v1, {r}\nglobal_atomic_umax v0, v1, s[42:43] offset:{4*w} sc1")
            sel = [(3, 1), (4, 7), (5, 9), (6, -1)] if role == 0 else [(7, 0), (8, 1), (9, 3), (10, 5), (11, 6), (12, 8), (13, 9), (14, -1)]
            for w, i in sel:
                r = SLOTS[i] if i >= 0 else 100
                a(f"s_sub_u32 s3, s{r}, s86\nv_mov_b32 v1, s3\nglobal_atomic_umax v0, v1, s[42:43] offset:{4*w} sc1")
            return
        a("s_waitcnt vmcnt(0)\ns_memtime s[100:101]\ns_memrealtime s[82:83]\ns_waitcnt lgkmcnt(0)")
        a(f"s_lshl_b32 s3, s14, 2\ns_add_u32 s3, s3, s{self.wv}\ns_lshl_b32 s3, s3, 7\ns_add_u32 s3, s3, {STAMP_OFF + self.k*0x40000}")
        a("v_mov_b32 v0, s3")
        vals = [84, 82, 86] + SLOTS + [100]
        for j, s in enumerate(vals):
            a(f"v_mov_b32 v1, s{s}")
            a(f"global_store_dword v0, v1, s[{self.ws}:{self.ws+1}] offset:{4*j}")
        a("s_getreg_b32 s3, hwreg(HW_REG_XCC_ID)\nv_mov_b32 v1, s3")
        a(f"global_store_dword v0, v1, s[{self.ws}:{self.ws+1}] offset:64")
        a("s_getreg_b32 s3, hwreg(HW_REG_HW_ID)\nv_mov_b32 v1, s3")
        a(f"global_store_dword v0, v1, s[{self.ws}:{self.ws+1}] offset:68")
```

```python
import struct, os
from asmlib import *
from stamp import Stamper

WS_PQ  = 0x000000
WS_KVA = 0x200000
WS_FLG = 0x210000
WS_KF  = 0x300000
WS_UT  = 0x500000
WS_SIZE = 0x700000
F_UT, F_KF, F_Q, F_KV = [WS_FLG + 1024 * x for x in (0, 16, 32, 40)]
LDS = 81920
LOG2E = 0x3fb8aa3b
INV2PI = 0x3e22f983
def f2u(x): return hex(struct.unpack("<I", struct.pack("<f", x))[0])
EPS = f2u(1e-6)
SC = "sc1"

def cmul(a, d, x, y):
    assert d != x and d != y
    a(f"v_pk_mul_f32 {vr(d,2)}, {vr(x,2)}, {vr(y,2)} op_sel:[0,0] op_sel_hi:[0,1]")
    a(f"v_pk_fma_f32 {vr(d,2)}, {vr(x,2)}, {vr(y,2)}, {vr(d,2)} op_sel:[1,1,0] op_sel_hi:[1,0,1] neg_lo:[1,0,0]")
def srd(a, S, lo, hi, n):
    a(f"s_mov_b32 s{S}, s{lo}\ns_mov_b32 s{S+1}, s{hi}\ns_mov_b32 s{S+2}, {n}\ns_mov_b32 s{S+3}, 0x20000")
def weave(main, fill, start=0):
    n, m, j = len(main), len(fill), 0
    for i, f in enumerate(main):
        f()
        tgt = 0 if i < start else min(m, ((i - start + 1) * m + (n - start) - 1) // (n - start))
        while j < tgt: fill[j](); j += 1
    while j < m: fill[j](); j += 1

SWS, SX, SW, SO = 48, 52, 56, 60
sC1 = 64
sWV, sT0, sT1, sT2, sT3, sT4, sA, sB, sC, sD, sE, sF, sG, sH, sI, sJ = range(66, 82)
WSR = f"s[{SWS}:{SWS+3}]"

class K:
    def __init__(self):
        self.a = Asm(); self.nl = 0
    def lab(self, p="L"):
        self.nl += 1; return f"{p}_{self.nl}"
    def _spin(self, vm, tag, t, ld):
        a = self.a; L, Lok = self.lab("Lp"), self.lab("Lpo")
        vm.wait(tag)
        a(f"""{L}:
        v_cmp_eq_u32 vcc, 1, v{t}
        s_cmp_eq_u64 vcc, -1
        s_cbranch_scc1 {Lok}
        s_sub_u32 s15, s15, 1
        s_cbranch_scc1 L_end
        s_sleep 2
        {ld}
        s_waitcnt vmcnt(0)
        s_branch {L}
        {Lok}:""")
    def init_issue(self, vm, t): vm.op(f"global_load_dword v{t}, v4, s[42:43] {SC}", "init")
    def init_check(self, vm, t): self._spin(vm, "init", t, f"global_load_dword v{t}, v4, s[42:43] {SC}")
    def poll_issue(self, vm, vaddr, t): vm.op(f"buffer_load_dword v{t}, v{vaddr}, {WSR}, 0 offen {SC}", "poll")
    def poll(self, vm, vaddr, t, issued=False):
        if not issued: self.poll_issue(vm, vaddr, t)
        self._spin(vm, "poll", t, f"buffer_load_dword v{t}, v{vaddr}, {WSR}, 0 offen {SC}")
    def flag(self, vm, soff, vone):
        self.a("s_mov_b64 exec, 1")
        vm.op(f"buffer_store_dword v{vone}, off, {WSR}, s{soff} {SC}", "flag")
        self.a("s_mov_b64 exec, -1")

def gen():
    k = K(); a = k.a
    st = Stamper(a, 0, 44, sWV)
    a("s_cmp_ge_u32 s2, 512\ns_cbranch_scc1 L_end")
    st.start()
    a(f"""
    s_load_dwordx16 s[16:31], s[0:1], 0
    s_load_dwordx8 s[32:39], s[0:1], 64
    s_load_dwordx4 s[40:43], s[0:1], 96
    s_load_dwordx2 s[44:45], s[0:1], 112
    v_lshrrev_b32 v1, 6, v0
    v_and_b32 v2, 63, v0
    v_readfirstlane_b32 s{sWV}, v1
    v_lshlrev_b32 v3, 4, v2
    v_and_b32 v4, 15, v0
    v_lshlrev_b32 v4, 2, v4
    v_add_u32 v4, 64, v4
    v_mov_b32 v1, 1
    s_mov_b32 s15, 40000
    s_cmp_lt_u32 s2, 256
    s_cbranch_scc1 L_S
    s_sub_u32 s2, s2, 256
    """)
    gen_G(k, st)
    gen_S(k, st)
    a("L_end:\ns_endpgm")
    return a

def gen_G(k, st):
    a = k.a
    if os.environ.get('SKIP_G'): a('s_endpgm')
    sRB, sP, sKX, sFL, sXO, sWO, sXM, sWM, sTY, sAT = sA, sB, sC, sD, sE, sF, sG, sH, sI, sJ
    vXD, vWD, vXA, vWA = 8, 12, 16, 20
    vWO, vFQ, vFK, vWS = 21, 22, 23, 24
    vFT, vEX = 26, 27
    vAT = 28
    vT = 36
    GA = 64; XF, WF = 128, 144
    a(f"""
    s_setprio {os.environ.get('GPRIO', 1)}
    s_and_b32 s{sT0}, s2, 7
    s_lshr_b32 s{sT1}, s2, 3
    s_lshr_b32 s{sTY}, s2, 7
    s_lshr_b32 s{sRB}, s{sT0}, 1
    s_lshl_b32 s{sRB}, s{sRB}, 2
    s_bfe_u32 s{sT2}, s{sT1}, 0x20002
    s_add_u32 s{sRB}, s{sRB}, s{sT2}
    s_and_b32 s{sP}, s{sT0}, 1
    s_lshl_b32 s{sP}, s{sP}, 2
    s_and_b32 s{sT3}, s{sT1}, 3
    s_add_u32 s{sP}, s{sP}, s{sT3}
    s_lshl_b32 s{sKX}, s{sT3}, 1
    s_add_u32 s{sKX}, s{sKX}, s{sTY}
    s_mul_i32 s{sT2}, s{sT2}, 3
    s_add_u32 s{sKX}, s{sKX}, s{sT2}
    s_cmp_ge_u32 s{sKX}, 14
    s_cselect_b32 s{sT2}, 14, 0
    s_sub_u32 s{sKX}, s{sKX}, s{sT2}
    s_cmp_ge_u32 s{sKX}, 7
    s_cselect_b32 s{sT2}, 7, 0
    s_sub_u32 s{sKX}, s{sKX}, s{sT2}
    s_lshl_b32 s{sXO}, s{sKX}, 7
    s_mul_i32 s{sWO}, s{sKX}, {64*2688}
    v_lshrrev_b32 v{vT+1}, 3, v2
    v_and_b32 v{vT+2}, 7, v2
    v_lshrrev_b32 v{vT+3}, 4, v2
    v_xor_b32 v{vT+6}, v{vT+2}, v{vT+3}
    v_lshlrev_b32 v{vT+6}, 4, v{vT+6}
    v_mul_u32_u24 v{vT+7}, 896, v{vT+1}
    s_lshl_b32 s{sT0}, s{sRB}, 2
    s_add_u32 s{sT0}, s{sT0}, s{sWV}
    s_mul_i32 s{sT0}, s{sT0}, {32*896}
    v_add3_u32 v{vXD}, v{vT+6}, v{vT+7}, s{sT0}
    v_xor_b32 v{vT+6}, 64, v{vT+6}
    v_add3_u32 v{vXD+1}, v{vT+6}, v{vT+7}, s{sT0}
    v_add_u32 v{vXD+1}, {7168-1024}, v{vXD+1}
    v_add_u32 v{vXD+2}, {2*(7168-1024)}, v{vXD}
    v_add_u32 v{vXD+3}, {2*(7168-1024)}, v{vXD+1}
    v_and_b32 v{vT+6}, 1, v{vT+3}
    v_lshlrev_b32 v{vT+6}, 2, v{vT+6}
    v_xor_b32 v{vT+8}, v{vT+6}, v{vT+2}
    v_min_u32 v{vT+6}, 6, v{vT+8}
    v_lshlrev_b32 v{vT+6}, 4, v{vT+6}
    v_mul_u32_u24 v{vT+9}, 2688, v{vT+1}
    s_lshr_b32 s{sT0}, s{sWV}, 1
    s_add_u32 s{sT0}, s{sT0}, 1
    s_mul_i32 s{sT0}, s{sT0}, 896
    s_and_b32 s{sT1}, s{sWV}, 1
    s_mul_i32 s{sT1}, s{sT1}, {32*2688}
    s_add_u32 s{sT0}, s{sT0}, s{sT1}
    s_mul_i32 s{sT1}, s{sWV}, {16*2688}
    s_lshl_b32 s{sXM}, s{sWV}, 12
    s_lshl_b32 s{sT2}, s{sWV}, 11
    s_cmp_eq_u32 s{sTY}, 0
    s_cselect_b32 s{sT0}, s{sT1}, s{sT0}
    s_cselect_b32 s{sWM}, s{sT2}, s{sXM}
    s_add_u32 s{sWM}, s{sWM}, 49152
    s_mul_i32 s{sT1}, s{sP}, 112
    s_add_u32 s{sT0}, s{sT0}, s{sT1}
    v_add3_u32 v{vWD}, v{vT+6}, v{vT+9}, s{sT0}
    v_add_u32 v{vWD+1}, {8*2688-1024}, v{vWD}
    v_add_u32 v{vWD+2}, {2*(8*2688-1024)}, v{vWD}
    v_add_u32 v{vWD+3}, {3*(8*2688-1024)}, v{vWD}
    s_mov_b32 s{SX+2}, {2048*896}
    s_mov_b32 s{SX+3}, 0x20000
    s_mov_b32 s{SW+2}, {448*2688}
    s_mov_b32 s{SW+3}, 0x20000
    s_cmp_eq_u32 s{sTY}, 0
    s_waitcnt lgkmcnt(0)
    s_mov_b32 s{SX}, s34
    s_mov_b32 s{SX+1}, s35
    s_mov_b32 s{SW}, s36
    s_mov_b32 s{SW+1}, s37
    """)
    st(0)
    a("s_cbranch_scc1 L_GQ")
    def setup(kv):
        a(f"""
        v_and_b32 v{vT+6}, 31, v2
        v_lshrrev_b32 v{vT+4}, 5, v2
        v_bfe_u32 v{vT+5}, v2, 1, 3
        v_xor_b32 v{vT+5}, v{vT+5}, v{vT+4}
        v_lshlrev_b32 v{vT+5}, 4, v{vT+5}
        v_lshl_add_u32 v{vT+5}, v{vT+6}, 7, v{vT+5}
        s_lshr_b32 s{sT0}, s{sWV}, 1
        s_lshl_b32 s{sT0}, s{sT0}, 13
        v_add_u32 v{vXA}, s{sT0}, v{vT+5}
        v_xor_b32 v{vXA+1}, 32, v{vXA}
        v_xor_b32 v{vXA+2}, 64, v{vXA}
        v_xor_b32 v{vXA+3}, 96, v{vXA}
        v_bfe_u32 v{vT+5}, v2, 2, 2
        v_lshl_add_u32 v{vT+5}, v{vT+4}, 3, v{vT+5}
        v_lshlrev_b32 v{vT+5}, 7, v{vT+5}
        v_and_b32 v{vT+9}, 3, v2
        v_lshlrev_b32 v{vT+10}, 3, v{vT+9}
        v_bfe_u32 v{vT+11}, v2, 4, 1
        v_lshl_add_u32 v{vT+10}, v{vT+11}, 5, v{vT+10}
        s_and_b32 s{sT0}, s{sWV}, 1
        s_mul_i32 s{sT0}, s{sT0}, 56
        v_add_u32 v{vT+10}, s{sT0}, v{vT+10}
        v_bfe_u32 v{vT+11}, v2, 3, 1
        v_lshlrev_b32 v{vT+11}, 6, v{vT+11}
        v_xor_b32 v{vT+10}, v{vT+10}, v{vT+11}
        v_add_u32 v{vT+5}, v{vT+5}, v{vT+10}
        v_add_u32 v{vWA}, 49152, v{vT+5}
        s_and_b32 s{sT0}, s2, 31
        s_lshl_b32 s{sT0}, s{sT0}, 4
        s_lshl_b32 s{sT1}, s{sWV}, 2
        s_add_u32 s{sT0}, s{sT0}, s{sT1}
        s_lshl_b32 s{sT0}, s{sT0}, 4
        s_add_u32 s{sT0}, s{sT0}, {F_Q}
        v_lshlrev_b32 v{vT+9}, 4, v{vT+9}
        v_add_u32 v{vFQ}, s{sT0}, v{vT+9}
        s_lshl_b32 s{sT0}, s{sWV}, 9
        s_add_u32 s{sT0}, s{sT0}, {F_KV}
        v_lshlrev_b32 v{vFK}, 4, v{vT+6}
        v_add_u32 v{vFK}, s{sT0}, v{vFK}
        v_lshlrev_b32 v{vT+8}, 4, v{vT+8}
        s_mul_i32 s{sT0}, s{sWV}, {112*896}
        s_lshr_b32 s{sT1}, s2, 5
        s_lshl_b32 s{sT1}, s{sT1}, 7
        s_add_u32 s{sT0}, s{sT0}, s{sT1}
        v_add3_u32 v{vWO}, v{vT+8}, v{vT+7}, s{sT0}
        v_add_u32 v{vWS}, s{sXM}, v3
        v_add_u32 v{vWS+1}, s{sWM}, v3
        s_mov_b32 s{sC1}, {LOG2E}
        s_mov_b32 s{sC1+1}, {LOG2E}
        """)
        srd(a, SWS, 44, 45, WS_SIZE)
        srd(a, SO, 40, 41, 2048 * 1792)
        if kv:
            a(f"""
            s_mul_i32 s{sT0}, s{sWV}, 20480
            s_add_u32 s{sT0}, s{sT0}, 16384
            v_add_u32 v{vEX}, s{sT0}, v3
            s_and_b32 s{sT0}, s{sWV}, 1
            s_lshr_b32 s{sT1}, s{sWV}, 1
            s_lshl_b32 s{sT1}, s{sT1}, 11
            s_mul_i32 s{sT2}, s{sT0}, 20480
            s_add_u32 s{sT2}, s{sT2}, s{sT1}
            s_add_u32 s{sT2}, s{sT2}, 16384
            s_and_b32 s{sT3}, s{sRB}, 7
            s_lshl_b32 s{sT3}, s{sT3}, 8
            s_add_u32 s{sT3}, s{sT3}, s{sT2}
            v_lshlrev_b32 v{vT+4}, 2, v2
            v_add_u32 v{vAT}, s{sT3}, v{vT+4}
            s_lshl_b32 s{sT0}, s{sT0}, 12
            s_add_u32 s{sT0}, s{sT0}, s{sT1}
            s_lshl_b32 s{sAT}, s{sP}, 13
            s_add_u32 s{sAT}, s{sAT}, s{sT0}
            s_add_u32 s{sAT}, s{sAT}, {WS_KVA}
            s_sub_u32 s{sAT}, s{sAT}, s{sT2}
            s_lshl_b32 s{sFL}, s{sP}, 4
            s_add_u32 s{sFL}, s{sFL}, s{sRB}
            s_lshl_b32 s{sFL}, s{sFL}, 4
            s_add_u32 s{sFL}, s{sFL}, {F_KV}
            """)
            for i in range(1, 8): a(f"v_xor_b32 v{vAT+i}, {i << 8}, v{vAT}")
        else:
            a(f"""
            s_lshl_b32 s{sT3}, s{sRB}, 1
            s_lshr_b32 s{sT1}, s{sWV}, 1
            s_add_u32 s{sT3}, s{sT3}, s{sT1}
            s_lshl_b32 s{sT3}, s{sT3}, 4
            s_lshl_b32 s{sT1}, s{sP}, 1
            s_add_u32 s{sT1}, s{sT1}, s{sT3}
            s_and_b32 s{sT2}, s{sWV}, 1
            s_add_u32 s{sT1}, s{sT1}, s{sT2}
            s_lshl_b32 s{sFL}, s{sT1}, 4
            s_add_u32 s{sFL}, s{sFL}, {F_Q}
            s_add_u32 s{sT1}, s{sT1}, s{sT3}
            s_lshl_b32 s{sAT}, s{sT1}, 11
            s_add_u32 s{sKX}, s{sAT}, 32768
            """)
        for i in range(32): a(f"v_mov_b32 v{GA+i}, {EPS}")
    def gemm(kv):
        vm, lg = Cnt(a, "vmcnt"), Cnt(a, "lgkmcnt")
        nt = 2 if kv else 1
        nws = 2 if kv else 4
        wsz = 16384 if kv else 8192
        stage = {}
        def ld(kind, c, regs=None):
            n = 4 if kind == "x" else 2 * nt
            vD, S, sO = (vXD, SX, sXO) if kind == "x" else (vWD, SW, sWO)
            step, end = (128, 896) if kind == "x" else (64 * 2688, 448 * 2688)
            if regs is not None: stage[(kind, c)] = regs
            T = []
            for j in range(n):
                def f(j=j):
                    if regs is None:
                        if j == 0: a(f"s_add_u32 m0, s{sXM if kind == 'x' else sWM}, {16384*(c%3) if kind == 'x' else wsz*(c%nws)}")
                        vm.op(f"buffer_load_dwordx4 v{vD+j}, s[{S}:{S+3}], s{sO} offen offset:{1024*j} {os.environ.get('NTG','')} lds", f"{kind}{c}")
                    else:
                        vm.op(f"buffer_load_dwordx4 {vr(regs[1]+4*j,4,regs[0])}, v{vD+j}, s[{S}:{S+3}], s{sO} offen offset:{1024*j} {os.environ.get('NTG','')}", f"{kind}{c}")
                    if j == n - 1: a(f"s_add_u32 s{sO}, s{sO}, {step}\ns_cmp_eq_u32 s{sO}, {end}\ns_cselect_b32 s{sO}, 0, s{sO}")
                T.append(f)
            return T
        def wr(kind, c):
            regs = stage[(kind, c)]
            n = 4 if kind == "x" else 2 * nt
            T = []
            for j in range(n):
                def f(j=j):
                    if j == 0: vm.wait(f"{kind}{c}")
                    off = (16384 * (c % 3) if kind == "x" else wsz * (c % nws)) + 1024 * j
                    lg.op(f"ds_write_b128 v{vWS + (0 if kind == 'x' else 1)}, {vr(regs[1]+4*j,4,regs[0])} offset:{off}", "wr")
                T.append(f)
            return T
        def F(c, ks):
            b = ks & 1
            for n in range(nt):
                for i in range(2):
                    lg.op(f"ds_read_b64_tr_b16 {vr(WF+8*b+4*n+2*i,2)}, v{vWA} offset:{wsz*(c%nws) + ks*2048 + i*512 + n*8192}", f"f{c}{ks}")
            for t in range(2):
                lg.op(f"ds_read_b128 {vr(XF+8*b+4*t,4)}, v{vXA+ks} offset:{16384*(c%3) + 4096*t}", f"f{c}{ks}")
        def M(c, ks, fill=()):
            b = ks & 1
            lg.wait(f"f{c}{ks}")
            T = []
            for n in range(nt):
                for t in range(2):
                    acc = vr(GA + 16 * (n * 2 + t), 16)
                    cin = "0" if (c == 0 and ks == 0 and n == 1) else acc
                    xf, wf = vr(XF + 8 * b + 4 * t, 4), vr(WF + 8 * b + 4 * n, 4)
                    T.append(lambda s=(f"v_mfma_f32_32x32x16_bf16 {acc}, {xf}, {wf}, {cin}" if kv else f"v_mfma_f32_32x32x16_bf16 {acc}, {wf}, {xf}, {cin}"): a(s))
            weave(T, list(fill))
        run = lambda T: [f() for f in T]
        for x in (("x", 0), ("w", 0), ("x", 1), ("w", 1), ("x", 2)): run(ld(*x))
        R = [("a", 0), ("a", 16), ("a", 32), ("a", 48), ("v", 160), ("v", 176)]
        if kv:
            run(ld("w", 2, R[0])); run(ld("x", 3, R[1]))
            lds_ = {0: [("w", 3, R[2]), ("x", 4, R[3])], 1: [("w", 4, R[4]), ("x", 5, R[5])], 2: [("w", 5, R[0]), ("x", 6, R[1])], 3: [("w", 6, R[2])]}
            wrs = {c: [x for x in (("w", c + 2), ("x", c + 3)) if x[1] < 7] for c in range(5)}
        else:
            run(ld("w", 2)); run(ld("x", 3, R[0])); run(ld("w", 3))
            lds_ = {0: [("x", 4, R[1]), ("w", 4, ("v", 160))], 1: [("x", 5, R[2]), ("w", 5, ("v", 168))], 2: [("x", 6, R[3]), ("w", 6, ("v", 176))]}
            wrs = {c: [x for x in (("x", c + 3), ("w", c + 4)) if x[1] < 7] for c in range(4)}
        setup(kv)
        vm.wait(["x0", "w0"]); a("s_barrier")
        st(1)
        F(0, 0); F(0, 1)
        pend = []
        for c in range(7):
            L = sum([ld(*l) for l in lds_.get(c, [])], [])
            if c == 4: L.append(lambda: k.init_issue(vm, vFT))
            q = max(1, (len(L) + 2) // 3); w = max(1, (len(pend) + 2) // 3)
            M(c, 0, pend[:w] + L[:q]); F(c, 2)
            M(c, 1, pend[w:2*w] + L[q:2*q]); F(c, 3)
            M(c, 2, pend[2*w:] + L[2*q:])
            if c < 6:
                dma = [f"{kd}{c+1}" for kd in "xw" if (kd, c + 1) not in stage]
                if dma and vm.n_after(dma) is not None: vm.wait(dma, "lgkmcnt(0)")
                else: a("s_waitcnt lgkmcnt(0)")
                lg.drain()
                a("s_barrier")
                F(c + 1, 0)
                pend = sum([wr(*x) for x in wrs.get(c, [])], [])
                M(c, 3, pend[:2]); pend = pend[2:]
                F(c + 1, 1)
            else:
                lg.wait(f"f{c}3")
                a("s_barrier")
                M(c, 3)
        return vm
    def phi_t(base, n, dst):
        T = []
        for i in range(0, n, 2):
            t = vT + 2 * ((i // 2) & 3)
            x = base + i
            T.append(lambda t=t, x=x, i=i: a(f"""
            v_pk_mul_f32 {vr(t,2)}, {vr(x,2)}, s[{sC1}:{sC1+1}]
            v_max_f32 v{x}, {EPS}, v{x}
            v_exp_f32_e64 v{t}, v{t} clamp
            v_exp_f32_e64 v{t+1}, v{t+1} clamp
            v_max_f32 v{x+1}, {EPS}, v{x+1}
            v_pk_add_f32 {vr(x,2)}, {vr(x,2)}, {vr(t,2)}
            v_cvt_pk_bf16_f32 v{dst + i//2}, v{x}, v{x+1}
            """))
        return T
    def wo_dma(vm):
        T = []
        for i in range(15):
            def f(i=i):
                if i == 0:
                    srd(a, SW, 38, 39, 448 * 896)
                    a(f"s_mul_i32 s{sT1}, s{sWV}, 20480\ns_mov_b32 s{sT0}, 0")
                a(f"s_add_u32 m0, s{sT1}, {1024*i}")
                if i: a(f"s_add_u32 s{sT0}, s{sT0}, 7168")
                vm.op(f"buffer_load_dwordx4 v{vWO}, s[{SW}:{SW+3}], s{sT0} offen lds", "wo")
            T.append(f)
        return T
    PK, PV, KVD = 128, 144, 48
    vm = gemm(True)
    st(3)
    W = wo_dma(vm)
    weave(phi_t(GA, 16, PK), W[:8])
    for t in range(2):
        for i in range(8):
            a(f"v_cvt_pk_bf16_f32 v{PV+8*t+i}, v{GA+32+16*t+2*i}, v{GA+32+16*t+2*i+1}")
    a(f"s_mov_b32 exec_lo, {1<<28}\ns_mov_b32 exec_hi, {1<<28}")
    for i in range(16): a(f"v_mov_b32 v{PV+i}, 0x3f803f80")
    a("s_mov_b64 exec, -1")
    for u in range(2):
        a(f"v_mfma_f32_32x32x16_bf16 {vr(KVD,16)}, {vr(PK+4*u,4)}, {vr(PV+4*u,4)}, {'0' if u == 0 else vr(KVD,16)}")
    weave(phi_t(GA + 16, 16, PK + 8), W[8:])
    for u in range(2):
        a(f"v_mfma_f32_32x32x16_bf16 {vr(KVD,16)}, {vr(PK+8+4*u,4)}, {vr(PV+8+4*u,4)}, {vr(KVD,16)}")
    st(4)
    k.init_check(vm, vFT)
    for q in range(3):
        a(f"ds_write_b128 v{vEX}, {vr(KVD+4*q,4)} offset:{1024*q}")
    a("s_mov_b32 exec_lo, 0")
    for i in range(12, 16): a(f"v_mov_b32 v{KVD+i}, 0")
    a("s_mov_b64 exec, -1")
    a(f"ds_write_b128 v{vEX}, {vr(KVD+12,4)} offset:3072")
    a("s_waitcnt lgkmcnt(0)\ns_barrier")
    for i in range(8):
        a(f"ds_read2st64_b32 {vr(GA+2*i,2)}, v{vAT+i} offset0:0 offset1:160")
    for i in range(8):
        a(f"s_waitcnt lgkmcnt({7-i})")
        a(f"v_add_f32 v{GA+2*i}, v{GA+2*i}, v{GA+2*i+1}")
        a(f"buffer_atomic_add_f32 v{GA+2*i}, v{vAT+i}, {WSR}, s{sAT} offen sc1")
    st(5)
    vm.drain()
    k.poll_issue(vm, vFQ, vFT)
    a(f"s_waitcnt vmcnt(1)\ns_barrier\ns_cmp_lg_u32 s{sWV}, 0\ns_cbranch_scc1 L_kvf")
    k.flag(vm, sFL, 1)
    a("L_kvf:")
    st(6)
    a("s_cmp_ge_u32 s2, 224\ns_cbranch_scc1 L_end\ns_waitcnt vmcnt(0)\ns_branch L_fin3")
    a("L_GQ:")
    vm = gemm(False)
    st(3)
    for t in range(2):
        for f in phi_t(GA + 16 * t, 16, PK + 8 * t): f()
        for ks in range(2):
            vm.op(f"buffer_store_dwordx4 {vr(PK+8*t+4*ks,4)}, v3, {WSR}, s{sAT if t == 0 else sKX} offen offset:{WS_PQ + 1024*ks} {SC}", "pqs")
    st(4)
    k.init_check(vm, vFT)
    W = wo_dma(vm)
    for f in W[:6]: f()
    st(5)
    vm.wait("pqs")
    k.flag(vm, sFL, 1)
    for f in W[6:]: f()
    st(6)
    a(f"buffer_load_dword v{vFT}, v{vFQ}, {WSR}, 0 offen {SC}\ns_waitcnt vmcnt(0)")
    A1, O, A2, KB, K23, WOFR = 16, 48, 64, 128, 144, 176
    vm = Cnt(a, "vmcnt"); lg = Cnt(a, "lgkmcnt")
    a("L_fin3:")
    a(f"v_mov_b32 v12, v{vFK}\nv_mov_b32 v13, v{vFQ}\nv_mov_b32 v14, v{vFT}")
    k.poll(vm, 13, 14, issued=True)
    st(7)
    a(f"""
    s_and_b32 s{sT0}, s2, 31
    s_lshl_b32 s{sT0}, s{sT0}, 16
    s_lshl_b32 s{sT1}, s{sWV}, 13
    s_add_u32 s{sT0}, s{sT0}, s{sT1}
    s_add_u32 s{sT1}, s{sT0}, 32768
    s_add_u32 s{sT2}, s{sT0}, 4096
    s_add_u32 s{sT3}, s{sT1}, 4096
    """)
    for hl in range(4):
        for t in range(2):
            for ks in range(2):
                so = [[sT0, sT1], [sT2, sT3]][hl >> 1][t]
                vm.op(f"buffer_load_dwordx4 {ar(16*hl+8*t+4*ks,4)}, v3, {WSR}, s{so} offen offset:{WS_PQ + 2048*(hl&1) + 1024*ks} {SC}", "pq")
    k.poll_issue(vm, 12, 14)
    a(f"""
    s_lshl_b32 s{sT0}, s{sWV}, 14
    s_add_u32 s{sT0}, s{sT0}, {WS_KVA}
    s_mul_i32 s{sT1}, s{sWV}, 20480
    v_bfe_u32 v5, v2, 2, 2
    v_lshrrev_b32 v6, 5, v2
    v_lshl_add_u32 v5, v6, 2, v5
    v_lshlrev_b32 v5, 7, v5
    v_and_b32 v7, 1, v2
    v_lshl_add_u32 v5, v7, 5, v5
    v_bfe_u32 v7, v2, 4, 1
    v_lshl_add_u32 v5, v7, 4, v5
    v_bfe_u32 v7, v2, 1, 1
    v_lshl_add_u32 v5, v7, 3, v5
    v_bfe_u32 v7, v2, 3, 1
    v_lshl_add_u32 v5, v7, 6, v5
    v_xor_b32 v15, 64, v5
    v_add_u32 v5, s{sT1}, v5
    v_add_u32 v15, s{sT1}, v15
    s_mov_b32 s{sT2}, {EPS}
    s_mov_b32 s{sC1}, -1
    s_mov_b32 s{sC1+1}, 0
    v_and_b32 v13, 31, v2
    v_mul_u32_u24 v13, 272, v13
    v_lshl_add_u32 v13, v6, 6, v13
    v_add_u32 v13, s{sT1}, v13
    v_lshrrev_b32 v7, 3, v0
    v_and_b32 v8, 7, v0
    v_mul_u32_u24 v10, 272, v7
    v_lshl_add_u32 v10, v8, 5, v10
    v_mul_u32_u24 v11, 1792, v7
    v_lshl_add_u32 v11, v8, 4, v11
    s_and_b32 s{sT3}, s2, 31
    s_mul_i32 s{sT3}, s{sT3}, {64*1792}
    s_lshr_b32 s{sT4}, s2, 5
    s_lshl_b32 s{sT4}, s{sT4}, 7
    s_add_u32 s{sT3}, s{sT3}, s{sT4}
    s_add_u32 s{sT3}, s{sT3}, 896
    s_add_u32 s{sT4}, s{sT3}, {32*1792}
    """)
    def ldwo(hl):
        for ks in range(2):
            for ct in range(2):
                for i in range(2):
                    lg.op(f"ds_read_b64_tr_b16 {vr(WOFR+8*ks+4*ct+2*i,2)}, v{15 if ct else 5} offset:{128*(28*hl+16*ks+8*i)}", f"wo{hl}")
    k.poll(vm, 12, 14, issued=True)
    vm.drain()
    st(8)
    def kvsrc(hl): return A1 + 16 * hl if hl < 2 else K23 + 16 * (hl - 2)
    def kvb(hl): return KB + 8 * hl if hl < 2 else K23 + 16 * (hl - 2)
    for hl in range(4):
        for q in range(4):
            vm.op(f"buffer_load_dwordx4 {vr(kvsrc(hl)+4*q,4)}, v3, {WSR}, s{sT0} offen offset:{1024*q} {SC}", f"kv{hl}")
        if hl < 3: a(f"s_add_u32 s{sT0}, s{sT0}, 4096")
    ldwo(0)
    a(f"v_add_u32 v12, 40960, v10")
    def cvtkv(hl):
        T = []
        for i in range(8):
            def f(i=i):
                if i == 0: vm.wait(f"kv{hl}")
                a(f"v_cvt_pk_bf16_f32 v{kvb(hl)+i}, v{kvsrc(hl)+2*i}, v{kvsrc(hl)+2*i+1}")
            T.append(f)
        return T
    def s1(u):
        hl, t = u >> 1, u & 1
        A = vr(A1 + 16 * (u & 1), 16)
        return [lambda: a(f"v_mfma_f32_32x32x16_bf16 {A}, {vr(kvb(hl),4)}, {ar(16*hl+8*t,4)}, 0"),
                lambda: a(f"v_mfma_f32_32x32x16_bf16 {A}, {vr(kvb(hl)+4,4)}, {ar(16*hl+8*t+4,4)}, {A}")]
    DN = 6
    def scale(u):
        A = A1 + 16 * (u & 1); Ou = O + 8 * (u & 1)
        L = [f"v_mov_b32 v{DN}, v{A+12}", f"v_mov_b32 v{DN+2}, v{A+12}", f"v_permlane32_swap_b32 v{DN}, v{DN+2}",
             f"v_add_f32 v{DN+2}, s{sT2}, v{DN+2}", f"v_rcp_f32 v{DN+2}, v{DN+2}"]
        for i in range(8):
            L.append(f"v_pk_mul_f32 {vr(A+2*i,2)}, {vr(A+2*i,2)}, {vr(DN+2,2)} op_sel_hi:[1,0]")
            L.append(f"v_cvt_pk_bf16_f32 v{Ou+i}, v{A+2*i}, v{A+2*i+1}")
        L += [f"v_cndmask_b32 v{Ou+6}, 0, v{Ou+6}, s[{sC1}:{sC1+1}]", f"v_cndmask_b32 v{Ou+7}, 0, v{Ou+7}, s[{sC1}:{sC1+1}]"]
        return [lambda s=s: a(s) for s in L]
    def s2(u):
        hl, t = u >> 1, u & 1
        Ou = O + 8 * (u & 1); T = []
        for ks in range(2):
            for ct in range(2):
                acc = vr(A2 + 32 * t + 16 * ct, 16)
                cin = "0" if (hl == 0 and ks == 0) else acc
                def f(s=f"v_mfma_f32_32x32x16_bf16 {acc}, {vr(WOFR+8*ks+4*ct,4)}, {vr(Ou+4*ks,4)}, {cin}", first=(ks == 0 and ct == 0), last=(ks == 1 and ct == 1)):
                    if first and t == 0: lg.wait(f"wo{hl}")
                    a(s)
                    if last and t == 1 and hl < 3: ldwo(hl + 1)
                T.append(f)
        return T
    run = lambda T: [f() for f in T]
    run(cvtkv(0)); run(cvtkv(1))
    run(s1(0)); run(s1(1)); run(scale(0))
    for u in range(8):
        main = s2(u)
        fill = scale(u + 1) if u + 1 < 8 else []
        if u + 2 < 8:
            if u + 2 in (4, 6): run(cvtkv((u + 2) >> 1))
            main = s1(u + 2) + main
        if u == 7:
            fill = [lambda ct=ct, i=i: a(f"ds_write_b128 v13, {vr(A2+16*ct+4*i,4)} offset:{128*ct + 16*i}") for ct in range(2) for i in range(4)]
            weave(main, fill, start=1)
        else:
            weave(main, fill)
    st(9)
    for ct in range(2):
        for i in range(4):
            a(f"ds_write_b128 v13, {vr(A2+32+16*ct+4*i,4)} offset:{32*272 + 128*ct + 16*i}")
    a("s_waitcnt lgkmcnt(0)\ns_barrier")
    st(10)
    R = 64
    for t in range(2):
        for w in range(4):
            for h in range(2):
                a(f"ds_read_b128 {vr(R+32*t+8*w+4*h,4)}, v{10 if w < 2 else 12} offset:{20480*(w&1) + 32*272*t + 16*h}")
    for t in range(2):
        b = R + 32 * t
        a(f"s_waitcnt lgkmcnt({8 if t == 0 else 0})")
        for i in range(4):
            a(f"v_pk_add_f32 {vr(b+2*i,2)}, {vr(b+2*i,2)}, {vr(b+8+2*i,2)}")
            a(f"v_pk_add_f32 {vr(b+16+2*i,2)}, {vr(b+16+2*i,2)}, {vr(b+24+2*i,2)}")
        for i in range(4):
            a(f"v_pk_add_f32 {vr(b+2*i,2)}, {vr(b+2*i,2)}, {vr(b+16+2*i,2)}")
        for i in range(4):
            a(f"v_cvt_pk_bf16_f32 v{b+8+i}, v{b+2*i}, v{b+2*i+1}")
        a(f"buffer_store_dwordx4 {vr(b+8,4)}, v11, s[{SO}:{SO+3}], s{sT3 if t == 0 else sT4} offen")
    st.end(1)
    a("s_endpgm")

from v4s import gen_S
```

```python
import os
from asmlib import *
from v4 import *

ROWB = 272
WREG = 53 * ROWB
KS, KSL = 4160, 16640
UBASE, UB, U0, U1 = 33280, 8256, 16, 16 + 4096 + 32
TTAB, TSTR = 66304, 1536
USTG = 69376

def gen_S(k, st):
    a = k.a
    sJB, sIDX, sCG, sHH, sKB, sFU, sIT, sPH, sKG, sFK = sA, sB, sC, sD, sE, sF, sG, sH, sI, sJ
    vm = Cnt(a, "vmcnt")
    P0 = 8
    UG, UG2 = 24, 32
    vT = 40
    IN = 56
    KA, KB_ = 60, 61
    ACC = 64; FR = 96
    E1, E8, E256, E2, E4, Wc, X0, X1, G0, G1, Y0, Y1 = [112 + 2 * i for i in range(12)]
    t0, t1, t2, t3, pk = 136, 137, 138, 139, 140
    EA = 144; AD = 153
    vFU, vFP, vGS, vGR, vGO = 157, 158, 159, 57, 58
    UR = 160
    vPW, vRR, vZF, vZU, vCW, vC4, vUW = 176, 177, 178, 179, 180, 181, 185
    vKL, vUL, vZL = 186, 187, 188
    a(f"""
    L_S:
    s_setprio 3
    s_and_b32 s{sJB}, s2, 7
    s_lshr_b32 s{sIDX}, s2, 3
    s_cmp_eq_u32 s{sJB}, 7
    s_cbranch_scc1 L_aux
    {'s_endpgm' if os.environ.get('SKIP_S') else ''}
    s_lshl_b32 s{sT0}, s{sJB}, 5
    s_add_u32 s{sKG}, s{sT0}, s{sIDX}
    s_lshr_b32 s{sCG}, s{sKG}, 1
    s_and_b32 s{sHH}, s{sIDX}, 1
    s_lshl_b32 s{sT1}, s{sKG}, 10
    v_lshlrev_b32 v5, 1, v0
    v_add_u32 v5, s{sT1}, v5
    s_lshl_b32 s{sT1}, s{sKG}, 2
    v_mov_b32 v6, s{sT1}
    s_lshl_b32 s{sT1}, s{sIDX}, 2
    s_add_u32 s{sT1}, s{sT1}, s{sWV}
    s_mul_i32 s{sT1}, s{sT1}, {16*896}
    s_lshl_b32 s{sT2}, s{sJB}, 7
    s_add_u32 s{sT1}, s{sT1}, s{sT2}
    v_lshlrev_b32 v7, 1, v2
    v_add_u32 v7, s{sT1}, v7
    s_waitcnt lgkmcnt(0)
    """)
    st(0)
    for i in range(16):
        if i and i % 4 == 0: a(f"v_add_u32 v7, {4*896}, v7")
        vm.op(f"global_load_{'short_d16_hi' if i&1 else 'ushort'} v{(UG2 if i&1 else UG)+i//2}, v7, s[16:17] offset:{(i%4)*896} {os.environ.get('NTS','')}", "ug")
    for c in range(2):
        vm.op(f"global_load_short_d16_hi v{P0+8*c+6}, v6, s[30:31] offset:{2*c}", f"p{c}")
        for i in range(6):
            vm.op(f"global_load_short_d16_hi v{P0+8*c+i}, v5, s[{18+2*i}:{19+2*i}] offset:{512*c} {os.environ.get('NTS','')}", f"p{c}")
        vm.op(f"global_load_short_d16_hi v{P0+8*c+7}, v6, s[32:33] offset:{2*c}", f"p{c}")
    a(f"s_setprio {os.environ.get('SPRIO', 1)}")
    srd(a, SWS, 44, 45, WS_SIZE)
    srd(a, SO, 40, 41, 2048 * 1792)
    a(f"""
    s_mul_i32 s{sKB}, s{sWV}, {WREG}
    v_and_b32 v{t0}, 31, v2
    v_lshrrev_b32 v{t1}, 5, v2
    v_lshlrev_b32 v{t1}, 4, v{t1}
    v_add_u32 v{t1}, s{sKB}, v{t1}
    v_min_u32 v{t2}, 20, v{t0}
    v_mul_u32_u24 v{t2}, {ROWB}, v{t2}
    v_add_u32 v{KA}, v{t2}, v{t1}
    v_mul_u32_u24 v{t2}, {ROWB}, v{t0}
    v_add_u32 v{KB_}, v{t2}, v{t1}
    s_mov_b32 m0, s{sKB}
    v_add_u32 v{vPW}, s{sKB}, v3
    s_lshl_b32 s{sT0}, s{sWV}, 10
    v_add_u32 v{vRR}, s{sT0}, v3
    v_mul_u32_u24 v{vGS}, 144, v2
    s_lshl_b32 s{sT0}, s{sWV}, 5
    s_add_u32 s{sT0}, s{sT0}, {USTG}
    v_add_u32 v{vGS}, s{sT0}, v{vGS}
    v_lshrrev_b32 v{t2}, 3, v2
    v_and_b32 v{t3}, 7, v2
    v_mul_u32_u24 v{vGR}, 144, v{t2}
    v_lshl_add_u32 v{vGR}, v{t3}, 4, v{vGR}
    s_mul_i32 s{sT0}, s{sWV}, {16*144}
    s_add_u32 s{sT0}, s{sT0}, {USTG}
    v_add_u32 v{vGR}, s{sT0}, v{vGR}
    v_lshlrev_b32 v{vGO}, 12, v{t2}
    v_lshl_add_u32 v{vGO}, v{t3}, 4, v{vGO}
    v_mul_u32_u24 v{vZF}, {KS}, v{t2}
    v_lshl_add_u32 v{vZF}, v{t3}, 3, v{vZF}
    v_add_u32 v{vZF}, 4088, v{vZF}
    v_and_b32 v{t3}, 23, v2
    v_cmp_eq_u32 vcc, 0, v{t3}
    v_add_u32 v{t3}, 56, v{vZF}
    v_bfe_u32 v{vZU}, v2, 1, 2
    v_mul_u32_u24 v{vZU}, {UB}, v{vZU}
    v_cndmask_b32 v{vZF}, v{vZF}, v{t3}, vcc
    v_and_b32 v{t3}, 1, v2
    v_mul_u32_u24 v{t3}, {U1-U0}, v{t3}
    v_add3_u32 v{vZU}, v{vZU}, v{t3}, s{sT0}
    s_add_u32 s{sT0}, s{sT0}, {-UBASE & 0xffffffff}
    v_subrev_u32 v{vZU}, s{sT0}, v{vZU}
    s_lshl_b32 s{sT0}, s{sJB}, 2
    s_add_u32 s{sT0}, s{sT0}, s{sWV}
    s_lshl_b32 s{sT1}, s{sT0}, 16
    s_lshl_b32 s{sT2}, s{sIDX}, 7
    s_add_u32 s{sT1}, s{sT1}, s{sT2}
    s_add_u32 s{sT1}, s{sT1}, {WS_UT}
    s_add_u32 s{sT2}, s{sT1}, 32768
    s_lshl_b32 s{sT0}, s{sT0}, 5
    s_add_u32 s{sT0}, s{sT0}, s{sIDX}
    s_lshl_b32 s{sT0}, s{sT0}, 4
    s_add_u32 s{sFU}, s{sT0}, {F_UT}
    s_lshr_b32 s{sT0}, s{sCG}, 2
    s_lshl_b32 s{sT0}, s{sT0}, 9
    s_add_u32 s{sT0}, s{sT0}, {F_UT}
    v_lshlrev_b32 v{vFU}, 4, v{t0}
    v_add_u32 v{vFU}, s{sT0}, v{vFU}
    s_xor_b32 s{sT0}, s{sKG}, 1
    s_lshl_b32 s{sT0}, s{sT0}, 6
    s_add_u32 s{sT0}, s{sT0}, {F_KF}
    v_and_b32 v{vFP}, 3, v2
    v_lshlrev_b32 v{vFP}, 2, v{vFP}
    v_add_u32 v{vFP}, s{sT0}, v{vFP}
    s_lshl_b32 s{sT0}, s{sKG}, 4
    s_add_u32 s{sT0}, s{sT0}, s{sWV}
    s_lshl_b32 s{sT0}, s{sT0}, 2
    s_add_u32 s{sFK}, s{sT0}, {F_KF}
    v_lshlrev_b32 v{vCW}, 4, v0
    v_add_u32 v{vC4}, {2*KS-8}, v{vCW}
    v_add_u32 v{vC4+1}, {3*KS-8}, v{vCW}
    v_add_u32 v{vC4+2}, {KSL+2*KS-8}, v{vCW}
    v_add_u32 v{vC4+3}, {KSL+3*KS-8}, v{vCW}
    s_mul_i32 s{sT0}, s{sWV}, {UB}
    s_add_u32 s{sT0}, s{sT0}, {UBASE}
    v_add_u32 v{vUW}, s{sT0}, v3
    """)
    a(f"""
    s_cmp_eq_u32 s{sWV}, 1
    s_cselect_b32 s{sT0}, 4, 8
    s_cselect_b32 s{sT3}, 2, 8
    s_cselect_b32 s{sT4}, 256, 0
    s_cselect_b32 s{sPH}, 384, 4
    s_cmp_eq_u32 s{sWV}, 2
    s_cselect_b32 s{sT0}, 1, s{sT0}
    s_cselect_b32 s{sT3}, 1, s{sT3}
    s_cselect_b32 s{sT4}, 512, s{sT4}
    s_cselect_b32 s{sPH}, 640, s{sPH}
    s_cselect_b32 s{sIT}, 32, 1
    v_mul_u32_u24 v{AD}, s{sT0}, v{t0}
    v_add_u32 v{AD}, s{sT4}, v{AD}
    v_mul_u32_u24 v{AD+1}, s{sT3}, v{t0}
    v_add_u32 v{AD+1}, s{sPH}, v{AD+1}
    v_cmp_gt_u32 vcc, 32, v2
    s_lshl_b32 s{sT0}, s{sIT}, 1
    s_cmp_eq_u32 s{sWV}, 0
    s_cselect_b32 s{sT3}, 2, 64
    v_mov_b32 v{t2}, s{sT3}
    v_mov_b32 v{t3}, s{sT0}
    v_cndmask_b32 v{AD}, v{AD+1}, v{AD}, vcc
    v_cndmask_b32 v{t3}, v{t2}, v{t3}, vcc
    v_add_u32 v{AD+1}, s{sIT}, v{AD}
    v_add_u32 v{AD+2}, v{AD}, v{t3}
    v_add_u32 v{AD+3}, s{sIT}, v{AD+2}
    v_mov_b32 v{t3}, {TTAB}
    """)
    for i in range(4): a(f"v_lshl_add_u32 v{AD+i}, v{AD+i}, 1, v{t3}")
    a(f"v_lshlrev_b32 v{t2}, 3, v0\nv_sub_u32 v{t2}, 2047, v{t2}")
    for e in range(9):
        a(f"v_subrev_u32 v{EA+e}, {e}, v{t2}")
        a(f"v_cvt_f32_i32 v{FR+e}, v{EA+e}")
    for e in range(0, 10, 2):
        a(f"v_cvt_pk_bf16_f32 v{FR+e}, v{FR+e}, v{FR+min(e+1,8)}")
        if e < 8: a(f"v_lshrrev_b32 v{FR+e+1}, 16, v{FR+e}")
        a(f"v_and_b32 v{FR+e}, 0xffff, v{FR+e}")
    for e in range(9):
        if e in (0, 8): a(f"v_cmp_gt_i32 vcc, 128, v{EA+e}")
        a(f"v_subrev_u32 v{FR+e}, 17024, v{FR+e}")
        a(f"v_cndmask_b32 v{EA+e}, v{FR+e}, v{EA+e}, vcc")
        a(f"v_lshl_add_u32 v{EA+e}, v{EA+e}, 1, v{t3}")
    a(f"""
    v_and_b32 v5, 3, v2
    v_sub_u32 v5, 3, v5
    v_mul_u32_u24 v{vKL}, {KS}, v5
    v_lshrrev_b32 v6, 4, v2
    v_lshl_add_u32 v{vKL}, v6, 4, v{vKL}
    v_bfe_u32 v7, v2, 2, 2
    v_lshlrev_b32 v7, 4, v7
    v_sub_u32 v{vKL}, v{vKL}, v7
    s_and_b32 s{sT0}, s{sWV}, 1
    s_lshl_b32 s{sT0}, s{sT0}, 8
    s_lshr_b32 s{sT3}, s{sWV}, 1
    s_mul_i32 s{sT3}, s{sT3}, {KSL}
    s_add_u32 s{sT3}, s{sT3}, {2*(2040-1792)}
    s_sub_u32 s{sT3}, s{sT3}, s{sT0}
    v_add_u32 v{vKL}, s{sT3}, v{vKL}
    v_and_b32 v5, 1, v2
    v_sub_u32 v5, 1, v5
    v_mul_u32_u24 v{vZL}, {U1-U0}, v5
    v_add_u32 v{vZL}, {UBASE}, v{vZL}
    v_bfe_u32 v5, v2, 1, 3
    v_lshl_add_u32 v{vUL}, v5, 6, v{vZL}
    v_lshl_add_u32 v{vUL}, v6, 4, v{vUL}
    s_sub_u32 s{sT3}, 16, s{sT0}
    v_add_u32 v{vUL}, s{sT3}, v{vUL}
    """)
    vm.wait("ug")
    st(1)
    X = os.environ.get('SX', '')
    if X == '1': a('s_waitcnt vmcnt(0)\ns_endpgm')
    for i in range(8): a(f"v_or_b32 v{UG+i}, v{UG+i}, v{UG2+i}")
    a(f"""
    ds_write_b128 v{vGS}, {vr(UG,4)}
    ds_write_b128 v{vGS}, {vr(UG+4,4)} offset:16
    """)
    def kgen(c):
        P = P0 + 8 * c
        AC = ACC + 16 * c
        vm.wait(f"p{c}")
        a(f"""
        v_mul_f32 v{t0}, {LOG2E}, v{P+6}
        v_exp_f32 v{t0}, v{t0}
        v_cvt_pk_bf16_f32 v{t0}, v{t0}, v{t0}
        v_lshlrev_b32 v{t0}, 16, v{t0}
        v_mul_f32 v{t1}, v{t0}, v{P}
        v_mul_f32 v{t2}, v{t0}, v{P+1}
        v_mul_f32 v{t1}, {LOG2E}, v{t1}
        v_mul_f32 v{t2}, {INV2PI}, v{t2}
        v_mul_f32 v{P+2}, v{t0}, v{P+2}
        v_mul_f32 v{P+3}, v{t0}, v{P+3}
        """)
        cmul(a, Wc, P + 4, P + 2)
        for (E, m, cj) in ((E8, 8.0, True), (E1, 1.0, False), (E256, 256.0, False)):
            if m != 1.0:
                a(f"v_mul_f32 v{t0}, {f2u(m)}, v{t1}\nv_mul_f32 v{t3}, {f2u(m)}, v{t2}\nv_exp_f32 v{t0}, v{t0}\nv_fract_f32 v{t3}, v{t3}")
            else:
                a(f"v_exp_f32 v{t0}, v{t1}\nv_fract_f32 v{t3}, v{t2}")
            a(f"""
            v_cos_f32 v{E}, v{t3}
            v_sin_f32 v{E+1}, v{t3}
            v_mul_f32 v{E}, v{E}, v{t0}
            v_mul_f32_e64 v{E+1}, {'-' if cj else ''}v{E+1}, v{t0}
            """)
        cmul(a, E2, E1, E1); cmul(a, E4, E2, E2)
        yield "head"
        cnt = [0]
        def put(row, src):
            r = pk + (cnt[0] & 3); cnt[0] += 1
            a(f"v_cvt_pk_bf16_f32 v{r}, v{src}, v{src+1}")
            a(f"ds_write_addtid_b32 v{r} offset:{row * ROWB}")
        if c == 0:
            a(f"v_mov_b32 v{t0}, 0x3f80")
            a(f"ds_write_addtid_b32 v{t0} offset:{21*ROWB}")
        put(22, E8); put(0, Wc)
        fine, cur = [], E8
        for f in range(2, 32):
            nxt = X0 if cur != X0 else X1
            fine.append((nxt, cur, E8, 21 + f)); cur = nxt
        coarse, cur = [], Wc
        for cc in range(1, 8):
            nxt = Y0 if cur != Y0 else Y1
            coarse.append((nxt, cur, E1, cc)); cur = nxt
        coarse.append((G0, Wc, E256, 8)); cur = G0
        for cc in range(1, 4):
            nxt = Y0 if cur != Y0 else Y1
            coarse.append((nxt, cur, E2, 8 + cc)); cur = nxt
        coarse += [(G1, G0, E256, 12), (Y0, G1, E4, 13), (G0, G1, E256, 14), (Y0, G0, E4, 15)]
        g = G0
        for i in range(5):
            n = G1 if g == G0 else G0
            coarse.append((n, g, E256, 16 + i)); g = n
        seq = []
        for i in range(max(len(fine), len(coarse))):
            if i < len(fine): seq.append(fine[i])
            if i < len(coarse): seq.append(coarse[i])
        for n, (d, x, y, row) in enumerate(seq):
            cmul(a, d, x, y); put(row, d)
            if n == 24: yield "mid"
        a("s_waitcnt lgkmcnt(0)")
        bufs = [FR, FR + 8, vT, vT + 8]
        for jj in range(4):
            a(f"ds_read_b128 {vr(bufs[jj],4)}, v{KA} offset:{32*jj}")
            a(f"ds_read_b128 {vr(bufs[jj]+4,4)}, v{KB_} offset:{21*ROWB+32*jj}")
        yield "reads"
        for j in range(8):
            fb = bufs[j & 3]
            a(f"s_waitcnt lgkmcnt({6 if j < 5 else 2*(7-j)})")
            a(f"v_mfma_f32_32x32x16_bf16 {vr(AC,16)}, {vr(fb,4)}, {vr(fb+4,4)}, {'0' if j == 0 else vr(AC,16)}")
            if j + 4 < 8:
                a(f"ds_read_b128 {vr(fb,4)}, v{KA} offset:{32*(j+4)}")
                a(f"ds_read_b128 {vr(fb+4,4)}, v{KB_} offset:{21*ROWB+32*(j+4)}")
        yield "done"
    g0, g1 = kgen(0), kgen(1)
    next(g0)
    a(f"""
    s_waitcnt lgkmcnt(0)
    s_barrier
    ds_read_b128 {vr(UG,4)}, v{vGR}
    ds_read_b128 {vr(UG+4,4)}, v{vGR} offset:{8*144}
    v_cmp_eq_u32 vcc, 0, v0
    v_mov_b32 v{vT}, 0
    v_cndmask_b32 v{P0+7}, 0, v{P0+7}, vcc
    s_waitcnt lgkmcnt(0)
    """)
    if X != '2':
        vm.op(f"buffer_store_dwordx4 {vr(UG,4)}, v{vGO}, {WSR}, s{sT1} offen {SC}", "us")
        vm.op(f"buffer_store_dwordx4 {vr(UG+4,4)}, v{vGO}, {WSR}, s{sT2} offen {SC}", "us")
    if X == '3': a('s_endpgm')
    next(g0)
    k.init_issue(vm, IN)
    next(g0)
    st(2)
    next(g1)
    a(f"v_cmp_eq_u32 vcc, 0, v0\nv_cndmask_b32 v{P0+15}, 0, v{P0+15}, vcc")
    next(g0)
    k.init_check(vm, IN)
    k.flag(vm, sFU, 1)
    st(3)
    next(g1)
    k.poll_issue(vm, vFU, IN)
    next(g1)
    st(4)
    if X in ('2', '4'): a('s_endpgm')
    k.poll(vm, vFU, IN, issued=True)
    st(5)
    a(f"""
    s_lshl_b32 s{sT0}, s{sCG}, 2
    s_add_u32 s{sT0}, s{sT0}, s{sWV}
    s_lshl_b32 s{sT0}, s{sT0}, 12
    s_add_u32 s{sT0}, s{sT0}, {WS_UT}
    """)
    vm.drain()
    for i in range(4):
        vm.op(f"buffer_load_dwordx4 {vr(UR+4*i,4)}, v3, {WSR}, s{sT0} offen offset:{1024*i} {SC}", "u")
    next(g1)
    st(6)
    for c in range(2):
        for q in range(3):
            a(f"ds_write_b128 v{vPW}, {vr(ACC+16*c+4*q,4)} offset:{(3*c+q)*1024}")
    a(f"""
    s_lshl_b32 s{sT1}, s{sKG}, 13
    s_add_u32 s{sT1}, s{sT1}, {WS_KF}
    s_add_u32 s{sT2}, s{sT1}, 4096
    s_cmp_eq_u32 s{sWV}, 3
    s_waitcnt lgkmcnt(0)
    s_barrier
    s_cbranch_scc1 L_nored
    """)
    RD = ACC
    for c in range(2):
        for w in range(4):
            a(f"ds_read_b128 {vr(RD+16*c+4*w,4)}, v{vRR} offset:{w*WREG + c*3072}")
    for c in range(2):
        a("s_waitcnt lgkmcnt(4)")
        b = RD + 16 * c
        a(f"""
        v_add_f32 v{b}, v{P0+8*c+7}, v{b}
        v_pk_add_f32 {vr(b+2,2)}, {vr(b+2,2)}, {vr(b+6,2)}
        v_pk_add_f32 {vr(b,2)}, {vr(b,2)}, {vr(b+4,2)}
        v_pk_add_f32 {vr(b+8,2)}, {vr(b+8,2)}, {vr(b+12,2)}
        v_pk_add_f32 {vr(b+10,2)}, {vr(b+10,2)}, {vr(b+14,2)}
        v_pk_add_f32 {vr(b,2)}, {vr(b,2)}, {vr(b+8,2)}
        v_pk_add_f32 {vr(b+2,2)}, {vr(b+2,2)}, {vr(b+10,2)}
        v_cvt_pk_bf16_f32 v{b}, v{b}, v{b+1}
        v_cvt_pk_bf16_f32 v{b+1}, v{b+2}, v{b+3}
        ds_write_b16 v{AD}, v{b} offset:{c*TSTR}
        ds_write_b16_d16_hi v{AD+1}, v{b} offset:{c*TSTR}
        ds_write_b16 v{AD+2}, v{b+1} offset:{c*TSTR}
        ds_write_b16_d16_hi v{AD+3}, v{b+1} offset:{c*TSTR}
        """)
    a(f"""
    L_nored:
    v_mov_b32 v{vT}, 0
    v_mov_b32 v{vT+1}, 0
    v_mov_b32 v{vT+2}, 0
    v_mov_b32 v{vT+3}, 0
    v_cmp_eq_u32 vcc, 255, v0
    s_waitcnt lgkmcnt(0)
    s_barrier
    """)
    GE = 96
    for c in range(2):
        for e in range(9):
            a(f"ds_read_u16 v{GE+10*c+e}, v{EA+e} offset:{c*TSTR}")
    a(f"ds_write_b64 v{vZF}, {vr(vT,2)}\nds_write_b128 v{vZU}, {vr(vT,4)}")
    CW = 64
    def kwrite(addr, a4, q0, q1, off, off8=0):
        a(f"ds_write_b128 v{addr}, {vr(q0,4)} offset:{off}")
        a(f"ds_write2_b64 v{a4}, {vr(q0,2)}, {vr(q0+2,2)} offset0:{off8} offset1:{off8+1}")
        a(f"ds_write_b128 v{addr}, {vr(q1,4)} offset:{off+KS}")
        a(f"ds_write2_b64 v{a4+1}, {vr(q1,2)}, {vr(q1+2,2)} offset0:{off8} offset1:{off8+1}")
    for c in range(2):
        g = GE + 10 * c
        a(f"s_waitcnt lgkmcnt({11 if c == 0 else 6})")
        for i in range(4): a(f"v_lshl_or_b32 v{CW+8*c+i}, v{g+2*i+1}, 16, v{g+2*i}")
        vm.op(f"buffer_store_dwordx4 {vr(CW+8*c,4)}, v{vCW}, {WSR}, s{sT1 if c == 0 else sT2} offen {SC}", "ks")
        a(f"v_cndmask_b32 v{g+8}, v{g+8}, 0, vcc")
        for i in range(4): a(f"v_lshl_or_b32 v{CW+8*c+4+i}, v{g+2*i+2}, 16, v{g+2*i+1}")
        kwrite(vCW, vC4 + 2 * c, CW + 8 * c, CW + 8 * c + 4, c * KSL)
    vm.wait("u")
    UB_ = 80
    for i in range(4):
        b = UR + 4 * i; d = UB_ + 4 * i
        a(f"ds_write_b128 v{vUW}, {vr(b,4)} offset:{U0 + 1024*i}")
        if i == 0: a(f"v_mov_b32 v{d}, 0")
        else: a(f"v_readlane_b32 s{sT0}, v{b-1}, 63")
        for q in range(3): a(f"v_mov_b32 v{d+1+q}, v{b+q}")
        if i: a(f"v_mov_b32 v{d}, s{sT0}")
        a(f"v_mov_b32_dpp v{d}, v{b+3} wave_shr:1 row_mask:0xf bank_mask:0xf")
        a(f"ds_write_b128 v{vUW}, {vr(d,4)} offset:{U1 + 1024*i}")
    vKA, vUA, vU0, vZ = 8, 9, 10, 11
    SAVE = 16; A = 32; KF0, UF0 = 48, 112
    a(f"""
    s_setprio {os.environ.get('SPRIO2', 0)}
    v_mov_b32 v12, v{vFP}
    v_mov_b32 v13, v{vC4}
    s_lshr_b32 s{sT0}, s{sWV}, 1
    s_lshl_b32 s{sT1}, s{sHH}, 1
    s_add_u32 s{sT0}, s{sT0}, s{sT1}
    s_mul_i32 s{sKB}, s{sT0}, {UB}
    s_mov_b32 s{sPH}, 0
    L_phase:
    v_mov_b32 v{vKA}, v{vKL}
    v_add_u32 v{vUA}, s{sKB}, v{vUL}
    v_add_u32 v{vZ}, s{sKB}, v{vZL}
    v_max_i32 v{vU0}, v{vZ}, v{vUA}
    s_mov_b32 s{sIT}, 0
    s_cmp_eq_u32 s{sHH}, 0
    s_waitcnt lgkmcnt(0)
    s_barrier
    """)
    st(7)
    TS = {0: [1, 2, 5, 6], 1: [0, 3, 4, 7]}
    def loadlist(s, H):
        L = []; K_, U_ = KF0 + 32 * s, UF0 + 32 * s
        for x in range(8 if H else 7):
            L.append(f"ds_read_b128 {vr(U_+4*x,4)}, v{vU0 if x == 0 else vUA} offset:{512*x}")
            L.append(f"ds_read_b128 {vr(K_+4*x,4)}, v{vKA} offset:{512*(7-x)}")
        return L
    stepL = [f"v_subrev_u32 v{vKA}, 64, v{vKA}", f"v_subrev_u32 v{vUA}, 64, v{vUA}", f"v_max_i32 v{vU0}, v{vZ}, v{vUA}"]
    a("s_cbranch_scc1 L_cv0pre")
    for H in (1, 0):
        if H == 0: a("L_cv0pre:")
        for l in loadlist(0, H) + stepL: a(l)
        for i in range(16): a(f"v_mov_b32 v{A+i}, 0")
        a(f"L_cv{H}:")
        for s in range(2):
            L = loadlist(1 - s, H); nl = len(L)
            K_, U_ = KF0 + 32 * s, UF0 + 32 * s
            prs = [(c, mt - c, n) for n, mt in enumerate(TS[H]) for c in range(mt + 1)]
            prs.sort(key=lambda x: (max(x[0], x[1]), x[2]))
            issued = 0; done = -1
            L2 = L + stepL
            for n, (c, m, tn) in enumerate(prs):
                need = max(c, m)
                if need > done:
                    a(f"s_waitcnt lgkmcnt({min(15, nl - 2*(need+1) + min(issued, nl))})"); done = need
                acc = vr(A + 4 * tn, 4)
                a(f"v_mfma_f32_16x16x32_bf16 {acc}, {vr(K_+4*c,4)}, {vr(U_+4*m,4)}, {acc}")
                if n >= 1 and issued < len(L2): a(L2[issued]); issued += 1
            while issued < len(L2): a(L2[issued]); issued += 1
        a(f"""
        s_add_u32 s{sIT}, s{sIT}, 1
        s_cmp_eq_u32 s{sIT}, 2
        s_cbranch_scc1 L_cvdone
        s_cmp_eq_u32 s{sPH}, 1
        s_cbranch_scc1 L_cv{H}
        s_waitcnt vmcnt(0)
        """)
        k.flag(Cnt(a, "vmcnt"), sFK, 1)
        a(f"s_branch L_cv{H}")
    a(f"""
    L_cvdone:
    s_cmp_eq_u32 s{sPH}, 1
    s_cbranch_scc1 L_cvend
    """)
    st(8)
    vm.drain()
    k.poll_issue(vm, 12, 15)
    PKR = 48
    a(f"""
    s_xor_b32 s{sT0}, s{sKG}, 1
    s_lshl_b32 s{sT0}, s{sT0}, 13
    s_lshl_b32 s{sT1}, s{sWV}, 11
    s_add_u32 s{sT0}, s{sT0}, s{sT1}
    s_add_u32 s{sT0}, s{sT0}, {WS_KF}
    s_xor_b32 s{sT1}, s{sHH}, 1
    s_lshl_b32 s{sT1}, s{sT1}, 1
    s_lshr_b32 s{sT2}, s{sWV}, 1
    s_add_u32 s{sT1}, s{sT1}, s{sT2}
    s_mul_i32 s{sKB}, s{sT1}, {UB}
    s_mul_i32 s{sT1}, s{sT2}, {KSL}
    s_and_b32 s{sT2}, s{sWV}, 1
    s_lshl_b32 s{sT3}, s{sT2}, 11
    s_add_u32 s{sT1}, s{sT1}, s{sT3}
    v_add_u32 v5, s{sT1}, v3
    v_add_u32 v6, {2*KS-8}, v5
    v_add_u32 v7, {3*KS-8}, v5
    s_sub_u32 s{sT2}, s{sT2}, 1
    s_mov_b32 s{sPH}, 1
    """)
    for i in range(16): a(f"v_mov_b32 v{SAVE+i}, v{A+i}")
    a("s_waitcnt lgkmcnt(0)")
    k.poll(vm, 12, 15, issued=True)
    st(9)
    a(f"""
    buffer_load_dwordx4 {vr(PKR,4)}, v3, {WSR}, s{sT0} offen {SC}
    buffer_load_dwordx4 {vr(PKR+6,4)}, v3, {WSR}, s{sT0} offen offset:1024 {SC}
    buffer_load_dword v{PKR+10}, off, {WSR}, s{sT0} offset:2048 {SC}
    s_barrier
    s_waitcnt vmcnt(0)
    v_and_b32 v{PKR+10}, s{sT2}, v{PKR+10}
    v_readlane_b32 s{sT0}, v{PKR+6}, 0
    v_mov_b32_dpp v{PKR+10}, v{PKR+6} wave_shl:1 row_mask:0xf bank_mask:0xf
    v_mov_b32 v{PKR+4}, s{sT0}
    v_mov_b32_dpp v{PKR+4}, v{PKR} wave_shl:1 row_mask:0xf bank_mask:0xf
    """)
    for i in (1, 0):
        b = PKR + 6 * i
        for q in range(4): a(f"v_alignbit_b32 v{PKR+12+4*i+q}, v{b+q+1}, v{b+q}, 16")
        kwrite(5, 6, b, PKR + 12 + 4 * i, 1024 * i, 128 * i)
    a("s_branch L_phase")
    a(f"""
    L_cvend:
    s_lshr_b32 s{sT0}, s{sWV}, 1
    s_lshl_b32 s{sT1}, s{sHH}, 1
    s_add_u32 s{sT0}, s{sT0}, s{sT1}
    s_mul_i32 s{sT4}, s{sT0}, {UB}
    s_xor_b32 s{sT3}, s{sT0}, 2
    s_and_b32 s{sT1}, s{sWV}, 1
    s_lshl_b32 s{sT2}, s{sT1}, 12
    s_add_u32 s{sT2}, s{sT2}, s{sT4}
    s_add_u32 s{sT2}, s{sT2}, {UBASE}
    v_add_u32 v5, s{sT2}, v3
    s_lshl_b32 s{sT4}, s{sT1}, 13
    s_sub_u32 s{sT2}, s{sT2}, s{sT4}
    s_add_u32 s{sT2}, s{sT2}, 4096
    v_add_u32 v6, s{sT2}, v3
    s_cmp_eq_u32 s{sT1}, 0
    s_cselect_b32 s{sT0}, s{sT0}, s{sT3}
    s_mul_i32 s{sT0}, s{sT0}, {KS}
    s_cbranch_scc1 L_even
    """)
    for i in range(16): a(f"v_swap_b32 v{A+i}, v{SAVE+i}")
    a("L_even:")
    for q in range(4): a(f"ds_write_b128 v5, {vr(A+4*q,4)} offset:{1024*q}")
    a(f"""
    v_bfe_u32 v7, v2, 1, 3
    v_lshlrev_b32 v7, 6, v7
    v_lshrrev_b32 v8, 4, v2
    v_lshl_add_u32 v7, v8, 4, v7
    v_and_b32 v9, 1, v2
    v_lshl_add_u32 v7, v9, 2, v7
    v_add_u32 v7, s{sT0}, v7
    v_add_u32 v9, 1024, v7
    v_bfe_u32 v10, v2, 2, 2
    v_mul_u32_u24 v10, {KS}, v10
    v_lshl_add_u32 v10, v8, 5, v10
    v_and_b32 v8, 3, v2
    v_lshl_add_u32 v10, v8, 3, v10
    s_lshl_b32 s{sT0}, s{sWV}, 9
    v_add_u32 v10, s{sT0}, v10
    v_mul_u32_u24 v11, 1792, v2
    s_mul_i32 s{sT2}, s{sT1}, 3
    s_add_u32 s{sT3}, s{sT1}, 1
    s_cmp_eq_u32 s{sHH}, 0
    s_cselect_b32 s{sT2}, s{sT3}, s{sT2}
    s_lshr_b32 s{sT3}, s{sWV}, 1
    s_lshl_b32 s{sT3}, s{sT3}, 2
    s_add_u32 s{sT2}, s{sT2}, s{sT3}
    s_mul_i32 s{sT2}, s{sT2}, {256*1792}
    s_lshl_b32 s{sT3}, s{sCG}, 3
    s_add_u32 s{sT2}, s{sT2}, s{sT3}
    s_waitcnt lgkmcnt(0)
    s_barrier
    """)
    for q in range(4): a(f"ds_read_b128 {vr(A+4*q,4)}, v6 offset:{1024*q}")
    for q in range(4):
        a(f"s_waitcnt lgkmcnt(3)")
        a(f"v_pk_add_f32 {vr(SAVE+4*q,2)}, {vr(SAVE+4*q,2)}, {vr(A+4*q,2)}")
        a(f"v_pk_add_f32 {vr(SAVE+4*q+2,2)}, {vr(SAVE+4*q+2,2)}, {vr(A+4*q+2,2)}")
        a(f"v_cvt_pk_bf16_f32 v{48+2*q}, v{SAVE+4*q}, v{SAVE+4*q+1}")
        a(f"v_cvt_pk_bf16_f32 v{49+2*q}, v{SAVE+4*q+2}, v{SAVE+4*q+3}")
        a(f"ds_write2_b32 v{7 if q < 2 else 9}, v{48+2*q}, v{49+2*q} offset0:{128*(q&1)} offset1:{128*(q&1)+2}")
    a("s_waitcnt lgkmcnt(0)\ns_barrier")
    st(10)
    for it in range(4): a(f"ds_read_b64_tr_b16 {vr(56+2*it,2)}, v10 offset:{128*it}")
    for it in range(4):
        a(f"s_waitcnt lgkmcnt({3-it})")
        a(f"buffer_store_dwordx2 {vr(56+2*it,2)}, v11, s[{SO}:{SO+3}], s{sT2} offen")
        if it < 3: a(f"s_add_u32 s{sT2}, s{sT2}, {64*1792}")
    st.end(0)
    a("s_endpgm")
    a(f"""
    L_aux:
    s_cmp_ge_u32 s{sIDX}, 16
    s_cbranch_scc1 L_end
    s_lshl_b32 s{sT1}, s{sIDX}, 13
    s_add_u32 s{sT1}, s{sT1}, {WS_KVA}
    s_add_u32 s{sT2}, s{sT1}, 4096
    v_lshlrev_b32 v5, 4, v0
    v_mov_b32 v8, 0
    v_mov_b32 v9, 0
    v_mov_b32 v10, 0
    v_mov_b32 v11, 0
    s_lshl_b32 s{sT0}, s{sIDX}, 2
    v_mov_b32 v6, s{sT0}
    s_waitcnt lgkmcnt(0)
    """)
    srd(a, SWS, 44, 45, WS_SIZE)
    a(f"""
    buffer_store_dwordx4 v[8:11], v5, {WSR}, s{sT1} offen {SC}
    buffer_store_dwordx4 v[8:11], v5, {WSR}, s{sT2} offen {SC}
    s_waitcnt vmcnt(0)
    s_barrier
    s_cmp_lg_u32 s{sWV}, 0
    s_cbranch_scc1 L_end
    s_mov_b64 exec, 1
    global_store_dword v6, v1, s[42:43] offset:64 {SC}
    """)
```

```python
import build, sys, stamp
if "--stamp" in sys.argv:
    stamp.ENABLED = True; sys.argv.remove("--stamp")
if '--dbg' in sys.argv:
    stamp.ENABLED = True; stamp.DBG = True; sys.argv.remove('--dbg')
import v4 as v2
hdr = open("cdna_kernels/" + build.NAME + ".s.ref").read().split("; Override launch geometry")[0]
name = build.NAME + "_kernel"
body, kd = build.kernel(name, v2.gen())
s = hdr + f"; @launch grid=(512,1,1) block=(256,1,1) lds={v2.LDS}\n" + '.amdgcn_target "amdgcn-amd-amdhsa--gfx950"\n.text\n' + body + '.section .rodata,"a"\n.p2align 6\n' + kd
out = sys.argv[1] if len(sys.argv) > 1 else "cdna_kernels/" + build.NAME + ".s"
open(out, "w").write(s)
```

```python
import struct, os
from asmlib import *
from stamp import Stamper

WS_PQ  = 0x000000
WS_KVA = 0x200000
WS_FLG = 0x210000
WS_KF  = 0x300000
WS_UT  = 0x500000
WS_SIZE = 0x700000
F_UT, F_KF, F_Q, F_KV, F_Z = [WS_FLG + 128 * x for x in (0, 448, 896, 1408, 1536)]
LDS = 81920
LOG2E = 0x3fb8aa3b
INV2PI = 0x3e22f983
def f2u(x): return hex(struct.unpack("<I", struct.pack("<f", x))[0])
EPS = f2u(1e-6)
SC = "sc1"

def cmul(a, d, x, y):
    assert d != x and d != y
    if os.environ.get('PK', '0') == '0':
        a(f"v_mul_f32 v{d}, v{x}, v{y}\nv_mul_f32 v{d+1}, v{x}, v{y+1}\nv_fma_f32 v{d}, -v{x+1}, v{y+1}, v{d}\nv_fmac_f32 v{d+1}, v{x+1}, v{y}")
        return
    a(f"v_pk_mul_f32 {vr(d,2)}, {vr(x,2)}, {vr(y,2)} op_sel:[0,0] op_sel_hi:[0,1]")
    a(f"v_pk_fma_f32 {vr(d,2)}, {vr(x,2)}, {vr(y,2)}, {vr(d,2)} op_sel:[1,1,0] op_sel_hi:[1,0,1] neg_lo:[1,0,0]")
def srd(a, S, lo, hi, n):
    a(f"s_mov_b32 s{S}, s{lo}\ns_mov_b32 s{S+1}, s{hi}\ns_mov_b32 s{S+2}, {n}\ns_mov_b32 s{S+3}, 0x20000")
def weave(main, fill, start=0):
    n, m, j = len(main), len(fill), 0
    for i, f in enumerate(main):
        f()
        tgt = 0 if i < start else min(m, ((i - start + 1) * m + (n - start) - 1) // (n - start))
        while j < tgt: fill[j](); j += 1
    while j < m: fill[j](); j += 1

SWS, SX, SW, SO = 48, 52, 56, 60
sC1 = 64
sN = 46
NV = 190
sWV, sT0, sT1, sT2, sT3, sT4, sA, sB, sC, sD, sE, sF, sG, sH, sI, sJ = range(66, 82)
WSR = f"s[{SWS}:{SWS+3}]"

class K:
    def __init__(self):
        self.a = Asm(); self.nl = 0
    def lab(self, p="L"):
        self.nl += 1; return f"{p}_{self.nl}"
    def _spin(self, vm, tag, cmp, ld, post=""):
        a = self.a; L, Lok = self.lab("Lp"), self.lab("Lpo")
        vm.wait(tag)
        a(f"""{L}:
        {cmp}
        s_cmp_eq_u64 vcc, 0
        s_cbranch_scc1 {Lok}
        s_sub_u32 s15, s15, 1
        s_cbranch_scc1 L_end
        s_mov_b64 exec, vcc
        s_sleep {os.environ.get('SLP', 2)}
        {ld}
        s_waitcnt vmcnt(0)
        s_branch {L}
        {Lok}:
        s_mov_b64 exec, -1
        {post}""")
    def init_issue(self, vm, t=None): vm.op(f"global_load_dwordx2 {vr(NV,2)}, v4, s[42:43] {SC}", "init")
    def init_check(self, vm, t=None):
        self._spin(vm, "init", f"v_cmp_eq_u32 vcc, 0, v{NV}", f"global_load_dwordx2 {vr(NV,2)}, v4, s[42:43] {SC}",
                   f"v_readfirstlane_b32 s{sN}, v{NV}\nv_readfirstlane_b32 s{sN+1}, v{NV+1}")
    def poll_ld(self, vaddr, t): return f"buffer_load_dwordx2 {vr(t,2)}, v{vaddr}, {WSR}, 0 offen {SC}"
    def poll_cmp(self, t): return f"v_cmp_ne_u64 vcc, s[{sN}:{sN+1}], {vr(t,2)}"
    def poll_issue(self, vm, vaddr, t): vm.op(self.poll_ld(vaddr, t), "poll")
    def poll(self, vm, vaddr, t, issued=False, tag="poll"):
        if not issued: self.poll_issue(vm, vaddr, t)
        self._spin(vm, tag, self.poll_cmp(t), self.poll_ld(vaddr, t))
    def flag(self, vm, soff, vone=None):
        self.a("s_mov_b64 exec, 1")
        vm.op(f"buffer_store_dwordx2 {vr(NV,2)}, off, {WSR}, s{soff} {SC}", "flag")
        self.a("s_mov_b64 exec, -1")

def gen():
    k = K(); a = k.a
    st = Stamper(a, 0, 44, sWV)
    a("s_cmp_ge_u32 s2, 512\ns_cbranch_scc1 L_end")
    st.start()
    a(f"""
    s_load_dwordx16 s[16:31], s[0:1], 0
    s_load_dwordx8 s[32:39], s[0:1], 64
    s_load_dwordx4 s[40:43], s[0:1], 96
    s_load_dwordx2 s[44:45], s[0:1], 112
    v_lshrrev_b32 v1, 6, v0
    v_and_b32 v2, 63, v0
    v_readfirstlane_b32 s{sWV}, v1
    v_lshlrev_b32 v3, 4, v2
    v_mov_b32 v4, 64
    s_mov_b32 s15, 40000
    s_cmp_lt_u32 s2, 256
    s_cbranch_scc1 L_S
    s_sub_u32 s2, s2, 256
    """)
    gen_G(k, st)
    gen_S(k, st)
    a("L_end:\ns_endpgm")
    return a

def gen_G(k, st):
    a = k.a
    if os.environ.get('SKIP_G'): a('s_endpgm')
    sRB, sP, sKX, sFL, sXO, sWO, sXM, sWM, sTY, sAT = sA, sB, sC, sD, sE, sF, sG, sH, sI, sJ
    vXD, vWD, vXA, vWA = 8, 12, 16, 20
    vWO, vFQ, vFK, vWS = 21, 22, 23, 24
    vFT, vEX, vFZ = 26, 5, 6
    vAT = 28
    vT = 36
    GA = 64; XF, WF = 128, 144
    a(f"""
    s_setprio {os.environ.get('GPRIO', 1)}
    s_and_b32 s{sT0}, s2, 7
    s_lshr_b32 s{sT1}, s2, 3
    s_lshr_b32 s{sTY}, s2, 7
    s_lshr_b32 s{sRB}, s{sT0}, 1
    s_lshl_b32 s{sRB}, s{sRB}, 2
    s_bfe_u32 s{sT2}, s{sT1}, 0x20002
    s_add_u32 s{sRB}, s{sRB}, s{sT2}
    s_and_b32 s{sP}, s{sT0}, 1
    s_lshl_b32 s{sP}, s{sP}, 2
    s_and_b32 s{sT3}, s{sT1}, 3
    s_add_u32 s{sP}, s{sP}, s{sT3}
    s_lshl_b32 s{sKX}, s{sT3}, 1
    s_add_u32 s{sKX}, s{sKX}, s{sTY}
    s_mul_i32 s{sT2}, s{sT2}, 3
    s_add_u32 s{sKX}, s{sKX}, s{sT2}
    s_cmp_ge_u32 s{sKX}, 14
    s_cselect_b32 s{sT2}, 14, 0
    s_sub_u32 s{sKX}, s{sKX}, s{sT2}
    s_cmp_ge_u32 s{sKX}, 7
    s_cselect_b32 s{sT2}, 7, 0
    s_sub_u32 s{sKX}, s{sKX}, s{sT2}
    s_lshl_b32 s{sXO}, s{sKX}, 7
    s_mul_i32 s{sWO}, s{sKX}, {64*2688}
    v_lshrrev_b32 v{vT+1}, 3, v2
    v_and_b32 v{vT+2}, 7, v2
    v_lshrrev_b32 v{vT+3}, 4, v2
    v_xor_b32 v{vT+6}, v{vT+2}, v{vT+3}
    v_lshlrev_b32 v{vT+6}, 4, v{vT+6}
    v_mul_u32_u24 v{vT+7}, 896, v{vT+1}
    s_lshl_b32 s{sT0}, s{sRB}, 2
    s_add_u32 s{sT0}, s{sT0}, s{sWV}
    s_mul_i32 s{sT0}, s{sT0}, {32*896}
    v_add3_u32 v{vXD}, v{vT+6}, v{vT+7}, s{sT0}
    v_xor_b32 v{vT+6}, 64, v{vT+6}
    v_add3_u32 v{vXD+1}, v{vT+6}, v{vT+7}, s{sT0}
    v_add_u32 v{vXD+1}, {7168-1024}, v{vXD+1}
    v_add_u32 v{vXD+2}, {2*(7168-1024)}, v{vXD}
    v_add_u32 v{vXD+3}, {2*(7168-1024)}, v{vXD+1}
    v_and_b32 v{vT+6}, 1, v{vT+3}
    v_lshlrev_b32 v{vT+6}, 2, v{vT+6}
    v_xor_b32 v{vT+8}, v{vT+6}, v{vT+2}
    v_min_u32 v{vT+6}, 6, v{vT+8}
    v_lshlrev_b32 v{vT+6}, 4, v{vT+6}
    v_mul_u32_u24 v{vT+9}, 2688, v{vT+1}
    s_lshr_b32 s{sT0}, s{sWV}, 1
    s_add_u32 s{sT0}, s{sT0}, 1
    s_mul_i32 s{sT0}, s{sT0}, 896
    s_and_b32 s{sT1}, s{sWV}, 1
    s_mul_i32 s{sT1}, s{sT1}, {32*2688}
    s_add_u32 s{sT0}, s{sT0}, s{sT1}
    s_mul_i32 s{sT1}, s{sWV}, {16*2688}
    s_lshl_b32 s{sXM}, s{sWV}, 12
    s_lshl_b32 s{sT2}, s{sWV}, 11
    s_cmp_eq_u32 s{sTY}, 0
    s_cselect_b32 s{sT0}, s{sT1}, s{sT0}
    s_cselect_b32 s{sWM}, s{sT2}, s{sXM}
    s_add_u32 s{sWM}, s{sWM}, 49152
    s_mul_i32 s{sT1}, s{sP}, 112
    s_add_u32 s{sT0}, s{sT0}, s{sT1}
    v_add3_u32 v{vWD}, v{vT+6}, v{vT+9}, s{sT0}
    v_add_u32 v{vWD+1}, {8*2688-1024}, v{vWD}
    v_add_u32 v{vWD+2}, {2*(8*2688-1024)}, v{vWD}
    v_add_u32 v{vWD+3}, {3*(8*2688-1024)}, v{vWD}
    s_mov_b32 s{SX+2}, {2048*896}
    s_mov_b32 s{SX+3}, 0x20000
    s_mov_b32 s{SW+2}, {448*2688}
    s_mov_b32 s{SW+3}, 0x20000
    s_cmp_eq_u32 s{sTY}, 0
    s_waitcnt lgkmcnt(0)
    s_mov_b32 s{SX}, s34
    s_mov_b32 s{SX+1}, s35
    s_mov_b32 s{SW}, s36
    s_mov_b32 s{SW+1}, s37
    """)
    st(0)
    a("s_cbranch_scc1 L_GQ")
    def setup(kv):
        a(f"""
        v_and_b32 v{vT+6}, 31, v2
        v_lshrrev_b32 v{vT+4}, 5, v2
        v_bfe_u32 v{vT+5}, v2, 1, 3
        v_xor_b32 v{vT+5}, v{vT+5}, v{vT+4}
        v_lshlrev_b32 v{vT+5}, 4, v{vT+5}
        v_lshl_add_u32 v{vT+5}, v{vT+6}, 7, v{vT+5}
        s_lshr_b32 s{sT0}, s{sWV}, 1
        s_lshl_b32 s{sT0}, s{sT0}, 13
        v_add_u32 v{vXA}, s{sT0}, v{vT+5}
        v_xor_b32 v{vXA+1}, 32, v{vXA}
        v_xor_b32 v{vXA+2}, 64, v{vXA}
        v_xor_b32 v{vXA+3}, 96, v{vXA}
        v_bfe_u32 v{vT+5}, v2, 2, 2
        v_lshl_add_u32 v{vT+5}, v{vT+4}, 3, v{vT+5}
        v_lshlrev_b32 v{vT+5}, 7, v{vT+5}
        v_and_b32 v{vT+9}, 3, v2
        v_lshlrev_b32 v{vT+10}, 3, v{vT+9}
        v_bfe_u32 v{vT+11}, v2, 4, 1
        v_lshl_add_u32 v{vT+10}, v{vT+11}, 5, v{vT+10}
        s_and_b32 s{sT0}, s{sWV}, 1
        s_mul_i32 s{sT0}, s{sT0}, 56
        v_add_u32 v{vT+10}, s{sT0}, v{vT+10}
        v_bfe_u32 v{vT+11}, v2, 3, 1
        v_lshlrev_b32 v{vT+11}, 6, v{vT+11}
        v_xor_b32 v{vT+10}, v{vT+10}, v{vT+11}
        v_add_u32 v{vT+5}, v{vT+5}, v{vT+10}
        v_add_u32 v{vWA}, 49152, v{vT+5}
        s_and_b32 s{sT0}, s2, 31
        s_lshl_b32 s{sT0}, s{sT0}, 4
        s_lshl_b32 s{sT1}, s{sWV}, 2
        s_add_u32 s{sT0}, s{sT0}, s{sT1}
        s_lshl_b32 s{sT0}, s{sT0}, 7
        s_add_u32 s{sT0}, s{sT0}, {F_Q}
        v_lshlrev_b32 v{vT+9}, 7, v{vT+9}
        v_add_u32 v{vFQ}, s{sT0}, v{vT+9}
        s_lshl_b32 s{sT0}, s{sWV}, 12
        s_add_u32 s{sT0}, s{sT0}, {F_KV}
        v_lshlrev_b32 v{vFK}, 7, v{vT+6}
        v_add_u32 v{vFK}, s{sT0}, v{vFK}
        v_lshlrev_b32 v{vT+8}, 4, v{vT+8}
        s_mul_i32 s{sT0}, s{sWV}, {112*896}
        s_lshr_b32 s{sT1}, s2, 5
        s_lshl_b32 s{sT1}, s{sT1}, 7
        s_add_u32 s{sT0}, s{sT0}, s{sT1}
        v_add3_u32 v{vWO}, v{vT+8}, v{vT+7}, s{sT0}
        v_add_u32 v{vWS}, s{sXM}, v3
        v_add_u32 v{vWS+1}, s{sWM}, v3
        s_mov_b32 s{sC1}, {LOG2E}
        s_mov_b32 s{sC1+1}, {LOG2E}
        """)
        srd(a, SWS, 44, 45, WS_SIZE)
        srd(a, SO, 40, 41, 2048 * 1792)
        if kv:
            a(f"""
            s_mul_i32 s{sT0}, s{sWV}, 20480
            s_add_u32 s{sT0}, s{sT0}, 16384
            v_add_u32 v{vEX}, s{sT0}, v3
            s_and_b32 s{sT0}, s{sWV}, 1
            s_lshr_b32 s{sT1}, s{sWV}, 1
            s_lshl_b32 s{sT1}, s{sT1}, 11
            s_mul_i32 s{sT2}, s{sT0}, 20480
            s_add_u32 s{sT2}, s{sT2}, s{sT1}
            s_add_u32 s{sT2}, s{sT2}, 16384
            s_and_b32 s{sT3}, s{sRB}, 7
            s_lshl_b32 s{sT3}, s{sT3}, 8
            s_add_u32 s{sT3}, s{sT3}, s{sT2}
            v_lshlrev_b32 v{vT+4}, 2, v2
            v_add_u32 v{vAT}, s{sT3}, v{vT+4}
            s_lshl_b32 s{sT0}, s{sT0}, 12
            s_add_u32 s{sT0}, s{sT0}, s{sT1}
            s_lshl_b32 s{sAT}, s{sP}, 13
            s_add_u32 s{sAT}, s{sAT}, s{sT0}
            s_add_u32 s{sAT}, s{sAT}, {WS_KVA}
            s_sub_u32 s{sAT}, s{sAT}, s{sT2}
            s_lshl_b32 s{sFL}, s{sP}, 4
            s_add_u32 s{sFL}, s{sFL}, s{sRB}
            s_lshl_b32 s{sFL}, s{sFL}, 7
            s_add_u32 s{sFL}, s{sFL}, {F_KV}
            """)
            for i in range(1, 8): a(f"v_xor_b32 v{vAT+i}, {i << 8}, v{vAT}")
            a(f"v_and_b32 v{vFZ}, 3, v2\nv_lshlrev_b32 v{vFZ}, 7, v{vFZ}\nv_add_u32 v{vFZ}, {F_Z}, v{vFZ}")
        else:
            a(f"""
            s_lshl_b32 s{sT3}, s{sRB}, 1
            s_lshr_b32 s{sT1}, s{sWV}, 1
            s_add_u32 s{sT3}, s{sT3}, s{sT1}
            s_lshl_b32 s{sT3}, s{sT3}, 4
            s_lshl_b32 s{sT1}, s{sP}, 1
            s_add_u32 s{sT1}, s{sT1}, s{sT3}
            s_and_b32 s{sT2}, s{sWV}, 1
            s_add_u32 s{sT1}, s{sT1}, s{sT2}
            s_lshl_b32 s{sFL}, s{sT1}, 7
            s_add_u32 s{sFL}, s{sFL}, {F_Q}
            s_add_u32 s{sT1}, s{sT1}, s{sT3}
            s_lshl_b32 s{sAT}, s{sT1}, 11
            s_add_u32 s{sKX}, s{sAT}, 32768
            """)
        for i in range(32): a(f"v_mov_b32 v{GA+i}, {EPS}")
    def gemm(kv):
        vm, lg = Cnt(a, "vmcnt"), Cnt(a, "lgkmcnt")
        nt = 2 if kv else 1
        nws = 2 if kv else 4
        wsz = 16384 if kv else 8192
        stage = {}
        def ld(kind, c, regs=None):
            n = 4 if kind == "x" else 2 * nt
            vD, S, sO = (vXD, SX, sXO) if kind == "x" else (vWD, SW, sWO)
            step, end = (128, 896) if kind == "x" else (64 * 2688, 448 * 2688)
            if regs is not None: stage[(kind, c)] = regs
            T = []
            for j in range(n):
                def f(j=j):
                    if regs is None:
                        if j == 0: a(f"s_add_u32 m0, s{sXM if kind == 'x' else sWM}, {16384*(c%3) if kind == 'x' else wsz*(c%nws)}")
                        vm.op(f"buffer_load_dwordx4 v{vD+j}, s[{S}:{S+3}], s{sO} offen offset:{1024*j} {os.environ.get('NTG','')} lds", f"{kind}{c}")
                    else:
                        vm.op(f"buffer_load_dwordx4 {vr(regs[1]+4*j,4,regs[0])}, v{vD+j}, s[{S}:{S+3}], s{sO} offen offset:{1024*j} {os.environ.get('NTG','')}", f"{kind}{c}")
                    if j == n - 1: a(f"s_add_u32 s{sO}, s{sO}, {step}\ns_cmp_eq_u32 s{sO}, {end}\ns_cselect_b32 s{sO}, 0, s{sO}")
                T.append(f)
            return T
        def wr(kind, c):
            regs = stage[(kind, c)]
            n = 4 if kind == "x" else 2 * nt
            T = []
            for j in range(n):
                def f(j=j):
                    if j == 0: vm.wait(f"{kind}{c}")
                    off = (16384 * (c % 3) if kind == "x" else wsz * (c % nws)) + 1024 * j
                    lg.op(f"ds_write_b128 v{vWS + (0 if kind == 'x' else 1)}, {vr(regs[1]+4*j,4,regs[0])} offset:{off}", "wr")
                T.append(f)
            return T
        def F(c, ks):
            b = ks & 1
            for n in range(nt):
                for i in range(2):
                    lg.op(f"ds_read_b64_tr_b16 {vr(WF+8*b+4*n+2*i,2)}, v{vWA} offset:{wsz*(c%nws) + ks*2048 + i*512 + n*8192}", f"f{c}{ks}")
            for t in range(2):
                lg.op(f"ds_read_b128 {vr(XF+8*b+4*t,4)}, v{vXA+ks} offset:{16384*(c%3) + 4096*t}", f"f{c}{ks}")
        def M(c, ks, fill=()):
            b = ks & 1
            lg.wait(f"f{c}{ks}")
            T = []
            for n in range(nt):
                for t in range(2):
                    acc = vr(GA + 16 * (n * 2 + t), 16)
                    cin = "0" if (c == 0 and ks == 0 and n == 1) else acc
                    xf, wf = vr(XF + 8 * b + 4 * t, 4), vr(WF + 8 * b + 4 * n, 4)
                    T.append(lambda s=(f"v_mfma_f32_32x32x16_bf16 {acc}, {xf}, {wf}, {cin}" if kv else f"v_mfma_f32_32x32x16_bf16 {acc}, {wf}, {xf}, {cin}"): a(s))
            weave(T, list(fill))
        run = lambda T: [f() for f in T]
        if kv:
            for x in (("x", 0), ("w", 0), ("x", 1), ("w", 1)): run(ld(*x))
            R = [("a", 0), ("a", 16), ("a", 32)]
            lds_ = {0: [("w", 2, R[0]), ("x", 2), ("w", 3, R[1])], 1: [("x", 3), ("w", 4, R[2])], 2: [("x", 4), ("w", 5, R[0])],
                    3: [("x", 5), ("w", 6, R[1])], 4: [("x", 6)]}
            wrs = {c: [("w", c + 2)] for c in range(5)}
            setup(kv)
            vm.wait(["x0", "w0"]); a("s_barrier")
            st(1)
            F(0, 0); F(0, 1)
            pend = []
            for c in range(7):
                L = sum([ld(*l) for l in lds_.get(c, [])], [])
                if c == 3: L.append(lambda: k.init_issue(vm))
                if c == 5: L.append(lambda: (k.init_check(vm), vm.op(k.poll_ld(vFZ, vFT), "zp")))
                q = max(1, (len(L) + 2) // 3); w = max(1, (len(pend) + 2) // 3)
                M(c, 0, L[:q] + pend[:w]); F(c, 2)
                M(c, 1, L[q:2*q] + pend[w:2*w]); F(c, 3)
                M(c, 2, L[2*q:] + pend[2*w:])
                if c < 6:
                    dma = [f"{kd}{c+1}" for kd in "xw" if (kd, c + 1) not in stage]
                    if dma and vm.n_after(dma) is not None: vm.wait(dma, "lgkmcnt(0)")
                    else: a("s_waitcnt lgkmcnt(0)")
                    lg.drain()
                    a("s_barrier")
                    F(c + 1, 0)
                    pend = sum([wr(*x) for x in wrs.get(c, [])], [])
                    M(c, 3, pend[:1]); pend = pend[1:]
                    F(c + 1, 1)
                else:
                    lg.wait(f"f{c}3")
                    a("s_barrier")
                    M(c, 3)
            return vm
        RX = [("a", 0), ("a", 16), ("a", 32), ("a", 48)]
        RW = [("v", 160), ("v", 168), ("v", 176), ("v", 96)]
        for c in range(3): run(ld("x", c, RX[c])); run(ld("w", c, RW[c]))
        setup(kv)
        run(wr("x", 0)); run(wr("w", 0)); run(wr("x", 1)); run(wr("w", 1))
        run(ld("x", 3, RX[3])); run(ld("w", 3, RW[3]))
        a("s_waitcnt lgkmcnt(0)\ns_barrier"); lg.drain()
        st(1)
        F(0, 0); F(0, 1)
        for c in range(7):
            L = (ld("x", c + 4, RX[c % 4]) + ld("w", c + 4, RW[c % 4])) if c + 4 < 7 else []
            if c == 4: L.append(lambda: k.init_issue(vm, vFT))
            P = (wr("x", c + 2) + wr("w", c + 2)) if c + 2 < 7 else []
            q = (len(L) + 1) // 2
            M(c, 0, L[:q]); F(c, 2)
            M(c, 1, L[q:] + P[:2]); F(c, 3)
            M(c, 2, P[2:])
            if c < 6:
                a("s_waitcnt lgkmcnt(0)\ns_barrier"); lg.drain()
                F(c + 1, 0)
                M(c, 3)
                F(c + 1, 1)
            else:
                lg.wait(f"f{c}3")
                a("s_barrier")
                M(c, 3)
        return vm
    def phi_t(base, n, dst):
        T = []
        for i in range(0, n, 2):
            t = vT + 2 * ((i // 2) & 3)
            x = base + i
            T.append(lambda t=t, x=x, i=i: a(f"""
            v_pk_mul_f32 {vr(t,2)}, {vr(x,2)}, s[{sC1}:{sC1+1}]
            v_max_f32 v{x}, {EPS}, v{x}
            v_exp_f32_e64 v{t}, v{t} clamp
            v_exp_f32_e64 v{t+1}, v{t+1} clamp
            v_max_f32 v{x+1}, {EPS}, v{x+1}
            v_pk_add_f32 {vr(x,2)}, {vr(x,2)}, {vr(t,2)}
            v_cvt_pk_bf16_f32 v{dst + i//2}, v{x}, v{x+1}
            """))
        return T
    def wo_dma(vm):
        T = []
        for i in range(15):
            def f(i=i):
                if i == 0:
                    srd(a, SW, 38, 39, 448 * 896)
                    a(f"s_mul_i32 s{sT1}, s{sWV}, 20480\ns_mov_b32 s{sT0}, 0")
                a(f"s_add_u32 m0, s{sT1}, {1024*i}")
                if i: a(f"s_add_u32 s{sT0}, s{sT0}, 7168")
                vm.op(f"buffer_load_dwordx4 v{vWO}, s[{SW}:{SW+3}], s{sT0} offen lds", "wo")
            T.append(f)
        return T
    PK, PV, KVD = 128, 144, 48
    vm = gemm(True)
    st(3)
    for f in phi_t(GA, 16, PK): f()
    for t in range(2):
        for i in range(8):
            a(f"v_cvt_pk_bf16_f32 v{PV+8*t+i}, v{GA+32+16*t+2*i}, v{GA+32+16*t+2*i+1}")
    a(f"s_mov_b32 exec_lo, {1<<28}\ns_mov_b32 exec_hi, {1<<28}")
    for i in range(16): a(f"v_mov_b32 v{PV+i}, 0x3f803f80")
    a("s_mov_b64 exec, -1")
    for u in range(2):
        a(f"v_mfma_f32_32x32x16_bf16 {vr(KVD,16)}, {vr(PK+4*u,4)}, {vr(PV+4*u,4)}, {'0' if u == 0 else vr(KVD,16)}")
    for f in phi_t(GA + 16, 16, PK + 8): f()
    for u in range(2):
        a(f"v_mfma_f32_32x32x16_bf16 {vr(KVD,16)}, {vr(PK+8+4*u,4)}, {vr(PV+8+4*u,4)}, {vr(KVD,16)}")
    st(4)
    k.poll(vm, vFZ, vFT, issued=True, tag="zp")
    for q in range(3):
        a(f"ds_write_b128 v{vEX}, {vr(KVD+4*q,4)} offset:{1024*q}")
    a("s_mov_b32 exec_lo, 0")
    for i in range(12, 16): a(f"v_mov_b32 v{KVD+i}, 0")
    a("s_mov_b64 exec, -1")
    a(f"ds_write_b128 v{vEX}, {vr(KVD+12,4)} offset:3072")
    a("s_waitcnt lgkmcnt(0)\ns_barrier")
    for i in range(8):
        a(f"ds_read2st64_b32 {vr(GA+2*i,2)}, v{vAT+i} offset0:0 offset1:160")
    for i in range(8):
        a(f"s_waitcnt lgkmcnt({7-i})")
        a(f"v_add_f32 v{GA+2*i}, v{GA+2*i}, v{GA+2*i+1}")
        a(f"buffer_atomic_add_f32 v{GA+2*i}, v{vAT+i}, {WSR}, s{sAT} offen sc1")
    st(5)
    vm.drain()
    k.poll_issue(vm, vFQ, vFT)
    W = wo_dma(vm)
    for f in W[:6]: f()
    a(f"s_waitcnt vmcnt(7)\ns_barrier\ns_cmp_lg_u32 s{sWV}, 0\ns_cbranch_scc1 L_kvf")
    k.flag(vm, sFL, 1)
    a("L_kvf:")
    st(6)
    a("s_cmp_ge_u32 s2, 224\ns_cbranch_scc1 L_kvend")
    for f in W[6:]: f()
    a("s_waitcnt vmcnt(9)\ns_branch L_fin3")
    a("L_GQ:")
    vm = gemm(False)
    st(3)
    for t in range(2):
        for f in phi_t(GA + 16 * t, 16, PK + 8 * t): f()
        for ks in range(2):
            vm.op(f"buffer_store_dwordx4 {vr(PK+8*t+4*ks,4)}, v3, {WSR}, s{sAT if t == 0 else sKX} offen offset:{WS_PQ + 1024*ks} {SC}", "pqs")
    st(4)
    k.init_check(vm, vFT)
    W = wo_dma(vm)
    for f in W[:6]: f()
    st(5)
    vm.wait("pqs")
    k.flag(vm, sFL, 1)
    for f in W[6:]: f()
    st(6)
    a(k.poll_ld(vFQ, vFT) + "\ns_waitcnt vmcnt(0)")
    A1, O, A2, KB, K23, WOFR = 16, 48, 64, 128, 144, 176
    vm = Cnt(a, "vmcnt"); lg = Cnt(a, "lgkmcnt")
    a("L_fin3:")
    a(f"v_mov_b32 v12, v{vFK}")
    k.poll(vm, vFQ, vFT, issued=True)
    st(7)
    a(f"""
    s_and_b32 s{sT0}, s2, 31
    s_lshl_b32 s{sT0}, s{sT0}, 16
    s_lshl_b32 s{sT1}, s{sWV}, 13
    s_add_u32 s{sT0}, s{sT0}, s{sT1}
    s_add_u32 s{sT1}, s{sT0}, 32768
    s_add_u32 s{sT2}, s{sT0}, 4096
    s_add_u32 s{sT3}, s{sT1}, 4096
    """)
    for hl in range(4):
        for t in range(2):
            for ks in range(2):
                so = [[sT0, sT1], [sT2, sT3]][hl >> 1][t]
                vm.op(f"buffer_load_dwordx4 {ar(16*hl+8*t+4*ks,4)}, v3, {WSR}, s{so} offen offset:{WS_PQ + 2048*(hl&1) + 1024*ks} {SC}", "pq")
    k.poll_issue(vm, 12, 8)
    a(f"""
    s_lshl_b32 s{sT0}, s{sWV}, 14
    s_add_u32 s{sT0}, s{sT0}, {WS_KVA}
    s_mul_i32 s{sT1}, s{sWV}, 20480
    v_bfe_u32 v5, v2, 2, 2
    v_lshrrev_b32 v6, 5, v2
    v_lshl_add_u32 v5, v6, 2, v5
    v_lshlrev_b32 v5, 7, v5
    v_and_b32 v7, 1, v2
    v_lshl_add_u32 v5, v7, 5, v5
    v_bfe_u32 v7, v2, 4, 1
    v_lshl_add_u32 v5, v7, 4, v5
    v_bfe_u32 v7, v2, 1, 1
    v_lshl_add_u32 v5, v7, 3, v5
    v_bfe_u32 v7, v2, 3, 1
    v_lshl_add_u32 v5, v7, 6, v5
    v_xor_b32 v15, 64, v5
    v_add_u32 v5, s{sT1}, v5
    v_add_u32 v15, s{sT1}, v15
    s_mov_b32 s{sT2}, {EPS}
    s_mov_b32 s{sC1}, -1
    s_mov_b32 s{sC1+1}, 0
    v_and_b32 v13, 31, v2
    v_mul_u32_u24 v13, 272, v13
    v_lshl_add_u32 v13, v6, 6, v13
    v_add_u32 v13, s{sT1}, v13
    v_lshrrev_b32 v7, 3, v0
    v_and_b32 v14, 7, v0
    v_mul_u32_u24 v10, 272, v7
    v_lshl_add_u32 v10, v14, 5, v10
    v_mul_u32_u24 v11, 1792, v7
    v_lshl_add_u32 v11, v14, 4, v11
    s_and_b32 s{sT3}, s2, 31
    s_mul_i32 s{sT3}, s{sT3}, {64*1792}
    s_lshr_b32 s{sT4}, s2, 5
    s_lshl_b32 s{sT4}, s{sT4}, 7
    s_add_u32 s{sT3}, s{sT3}, s{sT4}
    s_add_u32 s{sT3}, s{sT3}, 896
    s_add_u32 s{sT4}, s{sT3}, {32*1792}
    """)
    def ldwo(hl):
        for ks in range(2):
            for ct in range(2):
                for i in range(2):
                    lg.op(f"ds_read_b64_tr_b16 {vr(WOFR+8*ks+4*ct+2*i,2)}, v{15 if ct else 5} offset:{128*(28*hl+16*ks+8*i)}", f"wo{hl}")
    k.poll(vm, 12, 8, issued=True)
    vm.drain()
    st(8)
    def kvsrc(hl): return A1 + 16 * hl if hl < 2 else K23 + 16 * (hl - 2)
    def kvb(hl): return KB + 8 * hl if hl < 2 else K23 + 16 * (hl - 2)
    for hl in range(4):
        for q in range(4):
            vm.op(f"buffer_load_dwordx4 {vr(kvsrc(hl)+4*q,4)}, v3, {WSR}, s{sT0} offen offset:{1024*q} {SC}", f"kv{hl}")
        if hl < 3: a(f"s_add_u32 s{sT0}, s{sT0}, 4096")
    ldwo(0)
    a(f"v_add_u32 v12, 40960, v10")
    def cvtkv(hl):
        T = []
        for i in range(8):
            def f(i=i):
                if i == 0: vm.wait(f"kv{hl}")
                a(f"v_cvt_pk_bf16_f32 v{kvb(hl)+i}, v{kvsrc(hl)+2*i}, v{kvsrc(hl)+2*i+1}")
            T.append(f)
        return T
    def s1(u):
        hl, t = u >> 1, u & 1
        A = vr(A1 + 16 * (u & 1), 16)
        return [lambda: a(f"v_mfma_f32_32x32x16_bf16 {A}, {vr(kvb(hl),4)}, {ar(16*hl+8*t,4)}, 0"),
                lambda: a(f"v_mfma_f32_32x32x16_bf16 {A}, {vr(kvb(hl)+4,4)}, {ar(16*hl+8*t+4,4)}, {A}")]
    DN = 6
    def scale(u):
        A = A1 + 16 * (u & 1); Ou = O + 8 * (u & 1)
        L = [f"v_mov_b32 v{DN}, v{A+12}", f"v_mov_b32 v{DN+2}, v{A+12}", f"v_permlane32_swap_b32 v{DN}, v{DN+2}",
             f"v_add_f32 v{DN+2}, s{sT2}, v{DN+2}", f"v_rcp_f32 v{DN+2}, v{DN+2}"]
        for i in range(8):
            L.append(f"v_mul_f32 v{A+2*i}, v{A+2*i}, v{DN+2}")
            L.append(f"v_mul_f32 v{A+2*i+1}, v{A+2*i+1}, v{DN+2}")
            L.append(f"v_cvt_pk_bf16_f32 v{Ou+i}, v{A+2*i}, v{A+2*i+1}")
        L += [f"v_cndmask_b32 v{Ou+6}, 0, v{Ou+6}, s[{sC1}:{sC1+1}]", f"v_cndmask_b32 v{Ou+7}, 0, v{Ou+7}, s[{sC1}:{sC1+1}]"]
        return [lambda s=s: a(s) for s in L]
    def s2(u):
        hl, t = u >> 1, u & 1
        Ou = O + 8 * (u & 1); T = []
        for ks in range(2):
            for ct in range(2):
                acc = vr(A2 + 32 * t + 16 * ct, 16)
                cin = "0" if (hl == 0 and ks == 0) else acc
                def f(s=f"v_mfma_f32_32x32x16_bf16 {acc}, {vr(WOFR+8*ks+4*ct,4)}, {vr(Ou+4*ks,4)}, {cin}", first=(ks == 0 and ct == 0), last=(ks == 1 and ct == 1)):
                    if first and t == 0: lg.wait(f"wo{hl}")
                    a(s)
                    if last and t == 1 and hl < 3: ldwo(hl + 1)
                T.append(f)
        return T
    run = lambda T: [f() for f in T]
    run(cvtkv(0)); run(cvtkv(1))
    run(s1(0)); run(s1(1)); run(scale(0))
    for u in range(8):
        main = s2(u)
        fill = scale(u + 1) if u + 1 < 8 else []
        if u + 2 < 8:
            if u + 2 in (4, 6): run(cvtkv((u + 2) >> 1))
            main = s1(u + 2) + main
        if u == 7:
            fill = [lambda ct=ct, i=i: a(f"ds_write_b128 v13, {vr(A2+16*ct+4*i,4)} offset:{128*ct + 16*i}") for ct in range(2) for i in range(4)]
            weave(main, fill, start=1)
        else:
            weave(main, fill)
    st(9)
    for ct in range(2):
        for i in range(4):
            a(f"ds_write_b128 v13, {vr(A2+32+16*ct+4*i,4)} offset:{32*272 + 128*ct + 16*i}")
    a("s_waitcnt lgkmcnt(0)\ns_barrier")
    st(10)
    R = 64
    for t in range(2):
        for w in range(4):
            for h in range(2):
                a(f"ds_read_b128 {vr(R+32*t+8*w+4*h,4)}, v{10 if w < 2 else 12} offset:{20480*(w&1) + 32*272*t + 16*h}")
    for t in range(2):
        b = R + 32 * t
        a(f"s_waitcnt lgkmcnt({8 if t == 0 else 0})")
        for i in range(8):
            a(f"v_add_f32 v{b+i}, v{b+i}, v{b+8+i}")
            a(f"v_add_f32 v{b+16+i}, v{b+16+i}, v{b+24+i}")
        for i in range(8):
            a(f"v_add_f32 v{b+i}, v{b+i}, v{b+16+i}")
        for i in range(4):
            a(f"v_cvt_pk_bf16_f32 v{b+8+i}, v{b+2*i}, v{b+2*i+1}")
        a(f"buffer_store_dwordx4 {vr(b+8,4)}, v11, s[{SO}:{SO+3}], s{sT3 if t == 0 else sT4} offen")
    a("L_kvend:")
    st.end(1)
    a("s_endpgm")

from v5s import gen_S
```

```python
import os
from asmlib import *
from v5 import *

ROWB = 272
WREG = 53 * ROWB
KS, KSL = 4160, 16640
UBASE, UB, U0, U1 = 33280, 8256, 16, 16 + 4096 + 32
TTAB, TSTR = 66304, 1536
USTG = 57664

def gen_S(k, st):
    a = k.a
    sJB, sIDX, sCG, sHH, sKB, sFU, sIT, sPH, sKG, sFK = sA, sB, sC, sD, sE, sF, sG, sH, sI, sJ
    vm = Cnt(a, "vmcnt")
    P0 = 8
    UG, UG2 = 24, 32
    vT = 40
    IN = 56
    KA, KB_ = 60, 61
    ACC = 64; FR = 96
    E1, E8, E256, E2, E4, Wc, X0, X1, G0, G1, Y0, Y1 = [112 + 2 * i for i in range(12)]
    t0, t1, t2, t3, pk = 136, 137, 138, 139, 140
    EA = 144; AD = 153
    vFU, vFP, vGS, vGR, vGO = 157, 158, 159, 62, 63
    UR = 160
    vPW, vRR, vZF, vZU, vCW, vC4, vUW = 176, 177, 178, 179, 180, 181, 185
    vKL, vUL, vZL = 188, 189, 59
    a(f"""
    L_S:
    s_setprio 3
    s_and_b32 s{sJB}, s2, 7
    s_lshr_b32 s{sIDX}, s2, 3
    s_cmp_eq_u32 s{sJB}, 7
    s_cbranch_scc1 L_aux
    {'s_endpgm' if os.environ.get('SKIP_S') else ''}
    s_lshl_b32 s{sT0}, s{sJB}, 4
    s_and_b32 s{sCG}, s{sIDX}, 15
    s_add_u32 s{sCG}, s{sCG}, s{sT0}
    s_lshr_b32 s{sHH}, s{sIDX}, 4
    s_lshl_b32 s{sKG}, s{sCG}, 1
    s_add_u32 s{sKG}, s{sKG}, s{sHH}
    s_lshl_b32 s{sT1}, s{sKG}, 10
    v_lshlrev_b32 v5, 1, v0
    v_add_u32 v5, s{sT1}, v5
    s_lshl_b32 s{sT1}, s{sKG}, 2
    v_mov_b32 v6, s{sT1}
    s_and_b32 s{sIDX}, s{sIDX}, 15
    s_lshl_b32 s{sT1}, s{sIDX}, 2
    s_add_u32 s{sT1}, s{sT1}, s{sWV}
    s_mul_i32 s{sT1}, s{sT1}, {32*896}
    s_lshl_b32 s{sT2}, s{sJB}, 7
    s_add_u32 s{sT1}, s{sT1}, s{sT2}
    v_lshlrev_b32 v7, 1, v2
    v_add_u32 v7, s{sT1}, v7
    s_waitcnt lgkmcnt(0)
    """)
    st(0)
    UG, UG2 = 64, 80
    a(f"s_cmp_eq_u32 s{sHH}, 0\ns_cbranch_scc1 L_nog")
    for i in range(32):
        if i and i % 4 == 0: a(f"v_add_u32 v7, {4*896}, v7")
        a(f"global_load_{'short_d16_hi' if i&1 else 'ushort'} v{(UG2 if i&1 else UG)+i//2}, v7, s[16:17] offset:{(i%4)*896} {os.environ.get('NTS','nt')}")
    a("L_nog:")
    for c in range(2):
        vm.op(f"global_load_short_d16_hi v{P0+8*c+6}, v6, s[30:31] offset:{2*c}", f"p{c}")
        for i in range(6):
            vm.op(f"global_load_short_d16_hi v{P0+8*c+i}, v5, s[{18+2*i}:{19+2*i}] offset:{512*c} {os.environ.get('NTS','nt')}", f"p{c}")
        vm.op(f"global_load_short_d16_hi v{P0+8*c+7}, v6, s[32:33] offset:{2*c}", f"p{c}")
    a(f"s_setprio {os.environ.get('SPRIO', 1)}")
    srd(a, SWS, 44, 45, WS_SIZE)
    srd(a, SO, 40, 41, 2048 * 1792)
    a(f"""
    s_mul_i32 s{sKB}, s{sWV}, {WREG}
    v_and_b32 v{t0}, 31, v2
    v_lshrrev_b32 v{t1}, 5, v2
    v_lshlrev_b32 v{t1}, 4, v{t1}
    v_add_u32 v{t1}, s{sKB}, v{t1}
    v_min_u32 v{t2}, 20, v{t0}
    v_mul_u32_u24 v{t2}, {ROWB}, v{t2}
    v_add_u32 v{KA}, v{t2}, v{t1}
    v_mul_u32_u24 v{t2}, {ROWB}, v{t0}
    v_add_u32 v{KB_}, v{t2}, v{t1}
    s_mov_b32 m0, s{sKB}
    v_add_u32 v{vPW}, s{sKB}, v3
    s_lshl_b32 s{sT0}, s{sWV}, 10
    v_add_u32 v{vRR}, s{sT0}, v3
    v_mul_u32_u24 v{vGS}, 272, v2
    s_lshl_b32 s{sT0}, s{sWV}, 6
    s_add_u32 s{sT0}, s{sT0}, {USTG}
    v_add_u32 v{vGS}, s{sT0}, v{vGS}
    v_lshrrev_b32 v{t2}, 3, v2
    v_and_b32 v{t3}, 7, v2
    v_lshrrev_b32 v{vGO}, 4, v2
    v_and_b32 v{vZF}, 15, v2
    v_mul_u32_u24 v{vGR}, 272, v{vGO}
    v_lshl_add_u32 v{vGR}, v{vZF}, 4, v{vGR}
    s_mul_i32 s{sT0}, s{sWV}, {16*272}
    s_add_u32 s{sT0}, s{sT0}, {USTG}
    v_add_u32 v{vGR}, s{sT0}, v{vGR}
    v_lshlrev_b32 v{vGO}, 12, v{vGO}
    v_lshl_add_u32 v{vGO}, v{vZF}, 4, v{vGO}
    v_mul_u32_u24 v{vZF}, {KS}, v{t2}
    v_lshl_add_u32 v{vZF}, v{t3}, 3, v{vZF}
    v_add_u32 v{vZF}, 4088, v{vZF}
    v_and_b32 v{t3}, 23, v2
    v_cmp_eq_u32 vcc, 0, v{t3}
    v_add_u32 v{t3}, 56, v{vZF}
    v_bfe_u32 v{vZU}, v2, 1, 2
    v_mul_u32_u24 v{vZU}, {UB}, v{vZU}
    v_cndmask_b32 v{vZF}, v{vZF}, v{t3}, vcc
    v_and_b32 v{t3}, 1, v2
    v_mul_u32_u24 v{t3}, {U1-U0}, v{t3}
    v_add3_u32 v{vZU}, v{vZU}, v{t3}, s{sT0}
    s_add_u32 s{sT0}, s{sT0}, {-UBASE & 0xffffffff}
    v_subrev_u32 v{vZU}, s{sT0}, v{vZU}
    s_lshl_b32 s{sT0}, s{sJB}, 2
    s_add_u32 s{sT0}, s{sT0}, s{sWV}
    s_lshl_b32 s{sT1}, s{sT0}, 16
    s_lshl_b32 s{sT2}, s{sIDX}, 8
    s_add_u32 s{sT1}, s{sT1}, s{sT2}
    s_add_u32 s{sT1}, s{sT1}, {WS_UT}
    s_lshl_b32 s{sT0}, s{sT0}, 4
    s_add_u32 s{sT0}, s{sT0}, s{sIDX}
    s_lshl_b32 s{sT0}, s{sT0}, 7
    s_add_u32 s{sFU}, s{sT0}, {F_UT}
    s_lshr_b32 s{sT0}, s{sCG}, 2
    s_lshl_b32 s{sT0}, s{sT0}, 11
    s_add_u32 s{sT0}, s{sT0}, {F_UT}
    v_and_b32 v{vFU}, 15, v2
    v_lshlrev_b32 v{vFU}, 7, v{vFU}
    v_add_u32 v{vFU}, s{sT0}, v{vFU}
    s_lshl_b32 s{sT0}, s{sCG}, 9
    s_add_u32 s{sT0}, s{sT0}, {F_KF}
    v_and_b32 v{vFP}, 3, v2
    v_lshlrev_b32 v{vFP}, 7, v{vFP}
    v_add_u32 v{vFP}, s{sT0}, v{vFP}
    s_lshl_b32 s{sT0}, s{sCG}, 2
    s_add_u32 s{sT0}, s{sT0}, s{sWV}
    s_lshl_b32 s{sT0}, s{sT0}, 7
    s_add_u32 s{sFK}, s{sT0}, {F_KF}
    v_lshlrev_b32 v{vCW}, 4, v0
    v_add_u32 v{vC4}, {2*KS-8}, v{vCW}
    v_add_u32 v{vC4+1}, {3*KS-8}, v{vCW}
    v_add_u32 v{vC4+2}, {KSL+2*KS-8}, v{vCW}
    v_add_u32 v{vC4+3}, {KSL+3*KS-8}, v{vCW}
    s_mul_i32 s{sT0}, s{sWV}, {UB}
    s_add_u32 s{sT0}, s{sT0}, {UBASE}
    v_add_u32 v{vUW}, s{sT0}, v3
    """)
    a(f"""
    s_cmp_eq_u32 s{sWV}, 1
    s_cselect_b32 s{sT0}, 4, 8
    s_cselect_b32 s{sT3}, 2, 8
    s_cselect_b32 s{sT4}, 256, 0
    s_cselect_b32 s{sPH}, 384, 4
    s_cmp_eq_u32 s{sWV}, 2
    s_cselect_b32 s{sT0}, 1, s{sT0}
    s_cselect_b32 s{sT3}, 1, s{sT3}
    s_cselect_b32 s{sT4}, 512, s{sT4}
    s_cselect_b32 s{sPH}, 640, s{sPH}
    s_cselect_b32 s{sIT}, 32, 1
    v_mul_u32_u24 v{AD}, s{sT0}, v{t0}
    v_add_u32 v{AD}, s{sT4}, v{AD}
    v_mul_u32_u24 v{AD+1}, s{sT3}, v{t0}
    v_add_u32 v{AD+1}, s{sPH}, v{AD+1}
    v_cmp_gt_u32 vcc, 32, v2
    s_lshl_b32 s{sT0}, s{sIT}, 1
    s_cmp_eq_u32 s{sWV}, 0
    s_cselect_b32 s{sT3}, 2, 64
    v_mov_b32 v{t2}, s{sT3}
    v_mov_b32 v{t3}, s{sT0}
    v_cndmask_b32 v{AD}, v{AD+1}, v{AD}, vcc
    v_cndmask_b32 v{t3}, v{t2}, v{t3}, vcc
    v_add_u32 v{AD+1}, s{sIT}, v{AD}
    v_add_u32 v{AD+2}, v{AD}, v{t3}
    v_add_u32 v{AD+3}, s{sIT}, v{AD+2}
    v_mov_b32 v{t3}, {TTAB}
    """)
    for i in range(4): a(f"v_lshl_add_u32 v{AD+i}, v{AD+i}, 1, v{t3}")
    a(f"v_lshlrev_b32 v{t2}, 3, v0\nv_sub_u32 v{t2}, 2047, v{t2}")
    for e in range(9):
        a(f"v_subrev_u32 v{EA+e}, {e}, v{t2}")
        a(f"v_cvt_f32_i32 v{FR+e}, v{EA+e}")
    for e in range(0, 10, 2):
        a(f"v_cvt_pk_bf16_f32 v{FR+e}, v{FR+e}, v{FR+min(e+1,8)}")
        if e < 8: a(f"v_lshrrev_b32 v{FR+e+1}, 16, v{FR+e}")
        a(f"v_and_b32 v{FR+e}, 0xffff, v{FR+e}")
    for e in range(9):
        if e in (0, 8): a(f"v_cmp_gt_i32 vcc, 128, v{EA+e}")
        a(f"v_subrev_u32 v{FR+e}, 17024, v{FR+e}")
        a(f"v_cndmask_b32 v{EA+e}, v{FR+e}, v{EA+e}, vcc")
        a(f"v_lshl_add_u32 v{EA+e}, v{EA+e}, 1, v{t3}")
    a(f"""
    v_and_b32 v5, 3, v2
    v_sub_u32 v5, 3, v5
    v_mul_u32_u24 v{vKL}, {KS}, v5
    v_lshrrev_b32 v6, 4, v2
    v_lshl_add_u32 v{vKL}, v6, 4, v{vKL}
    v_bfe_u32 v7, v2, 2, 2
    v_lshlrev_b32 v7, 4, v7
    v_sub_u32 v{vKL}, v{vKL}, v7
    s_and_b32 s{sT0}, s{sWV}, 1
    s_lshl_b32 s{sT0}, s{sT0}, 8
    s_lshr_b32 s{sT3}, s{sWV}, 1
    s_mul_i32 s{sT3}, s{sT3}, {KSL}
    s_add_u32 s{sT3}, s{sT3}, {2*(2040-1792)}
    s_sub_u32 s{sT3}, s{sT3}, s{sT0}
    v_add_u32 v{vKL}, s{sT3}, v{vKL}
    v_and_b32 v5, 1, v2
    v_sub_u32 v5, 1, v5
    v_mul_u32_u24 v{vZL}, {U1-U0}, v5
    v_add_u32 v{vZL}, {UBASE}, v{vZL}
    v_bfe_u32 v5, v2, 1, 3
    v_lshl_add_u32 v{vUL}, v5, 6, v{vZL}
    v_lshl_add_u32 v{vUL}, v6, 4, v{vUL}
    s_sub_u32 s{sT3}, 16, s{sT0}
    v_add_u32 v{vUL}, s{sT3}, v{vUL}
    """)
    st(1)
    a(f"s_cmp_eq_u32 s{sHH}, 0\ns_cbranch_scc1 L_nout\ns_waitcnt vmcnt(16)")
    for i in range(16): a(f"v_or_b32 v{UG+i}, v{UG+i}, v{UG2+i}")
    for i in range(4): a(f"ds_write_b128 v{vGS}, {vr(UG+4*i,4)} offset:{16*i}")
    a("s_waitcnt lgkmcnt(0)\ns_barrier")
    for i in range(4): a(f"ds_read_b128 {vr(UG+4*i,4)}, v{vGR} offset:{4*272*i}")
    for i in range(4):
        a(f"s_waitcnt lgkmcnt({3-i})")
        a(f"buffer_store_dwordx4 {vr(UG+4*i,4)}, v{vGO}, {WSR}, s{sT1} offen {SC}")
        if i < 3: a(f"s_add_u32 s{sT1}, s{sT1}, 16384")
    a(f"global_load_dwordx2 {vr(NV,2)}, v4, s[42:43] {SC}\ns_waitcnt vmcnt(0)")
    k.init_check(Cnt(a, "vmcnt"), IN)
    k.flag(Cnt(a, "vmcnt"), sFU, 1)
    a("L_nout:")
    def kgen(c):
        P = P0 + 8 * c
        AC = ACC + 16 * c
        vm.wait(f"p{c}")
        a(f"""
        v_mul_f32 v{t0}, {LOG2E}, v{P+6}
        v_exp_f32 v{t0}, v{t0}
        v_cvt_pk_bf16_f32 v{t0}, v{t0}, v{t0}
        v_lshlrev_b32 v{t0}, 16, v{t0}
        v_mul_f32 v{t1}, v{t0}, v{P}
        v_mul_f32 v{t2}, v{t0}, v{P+1}
        v_mul_f32 v{t1}, {LOG2E}, v{t1}
        v_mul_f32 v{t2}, {INV2PI}, v{t2}
        v_mul_f32 v{P+2}, v{t0}, v{P+2}
        v_mul_f32 v{P+3}, v{t0}, v{P+3}
        """)
        cmul(a, Wc, P + 4, P + 2)
        for (E, m, cj) in ((E8, 8.0, True), (E1, 1.0, False), (E256, 256.0, False)):
            if m != 1.0:
                a(f"v_mul_f32 v{t0}, {f2u(m)}, v{t1}\nv_mul_f32 v{t3}, {f2u(m)}, v{t2}\nv_exp_f32 v{t0}, v{t0}\nv_fract_f32 v{t3}, v{t3}")
            else:
                a(f"v_exp_f32 v{t0}, v{t1}\nv_fract_f32 v{t3}, v{t2}")
            a(f"""
            v_cos_f32 v{E}, v{t3}
            v_sin_f32 v{E+1}, v{t3}
            v_mul_f32 v{E}, v{E}, v{t0}
            v_mul_f32_e64 v{E+1}, {'-' if cj else ''}v{E+1}, v{t0}
            """)
        cmul(a, E2, E1, E1); cmul(a, E4, E2, E2)
        yield "head"
        cnt = [0]
        def put(row, src):
            r = pk + (cnt[0] & 3); cnt[0] += 1
            a(f"v_cvt_pk_bf16_f32 v{r}, v{src}, v{src+1}")
            a(f"ds_write_addtid_b32 v{r} offset:{row * ROWB}")
        if c == 0:
            a(f"v_mov_b32 v{t0}, 0x3f80")
            a(f"ds_write_addtid_b32 v{t0} offset:{21*ROWB}")
        put(22, E8); put(0, Wc)
        fine, cur = [], E8
        for f in range(2, 32):
            nxt = X0 if cur != X0 else X1
            fine.append((nxt, cur, E8, 21 + f)); cur = nxt
        coarse, cur = [], Wc
        for cc in range(1, 8):
            nxt = Y0 if cur != Y0 else Y1
            coarse.append((nxt, cur, E1, cc)); cur = nxt
        coarse.append((G0, Wc, E256, 8)); cur = G0
        for cc in range(1, 4):
            nxt = Y0 if cur != Y0 else Y1
            coarse.append((nxt, cur, E2, 8 + cc)); cur = nxt
        coarse += [(G1, G0, E256, 12), (Y0, G1, E4, 13), (G0, G1, E256, 14), (Y0, G0, E4, 15)]
        g = G0
        for i in range(5):
            n = G1 if g == G0 else G0
            coarse.append((n, g, E256, 16 + i)); g = n
        seq = []
        for i in range(max(len(fine), len(coarse))):
            if i < len(fine): seq.append(fine[i])
            if i < len(coarse): seq.append(coarse[i])
        for n, (d, x, y, row) in enumerate(seq):
            cmul(a, d, x, y); put(row, d)
            if n == 24: yield "mid"
        a("s_waitcnt lgkmcnt(0)")
        bufs = [FR, FR + 8, vT, vT + 8]
        for jj in range(4):
            a(f"ds_read_b128 {vr(bufs[jj],4)}, v{KA} offset:{32*jj}")
            a(f"ds_read_b128 {vr(bufs[jj]+4,4)}, v{KB_} offset:{21*ROWB+32*jj}")
        yield "reads"
        for j in range(8):
            fb = bufs[j & 3]
            a(f"s_waitcnt lgkmcnt({6 if j < 5 else 2*(7-j)})")
            a(f"v_mfma_f32_32x32x16_bf16 {vr(AC,16)}, {vr(fb,4)}, {vr(fb+4,4)}, {'0' if j == 0 else vr(AC,16)}")
            if j + 4 < 8:
                a(f"ds_read_b128 {vr(fb,4)}, v{KA} offset:{32*(j+4)}")
                a(f"ds_read_b128 {vr(fb+4,4)}, v{KB_} offset:{21*ROWB+32*(j+4)}")
        yield "done"
    g0, g1 = kgen(0), kgen(1)
    next(g0)
    a(f"v_cmp_eq_u32 vcc, 0, v0\nv_cndmask_b32 v{P0+7}, 0, v{P0+7}, vcc")
    next(g0)
    k.init_issue(vm, IN)
    next(g0)
    st(2)
    next(g1)
    a(f"v_cmp_eq_u32 vcc, 0, v0\nv_cndmask_b32 v{P0+15}, 0, v{P0+15}, vcc")
    next(g0)
    k.init_check(vm, IN)
    st(3)
    next(g1)
    a(f"s_cmp_eq_u32 s{sHH}, 1\ns_cbranch_scc1 L_nopoll1")
    k.poll_issue(vm, vFU, IN)
    a("L_nopoll1:")
    next(g1)
    st(4)
    a(f"s_cmp_eq_u32 s{sHH}, 1\ns_cbranch_scc1 L_nopoll2")
    k.poll(vm, vFU, IN, issued=True)
    st(5)
    a(f"""
    s_lshl_b32 s{sT0}, s{sCG}, 2
    s_add_u32 s{sT0}, s{sT0}, s{sWV}
    s_lshl_b32 s{sT0}, s{sT0}, 12
    s_add_u32 s{sT0}, s{sT0}, {WS_UT}
    """)
    vm.drain()
    for i in range(4):
        vm.op(f"buffer_load_dwordx4 {vr(UR+4*i,4)}, v3, {WSR}, s{sT0} offen offset:{1024*i} {SC}", "u")
    a("L_nopoll2:")
    next(g1)
    st(6)
    for c in range(2):
        for q in range(3):
            a(f"ds_write_b128 v{vPW}, {vr(ACC+16*c+4*q,4)} offset:{(3*c+q)*1024}")
    a(f"""
    s_lshl_b32 s{sT1}, s{sKG}, 13
    s_add_u32 s{sT1}, s{sT1}, {WS_KF}
    s_add_u32 s{sT2}, s{sT1}, 4096
    s_cmp_eq_u32 s{sWV}, 3
    s_waitcnt lgkmcnt(0)
    s_barrier
    s_cbranch_scc1 L_nored
    """)
    RD = ACC
    for c in range(2):
        for w in range(4):
            a(f"ds_read_b128 {vr(RD+16*c+4*w,4)}, v{vRR} offset:{w*WREG + c*3072}")
    for c in range(2):
        a("s_waitcnt lgkmcnt(4)")
        b = RD + 16 * c
        a(f"""
        v_add_f32 v{b}, v{P0+8*c+7}, v{b}
        v_add_f32 v{b+0}, v{b+0}, v{b+4}
        v_add_f32 v{b+8}, v{b+8}, v{b+12}
        v_add_f32 v{b+1}, v{b+1}, v{b+5}
        v_add_f32 v{b+9}, v{b+9}, v{b+13}
        v_add_f32 v{b+2}, v{b+2}, v{b+6}
        v_add_f32 v{b+10}, v{b+10}, v{b+14}
        v_add_f32 v{b+3}, v{b+3}, v{b+7}
        v_add_f32 v{b+11}, v{b+11}, v{b+15}
        v_add_f32 v{b+0}, v{b+0}, v{b+8}
        v_add_f32 v{b+1}, v{b+1}, v{b+9}
        v_add_f32 v{b+2}, v{b+2}, v{b+10}
        v_add_f32 v{b+3}, v{b+3}, v{b+11}
        v_cvt_pk_bf16_f32 v{b}, v{b}, v{b+1}
        v_cvt_pk_bf16_f32 v{b+1}, v{b+2}, v{b+3}
        ds_write_b16 v{AD}, v{b} offset:{c*TSTR}
        ds_write_b16_d16_hi v{AD+1}, v{b} offset:{c*TSTR}
        ds_write_b16 v{AD+2}, v{b+1} offset:{c*TSTR}
        ds_write_b16_d16_hi v{AD+3}, v{b+1} offset:{c*TSTR}
        """)
    a(f"""
    L_nored:
    v_mov_b32 v{vT}, 0
    v_mov_b32 v{vT+1}, 0
    v_mov_b32 v{vT+2}, 0
    v_mov_b32 v{vT+3}, 0
    v_cmp_eq_u32 vcc, 255, v0
    s_cmp_eq_u32 s{sHH}, 0
    s_waitcnt lgkmcnt(0)
    s_barrier
    """)
    GE = 96
    CW = 64
    for c in range(2):
        for e in range(9):
            a(f"ds_read_u16 v{GE+10*c+e}, v{EA+e} offset:{c*TSTR}")
    a("s_cbranch_scc1 L_conv")
    for c in range(2):
        g = GE + 10 * c
        a(f"s_waitcnt lgkmcnt({9 if c == 0 else 0})")
        for i in range(4): a(f"v_lshl_or_b32 v{CW+8*c+i}, v{g+2*i+1}, 16, v{g+2*i}")
        a(f"buffer_store_dwordx4 {vr(CW+8*c,4)}, v{vCW}, {WSR}, s{sT1 if c == 0 else sT2} offen {SC}")
    a("s_waitcnt vmcnt(0)")
    k.flag(Cnt(a, "vmcnt"), sFK, 1)
    st(7)
    a("s_branch L_send")
    a("L_conv:")
    a(f"ds_write_b64 v{vZF}, {vr(vT,2)}\nds_write_b128 v{vZU}, {vr(vT,4)}")
    def kwrite(addr, a4, q0, q1, off, off8=0):
        a(f"ds_write_b128 v{addr}, {vr(q0,4)} offset:{off}")
        a(f"ds_write2_b64 v{a4}, {vr(q0,2)}, {vr(q0+2,2)} offset0:{off8} offset1:{off8+1}")
        a(f"ds_write_b128 v{addr}, {vr(q1,4)} offset:{off+KS}")
        a(f"ds_write2_b64 v{a4+1}, {vr(q1,2)}, {vr(q1+2,2)} offset0:{off8} offset1:{off8+1}")
    for c in range(2):
        g = GE + 10 * c
        a(f"s_waitcnt lgkmcnt({11 if c == 0 else 6})")
        for i in range(4): a(f"v_lshl_or_b32 v{CW+8*c+i}, v{g+2*i+1}, 16, v{g+2*i}")
        a(f"v_cndmask_b32 v{g+8}, v{g+8}, 0, vcc")
        for i in range(4): a(f"v_lshl_or_b32 v{CW+8*c+4+i}, v{g+2*i+2}, 16, v{g+2*i+1}")
        kwrite(vCW, vC4 + 2 * c, CW + 8 * c, CW + 8 * c + 4, c * KSL)
    vm.wait("u")
    UB_ = 80
    for i in range(4):
        b = UR + 4 * i; d = UB_ + 4 * i
        a(f"ds_write_b128 v{vUW}, {vr(b,4)} offset:{U0 + 1024*i}")
        if i == 0: a(f"v_mov_b32 v{d}, 0")
        else: a(f"v_readlane_b32 s{sT0}, v{b-1}, 63")
        for q in range(3): a(f"v_mov_b32 v{d+1+q}, v{b+q}")
        if i: a(f"v_mov_b32 v{d}, s{sT0}")
        a(f"v_mov_b32_dpp v{d}, v{b+3} wave_shr:1 row_mask:0xf bank_mask:0xf")
        a(f"ds_write_b128 v{vUW}, {vr(d,4)} offset:{U1 + 1024*i}")
    vKA, vUA, vU0, vZ, vXS, vXR, vSG, vPL = 5, 6, 7, 8, 9, 10, 11, 12
    A = 16; KF0, UF0 = 48, 112
    PKR = 176
    STG = 57984
    a(f"""
    s_setprio {os.environ.get('SPRIO2', 0)}
    v_mov_b32 v{vPL}, v{vFP}
    v_mov_b32 v191, v{vZL}
    s_lshr_b32 s{sT0}, s{sWV}, 1
    s_mul_i32 s{sKB}, s{sT0}, {UB}
    s_and_b32 s{sT1}, s{sWV}, 1
    s_lshl_b32 s{sT2}, s{sT1}, 12
    s_add_u32 s{sT3}, s{sKB}, {UBASE}
    s_add_u32 s{sT4}, s{sT3}, s{sT2}
    v_add_u32 v{vXS}, s{sT4}, v3
    s_add_u32 s{sT3}, s{sT3}, 4096
    s_sub_u32 s{sT3}, s{sT3}, s{sT2}
    v_add_u32 v{vXR}, s{sT3}, v3
    v_bfe_u32 v{vSG}, v2, 1, 3
    v_lshlrev_b32 v{vSG}, 6, v{vSG}
    v_lshrrev_b32 v13, 4, v2
    v_lshl_add_u32 v{vSG}, v13, 4, v{vSG}
    v_and_b32 v13, 1, v2
    v_lshl_add_u32 v{vSG}, v13, 2, v{vSG}
    s_mul_i32 s{sT3}, s{sT0}, {KS}
    s_lshl_b32 s{sT4}, s{sT1}, 11
    s_add_u32 s{sT3}, s{sT3}, s{sT4}
    s_add_u32 s{sT3}, s{sT3}, {STG + 2*KS}
    v_add_u32 v{vSG}, s{sT3}, v{vSG}
    s_add_u32 s{sFU}, s{sKG}, 1
    s_lshl_b32 s{sFU}, s{sFU}, 13
    s_lshl_b32 s{sT3}, s{sWV}, 11
    s_add_u32 s{sFU}, s{sFU}, s{sT3}
    s_add_u32 s{sFU}, s{sFU}, {WS_KF}
    s_mul_i32 s{sFK}, s{sT0}, {KSL}
    s_add_u32 s{sFK}, s{sFK}, s{sT4}
    s_sub_u32 s{sHH}, s{sT1}, 1
    s_mov_b32 s{sPH}, 0
    L_phase:
    v_mov_b32 v{vKA}, v{vKL}
    v_add_u32 v{vUA}, s{sKB}, v{vUL}
    v_add_u32 v{vZ}, s{sKB}, v191
    v_max_i32 v{vU0}, v{vZ}, v{vUA}
    s_mov_b32 s{sIT}, 0
    s_waitcnt lgkmcnt(0)
    s_barrier
    """)
    def loadlist(s):
        L = []; K_, U_ = KF0 + 32 * s, UF0 + 32 * s
        for x in range(8):
            L.append(f"ds_read_b128 {vr(U_+4*x,4)}, v{vU0 if x == 0 else vUA} offset:{512*x}")
            L.append(f"ds_read_b128 {vr(K_+4*x,4)}, v{vKA} offset:{512*(7-x)}")
        return L
    stepL = [f"v_subrev_u32 v{vKA}, 64, v{vKA}", f"v_subrev_u32 v{vUA}, 64, v{vUA}", f"v_max_i32 v{vU0}, v{vZ}, v{vUA}"]
    for l in loadlist(0) + stepL: a(l)
    for i in range(32): a(f"v_mov_b32 v{A+i}, 0")
    a(f"s_cmp_eq_u32 s{sPH}, 1\ns_cbranch_scc1 L_cv")
    st(7)
    a(k.poll_ld(vPL, 14))
    a("L_cv:")
    for s_ in range(2):
        L = loadlist(1 - s_); nl = len(L)
        K_, U_ = KF0 + 32 * s_, UF0 + 32 * s_
        prs = [(c, mt - c) for mt in range(8) for c in range(mt + 1)]
        prs.sort(key=lambda x: (max(x), x[0] + x[1]))
        issued = 0; done = -1
        L2 = L + stepL
        for n, (c, m) in enumerate(prs):
            need = max(c, m)
            if need > done:
                a(f"s_waitcnt lgkmcnt({min(15, nl - 2*(need+1) + min(issued, nl))})"); done = need
            acc = vr(A + 4 * (c + m), 4)
            a(f"v_mfma_f32_16x16x32_bf16 {acc}, {vr(K_+4*c,4)}, {vr(U_+4*m,4)}, {acc}")
            if n >= 8 and issued < len(L2): a(L2[issued]); issued += 1
        assert issued == len(L2)
    a(f"""
    s_add_u32 s{sIT}, s{sIT}, 1
    s_cmp_eq_u32 s{sIT}, 2
    s_cbranch_scc1 L_cvdone
    s_cmp_eq_u32 s{sPH}, 1
    s_cbranch_scc1 L_cv
    """)
    kl = f"""
    buffer_load_dwordx4 {vr(PKR,4)}, v3, {WSR}, s{sFU} offen {SC}
    buffer_load_dwordx4 {vr(PKR+6,4)}, v3, {WSR}, s{sFU} offen offset:1024 {SC}
    buffer_load_dword v{PKR+11}, off, {WSR}, s{sFU} offset:2048 {SC}
    """
    a(f"""
    s_waitcnt vmcnt(0)
    {k.poll_cmp(14)}
    s_mov_b64 s[{sC1}:{sC1+1}], vcc
    s_cmp_eq_u64 vcc, 0
    s_cbranch_scc0 L_late
    {kl}
    s_branch L_cv
    L_late:
    {k.poll_ld(vPL, 14)}
    s_branch L_cv
    L_cvdone:
    s_cmp_eq_u32 s{sPH}, 1
    s_cbranch_scc1 L_ph1
    s_cmp_eq_u64 s[{sC1}:{sC1+1}], 0
    s_cbranch_scc1 L_havek
    """)
    vm.drain(); vm.q = ["poll"]
    k.poll(vm, vPL, 14, issued=True)
    a(kl + "L_havek:")
    st(8)
    a("s_waitcnt lgkmcnt(0)\ns_barrier\nL_ph1:")
    a(f"s_bitcmp1_b32 s{sWV}, 0\ns_cbranch_scc1 L_xodd")
    def exch(keep, send):
        for q in range(4): a(f"ds_write_b128 v{vXS}, {vr(send+4*q,4)} offset:{1024*q}")
        a(f"s_cmp_eq_u32 s{sPH}, 1\ns_cbranch_scc1 L_nok{keep}")
        a(f"""
        v_add_u32 v13, s{sFK}, v3
        v_add_u32 v14, {2*KS-8}, v13
        v_add_u32 v15, {3*KS-8}, v13
        s_waitcnt vmcnt(0)
        v_and_b32 v{PKR+10}, s{sHH}, v{PKR+11}
        v_readlane_b32 s{sT0}, v{PKR+6}, 0
        v_mov_b32_dpp v{PKR+10}, v{PKR+6} wave_shl:1 row_mask:0xf bank_mask:0xf
        v_mov_b32 v{PKR+4}, s{sT0}
        v_mov_b32_dpp v{PKR+4}, v{PKR} wave_shl:1 row_mask:0xf bank_mask:0xf
        """)
        for i in (1, 0):
            b = PKR + 6 * i
            for q in range(4): a(f"v_alignbit_b32 v{KF0+4*i+q}, v{b+q+1}, v{b+q}, 16")
            kwrite(13, 14, b, KF0 + 4 * i, 1024 * i, 128 * i)
        a(f"L_nok{keep}:\ns_waitcnt lgkmcnt(0)\ns_barrier")
        for q in range(4): a(f"ds_read_b128 {vr(send+4*q,4)}, v{vXR} offset:{1024*q}")
        a(f"v_add_u32 v13, 1024, v{vSG}")
        for q in range(4):
            a(f"s_waitcnt lgkmcnt(3)")
            for i in range(4): a(f"v_add_f32 v{keep+4*q+i}, v{keep+4*q+i}, v{send+4*q+i}")
            a(f"v_cvt_pk_bf16_f32 v{KF0+8+2*q}, v{keep+4*q}, v{keep+4*q+1}")
            a(f"v_cvt_pk_bf16_f32 v{KF0+9+2*q}, v{keep+4*q+2}, v{keep+4*q+3}")
            a(f"ds_write2_b32 v{vSG if q < 2 else 13}, v{KF0+8+2*q}, v{KF0+9+2*q} offset0:{128*(q&1)} offset1:{128*(q&1)+2}")
    exch(A, A + 16)
    a("s_branch L_xdone\nL_xodd:")
    exch(A + 16, A)
    a(f"""
    L_xdone:
    s_cmp_eq_u32 s{sPH}, 1
    s_cbranch_scc1 L_cvend
    s_mov_b32 s{sPH}, 1
    s_add_u32 s{sKB}, s{sKB}, {2*UB}
    v_subrev_u32 v{vSG}, {2*KS}, v{vSG}
    """)
    st(9)
    a(f"""
    s_branch L_phase
    L_cvend:
    v_bfe_u32 v10, v2, 2, 2
    v_xor_b32 v10, 2, v10
    v_mul_u32_u24 v10, {KS}, v10
    v_lshrrev_b32 v8, 4, v2
    v_lshl_add_u32 v10, v8, 5, v10
    v_and_b32 v8, 3, v2
    v_lshl_add_u32 v10, v8, 3, v10
    s_lshl_b32 s{sT0}, s{sWV}, 10
    s_add_u32 s{sT0}, s{sT0}, {STG}
    v_add_u32 v10, s{sT0}, v10
    v_mul_u32_u24 v11, 1792, v2
    s_mul_i32 s{sT2}, s{sWV}, {512*1792}
    s_lshl_b32 s{sT3}, s{sCG}, 3
    s_add_u32 s{sT2}, s{sT2}, s{sT3}
    s_waitcnt lgkmcnt(0)
    s_barrier
    """)
    st(10)
    for it in range(8): a(f"ds_read_b64_tr_b16 {vr(KF0+2*it,2)}, v10 offset:{128*it}")
    for it in range(8):
        a(f"s_waitcnt lgkmcnt({7-it})")
        a(f"buffer_store_dwordx2 {vr(KF0+2*it,2)}, v11, s[{SO}:{SO+3}], s{sT2} offen")
        if it < 7: a(f"s_add_u32 s{sT2}, s{sT2}, {64*1792}")
    a("L_send:")
    st.end(0)
    a("s_endpgm")
    a(f"""
    L_aux:
    s_cmp_ge_u32 s{sIDX}, 5
    s_cbranch_scc1 L_end
    s_cmp_lg_u32 s{sIDX}, 0
    s_cbranch_scc1 L_zkv
    s_cmp_lg_u32 s{sWV}, 0
    s_cbranch_scc1 L_end
    s_memrealtime s[{sN}:{sN+1}]
    s_waitcnt lgkmcnt(0)
    s_or_b32 s{sN}, s{sN}, 1
    v_mov_b32 v8, s{sN}
    v_mov_b32 v9, s{sN+1}
    s_mov_b64 exec, 1
    global_store_dwordx2 v4, v[8:9], s[42:43] {SC}
    s_endpgm
    L_zkv:
    v_mov_b32 v8, 0
    v_mov_b32 v9, 0
    v_mov_b32 v10, 0
    v_mov_b32 v11, 0
    v_lshlrev_b32 v5, 4, v0
    s_lshl_b32 s{sT0}, s{sIDX}, 7
    s_add_u32 s{sT0}, s{sT0}, {F_Z - 128}
    s_lshl_b32 s{sT1}, s{sIDX}, 14
    s_add_u32 s{sT1}, s{sT1}, {WS_KVA - 16384}
    s_waitcnt lgkmcnt(0)
    """)
    srd(a, SWS, 44, 45, WS_SIZE)
    for i in range(4):
        a(f"buffer_store_dwordx4 v[8:11], v5, {WSR}, s{sT1} offen {SC}")
        if i < 3: a(f"s_add_u32 s{sT1}, s{sT1}, 4096")
    vm = Cnt(a, "vmcnt")
    k.init_issue(vm); k.init_check(vm)
    a(f"s_barrier\ns_cmp_lg_u32 s{sWV}, 0\ns_cbranch_scc1 L_send")
    k.flag(vm, sT0)
    a("s_branch L_send")
```

```python
import build, sys, stamp
if "--stamp" in sys.argv:
    stamp.ENABLED = True; sys.argv.remove("--stamp")
if '--dbg' in sys.argv:
    stamp.ENABLED = True; stamp.DBG = True; sys.argv.remove('--dbg')
import v5 as v2
hdr = open("cdna_kernels/" + build.NAME + ".s.ref").read().split("; Override launch geometry")[0]
name = build.NAME + "_kernel"
body, kd = build.kernel(name, v2.gen())
s = hdr + f"; @launch grid=(512,1,1) block=(256,1,1) lds={v2.LDS}\n" + '.amdgcn_target "amdgcn-amd-amdhsa--gfx950"\n.text\n' + body + '.section .rodata,"a"\n.p2align 6\n' + kd
out = sys.argv[1] if len(sys.argv) > 1 else "cdna_kernels/" + build.NAME + ".s"
open(out, "w").write(s)
```

```python
import struct, os
from asmlib import *
from stamp import Stamper

WS_PQ  = 0x000000
WS_KVA = 0x200000
WS_FLG = 0x210000
WS_KF  = 0x300000
WS_UT  = 0x500000
WS_SIZE = 0x700000
F_UT, F_KF, F_Q, F_KV, F_Z = [WS_FLG + 128 * x for x in (0, 448, 1344, 1856, 1984)]
LDS = 81920
LOG2E = 0x3fb8aa3b
INV2PI = 0x3e22f983
def f2u(x): return hex(struct.unpack("<I", struct.pack("<f", x))[0])
EPS = f2u(1e-6)
SC = "sc1"

def cmul(a, d, x, y):
    assert d != x and d != y
    if os.environ.get('PK', '0') == '0':
        a(f"v_mul_f32 v{d}, v{x}, v{y}\nv_mul_f32 v{d+1}, v{x}, v{y+1}\nv_fma_f32 v{d}, -v{x+1}, v{y+1}, v{d}\nv_fmac_f32 v{d+1}, v{x+1}, v{y}")
        return
    a(f"v_pk_mul_f32 {vr(d,2)}, {vr(x,2)}, {vr(y,2)} op_sel:[0,0] op_sel_hi:[0,1]")
    a(f"v_pk_fma_f32 {vr(d,2)}, {vr(x,2)}, {vr(y,2)}, {vr(d,2)} op_sel:[1,1,0] op_sel_hi:[1,0,1] neg_lo:[1,0,0]")
def srd(a, S, lo, hi, n):
    a(f"s_mov_b32 s{S}, s{lo}\ns_mov_b32 s{S+1}, s{hi}\ns_mov_b32 s{S+2}, {n}\ns_mov_b32 s{S+3}, 0x20000")
def weave(main, fill, start=0):
    n, m, j = len(main), len(fill), 0
    for i, f in enumerate(main):
        f()
        tgt = 0 if i < start else min(m, ((i - start + 1) * m + (n - start) - 1) // (n - start))
        while j < tgt: fill[j](); j += 1
    while j < m: fill[j](); j += 1

SWS, SX, SW, SO = 48, 52, 56, 60
sC1 = 64
sN = 46
NV = 190
sWV, sT0, sT1, sT2, sT3, sT4, sA, sB, sC, sD, sE, sF, sG, sH, sI, sJ = range(66, 82)
WSR = f"s[{SWS}:{SWS+3}]"

class K:
    def __init__(self):
        self.a = Asm(); self.nl = 0
    def lab(self, p="L"):
        self.nl += 1; return f"{p}_{self.nl}"
    def _spin(self, vm, tag, cmp, ld, post=""):
        a = self.a; L, Lok = self.lab("Lp"), self.lab("Lpo")
        vm.wait(tag)
        a(f"""{L}:
        {cmp}
        s_cmp_eq_u64 vcc, 0
        s_cbranch_scc1 {Lok}
        s_sub_u32 s15, s15, 1
        s_cbranch_scc1 L_end
        s_mov_b64 exec, vcc
        s_sleep {os.environ.get('SLP', 2)}
        {ld}
        s_waitcnt vmcnt(0)
        s_branch {L}
        {Lok}:
        s_mov_b64 exec, -1
        {post}""")
    def init_issue(self, vm, t=None): vm.op(f"global_load_dwordx2 {vr(NV,2)}, v4, s[42:43] {SC}", "init")
    def init_check(self, vm, t=None):
        self._spin(vm, "init", f"v_cmp_eq_u32 vcc, 0, v{NV}", f"global_load_dwordx2 {vr(NV,2)}, v4, s[42:43] {SC}",
                   f"v_readfirstlane_b32 s{sN}, v{NV}\nv_readfirstlane_b32 s{sN+1}, v{NV+1}")
    def poll_ld(self, vaddr, t): return f"buffer_load_dwordx2 {vr(t,2)}, v{vaddr}, {WSR}, 0 offen {SC}"
    def poll_cmp(self, t): return f"v_cmp_ne_u64 vcc, s[{sN}:{sN+1}], {vr(t,2)}"
    def poll_issue(self, vm, vaddr, t): vm.op(self.poll_ld(vaddr, t), "poll")
    def poll(self, vm, vaddr, t, issued=False, tag="poll"):
        if not issued: self.poll_issue(vm, vaddr, t)
        self._spin(vm, tag, self.poll_cmp(t), self.poll_ld(vaddr, t))
    def flag(self, vm, soff, vone=None):
        self.a("s_mov_b64 exec, 1")
        vm.op(f"buffer_store_dwordx2 {vr(NV,2)}, off, {WSR}, s{soff} {SC}", "flag")
        self.a("s_mov_b64 exec, -1")

def gen():
    k = K(); a = k.a
    st = Stamper(a, 0, 44, sWV)
    a("s_cmp_ge_u32 s2, 512\ns_cbranch_scc1 L_end")
    st.start()
    a(f"""
    s_load_dwordx16 s[16:31], s[0:1], 0
    s_load_dwordx8 s[32:39], s[0:1], 64
    s_load_dwordx4 s[40:43], s[0:1], 96
    s_load_dwordx2 s[44:45], s[0:1], 112
    v_lshrrev_b32 v1, 6, v0
    v_and_b32 v2, 63, v0
    v_readfirstlane_b32 s{sWV}, v1
    v_lshlrev_b32 v3, 4, v2
    v_mov_b32 v4, 64
    s_mov_b32 s15, 40000
    s_cmp_lt_u32 s2, 256
    s_cbranch_scc1 L_S
    s_sub_u32 s2, s2, 256
    """)
    gen_G(k, st)
    gen_S(k, st)
    a("L_end:\ns_endpgm")
    return a

def gen_G(k, st):
    a = k.a
    if os.environ.get('SKIP_G'): a('s_endpgm')
    sRB, sP, sKX, sFL, sXO, sWO, sXM, sWM, sTY, sAT = sA, sB, sC, sD, sE, sF, sG, sH, sI, sJ
    vXD, vWD, vXA, vWA = 8, 12, 16, 20
    vWO, vFQ, vFK, vWS = 21, 22, 23, 24
    vFT, vEX, vFZ = 26, 5, 6
    vAT = 28
    vT = 36
    GA = 64; XF, WF = 128, 144
    a(f"""
    s_setprio {os.environ.get('GPRIO', 2)}
    s_and_b32 s{sT0}, s2, 7
    s_lshr_b32 s{sT1}, s2, 3
    s_lshr_b32 s{sTY}, s2, 7
    s_lshr_b32 s{sRB}, s{sT0}, 1
    s_lshl_b32 s{sRB}, s{sRB}, 2
    s_bfe_u32 s{sT2}, s{sT1}, 0x20002
    s_add_u32 s{sRB}, s{sRB}, s{sT2}
    s_and_b32 s{sP}, s{sT0}, 1
    s_lshl_b32 s{sP}, s{sP}, 2
    s_and_b32 s{sT3}, s{sT1}, 3
    s_add_u32 s{sP}, s{sP}, s{sT3}
    s_lshl_b32 s{sKX}, s{sT3}, 1
    s_add_u32 s{sKX}, s{sKX}, s{sTY}
    s_mul_i32 s{sT2}, s{sT2}, 3
    s_add_u32 s{sKX}, s{sKX}, s{sT2}
    s_cmp_ge_u32 s{sKX}, 14
    s_cselect_b32 s{sT2}, 14, 0
    s_sub_u32 s{sKX}, s{sKX}, s{sT2}
    s_cmp_ge_u32 s{sKX}, 7
    s_cselect_b32 s{sT2}, 7, 0
    s_sub_u32 s{sKX}, s{sKX}, s{sT2}
    s_lshl_b32 s{sXO}, s{sKX}, 7
    s_mul_i32 s{sWO}, s{sKX}, {64*2688}
    v_lshrrev_b32 v{vT+1}, 3, v2
    v_and_b32 v{vT+2}, 7, v2
    v_lshrrev_b32 v{vT+3}, 4, v2
    v_xor_b32 v{vT+6}, v{vT+2}, v{vT+3}
    v_lshlrev_b32 v{vT+6}, 4, v{vT+6}
    v_mul_u32_u24 v{vT+7}, 896, v{vT+1}
    s_lshl_b32 s{sT0}, s{sRB}, 2
    s_add_u32 s{sT0}, s{sT0}, s{sWV}
    s_mul_i32 s{sT0}, s{sT0}, {32*896}
    v_add3_u32 v{vXD}, v{vT+6}, v{vT+7}, s{sT0}
    v_xor_b32 v{vT+6}, 64, v{vT+6}
    v_add3_u32 v{vXD+1}, v{vT+6}, v{vT+7}, s{sT0}
    v_add_u32 v{vXD+1}, {7168-1024}, v{vXD+1}
    v_add_u32 v{vXD+2}, {2*(7168-1024)}, v{vXD}
    v_add_u32 v{vXD+3}, {2*(7168-1024)}, v{vXD+1}
    v_and_b32 v{vT+6}, 1, v{vT+3}
    v_lshlrev_b32 v{vT+6}, 2, v{vT+6}
    v_xor_b32 v{vT+8}, v{vT+6}, v{vT+2}
    v_min_u32 v{vT+6}, 6, v{vT+8}
    v_lshlrev_b32 v{vT+6}, 4, v{vT+6}
    v_mul_u32_u24 v{vT+9}, 2688, v{vT+1}
    s_lshr_b32 s{sT0}, s{sWV}, 1
    s_add_u32 s{sT0}, s{sT0}, 1
    s_mul_i32 s{sT0}, s{sT0}, 896
    s_and_b32 s{sT1}, s{sWV}, 1
    s_mul_i32 s{sT1}, s{sT1}, {32*2688}
    s_add_u32 s{sT0}, s{sT0}, s{sT1}
    s_mul_i32 s{sT1}, s{sWV}, {16*2688}
    s_lshl_b32 s{sXM}, s{sWV}, 12
    s_lshl_b32 s{sT2}, s{sWV}, 11
    s_cmp_eq_u32 s{sTY}, 0
    s_cselect_b32 s{sT0}, s{sT1}, s{sT0}
    s_cselect_b32 s{sWM}, s{sT2}, s{sXM}
    s_add_u32 s{sWM}, s{sWM}, 49152
    s_mul_i32 s{sT1}, s{sP}, 112
    s_add_u32 s{sT0}, s{sT0}, s{sT1}
    v_add3_u32 v{vWD}, v{vT+6}, v{vT+9}, s{sT0}
    v_add_u32 v{vWD+1}, {8*2688-1024}, v{vWD}
    v_add_u32 v{vWD+2}, {2*(8*2688-1024)}, v{vWD}
    v_add_u32 v{vWD+3}, {3*(8*2688-1024)}, v{vWD}
    s_mov_b32 s{SX+2}, {2048*896}
    s_mov_b32 s{SX+3}, 0x20000
    s_mov_b32 s{SW+2}, {448*2688}
    s_mov_b32 s{SW+3}, 0x20000
    s_cmp_eq_u32 s{sTY}, 0
    s_waitcnt lgkmcnt(0)
    s_mov_b32 s{SX}, s34
    s_mov_b32 s{SX+1}, s35
    s_mov_b32 s{SW}, s36
    s_mov_b32 s{SW+1}, s37
    """)
    st(0)
    a("s_cbranch_scc1 L_GQ")
    def setup(kv):
        a(f"""
        v_and_b32 v{vT+6}, 31, v2
        v_lshrrev_b32 v{vT+4}, 5, v2
        v_bfe_u32 v{vT+5}, v2, 1, 3
        v_xor_b32 v{vT+5}, v{vT+5}, v{vT+4}
        v_lshlrev_b32 v{vT+5}, 4, v{vT+5}
        v_lshl_add_u32 v{vT+5}, v{vT+6}, 7, v{vT+5}
        s_lshr_b32 s{sT0}, s{sWV}, 1
        s_lshl_b32 s{sT0}, s{sT0}, 13
        v_add_u32 v{vXA}, s{sT0}, v{vT+5}
        v_xor_b32 v{vXA+1}, 32, v{vXA}
        v_xor_b32 v{vXA+2}, 64, v{vXA}
        v_xor_b32 v{vXA+3}, 96, v{vXA}
        v_bfe_u32 v{vT+5}, v2, 2, 2
        v_lshl_add_u32 v{vT+5}, v{vT+4}, 3, v{vT+5}
        v_lshlrev_b32 v{vT+5}, 7, v{vT+5}
        v_and_b32 v{vT+9}, 3, v2
        v_lshlrev_b32 v{vT+10}, 3, v{vT+9}
        v_bfe_u32 v{vT+11}, v2, 4, 1
        v_lshl_add_u32 v{vT+10}, v{vT+11}, 5, v{vT+10}
        s_and_b32 s{sT0}, s{sWV}, 1
        s_mul_i32 s{sT0}, s{sT0}, 56
        v_add_u32 v{vT+10}, s{sT0}, v{vT+10}
        v_bfe_u32 v{vT+11}, v2, 3, 1
        v_lshlrev_b32 v{vT+11}, 6, v{vT+11}
        v_xor_b32 v{vT+10}, v{vT+10}, v{vT+11}
        v_add_u32 v{vT+5}, v{vT+5}, v{vT+10}
        v_add_u32 v{vWA}, 49152, v{vT+5}
        s_and_b32 s{sT0}, s2, 31
        s_lshl_b32 s{sT0}, s{sT0}, 4
        s_lshl_b32 s{sT1}, s{sWV}, 2
        s_add_u32 s{sT0}, s{sT0}, s{sT1}
        s_lshl_b32 s{sT0}, s{sT0}, 7
        s_add_u32 s{sT0}, s{sT0}, {F_Q}
        v_lshlrev_b32 v{vT+9}, 7, v{vT+9}
        v_add_u32 v{vFQ}, s{sT0}, v{vT+9}
        s_lshl_b32 s{sT0}, s{sWV}, 12
        s_add_u32 s{sT0}, s{sT0}, {F_KV}
        v_lshlrev_b32 v{vFK}, 7, v{vT+6}
        v_add_u32 v{vFK}, s{sT0}, v{vFK}
        v_lshlrev_b32 v{vT+8}, 4, v{vT+8}
        s_mul_i32 s{sT0}, s{sWV}, {112*896}
        s_lshr_b32 s{sT1}, s2, 5
        s_lshl_b32 s{sT1}, s{sT1}, 7
        s_add_u32 s{sT0}, s{sT0}, s{sT1}
        v_add3_u32 v{vWO}, v{vT+8}, v{vT+7}, s{sT0}
        v_add_u32 v{vWS}, s{sXM}, v3
        v_add_u32 v{vWS+1}, s{sWM}, v3
        s_mov_b32 s{sC1}, {LOG2E}
        s_mov_b32 s{sC1+1}, {LOG2E}
        """)
        srd(a, SWS, 44, 45, WS_SIZE)
        srd(a, SO, 40, 41, 2048 * 1792)
        if kv:
            a(f"""
            s_mul_i32 s{sT0}, s{sWV}, 20480
            s_add_u32 s{sT0}, s{sT0}, 16384
            v_add_u32 v{vEX}, s{sT0}, v3
            s_and_b32 s{sT0}, s{sWV}, 1
            s_lshr_b32 s{sT1}, s{sWV}, 1
            s_lshl_b32 s{sT1}, s{sT1}, 11
            s_mul_i32 s{sT2}, s{sT0}, 20480
            s_add_u32 s{sT2}, s{sT2}, s{sT1}
            s_add_u32 s{sT2}, s{sT2}, 16384
            s_and_b32 s{sT3}, s{sRB}, 7
            s_lshl_b32 s{sT3}, s{sT3}, 8
            s_add_u32 s{sT3}, s{sT3}, s{sT2}
            v_lshlrev_b32 v{vT+4}, 2, v2
            v_add_u32 v{vAT}, s{sT3}, v{vT+4}
            s_lshl_b32 s{sT0}, s{sT0}, 12
            s_add_u32 s{sT0}, s{sT0}, s{sT1}
            s_lshl_b32 s{sAT}, s{sP}, 13
            s_add_u32 s{sAT}, s{sAT}, s{sT0}
            s_add_u32 s{sAT}, s{sAT}, {WS_KVA}
            s_sub_u32 s{sAT}, s{sAT}, s{sT2}
            s_lshl_b32 s{sFL}, s{sP}, 4
            s_add_u32 s{sFL}, s{sFL}, s{sRB}
            s_lshl_b32 s{sFL}, s{sFL}, 7
            s_add_u32 s{sFL}, s{sFL}, {F_KV}
            """)
            for i in range(1, 8): a(f"v_xor_b32 v{vAT+i}, {i << 8}, v{vAT}")
            a(f"v_and_b32 v{vFZ}, 3, v2\nv_lshlrev_b32 v{vFZ}, 7, v{vFZ}\nv_add_u32 v{vFZ}, {F_Z}, v{vFZ}")
        else:
            a(f"""
            s_lshl_b32 s{sT3}, s{sRB}, 1
            s_lshr_b32 s{sT1}, s{sWV}, 1
            s_add_u32 s{sT3}, s{sT3}, s{sT1}
            s_lshl_b32 s{sT3}, s{sT3}, 4
            s_lshl_b32 s{sT1}, s{sP}, 1
            s_add_u32 s{sT1}, s{sT1}, s{sT3}
            s_and_b32 s{sT2}, s{sWV}, 1
            s_add_u32 s{sT1}, s{sT1}, s{sT2}
            s_lshl_b32 s{sFL}, s{sT1}, 7
            s_add_u32 s{sFL}, s{sFL}, {F_Q}
            s_add_u32 s{sT1}, s{sT1}, s{sT3}
            s_lshl_b32 s{sAT}, s{sT1}, 11
            s_add_u32 s{sKX}, s{sAT}, 32768
            """)
        for i in range(32): a(f"v_mov_b32 v{GA+i}, {EPS}")
    def gemm(kv):
        vm, lg = Cnt(a, "vmcnt"), Cnt(a, "lgkmcnt")
        nt = 2 if kv else 1
        nws = 2 if kv else 4
        wsz = 16384 if kv else 8192
        stage = {}
        def ld(kind, c, regs=None):
            n = 4 if kind == "x" else 2 * nt
            vD, S, sO = (vXD, SX, sXO) if kind == "x" else (vWD, SW, sWO)
            step, end = (128, 896) if kind == "x" else (64 * 2688, 448 * 2688)
            if regs is not None: stage[(kind, c)] = regs
            T = []
            for j in range(n):
                def f(j=j):
                    if regs is None:
                        if j == 0: a(f"s_add_u32 m0, s{sXM if kind == 'x' else sWM}, {16384*(c%3) if kind == 'x' else wsz*(c%nws)}")
                        vm.op(f"buffer_load_dwordx4 v{vD+j}, s[{S}:{S+3}], s{sO} offen offset:{1024*j} {os.environ.get('NTG','')} lds", f"{kind}{c}")
                    else:
                        vm.op(f"buffer_load_dwordx4 {vr(regs[1]+4*j,4,regs[0])}, v{vD+j}, s[{S}:{S+3}], s{sO} offen offset:{1024*j} {os.environ.get('NTG','')}", f"{kind}{c}")
                    if j == n - 1: a(f"s_add_u32 s{sO}, s{sO}, {step}\ns_cmp_eq_u32 s{sO}, {end}\ns_cselect_b32 s{sO}, 0, s{sO}")
                T.append(f)
            return T
        def wr(kind, c):
            regs = stage[(kind, c)]
            n = 4 if kind == "x" else 2 * nt
            T = []
            for j in range(n):
                def f(j=j):
                    if j == 0: vm.wait(f"{kind}{c}")
                    off = (16384 * (c % 3) if kind == "x" else wsz * (c % nws)) + 1024 * j
                    lg.op(f"ds_write_b128 v{vWS + (0 if kind == 'x' else 1)}, {vr(regs[1]+4*j,4,regs[0])} offset:{off}", "wr")
                T.append(f)
            return T
        def F(c, ks):
            b = ks & 1
            for n in range(nt):
                for i in range(2):
                    lg.op(f"ds_read_b64_tr_b16 {vr(WF+8*b+4*n+2*i,2)}, v{vWA} offset:{wsz*(c%nws) + ks*2048 + i*512 + n*8192}", f"f{c}{ks}")
            for t in range(2):
                lg.op(f"ds_read_b128 {vr(XF+8*b+4*t,4)}, v{vXA+ks} offset:{16384*(c%3) + 4096*t}", f"f{c}{ks}")
        def M(c, ks, fill=()):
            b = ks & 1
            lg.wait(f"f{c}{ks}")
            T = []
            for n in range(nt):
                for t in range(2):
                    acc = vr(GA + 16 * (n * 2 + t), 16)
                    cin = "0" if (c == 0 and ks == 0 and n == 1) else acc
                    xf, wf = vr(XF + 8 * b + 4 * t, 4), vr(WF + 8 * b + 4 * n, 4)
                    T.append(lambda s=(f"v_mfma_f32_32x32x16_bf16 {acc}, {xf}, {wf}, {cin}" if kv else f"v_mfma_f32_32x32x16_bf16 {acc}, {wf}, {xf}, {cin}"): a(s))
            weave(T, list(fill))
        run = lambda T: [f() for f in T]
        if kv:
            for x in (("x", 0), ("w", 0), ("x", 1), ("w", 1)): run(ld(*x))
            R = [("a", 0), ("a", 16), ("a", 32)]
            lds_ = {0: [("w", 2, R[0]), ("x", 2), ("w", 3, R[1])], 1: [("x", 3), ("w", 4, R[2])], 2: [("x", 4), ("w", 5, R[0])],
                    3: [("x", 5), ("w", 6, R[1])], 4: [("x", 6)]}
            wrs = {c: [("w", c + 2)] for c in range(5)}
            setup(kv)
            vm.wait(["x0", "w0"]); a("s_barrier")
            st(1)
            F(0, 0); F(0, 1)
            pend = []
            for c in range(7):
                L = sum([ld(*l) for l in lds_.get(c, [])], [])
                if c == 3: L.append(lambda: k.init_issue(vm))
                if c == 5: L.append(lambda: (k.init_check(vm), vm.op(k.poll_ld(vFZ, vFT), "zp")))
                q = max(1, (len(L) + 2) // 3); w = max(1, (len(pend) + 2) // 3)
                M(c, 0, L[:q] + pend[:w]); F(c, 2)
                M(c, 1, L[q:2*q] + pend[w:2*w]); F(c, 3)
                M(c, 2, L[2*q:] + pend[2*w:])
                if c < 6:
                    dma = [f"{kd}{c+1}" for kd in "xw" if (kd, c + 1) not in stage]
                    if dma and vm.n_after(dma) is not None: vm.wait(dma, "lgkmcnt(0)")
                    else: a("s_waitcnt lgkmcnt(0)")
                    lg.drain()
                    a("s_barrier")
                    F(c + 1, 0)
                    pend = sum([wr(*x) for x in wrs.get(c, [])], [])
                    M(c, 3, pend[:1]); pend = pend[1:]
                    F(c + 1, 1)
                else:
                    lg.wait(f"f{c}3")
                    a("s_barrier")
                    M(c, 3)
            return vm
        RX = [("a", 0), ("a", 16), ("a", 32), ("a", 48)]
        RW = [("v", 160), ("v", 168), ("v", 176), ("v", 96)]
        for c in range(2): run(ld("x", c, RX[c])); run(ld("w", c, RW[c]))
        setup(kv)
        run(wr("x", 0)); run(wr("w", 0))
        a("s_waitcnt lgkmcnt(0)\ns_barrier"); lg.drain()
        st(1)
        F(0, 0); F(0, 1)
        for c in range(7):
            cs = [2, 3] if c == 0 else ([c + 3] if c + 3 < 7 else [])
            L = sum([ld("x", x, RX[x % 4]) + ld("w", x, RW[x % 4]) for x in cs], [])
            if c == 4: L.append(lambda: k.init_issue(vm, vFT))
            P = (wr("x", c + 1) + wr("w", c + 1)) if c + 1 < 7 else []
            q = (len(L) + 1) // 2
            M(c, 0, L[:q]); F(c, 2)
            M(c, 1, L[q:] + P[:2]); F(c, 3)
            M(c, 2, P[2:])
            if c < 6:
                a("s_waitcnt lgkmcnt(0)\ns_barrier"); lg.drain()
                F(c + 1, 0)
                M(c, 3)
                F(c + 1, 1)
            else:
                lg.wait(f"f{c}3")
                M(c, 3)
        return vm
    def phi_t(base, n, dst, pk=True):
        T = []
        for i in range(0, n, 2):
            t = vT + 2 * ((i // 2) & 3)
            x = base + i
            if not pk:
                T.append(lambda t=t, x=x, i=i: a(f"""
                v_mul_f32 v{t}, s{sC1}, v{x}
                v_mul_f32 v{t+1}, s{sC1}, v{x+1}
                v_exp_f32_e64 v{t}, v{t} clamp
                v_exp_f32_e64 v{t+1}, v{t+1} clamp
                v_max_f32 v{x}, {EPS}, v{x}
                v_max_f32 v{x+1}, {EPS}, v{x+1}
                v_add_f32 v{x}, v{x}, v{t}
                v_add_f32 v{x+1}, v{x+1}, v{t+1}
                v_cvt_pk_bf16_f32 v{dst + i//2}, v{x}, v{x+1}
                """))
                continue
            T.append(lambda t=t, x=x, i=i: a(f"""
            v_pk_mul_f32 {vr(t,2)}, {vr(x,2)}, s[{sC1}:{sC1+1}]
            v_max_f32 v{x}, {EPS}, v{x}
            v_exp_f32_e64 v{t}, v{t} clamp
            v_exp_f32_e64 v{t+1}, v{t+1} clamp
            v_max_f32 v{x+1}, {EPS}, v{x+1}
            v_pk_add_f32 {vr(x,2)}, {vr(x,2)}, {vr(t,2)}
            v_cvt_pk_bf16_f32 v{dst + i//2}, v{x}, v{x+1}
            """))
        return T
    def wo_dma(vm):
        T = []
        for i in range(15):
            def f(i=i):
                if i == 0:
                    srd(a, SW, 38, 39, 448 * 896)
                    a(f"s_mul_i32 s{sT1}, s{sWV}, 20480\ns_mov_b32 s{sT0}, 0")
                a(f"s_add_u32 m0, s{sT1}, {1024*i}")
                if i: a(f"s_add_u32 s{sT0}, s{sT0}, 7168")
                vm.op(f"buffer_load_dwordx4 v{vWO}, s[{SW}:{SW+3}], s{sT0} offen lds", "wo")
            T.append(f)
        return T
    PK, PV, KVD = 128, 144, 48
    vm = gemm(True)
    st(3)
    for f in phi_t(GA, 16, PK, os.environ.get('KVPK')): f()
    for t in range(2):
        for i in range(8):
            a(f"v_cvt_pk_bf16_f32 v{PV+8*t+i}, v{GA+32+16*t+2*i}, v{GA+32+16*t+2*i+1}")
    a(f"s_mov_b32 exec_lo, {1<<28}\ns_mov_b32 exec_hi, {1<<28}")
    for i in range(16): a(f"v_mov_b32 v{PV+i}, 0x3f803f80")
    a("s_mov_b64 exec, -1")
    for u in range(2):
        a(f"v_mfma_f32_32x32x16_bf16 {vr(KVD,16)}, {vr(PK+4*u,4)}, {vr(PV+4*u,4)}, {'0' if u == 0 else vr(KVD,16)}")
    for f in phi_t(GA + 16, 16, PK + 8, os.environ.get('KVPK')): f()
    for u in range(2):
        a(f"v_mfma_f32_32x32x16_bf16 {vr(KVD,16)}, {vr(PK+8+4*u,4)}, {vr(PV+8+4*u,4)}, {vr(KVD,16)}")
    st(4)
    k.poll(vm, vFZ, vFT, issued=True, tag="zp")
    for q in range(3):
        a(f"ds_write_b128 v{vEX}, {vr(KVD+4*q,4)} offset:{1024*q}")
    a("s_mov_b32 exec_lo, 0")
    for i in range(12, 16): a(f"v_mov_b32 v{KVD+i}, 0")
    a("s_mov_b64 exec, -1")
    a(f"ds_write_b128 v{vEX}, {vr(KVD+12,4)} offset:3072")
    a("s_waitcnt lgkmcnt(0)\ns_barrier")
    for i in range(8):
        a(f"ds_read2st64_b32 {vr(GA+2*i,2)}, v{vAT+i} offset0:0 offset1:160")
    for i in range(8):
        a(f"s_waitcnt lgkmcnt({7-i})")
        a(f"v_add_f32 v{GA+2*i}, v{GA+2*i}, v{GA+2*i+1}")
        a(f"buffer_atomic_add_f32 v{GA+2*i}, v{vAT+i}, {WSR}, s{sAT} offen sc1")
    st(5)
    vm.drain()
    k.poll_issue(vm, vFQ, vFT)
    W = wo_dma(vm)
    for f in W[:6]: f()
    a(f"s_waitcnt vmcnt(7)\ns_barrier\ns_cmp_lg_u32 s{sWV}, 0\ns_cbranch_scc1 L_kvf")
    k.flag(vm, sFL, 1)
    a("L_kvf:")
    st(6)
    a("s_cmp_ge_u32 s2, 224\ns_cbranch_scc1 L_kvend")
    for f in W[6:]: f()
    a("s_waitcnt vmcnt(9)\ns_branch L_fin3")
    a("L_GQ:")
    vm = gemm(False)
    st(3)
    for t in range(2):
        for f in phi_t(GA + 16 * t, 16, PK + 8 * t, False): f()
        for ks in range(2):
            vm.op(f"buffer_store_dwordx4 {vr(PK+8*t+4*ks,4)}, v3, {WSR}, s{sAT if t == 0 else sKX} offen offset:{WS_PQ + 1024*ks} {SC}", "pqs")
    st(4)
    k.init_check(vm, vFT)
    st(5)
    vm.wait("pqs")
    k.flag(vm, sFL, 1)
    a("s_barrier")
    st(6)
    a(k.poll_ld(vFQ, vFT) + "\ns_waitcnt vmcnt(0)")
    A1, O, A2, KB, K23, WOFR = 16, 48, 64, 128, 144, 176
    vm = Cnt(a, "vmcnt"); lg = Cnt(a, "lgkmcnt")
    a("L_fin3:")
    a(f"s_setprio {os.environ.get('GPRIO2', 1)}")
    a(f"v_mov_b32 v12, v{vFK}")
    k.poll(vm, vFQ, vFT, issued=True)
    st(7)
    a(f"""
    s_and_b32 s{sT0}, s2, 31
    s_lshl_b32 s{sT0}, s{sT0}, 16
    s_lshl_b32 s{sT1}, s{sWV}, 13
    s_add_u32 s{sT0}, s{sT0}, s{sT1}
    s_add_u32 s{sT1}, s{sT0}, 32768
    s_add_u32 s{sT2}, s{sT0}, 4096
    s_add_u32 s{sT3}, s{sT1}, 4096
    """)
    for hl in range(4):
        for t in range(2):
            for ks in range(2):
                so = [[sT0, sT1], [sT2, sT3]][hl >> 1][t]
                vm.op(f"buffer_load_dwordx4 {ar(16*hl+8*t+4*ks,4)}, v3, {WSR}, s{so} offen offset:{WS_PQ + 2048*(hl&1) + 1024*ks} {SC}", "pq")
    a(f"s_cmp_lg_u32 s{sTY}, 0\ns_cbranch_scc1 L_havewo")
    for f in wo_dma(Cnt(a, "vmcnt")): f()
    a("L_havewo:")
    k.poll_issue(vm, 12, 8)
    a(f"""
    s_lshl_b32 s{sT0}, s{sWV}, 14
    s_add_u32 s{sT0}, s{sT0}, {WS_KVA}
    s_mul_i32 s{sT1}, s{sWV}, 20480
    v_bfe_u32 v5, v2, 2, 2
    v_lshrrev_b32 v6, 5, v2
    v_lshl_add_u32 v5, v6, 2, v5
    v_lshlrev_b32 v5, 7, v5
    v_and_b32 v7, 1, v2
    v_lshl_add_u32 v5, v7, 5, v5
    v_bfe_u32 v7, v2, 4, 1
    v_lshl_add_u32 v5, v7, 4, v5
    v_bfe_u32 v7, v2, 1, 1
    v_lshl_add_u32 v5, v7, 3, v5
    v_bfe_u32 v7, v2, 3, 1
    v_lshl_add_u32 v5, v7, 6, v5
    v_xor_b32 v15, 64, v5
    v_add_u32 v5, s{sT1}, v5
    v_add_u32 v15, s{sT1}, v15
    s_mov_b32 s{sT2}, {EPS}
    s_mov_b32 s{sC1}, -1
    s_mov_b32 s{sC1+1}, 0
    v_and_b32 v13, 31, v2
    v_mul_u32_u24 v13, 272, v13
    v_lshl_add_u32 v13, v6, 6, v13
    v_add_u32 v13, s{sT1}, v13
    v_lshrrev_b32 v7, 3, v0
    v_and_b32 v14, 7, v0
    v_mul_u32_u24 v10, 272, v7
    v_lshl_add_u32 v10, v14, 5, v10
    v_mul_u32_u24 v11, 1792, v7
    v_lshl_add_u32 v11, v14, 4, v11
    s_and_b32 s{sT3}, s2, 31
    s_mul_i32 s{sT3}, s{sT3}, {64*1792}
    s_lshr_b32 s{sT4}, s2, 5
    s_lshl_b32 s{sT4}, s{sT4}, 7
    s_add_u32 s{sT3}, s{sT3}, s{sT4}
    s_add_u32 s{sT3}, s{sT3}, 896
    s_add_u32 s{sT4}, s{sT3}, {32*1792}
    """)
    def ldwo(hl):
        for ks in range(2):
            for ct in range(2):
                for i in range(2):
                    lg.op(f"ds_read_b64_tr_b16 {vr(WOFR+8*ks+4*ct+2*i,2)}, v{15 if ct else 5} offset:{128*(28*hl+16*ks+8*i)}", f"wo{hl}")
    k.poll(vm, 12, 8, issued=True)
    vm.drain()
    st(8)
    def kvsrc(hl): return A1 + 16 * hl if hl < 2 else K23 + 16 * (hl - 2)
    def kvb(hl): return KB + 8 * hl if hl < 2 else K23 + 16 * (hl - 2)
    for hl in range(4):
        for q in range(4):
            vm.op(f"buffer_load_dwordx4 {vr(kvsrc(hl)+4*q,4)}, v3, {WSR}, s{sT0} offen offset:{1024*q} {SC}", f"kv{hl}")
        if hl < 3: a(f"s_add_u32 s{sT0}, s{sT0}, 4096")
    ldwo(0)
    a(f"v_add_u32 v12, 40960, v10")
    def cvtkv(hl):
        T = []
        for i in range(8):
            def f(i=i):
                if i == 0: vm.wait(f"kv{hl}")
                a(f"v_cvt_pk_bf16_f32 v{kvb(hl)+i}, v{kvsrc(hl)+2*i}, v{kvsrc(hl)+2*i+1}")
            T.append(f)
        return T
    def s1(u):
        hl, t = u >> 1, u & 1
        A = vr(A1 + 16 * (u & 1), 16)
        return [lambda: a(f"v_mfma_f32_32x32x16_bf16 {A}, {vr(kvb(hl),4)}, {ar(16*hl+8*t,4)}, 0"),
                lambda: a(f"v_mfma_f32_32x32x16_bf16 {A}, {vr(kvb(hl)+4,4)}, {ar(16*hl+8*t+4,4)}, {A}")]
    DN = 6
    def scale(u):
        A = A1 + 16 * (u & 1); Ou = O + 8 * (u & 1)
        L = [f"v_mov_b32 v{DN}, v{A+12}", f"v_mov_b32 v{DN+2}, v{A+12}", f"v_permlane32_swap_b32 v{DN}, v{DN+2}",
             f"v_add_f32 v{DN+2}, s{sT2}, v{DN+2}", f"v_rcp_f32 v{DN+2}, v{DN+2}"]
        for i in range(8):
            L.append(f"v_mul_f32 v{A+2*i}, v{A+2*i}, v{DN+2}")
            L.append(f"v_mul_f32 v{A+2*i+1}, v{A+2*i+1}, v{DN+2}")
            L.append(f"v_cvt_pk_bf16_f32 v{Ou+i}, v{A+2*i}, v{A+2*i+1}")
        L += [f"v_cndmask_b32 v{Ou+6}, 0, v{Ou+6}, s[{sC1}:{sC1+1}]", f"v_cndmask_b32 v{Ou+7}, 0, v{Ou+7}, s[{sC1}:{sC1+1}]"]
        return [lambda s=s: a(s) for s in L]
    def s2(u):
        hl, t = u >> 1, u & 1
        Ou = O + 8 * (u & 1); T = []
        for ks in range(2):
            for ct in range(2):
                acc = vr(A2 + 32 * t + 16 * ct, 16)
                cin = "0" if (hl == 0 and ks == 0) else acc
                def f(s=f"v_mfma_f32_32x32x16_bf16 {acc}, {vr(WOFR+8*ks+4*ct,4)}, {vr(Ou+4*ks,4)}, {cin}", first=(ks == 0 and ct == 0), last=(ks == 1 and ct == 1)):
                    if first and t == 0: lg.wait(f"wo{hl}")
                    a(s)
                    if last and t == 1 and hl < 3: ldwo(hl + 1)
                T.append(f)
        return T
    run = lambda T: [f() for f in T]
    run(cvtkv(0)); run(cvtkv(1))
    run(s1(0)); run(s1(1)); run(scale(0))
    for u in range(8):
        main = s2(u)
        fill = scale(u + 1) if u + 1 < 8 else []
        if u + 2 < 8:
            if u + 2 in (4, 6): run(cvtkv((u + 2) >> 1))
            main = s1(u + 2) + main
        if u == 7:
            fill = [lambda ct=ct, i=i: a(f"ds_write_b128 v13, {vr(A2+16*ct+4*i,4)} offset:{128*ct + 16*i}") for ct in range(2) for i in range(4)]
            weave(main, fill, start=1)
        else:
            weave(main, fill)
    st(9)
    for ct in range(2):
        for i in range(4):
            a(f"ds_write_b128 v13, {vr(A2+32+16*ct+4*i,4)} offset:{32*272 + 128*ct + 16*i}")
    a("s_waitcnt lgkmcnt(0)\ns_barrier")
    st(10)
    R = 64
    for t in range(2):
        for w in range(4):
            for h in range(2):
                a(f"ds_read_b128 {vr(R+32*t+8*w+4*h,4)}, v{10 if w < 2 else 12} offset:{20480*(w&1) + 32*272*t + 16*h}")
    for t in range(2):
        b = R + 32 * t
        a(f"s_waitcnt lgkmcnt({8 if t == 0 else 0})")
        for i in range(8):
            a(f"v_add_f32 v{b+i}, v{b+i}, v{b+8+i}")
            a(f"v_add_f32 v{b+16+i}, v{b+16+i}, v{b+24+i}")
        for i in range(8):
            a(f"v_add_f32 v{b+i}, v{b+i}, v{b+16+i}")
        for i in range(4):
            a(f"v_cvt_pk_bf16_f32 v{b+8+i}, v{b+2*i}, v{b+2*i+1}")
        a(f"buffer_store_dwordx4 {vr(b+8,4)}, v11, s[{SO}:{SO+3}], s{sT3 if t == 0 else sT4} offen")
    a("L_kvend:")
    st.end(1)
    a("s_endpgm")

from v6s import gen_S
```

```python
import os
from asmlib import *
from v6 import *

ROWB = 272
WREG = 53 * ROWB
KS, KSL = 4160, 16640
UBASE, UB, U0, U1 = 33280, 8256, 16, 16 + 4096 + 32
TTAB, TSTR = 66304, 1536
USTG = 57664

def gen_S(k, st):
    a = k.a
    sJB, sIDX, sCG, sHH, sKB, sFU, sIT, sPH, sKG, sFK = sA, sB, sC, sD, sE, sF, sG, sH, sI, sJ
    vm = Cnt(a, "vmcnt")
    P0 = 8
    UG, UG2 = 24, 32
    vT = 40
    IN = 56
    KA, KB_ = 60, 61
    ACC = 64; FR = 96
    E1, E8, E256, E2, E4, Wc, X0, X1, G0, G1, Y0, Y1 = [112 + 2 * i for i in range(12)]
    t0, t1, t2, t3, pk = 136, 137, 138, 139, 140
    EA = 144; AD = 153
    vFU, vFP, vGS, vGR, vGO = 157, 158, 159, 62, 63
    UR = 160
    vPW, vRR, vZF, vZU, vCW, vC4, vUW = 176, 177, 178, 179, 180, 181, 185
    vKL, vUL, vZL = 188, 189, 59
    a(f"""
    L_S:
    s_setprio 3
    s_and_b32 s{sJB}, s2, 7
    s_lshr_b32 s{sIDX}, s2, 3
    s_cmp_eq_u32 s{sJB}, 7
    s_cbranch_scc1 L_aux
    {'s_endpgm' if os.environ.get('SKIP_S') else ''}
    s_lshl_b32 s{sT0}, s{sJB}, 4
    s_and_b32 s{sCG}, s{sIDX}, 15
    s_add_u32 s{sCG}, s{sCG}, s{sT0}
    s_lshr_b32 s{sHH}, s{sIDX}, 4
    s_lshl_b32 s{sKG}, s{sCG}, 1
    s_add_u32 s{sKG}, s{sKG}, s{sHH}
    s_lshl_b32 s{sT1}, s{sKG}, 10
    v_lshlrev_b32 v5, 1, v0
    v_add_u32 v5, s{sT1}, v5
    s_lshl_b32 s{sT1}, s{sKG}, 2
    v_mov_b32 v6, s{sT1}
    s_and_b32 s{sIDX}, s{sIDX}, 15
    s_lshl_b32 s{sT1}, s{sIDX}, 2
    s_add_u32 s{sT1}, s{sT1}, s{sWV}
    s_mul_i32 s{sT1}, s{sT1}, {32*896}
    s_lshl_b32 s{sT2}, s{sJB}, 7
    s_add_u32 s{sT1}, s{sT1}, s{sT2}
    v_lshlrev_b32 v7, 1, v2
    v_add_u32 v7, s{sT1}, v7
    s_waitcnt lgkmcnt(0)
    """)
    st(0)
    for c in range(2):
        vm.op(f"global_load_short_d16_hi v{P0+8*c+6}, v6, s[30:31] offset:{2*c}", f"p{c}")
        for i in range(6):
            vm.op(f"global_load_short_d16_hi v{P0+8*c+i}, v5, s[{18+2*i}:{19+2*i}] offset:{512*c} {os.environ.get('NTS','nt')}", f"p{c}")
        vm.op(f"global_load_short_d16_hi v{P0+8*c+7}, v6, s[32:33] offset:{2*c}", f"p{c}")
    k.init_issue(vm)
    UG, UG2 = 160, 80
    a(f"s_cmp_eq_u32 s{sHH}, 1\ns_cbranch_scc1 L_nog")
    for i in range(32):
        if i and i % 4 == 0: a(f"v_add_u32 v7, {4*896}, v7")
        a(f"global_load_{'short_d16_hi' if i&1 else 'ushort'} v{(UG2 if i&1 else UG)+i//2}, v7, s[16:17] offset:{(i%4)*896} {os.environ.get('NTS','nt')}")
    a("L_nog:")
    a(f"s_setprio {os.environ.get('SPRIO', 1)}")
    srd(a, SWS, 44, 45, WS_SIZE)
    srd(a, SO, 40, 41, 2048 * 1792)
    a(f"""
    s_mul_i32 s{sKB}, s{sWV}, {WREG}
    v_and_b32 v{t0}, 31, v2
    v_lshrrev_b32 v{t1}, 5, v2
    v_lshlrev_b32 v{t1}, 4, v{t1}
    v_add_u32 v{t1}, s{sKB}, v{t1}
    v_min_u32 v{t2}, 20, v{t0}
    v_mul_u32_u24 v{t2}, {ROWB}, v{t2}
    v_add_u32 v{KA}, v{t2}, v{t1}
    v_mul_u32_u24 v{t2}, {ROWB}, v{t0}
    v_add_u32 v{KB_}, v{t2}, v{t1}
    s_mov_b32 m0, s{sKB}
    v_add_u32 v{vPW}, s{sKB}, v3
    s_lshl_b32 s{sT0}, s{sWV}, 10
    v_add_u32 v{vRR}, s{sT0}, v3
    v_mul_u32_u24 v{vGS}, 272, v2
    s_lshl_b32 s{sT0}, s{sWV}, 6
    s_add_u32 s{sT0}, s{sT0}, {USTG}
    v_add_u32 v{vGS}, s{sT0}, v{vGS}
    v_lshrrev_b32 v{t2}, 3, v2
    v_and_b32 v{t3}, 7, v2
    v_lshrrev_b32 v{vGO}, 4, v2
    v_and_b32 v{vZF}, 15, v2
    v_mul_u32_u24 v{vGR}, 272, v{vGO}
    v_lshl_add_u32 v{vGR}, v{vZF}, 4, v{vGR}
    s_mul_i32 s{sT0}, s{sWV}, {16*272}
    s_add_u32 s{sT0}, s{sT0}, {USTG}
    v_add_u32 v{vGR}, s{sT0}, v{vGR}
    v_lshlrev_b32 v{vGO}, 12, v{vGO}
    v_lshl_add_u32 v{vGO}, v{vZF}, 4, v{vGO}
    v_mul_u32_u24 v{vZF}, {KS}, v{t2}
    v_lshl_add_u32 v{vZF}, v{t3}, 3, v{vZF}
    v_add_u32 v{vZF}, 4088, v{vZF}
    v_and_b32 v{t3}, 23, v2
    v_cmp_eq_u32 vcc, 0, v{t3}
    v_add_u32 v{t3}, 56, v{vZF}
    v_bfe_u32 v{vZU}, v2, 1, 2
    v_mul_u32_u24 v{vZU}, {UB}, v{vZU}
    v_cndmask_b32 v{vZF}, v{vZF}, v{t3}, vcc
    v_and_b32 v{t3}, 1, v2
    v_mul_u32_u24 v{t3}, {U1-U0}, v{t3}
    v_add3_u32 v{vZU}, v{vZU}, v{t3}, s{sT0}
    s_add_u32 s{sT0}, s{sT0}, {-UBASE & 0xffffffff}
    v_subrev_u32 v{vZU}, s{sT0}, v{vZU}
    s_lshl_b32 s{sT0}, s{sJB}, 2
    s_add_u32 s{sT0}, s{sT0}, s{sWV}
    s_lshl_b32 s{sT1}, s{sT0}, 16
    s_lshl_b32 s{sT2}, s{sIDX}, 8
    s_add_u32 s{sT1}, s{sT1}, s{sT2}
    s_add_u32 s{sT1}, s{sT1}, {WS_UT}
    s_lshl_b32 s{sT0}, s{sT0}, 4
    s_add_u32 s{sT0}, s{sT0}, s{sIDX}
    s_lshl_b32 s{sT0}, s{sT0}, 7
    s_add_u32 s{sFU}, s{sT0}, {F_UT}
    s_lshr_b32 s{sT0}, s{sCG}, 2
    s_lshl_b32 s{sT0}, s{sT0}, 11
    s_add_u32 s{sT0}, s{sT0}, {F_UT}
    v_and_b32 v{vFU}, 15, v2
    v_lshlrev_b32 v{vFU}, 7, v{vFU}
    v_add_u32 v{vFU}, s{sT0}, v{vFU}
    s_xor_b32 s{sT0}, s{sKG}, 1
    s_lshl_b32 s{sT0}, s{sT0}, 9
    s_add_u32 s{sT0}, s{sT0}, {F_KF}
    v_and_b32 v{vFP}, 3, v2
    v_lshlrev_b32 v{vFP}, 7, v{vFP}
    v_add_u32 v{vFP}, s{sT0}, v{vFP}
    s_lshl_b32 s{sT0}, s{sKG}, 2
    s_add_u32 s{sT0}, s{sT0}, s{sWV}
    s_lshl_b32 s{sT0}, s{sT0}, 7
    s_add_u32 s{sFK}, s{sT0}, {F_KF}
    v_lshlrev_b32 v{vCW}, 4, v0
    v_add_u32 v{vC4}, {2*KS-8}, v{vCW}
    v_add_u32 v{vC4+1}, {3*KS-8}, v{vCW}
    v_add_u32 v{vC4+2}, {KSL+2*KS-8}, v{vCW}
    v_add_u32 v{vC4+3}, {KSL+3*KS-8}, v{vCW}
    s_mul_i32 s{sT0}, s{sWV}, {UB}
    s_add_u32 s{sT0}, s{sT0}, {UBASE}
    v_add_u32 v{vUW}, s{sT0}, v3
    """)
    a(f"""
    s_cmp_eq_u32 s{sWV}, 1
    s_cselect_b32 s{sT0}, 4, 8
    s_cselect_b32 s{sT3}, 2, 8
    s_cselect_b32 s{sT4}, 256, 0
    s_cselect_b32 s{sPH}, 384, 4
    s_cmp_eq_u32 s{sWV}, 2
    s_cselect_b32 s{sT0}, 1, s{sT0}
    s_cselect_b32 s{sT3}, 1, s{sT3}
    s_cselect_b32 s{sT4}, 512, s{sT4}
    s_cselect_b32 s{sPH}, 640, s{sPH}
    s_cselect_b32 s{sIT}, 32, 1
    v_mul_u32_u24 v{AD}, s{sT0}, v{t0}
    v_add_u32 v{AD}, s{sT4}, v{AD}
    v_mul_u32_u24 v{AD+1}, s{sT3}, v{t0}
    v_add_u32 v{AD+1}, s{sPH}, v{AD+1}
    v_cmp_gt_u32 vcc, 32, v2
    s_lshl_b32 s{sT0}, s{sIT}, 1
    s_cmp_eq_u32 s{sWV}, 0
    s_cselect_b32 s{sT3}, 2, 64
    v_mov_b32 v{t2}, s{sT3}
    v_mov_b32 v{t3}, s{sT0}
    v_cndmask_b32 v{AD}, v{AD+1}, v{AD}, vcc
    v_cndmask_b32 v{t3}, v{t2}, v{t3}, vcc
    v_add_u32 v{AD+1}, s{sIT}, v{AD}
    v_add_u32 v{AD+2}, v{AD}, v{t3}
    v_add_u32 v{AD+3}, s{sIT}, v{AD+2}
    v_mov_b32 v{t3}, {TTAB}
    """)
    for i in range(4): a(f"v_lshl_add_u32 v{AD+i}, v{AD+i}, 1, v{t3}")
    a(f"v_lshlrev_b32 v{t2}, 3, v0\nv_sub_u32 v{t2}, 2047, v{t2}")
    for e in range(9):
        a(f"v_subrev_u32 v{EA+e}, {e}, v{t2}")
        a(f"v_cvt_f32_i32 v{FR+e}, v{EA+e}")
    for e in range(0, 10, 2):
        a(f"v_cvt_pk_bf16_f32 v{FR+e}, v{FR+e}, v{FR+min(e+1,8)}")
        if e < 8: a(f"v_lshrrev_b32 v{FR+e+1}, 16, v{FR+e}")
        a(f"v_and_b32 v{FR+e}, 0xffff, v{FR+e}")
    for e in range(9):
        if e in (0, 8): a(f"v_cmp_gt_i32 vcc, 128, v{EA+e}")
        a(f"v_subrev_u32 v{FR+e}, 17024, v{FR+e}")
        a(f"v_cndmask_b32 v{EA+e}, v{FR+e}, v{EA+e}, vcc")
        a(f"v_lshl_add_u32 v{EA+e}, v{EA+e}, 1, v{t3}")
    a(f"""
    v_and_b32 v5, 3, v2
    v_sub_u32 v5, 3, v5
    v_mul_u32_u24 v{vKL}, {KS}, v5
    v_lshrrev_b32 v6, 4, v2
    v_lshl_add_u32 v{vKL}, v6, 4, v{vKL}
    v_bfe_u32 v7, v2, 2, 2
    v_lshlrev_b32 v7, 4, v7
    v_sub_u32 v{vKL}, v{vKL}, v7
    s_and_b32 s{sT0}, s{sWV}, 1
    s_lshl_b32 s{sT0}, s{sT0}, 8
    s_lshr_b32 s{sT3}, s{sWV}, 1
    s_mul_i32 s{sT3}, s{sT3}, {KSL}
    s_add_u32 s{sT3}, s{sT3}, {2*(2040-1792)}
    s_sub_u32 s{sT3}, s{sT3}, s{sT0}
    v_add_u32 v{vKL}, s{sT3}, v{vKL}
    v_and_b32 v5, 1, v2
    v_sub_u32 v5, 1, v5
    v_mul_u32_u24 v{vZL}, {U1-U0}, v5
    v_add_u32 v{vZL}, {UBASE}, v{vZL}
    v_bfe_u32 v5, v2, 1, 3
    v_lshl_add_u32 v{vUL}, v5, 6, v{vZL}
    v_lshl_add_u32 v{vUL}, v6, 4, v{vUL}
    s_sub_u32 s{sT3}, 16, s{sT0}
    v_add_u32 v{vUL}, s{sT3}, v{vUL}
    """)
    st(1)
    def kgen(c):
        P = P0 + 8 * c
        AC = ACC + 16 * c
        if c == 0:
            a(f"s_cmp_eq_u32 s{sHH}, 0\ns_cbranch_scc1 L_wk\ns_waitcnt vmcnt(9)\nL_wk:\ns_waitcnt vmcnt(41)")
        a(f"""
        v_mul_f32 v{t0}, {LOG2E}, v{P+6}
        v_exp_f32 v{t0}, v{t0}
        v_cvt_pk_bf16_f32 v{t0}, v{t0}, v{t0}
        v_lshlrev_b32 v{t0}, 16, v{t0}
        v_mul_f32 v{t1}, v{t0}, v{P}
        v_mul_f32 v{t2}, v{t0}, v{P+1}
        v_mul_f32 v{t1}, {LOG2E}, v{t1}
        v_mul_f32 v{t2}, {INV2PI}, v{t2}
        v_mul_f32 v{P+2}, v{t0}, v{P+2}
        v_mul_f32 v{P+3}, v{t0}, v{P+3}
        """)
        cmul(a, Wc, P + 4, P + 2)
        for (E, m, cj) in ((E8, 8.0, True), (E1, 1.0, False), (E256, 256.0, False)):
            if m != 1.0:
                a(f"v_mul_f32 v{t0}, {f2u(m)}, v{t1}\nv_mul_f32 v{t3}, {f2u(m)}, v{t2}\nv_exp_f32 v{t0}, v{t0}\nv_fract_f32 v{t3}, v{t3}")
            else:
                a(f"v_exp_f32 v{t0}, v{t1}\nv_fract_f32 v{t3}, v{t2}")
            a(f"""
            v_cos_f32 v{E}, v{t3}
            v_sin_f32 v{E+1}, v{t3}
            v_mul_f32 v{E}, v{E}, v{t0}
            v_mul_f32_e64 v{E+1}, {'-' if cj else ''}v{E+1}, v{t0}
            """)
        cmul(a, E2, E1, E1); cmul(a, E4, E2, E2)
        yield "head"
        cnt = [0]
        def put(row, src):
            r = pk + (cnt[0] & 3); cnt[0] += 1
            a(f"v_cvt_pk_bf16_f32 v{r}, v{src}, v{src+1}")
            a(f"ds_write_addtid_b32 v{r} offset:{row * ROWB}")
        if c == 0:
            a(f"v_mov_b32 v{t0}, 0x3f80")
            a(f"ds_write_addtid_b32 v{t0} offset:{21*ROWB}")
        put(22, E8); put(0, Wc)
        fine, cur = [], E8
        for f in range(2, 32):
            nxt = X0 if cur != X0 else X1
            fine.append((nxt, cur, E8, 21 + f)); cur = nxt
        coarse, cur = [], Wc
        for cc in range(1, 8):
            nxt = Y0 if cur != Y0 else Y1
            coarse.append((nxt, cur, E1, cc)); cur = nxt
        coarse.append((G0, Wc, E256, 8)); cur = G0
        for cc in range(1, 4):
            nxt = Y0 if cur != Y0 else Y1
            coarse.append((nxt, cur, E2, 8 + cc)); cur = nxt
        coarse += [(G1, G0, E256, 12), (Y0, G1, E4, 13), (G0, G1, E256, 14), (Y0, G0, E4, 15)]
        g = G0
        for i in range(5):
            n = G1 if g == G0 else G0
            coarse.append((n, g, E256, 16 + i)); g = n
        seq = []
        for i in range(max(len(fine), len(coarse))):
            if i < len(fine): seq.append(fine[i])
            if i < len(coarse): seq.append(coarse[i])
        for n, (d, x, y, row) in enumerate(seq):
            cmul(a, d, x, y); put(row, d)
            if n == 24: yield "mid"
        a("s_waitcnt lgkmcnt(0)")
        bufs = [FR, FR + 8, vT, vT + 8]
        for jj in range(4):
            a(f"ds_read_b128 {vr(bufs[jj],4)}, v{KA} offset:{32*jj}")
            a(f"ds_read_b128 {vr(bufs[jj]+4,4)}, v{KB_} offset:{21*ROWB+32*jj}")
        yield "reads"
        for j in range(8):
            fb = bufs[j & 3]
            a(f"s_waitcnt lgkmcnt({6 if j < 5 else 2*(7-j)})")
            a(f"v_mfma_f32_32x32x16_bf16 {vr(AC,16)}, {vr(fb,4)}, {vr(fb+4,4)}, {'0' if j == 0 else vr(AC,16)}")
            if j + 4 < 8:
                a(f"ds_read_b128 {vr(fb,4)}, v{KA} offset:{32*(j+4)}")
                a(f"ds_read_b128 {vr(fb+4,4)}, v{KB_} offset:{21*ROWB+32*(j+4)}")
        yield "done"
    g0, g1 = kgen(0), kgen(1)
    next(g0)
    a(f"v_cmp_eq_u32 vcc, 0, v0\nv_cndmask_b32 v{P0+7}, 0, v{P0+7}, vcc")
    next(g0)
    a("s_waitcnt vmcnt(0)")
    vm.drain()
    k.init_check(vm)
    a(f"s_cmp_eq_u32 s{sHH}, 1\ns_cbranch_scc1 L_nout")
    for i in range(16): a(f"v_or_b32 v{UG+i}, v{UG+i}, v{UG2+i}")
    for i in range(4): a(f"ds_write_b128 v{vGS}, {vr(UG+4*i,4)} offset:{16*i}")
    a("s_waitcnt lgkmcnt(0)\ns_barrier")
    for i in range(4): a(f"ds_read_b128 {vr(UG+4*i,4)}, v{vGR} offset:{4*272*i}")
    for i in range(4):
        a(f"s_waitcnt lgkmcnt({3-i})")
        a(f"buffer_store_dwordx4 {vr(UG+4*i,4)}, v{vGO}, {WSR}, s{sT1} offen {SC}")
        if i < 3: a(f"s_add_u32 s{sT1}, s{sT1}, 16384")
    a("L_nout:")
    next(g0)
    st(2)
    next(g1)
    a(f"v_cmp_eq_u32 vcc, 0, v0\nv_cndmask_b32 v{P0+15}, 0, v{P0+15}, vcc")
    a(f"s_cmp_eq_u32 s{sHH}, 1\ns_cbranch_scc1 L_nofl\ns_waitcnt vmcnt(0)")
    k.flag(Cnt(a, "vmcnt"), sFU)
    a("L_nofl:")
    next(g0)
    st(3)
    next(g1)
    a(f"""
    s_lshl_b32 s{sT0}, s{sCG}, 2
    s_add_u32 s{sT0}, s{sT0}, s{sWV}
    s_lshl_b32 s{sT0}, s{sT0}, 12
    s_add_u32 s{sT4}, s{sT0}, {WS_UT}
    """)
    next(g1)
    st(4)
    a(k.poll_ld(vFU, IN))
    ul = "\n".join(f"buffer_load_dwordx4 {vr(UR+4*i,4)}, v3, {WSR}, s{sT4} offen offset:{1024*i} {SC}" for i in range(4))
    next(g1)
    st(6)
    for c in range(2):
        for q in range(3):
            a(f"ds_write_b128 v{vPW}, {vr(ACC+16*c+4*q,4)} offset:{(3*c+q)*1024}")
    a(f"""
    s_waitcnt vmcnt(0)
    {k.poll_cmp(IN)}
    s_mov_b64 s[{sC1}:{sC1+1}], vcc
    s_cmp_eq_u64 vcc, 0
    s_cbranch_scc0 L_ulate
    {ul}
    s_branch L_nopoll2
    L_ulate:
    {k.poll_ld(vFU, IN)}
    L_nopoll2:
    """)
    a(f"""
    s_lshl_b32 s{sT1}, s{sKG}, 13
    s_add_u32 s{sT1}, s{sT1}, {WS_KF}
    s_add_u32 s{sT2}, s{sT1}, 4096
    s_cmp_eq_u32 s{sWV}, 3
    s_waitcnt lgkmcnt(0)
    s_barrier
    s_cbranch_scc1 L_nored
    """)
    RD = ACC
    for c in range(2):
        for w in range(4):
            a(f"ds_read_b128 {vr(RD+16*c+4*w,4)}, v{vRR} offset:{w*WREG + c*3072}")
    for c in range(2):
        a("s_waitcnt lgkmcnt(4)")
        b = RD + 16 * c
        a(f"""
        v_add_f32 v{b}, v{P0+8*c+7}, v{b}
        v_add_f32 v{b+0}, v{b+0}, v{b+4}
        v_add_f32 v{b+8}, v{b+8}, v{b+12}
        v_add_f32 v{b+1}, v{b+1}, v{b+5}
        v_add_f32 v{b+9}, v{b+9}, v{b+13}
        v_add_f32 v{b+2}, v{b+2}, v{b+6}
        v_add_f32 v{b+10}, v{b+10}, v{b+14}
        v_add_f32 v{b+3}, v{b+3}, v{b+7}
        v_add_f32 v{b+11}, v{b+11}, v{b+15}
        v_add_f32 v{b+0}, v{b+0}, v{b+8}
        v_add_f32 v{b+1}, v{b+1}, v{b+9}
        v_add_f32 v{b+2}, v{b+2}, v{b+10}
        v_add_f32 v{b+3}, v{b+3}, v{b+11}
        v_cvt_pk_bf16_f32 v{b}, v{b}, v{b+1}
        v_cvt_pk_bf16_f32 v{b+1}, v{b+2}, v{b+3}
        ds_write_b16 v{AD}, v{b} offset:{c*TSTR}
        ds_write_b16_d16_hi v{AD+1}, v{b} offset:{c*TSTR}
        ds_write_b16 v{AD+2}, v{b+1} offset:{c*TSTR}
        ds_write_b16_d16_hi v{AD+3}, v{b+1} offset:{c*TSTR}
        """)
    a(f"""
    L_nored:
    v_mov_b32 v{vT}, 0
    v_mov_b32 v{vT+1}, 0
    v_mov_b32 v{vT+2}, 0
    v_mov_b32 v{vT+3}, 0
    v_cmp_eq_u32 vcc, 255, v0
    s_waitcnt lgkmcnt(0)
    s_barrier
    """)
    GE = 96
    CW = 64
    for c in range(2):
        for e in range(9):
            a(f"ds_read_u16 v{GE+10*c+e}, v{EA+e} offset:{c*TSTR}")
    a(f"ds_write_b64 v{vZF}, {vr(vT,2)}\nds_write_b128 v{vZU}, {vr(vT,4)}")
    def kwrite(addr, a4, q0, q1, off, off8=0):
        a(f"ds_write_b128 v{addr}, {vr(q0,4)} offset:{off}")
        a(f"ds_write2_b64 v{a4}, {vr(q0,2)}, {vr(q0+2,2)} offset0:{off8} offset1:{off8+1}")
        a(f"ds_write_b128 v{addr}, {vr(q1,4)} offset:{off+KS}")
        a(f"ds_write2_b64 v{a4+1}, {vr(q1,2)}, {vr(q1+2,2)} offset0:{off8} offset1:{off8+1}")
    for c in range(2):
        g = GE + 10 * c
        a(f"s_waitcnt lgkmcnt({11 if c == 0 else 6})")
        for i in range(4): a(f"v_lshl_or_b32 v{CW+8*c+i}, v{g+2*i+1}, 16, v{g+2*i}")
        a(f"buffer_store_dwordx4 {vr(CW+8*c,4)}, v{vCW}, {WSR}, s{sT1 if c == 0 else sT2} offen {SC}")
        a(f"v_cndmask_b32 v{g+8}, v{g+8}, 0, vcc")
        for i in range(4): a(f"v_lshl_or_b32 v{CW+8*c+4+i}, v{g+2*i+2}, 16, v{g+2*i+1}")
        kwrite(vCW, vC4 + 2 * c, CW + 8 * c, CW + 8 * c + 4, c * KSL)
    a(f"s_cmp_eq_u64 s[{sC1}:{sC1+1}], 0\ns_cbranch_scc1 L_haveu")
    vm.drain(); vm.q = ["poll"]
    k.poll(vm, vFU, IN, issued=True)
    a(ul + "\nL_haveu:\ns_waitcnt vmcnt(0)")
    k.flag(Cnt(a, "vmcnt"), sFK)
    st(5)
    UB_ = 80
    for i in range(4):
        b = UR + 4 * i; d = UB_ + 4 * i
        a(f"ds_write_b128 v{vUW}, {vr(b,4)} offset:{U0 + 1024*i}")
        if i == 0: a(f"v_mov_b32 v{d}, 0")
        else: a(f"v_readlane_b32 s{sT0}, v{b-1}, 63")
        for q in range(3): a(f"v_mov_b32 v{d+1+q}, v{b+q}")
        if i: a(f"v_mov_b32 v{d}, s{sT0}")
        a(f"v_mov_b32_dpp v{d}, v{b+3} wave_shr:1 row_mask:0xf bank_mask:0xf")
        a(f"ds_write_b128 v{vUW}, {vr(d,4)} offset:{U1 + 1024*i}")
    vKA, vUA, vU0, vZ, vXS, vXR, vSG, vPL = 5, 6, 7, 8, 9, 10, 11, 12
    A = 16; KF0, UF0 = 48, 112
    PKR = 176
    STG, SS = 66304, 2112
    sMK = sIDX
    a(f"""
    s_setprio {os.environ.get('SPRIO2', 1)}
    v_mov_b32 v{vPL}, v{vFP}
    v_mov_b32 v32, v{vZL}
    s_lshr_b32 s{sT0}, s{sWV}, 1
    s_lshl_b32 s{sT2}, s{sHH}, 1
    s_add_u32 s{sJB}, s{sT0}, s{sT2}
    s_mul_i32 s{sKB}, s{sJB}, {UB}
    s_and_b32 s{sT1}, s{sWV}, 1
    s_lshl_b32 s{sT2}, s{sT1}, 11
    s_add_u32 s{sT3}, s{sKB}, {UBASE}
    s_add_u32 s{sT4}, s{sT3}, s{sT2}
    v_add_u32 v{vXS}, s{sT4}, v3
    s_add_u32 s{sT3}, s{sT3}, 2048
    s_sub_u32 s{sT3}, s{sT3}, s{sT2}
    v_add_u32 v{vXR}, s{sT3}, v3
    v_bfe_u32 v{vSG}, v2, 1, 3
    v_lshlrev_b32 v{vSG}, 6, v{vSG}
    v_lshrrev_b32 v13, 4, v2
    v_lshl_add_u32 v{vSG}, v13, 4, v{vSG}
    v_and_b32 v13, 1, v2
    v_lshl_add_u32 v{vSG}, v13, 2, v{vSG}
    s_lshl_b32 s{sT4}, s{sT1}, 10
    s_add_u32 s{sT4}, s{sT4}, {STG}
    v_add_u32 v{vSG}, s{sT4}, v{vSG}
    s_xor_b32 s{sFU}, s{sKG}, 1
    s_lshl_b32 s{sFU}, s{sFU}, 13
    s_lshl_b32 s{sT3}, s{sWV}, 11
    s_add_u32 s{sFU}, s{sFU}, s{sT3}
    s_add_u32 s{sFU}, s{sFU}, {WS_KF}
    s_mul_i32 s{sFK}, s{sT0}, {KSL}
    s_add_u32 s{sFK}, s{sFK}, s{sT2}
    s_sub_u32 s{sMK}, s{sT1}, 1
    s_mov_b32 s{sPH}, 0
    v_mov_b32 v{vKA}, v{vKL}
    v_add_u32 v{vUA}, s{sKB}, v{vUL}
    v_add_u32 v{vZ}, s{sKB}, v32
    v_max_i32 v{vU0}, v{vZ}, v{vUA}
    s_mov_b32 s{sIT}, 0
    {k.poll_ld(vPL, 14)}
    s_cmp_eq_u32 s{sHH}, 1
    s_waitcnt lgkmcnt(0)
    s_barrier
    """)
    st(7)
    a("s_cbranch_scc1 L_cv1pre")
    TS = {0: [4, 5, 6, 7], 1: [0, 1, 2, 3]}
    def loadlist(s, H):
        L = []; K_, U_ = KF0 + 32 * s, UF0 + 32 * s
        for x in range(4 if H else 8):
            L.append(f"ds_read_b128 {vr(U_+4*x,4)}, v{vU0 if x == 0 else vUA} offset:{512*x}")
            L.append(f"ds_read_b128 {vr(K_+4*x,4)}, v{vKA} offset:{512*(7-x)}")
        return L
    stepL = [f"v_subrev_u32 v{vKA}, 64, v{vKA}", f"v_subrev_u32 v{vUA}, 64, v{vUA}", f"v_max_i32 v{vU0}, v{vZ}, v{vUA}"]
    kl = f"""
    buffer_load_dwordx4 {vr(PKR,4)}, v3, {WSR}, s{sFU} offen {SC}
    buffer_load_dwordx4 {vr(PKR+6,4)}, v3, {WSR}, s{sFU} offen offset:1024 {SC}
    buffer_load_dword v{PKR+11}, off, {WSR}, s{sFU} offset:2048 {SC}
    """
    for H in (0, 1):
        a(f"L_cv{H}pre:")
        if H == 0: pass
        for l in loadlist(0, H) + stepL: a(l)
        for i in range(16): a(f"v_mov_b32 v{A+i}, 0")
        a(f"L_cv{H}:")
        for s_ in range(2):
            L = loadlist(1 - s_, H); nl = len(L)
            K_, U_ = KF0 + 32 * s_, UF0 + 32 * s_
            prs = [(c, mt - c, n) for n, mt in enumerate(TS[H]) for c in range(mt + 1)]
            prs.sort(key=lambda x: (max(x[0], x[1]), x[2]))
            issued = 0; done = -1
            L2 = L + stepL
            st0 = 4 if H == 0 else 0
            for n, (c, m, tn) in enumerate(prs):
                need = max(c, m)
                if need > done:
                    a(f"s_waitcnt lgkmcnt({min(15, nl - 2*(need+1) + min(issued, nl))})"); done = need
                acc = vr(A + 4 * tn, 4)
                a(f"v_mfma_f32_16x16x32_bf16 {acc}, {vr(K_+4*c,4)}, {vr(U_+4*m,4)}, {acc}")
                if n >= st0 and issued < len(L2): a(L2[issued]); issued += 1
            while issued < len(L2): a(L2[issued]); issued += 1
        a(f"""
        s_add_u32 s{sIT}, s{sIT}, 1
        s_cmp_eq_u32 s{sIT}, 2
        s_cbranch_scc1 L_cvdone
        s_cmp_eq_u32 s{sPH}, 1
        s_cbranch_scc1 L_cv{H}
        s_waitcnt vmcnt(0)
        {k.poll_cmp(14)}
        s_mov_b64 s[{sC1}:{sC1+1}], vcc
        s_cmp_eq_u64 vcc, 0
        s_cbranch_scc0 L_late{H}
        {kl}
        s_branch L_cv{H}
        L_late{H}:
        {k.poll_ld(vPL, 14)}
        s_branch L_cv{H}
        """)
    a(f"""
    L_cvdone:
    s_cmp_eq_u32 s{sPH}, 1
    s_cbranch_scc1 L_ph1
    s_cmp_eq_u64 s[{sC1}:{sC1+1}], 0
    s_cbranch_scc1 L_havek
    """)
    vm.drain(); vm.q = ["poll"]
    k.poll(vm, vPL, 14, issued=True)
    a(kl + "L_havek:")
    st(8)
    a("s_waitcnt lgkmcnt(0)\ns_barrier\nL_ph1:")
    a(f"s_mul_i32 s{sT0}, s{sJB}, {SS}\nv_add_u32 v33, s{sT0}, v{vSG}")
    a(f"s_bitcmp1_b32 s{sWV}, 0\ns_cbranch_scc1 L_xodd")
    def exch(keep, send):
        for q in range(2): a(f"ds_write_b128 v{vXS}, {vr(send+4*q,4)} offset:{1024*q}")
        a(f"s_cmp_eq_u32 s{sPH}, 1\ns_cbranch_scc1 L_nok{keep}")
        a(f"""
        v_add_u32 v13, s{sFK}, v3
        v_add_u32 v14, {2*KS-8}, v13
        v_add_u32 v15, {3*KS-8}, v13
        s_waitcnt vmcnt(0)
        v_and_b32 v{PKR+10}, s{sMK}, v{PKR+11}
        v_readlane_b32 s{sT0}, v{PKR+6}, 0
        v_mov_b32_dpp v{PKR+10}, v{PKR+6} wave_shl:1 row_mask:0xf bank_mask:0xf
        v_mov_b32 v{PKR+4}, s{sT0}
        v_mov_b32_dpp v{PKR+4}, v{PKR} wave_shl:1 row_mask:0xf bank_mask:0xf
        """)
        for i in (1, 0):
            b = PKR + 6 * i
            for q in range(4): a(f"v_alignbit_b32 v{KF0+4*i+q}, v{b+q+1}, v{b+q}, 16")
            kwrite(13, 14, b, KF0 + 4 * i, 1024 * i, 128 * i)
        a(f"L_nok{keep}:\ns_waitcnt lgkmcnt(0)\ns_barrier")
        for q in range(2): a(f"ds_read_b128 {vr(send+4*q,4)}, v{vXR} offset:{1024*q}")
        for q in range(2):
            a(f"s_waitcnt lgkmcnt(1)")
            for i in range(4): a(f"v_add_f32 v{keep+4*q+i}, v{keep+4*q+i}, v{send+4*q+i}")
            a(f"v_cvt_pk_bf16_f32 v{34+2*q}, v{keep+4*q}, v{keep+4*q+1}")
            a(f"v_cvt_pk_bf16_f32 v{35+2*q}, v{keep+4*q+2}, v{keep+4*q+3}")
            a(f"ds_write2_b32 v33, v{34+2*q}, v{35+2*q} offset0:{128*q} offset1:{128*q+2}")
    exch(A, A + 8)
    a("s_branch L_xdone\nL_xodd:")
    exch(A + 8, A)
    a(f"""
    L_xdone:
    s_cmp_eq_u32 s{sPH}, 1
    s_cbranch_scc1 L_cvend
    s_mov_b32 s{sPH}, 1
    s_xor_b32 s{sJB}, s{sJB}, 2
    s_mul_i32 s{sKB}, s{sJB}, {UB}
    """)
    st(9)
    a(f"""
    v_mov_b32 v{vKA}, v{vKL}
    v_add_u32 v{vUA}, s{sKB}, v{vUL}
    v_add_u32 v{vZ}, s{sKB}, v32
    v_max_i32 v{vU0}, v{vZ}, v{vUA}
    s_mov_b32 s{sIT}, 0
    s_cmp_eq_u32 s{sHH}, 1
    s_cbranch_scc1 L_cv1pre
    s_branch L_cv0pre
    L_cvend:
    v_bfe_u32 v10, v2, 2, 2
    v_mul_u32_u24 v10, {SS}, v10
    v_lshrrev_b32 v8, 4, v2
    v_lshl_add_u32 v10, v8, 5, v10
    v_and_b32 v8, 3, v2
    v_lshl_add_u32 v10, v8, 3, v10
    s_lshl_b32 s{sT0}, s{sWV}, 9
    s_add_u32 s{sT0}, s{sT0}, {STG}
    v_add_u32 v10, s{sT0}, v10
    v_mul_u32_u24 v11, 1792, v2
    s_xor_b32 s{sT2}, s{sHH}, 1
    s_lshl_b32 s{sT2}, s{sT2}, 2
    s_add_u32 s{sT2}, s{sT2}, s{sWV}
    s_mul_i32 s{sT2}, s{sT2}, {256*1792}
    s_lshl_b32 s{sT3}, s{sCG}, 3
    s_add_u32 s{sT2}, s{sT2}, s{sT3}
    s_waitcnt lgkmcnt(0)
    s_barrier
    """)
    st(10)
    for it in range(4): a(f"ds_read_b64_tr_b16 {vr(KF0+2*it,2)}, v10 offset:{128*it}")
    for it in range(4):
        a(f"s_waitcnt lgkmcnt({3-it})")
        a(f"buffer_store_dwordx2 {vr(KF0+2*it,2)}, v11, s[{SO}:{SO+3}], s{sT2} offen")
        if it < 3: a(f"s_add_u32 s{sT2}, s{sT2}, {64*1792}")
    a("L_send:")
    st.end(0)
    a("s_endpgm")
    a(f"""
    L_aux:
    s_cmp_ge_u32 s{sIDX}, 5
    s_cbranch_scc1 L_end
    s_cmp_lg_u32 s{sIDX}, 0
    s_cbranch_scc1 L_zkv
    s_cmp_lg_u32 s{sWV}, 0
    s_cbranch_scc1 L_end
    s_memrealtime s[{sN}:{sN+1}]
    s_waitcnt lgkmcnt(0)
    s_or_b32 s{sN}, s{sN}, 1
    v_mov_b32 v8, s{sN}
    v_mov_b32 v9, s{sN+1}
    s_mov_b64 exec, 1
    global_store_dwordx2 v4, v[8:9], s[42:43] {SC}
    s_endpgm
    L_zkv:
    v_mov_b32 v8, 0
    v_mov_b32 v9, 0
    v_mov_b32 v10, 0
    v_mov_b32 v11, 0
    v_lshlrev_b32 v5, 4, v0
    s_lshl_b32 s{sT0}, s{sIDX}, 7
    s_add_u32 s{sT0}, s{sT0}, {F_Z - 128}
    s_lshl_b32 s{sT1}, s{sIDX}, 14
    s_add_u32 s{sT1}, s{sT1}, {WS_KVA - 16384}
    s_waitcnt lgkmcnt(0)
    """)
    srd(a, SWS, 44, 45, WS_SIZE)
    for i in range(4):
        a(f"buffer_store_dwordx4 v[8:11], v5, {WSR}, s{sT1} offen {SC}")
        if i < 3: a(f"s_add_u32 s{sT1}, s{sT1}, 4096")
    vm = Cnt(a, "vmcnt")
    k.init_issue(vm); k.init_check(vm)
    a(f"s_barrier\ns_cmp_lg_u32 s{sWV}, 0\ns_cbranch_scc1 L_send")
    k.flag(vm, sT0)
    a("s_branch L_send")
```

```python
import build, sys, stamp
if "--stamp" in sys.argv:
    stamp.ENABLED = True; sys.argv.remove("--stamp")
if '--dbg' in sys.argv:
    stamp.ENABLED = True; stamp.DBG = True; sys.argv.remove('--dbg')
if '--dbg2' in sys.argv:
    stamp.ENABLED = True; stamp.DBG = 2; sys.argv.remove('--dbg2')
import v6 as v2
hdr = open("cdna_kernels/" + build.NAME + ".s.ref").read().split("; Override launch geometry")[0]
name = build.NAME + "_kernel"
body, kd = build.kernel(name, v2.gen())
s = hdr + f"; @launch grid=(512,1,1) block=(256,1,1) lds={v2.LDS}\n" + '.amdgcn_target "amdgcn-amd-amdhsa--gfx950"\n.text\n' + body + '.section .rodata,"a"\n.p2align 6\n' + kd
out = sys.argv[1] if len(sys.argv) > 1 else "cdna_kernels/" + build.NAME + ".s"
open(out, "w").write(s)
```

```python
import struct, os
from asmlib import *
from stamp import Stamper

WS_PQ  = 0x000000
WS_KVA = 0x200000
WS_FLG = 0x210000
WS_KF  = 0x300000
WS_UT  = 0x500000
WS_SIZE = 0x700000
F_UT, F_KF, F_Q, F_KV, F_Z = [WS_FLG + 128 * x for x in (0, 896, 1792, 2304, 2432)]
LDS = 81920
LOG2E = 0x3fb8aa3b
INV2PI = 0x3e22f983
def f2u(x): return hex(struct.unpack("<I", struct.pack("<f", x))[0])
EPS = f2u(1e-6)
SC = "sc1"

def cmul(a, d, x, y):
    assert d != x and d != y
    if os.environ.get('PK', '0') == '0':
        a(f"v_mul_f32 v{d}, v{x}, v{y}\nv_mul_f32 v{d+1}, v{x}, v{y+1}\nv_fma_f32 v{d}, -v{x+1}, v{y+1}, v{d}\nv_fmac_f32 v{d+1}, v{x+1}, v{y}")
        return
    a(f"v_pk_mul_f32 {vr(d,2)}, {vr(x,2)}, {vr(y,2)} op_sel:[0,0] op_sel_hi:[0,1]")
    a(f"v_pk_fma_f32 {vr(d,2)}, {vr(x,2)}, {vr(y,2)}, {vr(d,2)} op_sel:[1,1,0] op_sel_hi:[1,0,1] neg_lo:[1,0,0]")
def srd(a, S, lo, hi, n):
    a(f"s_mov_b32 s{S}, s{lo}\ns_mov_b32 s{S+1}, s{hi}\ns_mov_b32 s{S+2}, {n}\ns_mov_b32 s{S+3}, 0x20000")
def weave(main, fill, start=0):
    n, m, j = len(main), len(fill), 0
    for i, f in enumerate(main):
        f()
        tgt = 0 if i < start else min(m, ((i - start + 1) * m + (n - start) - 1) // (n - start))
        while j < tgt: fill[j](); j += 1
    while j < m: fill[j](); j += 1

SWS, SX, SW, SO = 48, 52, 56, 60
sC1 = 64
sN = 46
NV = 190
sWV, sT0, sT1, sT2, sT3, sT4, sA, sB, sC, sD, sE, sF, sG, sH, sI, sJ = range(66, 82)
WSR = f"s[{SWS}:{SWS+3}]"

class K:
    def __init__(self):
        self.a = Asm(); self.nl = 0
    def lab(self, p="L"):
        self.nl += 1; return f"{p}_{self.nl}"
    def _spin(self, vm, tag, cmp, ld, post=""):
        a = self.a; L, Lok = self.lab("Lp"), self.lab("Lpo")
        vm.wait(tag)
        a(f"""{L}:
        {cmp}
        s_cmp_eq_u64 vcc, 0
        s_cbranch_scc1 {Lok}
        s_sub_u32 s15, s15, 1
        s_cbranch_scc1 L_end
        s_mov_b64 exec, vcc
        s_sleep {os.environ.get('SLP', 2)}
        {ld}
        s_waitcnt vmcnt(0)
        s_branch {L}
        {Lok}:
        s_mov_b64 exec, -1
        {post}""")
    def init_issue(self, vm, t=None): vm.op(f"global_load_dwordx2 {vr(NV,2)}, v4, s[42:43] {SC}", "init")
    def init_check(self, vm, t=None):
        self._spin(vm, "init", f"v_cmp_eq_u32 vcc, 0, v{NV}", f"global_load_dwordx2 {vr(NV,2)}, v4, s[42:43] {SC}",
                   f"v_readfirstlane_b32 s{sN}, v{NV}\nv_readfirstlane_b32 s{sN+1}, v{NV+1}")
    def poll_ld(self, vaddr, t): return f"buffer_load_dwordx2 {vr(t,2)}, v{vaddr}, {WSR}, 0 offen {SC}"
    def poll_cmp(self, t): return f"v_cmp_ne_u64 vcc, s[{sN}:{sN+1}], {vr(t,2)}"
    def poll_issue(self, vm, vaddr, t): vm.op(self.poll_ld(vaddr, t), "poll")
    def poll(self, vm, vaddr, t, issued=False, tag="poll"):
        if not issued: self.poll_issue(vm, vaddr, t)
        self._spin(vm, tag, self.poll_cmp(t), self.poll_ld(vaddr, t))
    def flag(self, vm, soff, vone=None):
        self.a("s_mov_b64 exec, 1")
        vm.op(f"buffer_store_dwordx2 {vr(NV,2)}, off, {WSR}, s{soff} {SC}", "flag")
        self.a("s_mov_b64 exec, -1")

def gen():
    k = K(); a = k.a
    st = Stamper(a, 0, 44, sWV)
    a("s_cmp_ge_u32 s2, 512\ns_cbranch_scc1 L_end")
    st.start()
    a(f"""
    s_load_dwordx16 s[16:31], s[0:1], 0
    s_load_dwordx8 s[32:39], s[0:1], 64
    s_load_dwordx4 s[40:43], s[0:1], 96
    s_load_dwordx2 s[44:45], s[0:1], 112
    v_lshrrev_b32 v1, 6, v0
    v_and_b32 v2, 63, v0
    v_readfirstlane_b32 s{sWV}, v1
    v_lshlrev_b32 v3, 4, v2
    v_mov_b32 v4, 64
    s_mov_b32 s15, 40000
    s_cmp_lt_u32 s2, 256
    s_cbranch_scc1 L_S
    s_sub_u32 s2, s2, 256
    """)
    gen_G(k, st)
    gen_S(k, st)
    a("L_end:\ns_endpgm")
    return a

def gen_G(k, st):
    a = k.a
    if os.environ.get('SKIP_G'): a('s_endpgm')
    sRB, sP, sKX, sFL, sXO, sWO, sXM, sWM, sTY, sAT = sA, sB, sC, sD, sE, sF, sG, sH, sI, sJ
    vXD, vWD, vXA, vWA = 8, 12, 16, 20
    vWO, vFQ, vFK, vWS = 21, 22, 23, 24
    vFT, vEX, vFZ = 26, 5, 6
    vAT = 28
    vT = 36
    GA = 64; XF, WF = 128, 144
    a(f"""
    s_setprio {os.environ.get('GPRIO', 1)}
    s_and_b32 s{sT0}, s2, 7
    s_lshr_b32 s{sT1}, s2, 3
    s_lshr_b32 s{sTY}, s2, 7
    s_lshr_b32 s{sRB}, s{sT0}, 1
    s_lshl_b32 s{sRB}, s{sRB}, 2
    s_bfe_u32 s{sT2}, s{sT1}, 0x20002
    s_add_u32 s{sRB}, s{sRB}, s{sT2}
    s_and_b32 s{sP}, s{sT0}, 1
    s_lshl_b32 s{sP}, s{sP}, 2
    s_and_b32 s{sT3}, s{sT1}, 3
    s_add_u32 s{sP}, s{sP}, s{sT3}
    s_lshl_b32 s{sKX}, s{sT3}, 1
    s_add_u32 s{sKX}, s{sKX}, s{sTY}
    s_mul_i32 s{sT2}, s{sT2}, 3
    s_add_u32 s{sKX}, s{sKX}, s{sT2}
    s_cmp_ge_u32 s{sKX}, 14
    s_cselect_b32 s{sT2}, 14, 0
    s_sub_u32 s{sKX}, s{sKX}, s{sT2}
    s_cmp_ge_u32 s{sKX}, 7
    s_cselect_b32 s{sT2}, 7, 0
    s_sub_u32 s{sKX}, s{sKX}, s{sT2}
    s_lshl_b32 s{sXO}, s{sKX}, 7
    s_mul_i32 s{sWO}, s{sKX}, {64*2688}
    v_lshrrev_b32 v{vT+1}, 3, v2
    v_and_b32 v{vT+2}, 7, v2
    v_lshrrev_b32 v{vT+3}, 4, v2
    v_xor_b32 v{vT+6}, v{vT+2}, v{vT+3}
    v_lshlrev_b32 v{vT+6}, 4, v{vT+6}
    v_mul_u32_u24 v{vT+7}, 896, v{vT+1}
    s_lshl_b32 s{sT0}, s{sRB}, 2
    s_add_u32 s{sT0}, s{sT0}, s{sWV}
    s_mul_i32 s{sT0}, s{sT0}, {32*896}
    v_add3_u32 v{vXD}, v{vT+6}, v{vT+7}, s{sT0}
    v_xor_b32 v{vT+6}, 64, v{vT+6}
    v_add3_u32 v{vXD+1}, v{vT+6}, v{vT+7}, s{sT0}
    v_add_u32 v{vXD+1}, {7168-1024}, v{vXD+1}
    v_add_u32 v{vXD+2}, {2*(7168-1024)}, v{vXD}
    v_add_u32 v{vXD+3}, {2*(7168-1024)}, v{vXD+1}
    v_and_b32 v{vT+6}, 1, v{vT+3}
    v_lshlrev_b32 v{vT+6}, 2, v{vT+6}
    v_xor_b32 v{vT+8}, v{vT+6}, v{vT+2}
    v_min_u32 v{vT+6}, 6, v{vT+8}
    v_lshlrev_b32 v{vT+6}, 4, v{vT+6}
    v_mul_u32_u24 v{vT+9}, 2688, v{vT+1}
    s_lshr_b32 s{sT0}, s{sWV}, 1
    s_add_u32 s{sT0}, s{sT0}, 1
    s_mul_i32 s{sT0}, s{sT0}, 896
    s_and_b32 s{sT1}, s{sWV}, 1
    s_mul_i32 s{sT1}, s{sT1}, {32*2688}
    s_add_u32 s{sT0}, s{sT0}, s{sT1}
    s_mul_i32 s{sT1}, s{sWV}, {16*2688}
    s_lshl_b32 s{sXM}, s{sWV}, 12
    s_lshl_b32 s{sT2}, s{sWV}, 11
    s_cmp_eq_u32 s{sTY}, 0
    s_cselect_b32 s{sT0}, s{sT1}, s{sT0}
    s_cselect_b32 s{sWM}, s{sT2}, s{sXM}
    s_add_u32 s{sWM}, s{sWM}, 49152
    s_mul_i32 s{sT1}, s{sP}, 112
    s_add_u32 s{sT0}, s{sT0}, s{sT1}
    v_add3_u32 v{vWD}, v{vT+6}, v{vT+9}, s{sT0}
    v_add_u32 v{vWD+1}, {8*2688-1024}, v{vWD}
    v_add_u32 v{vWD+2}, {2*(8*2688-1024)}, v{vWD}
    v_add_u32 v{vWD+3}, {3*(8*2688-1024)}, v{vWD}
    s_mov_b32 s{SX+2}, {2048*896}
    s_mov_b32 s{SX+3}, 0x20000
    s_mov_b32 s{SW+2}, {448*2688}
    s_mov_b32 s{SW+3}, 0x20000
    s_cmp_eq_u32 s{sTY}, 0
    s_waitcnt lgkmcnt(0)
    s_mov_b32 s{SX}, s34
    s_mov_b32 s{SX+1}, s35
    s_mov_b32 s{SW}, s36
    s_mov_b32 s{SW+1}, s37
    """)
    st(0)
    a("s_cbranch_scc1 L_GQ")
    def setup(kv):
        a(f"""
        v_and_b32 v{vT+6}, 31, v2
        v_lshrrev_b32 v{vT+4}, 5, v2
        v_bfe_u32 v{vT+5}, v2, 1, 3
        v_xor_b32 v{vT+5}, v{vT+5}, v{vT+4}
        v_lshlrev_b32 v{vT+5}, 4, v{vT+5}
        v_lshl_add_u32 v{vT+5}, v{vT+6}, 7, v{vT+5}
        s_lshr_b32 s{sT0}, s{sWV}, 1
        s_lshl_b32 s{sT0}, s{sT0}, 13
        v_add_u32 v{vXA}, s{sT0}, v{vT+5}
        v_xor_b32 v{vXA+1}, 32, v{vXA}
        v_xor_b32 v{vXA+2}, 64, v{vXA}
        v_xor_b32 v{vXA+3}, 96, v{vXA}
        v_bfe_u32 v{vT+5}, v2, 2, 2
        v_lshl_add_u32 v{vT+5}, v{vT+4}, 3, v{vT+5}
        v_lshlrev_b32 v{vT+5}, 7, v{vT+5}
        v_and_b32 v{vT+9}, 3, v2
        v_lshlrev_b32 v{vT+10}, 3, v{vT+9}
        v_bfe_u32 v{vT+11}, v2, 4, 1
        v_lshl_add_u32 v{vT+10}, v{vT+11}, 5, v{vT+10}
        s_and_b32 s{sT0}, s{sWV}, 1
        s_mul_i32 s{sT0}, s{sT0}, 56
        v_add_u32 v{vT+10}, s{sT0}, v{vT+10}
        v_bfe_u32 v{vT+11}, v2, 3, 1
        v_lshlrev_b32 v{vT+11}, 6, v{vT+11}
        v_xor_b32 v{vT+10}, v{vT+10}, v{vT+11}
        v_add_u32 v{vT+5}, v{vT+5}, v{vT+10}
        v_add_u32 v{vWA}, 49152, v{vT+5}
        s_and_b32 s{sT0}, s2, 31
        s_lshl_b32 s{sT0}, s{sT0}, 4
        s_lshl_b32 s{sT1}, s{sWV}, 2
        s_add_u32 s{sT0}, s{sT0}, s{sT1}
        s_lshl_b32 s{sT0}, s{sT0}, 7
        s_add_u32 s{sT0}, s{sT0}, {F_Q}
        v_lshlrev_b32 v{vT+9}, 7, v{vT+9}
        v_add_u32 v{vFQ}, s{sT0}, v{vT+9}
        s_lshl_b32 s{sT0}, s{sWV}, 12
        s_add_u32 s{sT0}, s{sT0}, {F_KV}
        v_lshlrev_b32 v{vFK}, 7, v{vT+6}
        v_add_u32 v{vFK}, s{sT0}, v{vFK}
        v_lshlrev_b32 v{vT+8}, 4, v{vT+8}
        s_mul_i32 s{sT0}, s{sWV}, {112*896}
        s_lshr_b32 s{sT1}, s2, 5
        s_lshl_b32 s{sT1}, s{sT1}, 7
        s_add_u32 s{sT0}, s{sT0}, s{sT1}
        v_add3_u32 v{vWO}, v{vT+8}, v{vT+7}, s{sT0}
        v_add_u32 v{vWS}, s{sXM}, v3
        v_add_u32 v{vWS+1}, s{sWM}, v3
        s_mov_b32 s{sC1}, {LOG2E}
        s_mov_b32 s{sC1+1}, {LOG2E}
        """)
        srd(a, SWS, 44, 45, WS_SIZE)
        srd(a, SO, 40, 41, 2048 * 1792)
        if kv:
            a(f"""
            s_mul_i32 s{sT0}, s{sWV}, 20480
            s_add_u32 s{sT0}, s{sT0}, 16384
            v_add_u32 v{vEX}, s{sT0}, v3
            s_and_b32 s{sT0}, s{sWV}, 1
            s_lshr_b32 s{sT1}, s{sWV}, 1
            s_lshl_b32 s{sT1}, s{sT1}, 11
            s_mul_i32 s{sT2}, s{sT0}, 20480
            s_add_u32 s{sT2}, s{sT2}, s{sT1}
            s_add_u32 s{sT2}, s{sT2}, 16384
            s_and_b32 s{sT3}, s{sRB}, 7
            s_lshl_b32 s{sT3}, s{sT3}, 8
            s_add_u32 s{sT3}, s{sT3}, s{sT2}
            v_lshlrev_b32 v{vT+4}, 2, v2
            v_add_u32 v{vAT}, s{sT3}, v{vT+4}
            s_lshl_b32 s{sT0}, s{sT0}, 12
            s_add_u32 s{sT0}, s{sT0}, s{sT1}
            s_lshl_b32 s{sAT}, s{sP}, 13
            s_add_u32 s{sAT}, s{sAT}, s{sT0}
            s_add_u32 s{sAT}, s{sAT}, {WS_KVA}
            s_sub_u32 s{sAT}, s{sAT}, s{sT2}
            s_lshl_b32 s{sFL}, s{sP}, 4
            s_add_u32 s{sFL}, s{sFL}, s{sRB}
            s_lshl_b32 s{sFL}, s{sFL}, 7
            s_add_u32 s{sFL}, s{sFL}, {F_KV}
            """)
            for i in range(1, 8): a(f"v_xor_b32 v{vAT+i}, {i << 8}, v{vAT}")
            a(f"v_and_b32 v{vFZ}, 3, v2\nv_lshlrev_b32 v{vFZ}, 7, v{vFZ}\nv_add_u32 v{vFZ}, {F_Z}, v{vFZ}")
        else:
            a(f"""
            s_lshl_b32 s{sT3}, s{sRB}, 1
            s_lshr_b32 s{sT1}, s{sWV}, 1
            s_add_u32 s{sT3}, s{sT3}, s{sT1}
            s_lshl_b32 s{sT3}, s{sT3}, 4
            s_lshl_b32 s{sT1}, s{sP}, 1
            s_add_u32 s{sT1}, s{sT1}, s{sT3}
            s_and_b32 s{sT2}, s{sWV}, 1
            s_add_u32 s{sT1}, s{sT1}, s{sT2}
            s_lshl_b32 s{sFL}, s{sT1}, 7
            s_add_u32 s{sFL}, s{sFL}, {F_Q}
            s_add_u32 s{sT1}, s{sT1}, s{sT3}
            s_lshl_b32 s{sAT}, s{sT1}, 11
            s_add_u32 s{sKX}, s{sAT}, 32768
            """)
        for i in range(32): a(f"v_mov_b32 v{GA+i}, {EPS}")
    def gemm(kv):
        vm, lg = Cnt(a, "vmcnt"), Cnt(a, "lgkmcnt")
        nt = 2 if kv else 1
        nws = 2 if kv else 4
        wsz = 16384 if kv else 8192
        stage = {}
        def ld(kind, c, regs=None):
            n = 4 if kind == "x" else 2 * nt
            vD, S, sO = (vXD, SX, sXO) if kind == "x" else (vWD, SW, sWO)
            step, end = (128, 896) if kind == "x" else (64 * 2688, 448 * 2688)
            if regs is not None: stage[(kind, c)] = regs
            T = []
            for j in range(n):
                def f(j=j):
                    if regs is None:
                        if j == 0: a(f"s_add_u32 m0, s{sXM if kind == 'x' else sWM}, {16384*(c%3) if kind == 'x' else wsz*(c%nws)}")
                        vm.op(f"buffer_load_dwordx4 v{vD+j}, s[{S}:{S+3}], s{sO} offen offset:{1024*j} {os.environ.get('NTG','')} lds", f"{kind}{c}")
                    else:
                        vm.op(f"buffer_load_dwordx4 {vr(regs[1]+4*j,4,regs[0])}, v{vD+j}, s[{S}:{S+3}], s{sO} offen offset:{1024*j} {os.environ.get('NTG','')}", f"{kind}{c}")
                    if j == n - 1: a(f"s_add_u32 s{sO}, s{sO}, {step}\ns_cmp_eq_u32 s{sO}, {end}\ns_cselect_b32 s{sO}, 0, s{sO}")
                T.append(f)
            return T
        def wr(kind, c):
            regs = stage[(kind, c)]
            n = 4 if kind == "x" else 2 * nt
            T = []
            for j in range(n):
                def f(j=j):
                    if j == 0: vm.wait(f"{kind}{c}")
                    off = (16384 * (c % 3) if kind == "x" else wsz * (c % nws)) + 1024 * j
                    lg.op(f"ds_write_b128 v{vWS + (0 if kind == 'x' else 1)}, {vr(regs[1]+4*j,4,regs[0])} offset:{off}", "wr")
                T.append(f)
            return T
        def F(c, ks):
            b = ks & 1
            for n in range(nt):
                for i in range(2):
                    lg.op(f"ds_read_b64_tr_b16 {vr(WF+8*b+4*n+2*i,2)}, v{vWA} offset:{wsz*(c%nws) + ks*2048 + i*512 + n*8192}", f"f{c}{ks}")
            for t in range(2):
                lg.op(f"ds_read_b128 {vr(XF+8*b+4*t,4)}, v{vXA+ks} offset:{16384*(c%3) + 4096*t}", f"f{c}{ks}")
        def M(c, ks, fill=()):
            b = ks & 1
            lg.wait(f"f{c}{ks}")
            T = []
            for n in range(nt):
                for t in range(2):
                    acc = vr(GA + 16 * (n * 2 + t), 16)
                    cin = "0" if (c == 0 and ks == 0 and n == 1) else acc
                    xf, wf = vr(XF + 8 * b + 4 * t, 4), vr(WF + 8 * b + 4 * n, 4)
                    T.append(lambda s=(f"v_mfma_f32_32x32x16_bf16 {acc}, {xf}, {wf}, {cin}" if kv else f"v_mfma_f32_32x32x16_bf16 {acc}, {wf}, {xf}, {cin}"): a(s))
            weave(T, list(fill))
        run = lambda T: [f() for f in T]
        if kv:
            for x in (("x", 0), ("w", 0), ("x", 1), ("w", 1)): run(ld(*x))
            R = [("a", 0), ("a", 16), ("a", 32)]
            lds_ = {0: [("w", 2, R[0]), ("x", 2), ("w", 3, R[1])], 1: [("x", 3), ("w", 4, R[2])], 2: [("x", 4), ("w", 5, R[0])],
                    3: [("x", 5), ("w", 6, R[1])], 4: [("x", 6)]}
            wrs = {c: [("w", c + 2)] for c in range(5)}
            setup(kv)
            vm.wait(["x0", "w0"]); a("s_barrier")
            st(1)
            F(0, 0); F(0, 1)
            pend = []
            for c in range(7):
                L = sum([ld(*l) for l in lds_.get(c, [])], [])
                if c == 3: L.append(lambda: k.init_issue(vm))
                if c == 5: L.append(lambda: (k.init_check(vm), vm.op(k.poll_ld(vFZ, vFT), "zp")))
                q = max(1, (len(L) + 2) // 3); w = max(1, (len(pend) + 2) // 3)
                M(c, 0, L[:q] + pend[:w]); F(c, 2)
                M(c, 1, L[q:2*q] + pend[w:2*w]); F(c, 3)
                M(c, 2, L[2*q:] + pend[2*w:])
                if c < 6:
                    dma = [f"{kd}{c+1}" for kd in "xw" if (kd, c + 1) not in stage]
                    if dma and vm.n_after(dma) is not None: vm.wait(dma, "lgkmcnt(0)")
                    else: a("s_waitcnt lgkmcnt(0)")
                    lg.drain()
                    a("s_barrier")
                    F(c + 1, 0)
                    pend = sum([wr(*x) for x in wrs.get(c, [])], [])
                    M(c, 3, pend[:1]); pend = pend[1:]
                    F(c + 1, 1)
                else:
                    lg.wait(f"f{c}3")
                    a("s_barrier")
                    M(c, 3)
            return vm
        RX = [("a", 0), ("a", 16), ("a", 32), ("a", 48)]
        RW = [("v", 160), ("v", 168), ("v", 176), ("v", 96)]
        for c in range(2): run(ld("x", c, RX[c])); run(ld("w", c, RW[c]))
        setup(kv)
        run(wr("x", 0)); run(wr("w", 0))
        a("s_waitcnt lgkmcnt(0)\ns_barrier"); lg.drain()
        st(1)
        F(0, 0); F(0, 1)
        for c in range(7):
            cs = [2, 3] if c == 0 else ([c + 3] if c + 3 < 7 else [])
            L = sum([ld("x", x, RX[x % 4]) + ld("w", x, RW[x % 4]) for x in cs], [])
            if c == 4: L.append(lambda: k.init_issue(vm, vFT))
            P = (wr("x", c + 1) + wr("w", c + 1)) if c + 1 < 7 else []
            q = (len(L) + 1) // 2
            M(c, 0, L[:q]); F(c, 2)
            M(c, 1, L[q:] + P[:2]); F(c, 3)
            M(c, 2, P[2:])
            if c < 6:
                a("s_waitcnt lgkmcnt(0)\ns_barrier"); lg.drain()
                F(c + 1, 0)
                M(c, 3)
                F(c + 1, 1)
            else:
                lg.wait(f"f{c}3")
                M(c, 3)
        return vm
    def phi_t(base, n, dst, pk=True):
        T = []
        for i in range(0, n, 2):
            t = vT + 2 * ((i // 2) & 3)
            x = base + i
            if not pk:
                T.append(lambda t=t, x=x, i=i: a(f"""
                v_mul_f32 v{t}, s{sC1}, v{x}
                v_mul_f32 v{t+1}, s{sC1}, v{x+1}
                v_exp_f32_e64 v{t}, v{t} clamp
                v_exp_f32_e64 v{t+1}, v{t+1} clamp
                v_max_f32 v{x}, {EPS}, v{x}
                v_max_f32 v{x+1}, {EPS}, v{x+1}
                v_add_f32 v{x}, v{x}, v{t}
                v_add_f32 v{x+1}, v{x+1}, v{t+1}
                v_cvt_pk_bf16_f32 v{dst + i//2}, v{x}, v{x+1}
                """))
                continue
            T.append(lambda t=t, x=x, i=i: a(f"""
            v_pk_mul_f32 {vr(t,2)}, {vr(x,2)}, s[{sC1}:{sC1+1}]
            v_max_f32 v{x}, {EPS}, v{x}
            v_exp_f32_e64 v{t}, v{t} clamp
            v_exp_f32_e64 v{t+1}, v{t+1} clamp
            v_max_f32 v{x+1}, {EPS}, v{x+1}
            v_pk_add_f32 {vr(x,2)}, {vr(x,2)}, {vr(t,2)}
            v_cvt_pk_bf16_f32 v{dst + i//2}, v{x}, v{x+1}
            """))
        return T
    def wo_dma(vm):
        T = []
        for i in range(15):
            def f(i=i):
                if i == 0:
                    srd(a, SW, 38, 39, 448 * 896)
                    a(f"s_mul_i32 s{sT1}, s{sWV}, 20480\ns_mov_b32 s{sT0}, 0")
                a(f"s_add_u32 m0, s{sT1}, {1024*i}")
                if i: a(f"s_add_u32 s{sT0}, s{sT0}, 7168")
                vm.op(f"buffer_load_dwordx4 v{vWO}, s[{SW}:{SW+3}], s{sT0} offen lds", "wo")
            T.append(f)
        return T
    PK, PV, KVD = 128, 144, 48
    vm = gemm(True)
    st(3)
    a(f"s_setprio {os.environ.get('GPRIO1', 3)}")
    for f in phi_t(GA, 16, PK, os.environ.get('KVPK')): f()
    for t in range(2):
        for i in range(8):
            a(f"v_cvt_pk_bf16_f32 v{PV+8*t+i}, v{GA+32+16*t+2*i}, v{GA+32+16*t+2*i+1}")
    a(f"s_mov_b32 exec_lo, {1<<28}\ns_mov_b32 exec_hi, {1<<28}")
    for i in range(16): a(f"v_mov_b32 v{PV+i}, 0x3f803f80")
    a("s_mov_b64 exec, -1")
    for u in range(2):
        a(f"v_mfma_f32_32x32x16_bf16 {vr(KVD,16)}, {vr(PK+4*u,4)}, {vr(PV+4*u,4)}, {'0' if u == 0 else vr(KVD,16)}")
    for f in phi_t(GA + 16, 16, PK + 8, os.environ.get('KVPK')): f()
    for u in range(2):
        a(f"v_mfma_f32_32x32x16_bf16 {vr(KVD,16)}, {vr(PK+8+4*u,4)}, {vr(PV+8+4*u,4)}, {vr(KVD,16)}")
    st(4)
    k.poll(vm, vFZ, vFT, issued=True, tag="zp")
    for q in range(3):
        a(f"ds_write_b128 v{vEX}, {vr(KVD+4*q,4)} offset:{1024*q}")
    a("s_mov_b32 exec_lo, 0")
    for i in range(12, 16): a(f"v_mov_b32 v{KVD+i}, 0")
    a("s_mov_b64 exec, -1")
    a(f"ds_write_b128 v{vEX}, {vr(KVD+12,4)} offset:3072")
    a("s_waitcnt lgkmcnt(0)\ns_barrier")
    for i in range(8):
        a(f"ds_read2st64_b32 {vr(GA+2*i,2)}, v{vAT+i} offset0:0 offset1:160")
    for i in range(8):
        a(f"s_waitcnt lgkmcnt({7-i})")
        a(f"v_add_f32 v{GA+2*i}, v{GA+2*i}, v{GA+2*i+1}")
        a(f"buffer_atomic_add_f32 v{GA+2*i}, v{vAT+i}, {WSR}, s{sAT} offen sc1")
    st(5)
    vm.drain()
    k.poll_issue(vm, vFQ, vFT)
    W = wo_dma(vm)
    a("s_cmp_ge_u32 s2, 224\ns_cbranch_scc1 L_kvw")
    for f in W[:6]: f()
    a("s_waitcnt vmcnt(7)\nL_kvw:\ns_cbranch_scc0 L_kvw2\ns_waitcnt vmcnt(1)\nL_kvw2:")
    a(f"s_barrier\ns_cmp_lg_u32 s{sWV}, 0\ns_cbranch_scc1 L_kvf")
    k.flag(vm, sFL, 1)
    a("L_kvf:")
    st(6)
    a("s_cmp_ge_u32 s2, 224\ns_cbranch_scc1 L_kvend")
    for f in W[6:]: f()
    a("s_waitcnt vmcnt(9)\ns_branch L_fin3")
    a("L_GQ:")
    vm = gemm(False)
    st(3)
    a(f"s_setprio {os.environ.get('GPRIO1', 3)}")
    for t in range(2):
        for f in phi_t(GA + 16 * t, 16, PK + 8 * t, False): f()
        for ks in range(2):
            vm.op(f"buffer_store_dwordx4 {vr(PK+8*t+4*ks,4)}, v3, {WSR}, s{sAT if t == 0 else sKX} offen offset:{WS_PQ + 1024*ks} {SC}", "pqs")
    st(4)
    k.init_check(vm, vFT)
    st(5)
    vm.wait("pqs")
    k.flag(vm, sFL, 1)
    a("s_barrier")
    st(6)
    a(k.poll_ld(vFQ, vFT) + "\ns_waitcnt vmcnt(0)")
    A1, O, A2, KB, K23, WOFR = 16, 48, 64, 128, 144, 176
    vm = Cnt(a, "vmcnt"); lg = Cnt(a, "lgkmcnt")
    a("L_fin3:")
    a(f"s_setprio {os.environ.get('GPRIO2', 1)}")
    a(f"v_mov_b32 v12, v{vFK}")
    k.poll(vm, vFQ, vFT, issued=True)
    st(7)
    a(f"""
    s_and_b32 s{sT0}, s2, 31
    s_lshl_b32 s{sT0}, s{sT0}, 16
    s_lshl_b32 s{sT1}, s{sWV}, 13
    s_add_u32 s{sT0}, s{sT0}, s{sT1}
    s_add_u32 s{sT1}, s{sT0}, 32768
    s_add_u32 s{sT2}, s{sT0}, 4096
    s_add_u32 s{sT3}, s{sT1}, 4096
    """)
    for hl in range(4):
        for t in range(2):
            for ks in range(2):
                so = [[sT0, sT1], [sT2, sT3]][hl >> 1][t]
                vm.op(f"buffer_load_dwordx4 {ar(16*hl+8*t+4*ks,4)}, v3, {WSR}, s{so} offen offset:{WS_PQ + 2048*(hl&1) + 1024*ks} {SC}", "pq")
    a(f"s_cmp_lg_u32 s{sTY}, 0\ns_cbranch_scc1 L_havewo")
    for f in wo_dma(Cnt(a, "vmcnt")): f()
    a("L_havewo:")
    k.poll_issue(vm, 12, 8)
    a(f"""
    s_lshl_b32 s{sT0}, s{sWV}, 14
    s_add_u32 s{sT0}, s{sT0}, {WS_KVA}
    s_mul_i32 s{sT1}, s{sWV}, 20480
    v_bfe_u32 v5, v2, 2, 2
    v_lshrrev_b32 v6, 5, v2
    v_lshl_add_u32 v5, v6, 2, v5
    v_lshlrev_b32 v5, 7, v5
    v_and_b32 v7, 1, v2
    v_lshl_add_u32 v5, v7, 5, v5
    v_bfe_u32 v7, v2, 4, 1
    v_lshl_add_u32 v5, v7, 4, v5
    v_bfe_u32 v7, v2, 1, 1
    v_lshl_add_u32 v5, v7, 3, v5
    v_bfe_u32 v7, v2, 3, 1
    v_lshl_add_u32 v5, v7, 6, v5
    v_xor_b32 v15, 64, v5
    v_add_u32 v5, s{sT1}, v5
    v_add_u32 v15, s{sT1}, v15
    s_mov_b32 s{sT2}, {EPS}
    s_mov_b32 s{sC1}, -1
    s_mov_b32 s{sC1+1}, 0
    v_and_b32 v13, 31, v2
    v_mul_u32_u24 v13, 272, v13
    v_lshl_add_u32 v13, v6, 6, v13
    v_add_u32 v13, s{sT1}, v13
    v_lshrrev_b32 v7, 3, v0
    v_and_b32 v14, 7, v0
    v_mul_u32_u24 v10, 272, v7
    v_lshl_add_u32 v10, v14, 5, v10
    v_mul_u32_u24 v11, 1792, v7
    v_lshl_add_u32 v11, v14, 4, v11
    s_and_b32 s{sT3}, s2, 31
    s_mul_i32 s{sT3}, s{sT3}, {64*1792}
    s_lshr_b32 s{sT4}, s2, 5
    s_lshl_b32 s{sT4}, s{sT4}, 7
    s_add_u32 s{sT3}, s{sT3}, s{sT4}
    s_add_u32 s{sT3}, s{sT3}, 896
    s_add_u32 s{sT4}, s{sT3}, {32*1792}
    v_mov_b32 v14, 0x7fff0000
    v_cndmask_b32 v14, v14, v3, s[{sC1}:{sC1+1}]
    """)
    def ldwo(hl):
        for ks in range(2):
            for ct in range(2):
                for i in range(2):
                    lg.op(f"ds_read_b64_tr_b16 {vr(WOFR+8*ks+4*ct+2*i,2)}, v{15 if ct else 5} offset:{128*(28*hl+16*ks+8*i)}", f"wo{hl}")
    k.poll(vm, 12, 8, issued=True)
    vm.drain()
    st(8)
    def kvsrc(hl): return A1 + 16 * hl if hl < 2 else K23 + 16 * (hl - 2)
    def kvb(hl): return KB + 8 * hl if hl < 2 else K23 + 16 * (hl - 2)
    for hl in range(4):
        for q in range(4):
            vm.op(f"buffer_load_dwordx4 {vr(kvsrc(hl)+4*q,4)}, v{14 if q == 3 else 3}, {WSR}, s{sT0} offen offset:{1024*q} {SC}", f"kv{hl}")
        if hl < 3: a(f"s_add_u32 s{sT0}, s{sT0}, 4096")
    ldwo(0)
    a(f"v_add_u32 v12, 40960, v10")
    def cvtkv(hl):
        T = []
        for i in range(8):
            def f(i=i):
                if i == 0: vm.wait(f"kv{hl}")
                a(f"v_cvt_pk_bf16_f32 v{kvb(hl)+i}, v{kvsrc(hl)+2*i}, v{kvsrc(hl)+2*i+1}")
            T.append(f)
        return T
    def s1(u):
        hl, t = u >> 1, u & 1
        A = vr(A1 + 16 * (u & 1), 16)
        return [lambda: a(f"v_mfma_f32_32x32x16_bf16 {A}, {vr(kvb(hl),4)}, {ar(16*hl+8*t,4)}, 0"),
                lambda: a(f"v_mfma_f32_32x32x16_bf16 {A}, {vr(kvb(hl)+4,4)}, {ar(16*hl+8*t+4,4)}, {A}")]
    DN = 6
    def scale(u):
        A = A1 + 16 * (u & 1); Ou = O + 8 * (u & 1)
        L = [f"v_mov_b32 v{DN}, v{A+12}", f"v_mov_b32 v{DN+2}, v{A+12}", f"v_permlane32_swap_b32 v{DN}, v{DN+2}",
             f"v_add_f32 v{DN+2}, s{sT2}, v{DN+2}", f"v_rcp_f32 v{DN+2}, v{DN+2}"]
        for i in range(8):
            L.append(f"v_mul_f32 v{A+2*i}, v{A+2*i}, v{DN+2}")
            L.append(f"v_mul_f32 v{A+2*i+1}, v{A+2*i+1}, v{DN+2}")
            L.append(f"v_cvt_pk_bf16_f32 v{Ou+i}, v{A+2*i}, v{A+2*i+1}")
        L += [f"v_cndmask_b32 v{Ou+6}, 0, v{Ou+6}, s[{sC1}:{sC1+1}]", f"v_cndmask_b32 v{Ou+7}, 0, v{Ou+7}, s[{sC1}:{sC1+1}]"]
        return [lambda s=s: a(s) for s in L]
    def s2(u):
        hl, t = u >> 1, u & 1
        Ou = O + 8 * (u & 1); T = []
        for ks in range(2):
            for ct in range(2):
                acc = vr(A2 + 32 * t + 16 * ct, 16)
                cin = "0" if (hl == 0 and ks == 0) else acc
                def f(s=f"v_mfma_f32_32x32x16_bf16 {acc}, {vr(WOFR+8*ks+4*ct,4)}, {vr(Ou+4*ks,4)}, {cin}", first=(ks == 0 and ct == 0), last=(ks == 1 and ct == 1)):
                    if first and t == 0: lg.wait(f"wo{hl}")
                    a(s)
                    if last and t == 1 and hl < 3: ldwo(hl + 1)
                T.append(f)
        return T
    run = lambda T: [f() for f in T]
    run(cvtkv(0)); run(cvtkv(1))
    run(s1(0)); run(s1(1)); run(scale(0))
    for u in range(8):
        main = s2(u)
        fill = scale(u + 1) if u + 1 < 8 else []
        if u + 2 < 8:
            if u + 2 in (4, 6): run(cvtkv((u + 2) >> 1))
            main = s1(u + 2) + main
        if u == 7:
            fill = [lambda ct=ct, i=i: a(f"ds_write_b128 v13, {vr(A2+16*ct+4*i,4)} offset:{128*ct + 16*i}") for ct in range(2) for i in range(4)]
            weave(main, fill, start=1)
        else:
            weave(main, fill)
    st(9)
    for ct in range(2):
        for i in range(4):
            a(f"ds_write_b128 v13, {vr(A2+32+16*ct+4*i,4)} offset:{32*272 + 128*ct + 16*i}")
    a("s_waitcnt lgkmcnt(0)\ns_barrier")
    st(10)
    R = 64
    for t in range(2):
        for w in range(4):
            for h in range(2):
                a(f"ds_read_b128 {vr(R+32*t+8*w+4*h,4)}, v{10 if w < 2 else 12} offset:{20480*(w&1) + 32*272*t + 16*h}")
    for t in range(2):
        b = R + 32 * t
        a(f"s_waitcnt lgkmcnt({8 if t == 0 else 0})")
        for i in range(8):
            a(f"v_add_f32 v{b+i}, v{b+i}, v{b+8+i}")
            a(f"v_add_f32 v{b+16+i}, v{b+16+i}, v{b+24+i}")
        for i in range(8):
            a(f"v_add_f32 v{b+i}, v{b+i}, v{b+16+i}")
        for i in range(4):
            a(f"v_cvt_pk_bf16_f32 v{b+8+i}, v{b+2*i}, v{b+2*i+1}")
        a(f"buffer_store_dwordx4 {vr(b+8,4)}, v11, s[{SO}:{SO+3}], s{sT3 if t == 0 else sT4} offen {os.environ.get('NTO','')}")
    a("L_kvend:")
    st.end(1)
    a("s_endpgm")

from v6s import gen_S
```

```python
import os
from asmlib import *
from v6 import *

ROWB = 272
WREG = 53 * ROWB
KS, KSL = 4160, 16640
UBASE, UB, U0, U1 = 33280, 8256, 16, 16 + 4096 + 32
TTAB, TSTR = 66304, 1536
USTG = 57664

def gen_S(k, st):
    a = k.a
    sJB, sIDX, sCG, sHH, sKB, sFU, sIT, sPH, sKG, sFK = sA, sB, sC, sD, sE, sF, sG, sH, sI, sJ
    vm = Cnt(a, "vmcnt")
    P0 = 8
    UG, UG2 = 24, 32
    vT = 40
    IN = 56
    KA, KB_ = 60, 61
    ACC = 64; FR = 96
    E1, E8, E256, E2, E4, Wc, X0, X1, G0, G1, Y0, Y1 = [112 + 2 * i for i in range(12)]
    t0, t1, t2, t3, pk = 136, 137, 138, 139, 140
    EA = 144; AD = 153
    vFU, vFP, vGS, vGR, vGO = 157, 158, 159, 62, 63
    UR = 160
    vPW, vRR, vZF, vZU, vCW, vC4, vUW = 176, 177, 178, 179, 180, 181, 185
    vKL, vUL, vZL, vKS = 188, 189, 59, 58
    a(f"""
    L_S:
    s_setprio 3
    s_and_b32 s{sJB}, s2, 7
    s_lshr_b32 s{sIDX}, s2, 3
    s_cmp_eq_u32 s{sJB}, 7
    s_cbranch_scc1 L_aux
    {'s_endpgm' if os.environ.get('SKIP_S') else ''}
    s_lshl_b32 s{sT0}, s{sJB}, 4
    s_and_b32 s{sCG}, s{sIDX}, 15
    s_add_u32 s{sCG}, s{sCG}, s{sT0}
    s_lshr_b32 s{sHH}, s{sIDX}, 4
    s_lshl_b32 s{sKG}, s{sCG}, 1
    s_add_u32 s{sKG}, s{sKG}, s{sHH}
    s_lshl_b32 s{sT1}, s{sKG}, 10
    v_lshlrev_b32 v5, 1, v0
    v_add_u32 v5, s{sT1}, v5
    s_lshl_b32 s{sT1}, s{sKG}, 2
    v_mov_b32 v6, s{sT1}
    s_lshl_b32 s{sT1}, s{sIDX}, 2
    s_add_u32 s{sT1}, s{sT1}, s{sWV}
    s_mul_i32 s{sT1}, s{sT1}, {16*896}
    s_lshl_b32 s{sT2}, s{sJB}, 7
    s_add_u32 s{sT1}, s{sT1}, s{sT2}
    v_lshlrev_b32 v7, 1, v2
    v_add_u32 v7, s{sT1}, v7
    s_waitcnt lgkmcnt(0)
    """)
    st(0)
    for c in range(2):
        vm.op(f"global_load_short_d16_hi v{P0+8*c+6}, v6, s[30:31] offset:{2*c}", f"p{c}")
        for i in range(6):
            vm.op(f"global_load_short_d16_hi v{P0+8*c+i}, v5, s[{18+2*i}:{19+2*i}] offset:{512*c} {os.environ.get('NTS','nt')}", f"p{c}")
        vm.op(f"global_load_short_d16_hi v{P0+8*c+7}, v6, s[32:33] offset:{2*c}", f"p{c}")
    k.init_issue(vm)
    UG, UG2 = 160, 80
    for i in range(16):
        if i and i % 4 == 0: a(f"v_add_u32 v7, {4*896}, v7")
        a(f"global_load_{'short_d16_hi' if i&1 else 'ushort'} v{(UG2 if i&1 else UG)+i//2}, v7, s[16:17] offset:{(i%4)*896} {os.environ.get('NTS','nt')}")
    a(f"s_setprio {os.environ.get('SPRIO', 2)}")
    srd(a, SWS, 44, 45, WS_SIZE)
    srd(a, SO, 40, 41, 2048 * 1792)
    a(f"""
    s_mul_i32 s{sKB}, s{sWV}, {WREG}
    v_and_b32 v{t0}, 31, v2
    v_lshrrev_b32 v{t1}, 5, v2
    v_lshlrev_b32 v{t1}, 4, v{t1}
    v_add_u32 v{t1}, s{sKB}, v{t1}
    v_min_u32 v{t2}, 20, v{t0}
    v_mul_u32_u24 v{t2}, {ROWB}, v{t2}
    v_add_u32 v{KA}, v{t2}, v{t1}
    v_mul_u32_u24 v{t2}, {ROWB}, v{t0}
    v_add_u32 v{KB_}, v{t2}, v{t1}
    s_mov_b32 m0, s{sKB}
    v_add_u32 v{vPW}, s{sKB}, v3
    s_lshl_b32 s{sT0}, s{sWV}, 10
    v_add_u32 v{vRR}, s{sT0}, v3
    v_mul_u32_u24 v{vGS}, 144, v2
    s_lshl_b32 s{sT0}, s{sWV}, 5
    s_add_u32 s{sT0}, s{sT0}, {USTG}
    v_add_u32 v{vGS}, s{sT0}, v{vGS}
    v_lshrrev_b32 v{t2}, 3, v2
    v_and_b32 v{t3}, 7, v2
    v_lshrrev_b32 v{vGO}, 3, v2
    v_and_b32 v{vZF}, 7, v2
    v_mul_u32_u24 v{vGR}, 144, v{vGO}
    v_lshl_add_u32 v{vGR}, v{vZF}, 4, v{vGR}
    s_mul_i32 s{sT0}, s{sWV}, {16*144}
    s_add_u32 s{sT0}, s{sT0}, {USTG}
    v_add_u32 v{vGR}, s{sT0}, v{vGR}
    v_lshlrev_b32 v{vGO}, 12, v{vGO}
    v_lshl_add_u32 v{vGO}, v{vZF}, 4, v{vGO}
    v_mul_u32_u24 v{vZF}, {KS}, v{t2}
    v_lshl_add_u32 v{vZF}, v{t3}, 3, v{vZF}
    v_add_u32 v{vZF}, 4088, v{vZF}
    v_and_b32 v{t3}, 23, v2
    v_cmp_eq_u32 vcc, 0, v{t3}
    v_add_u32 v{t3}, 56, v{vZF}
    v_bfe_u32 v{vZU}, v2, 1, 2
    v_mul_u32_u24 v{vZU}, {UB}, v{vZU}
    v_cndmask_b32 v{vZF}, v{vZF}, v{t3}, vcc
    v_and_b32 v{t3}, 1, v2
    v_mul_u32_u24 v{t3}, {U1-U0}, v{t3}
    v_add3_u32 v{vZU}, v{vZU}, v{t3}, s{sT0}
    s_add_u32 s{sT0}, s{sT0}, {-UBASE & 0xffffffff}
    v_subrev_u32 v{vZU}, s{sT0}, v{vZU}
    s_lshl_b32 s{sT0}, s{sJB}, 2
    s_add_u32 s{sT0}, s{sT0}, s{sWV}
    s_lshl_b32 s{sT1}, s{sT0}, 16
    s_lshl_b32 s{sT2}, s{sIDX}, 7
    s_add_u32 s{sT1}, s{sT1}, s{sT2}
    s_add_u32 s{sT1}, s{sT1}, {WS_UT}
    s_lshl_b32 s{sT0}, s{sT0}, 5
    s_add_u32 s{sT0}, s{sT0}, s{sIDX}
    s_lshl_b32 s{sT0}, s{sT0}, 7
    s_add_u32 s{sFU}, s{sT0}, {F_UT}
    s_lshr_b32 s{sT0}, s{sCG}, 2
    s_lshl_b32 s{sT0}, s{sT0}, 12
    s_add_u32 s{sT0}, s{sT0}, {F_UT}
    s_cmp_eq_u32 s{sHH}, 1
    s_cselect_b32 s{sT3}, 15, 31
    v_and_b32 v{vFU}, s{sT3}, v2
    v_lshlrev_b32 v{vFU}, 7, v{vFU}
    v_add_u32 v{vFU}, s{sT0}, v{vFU}
    s_xor_b32 s{sT0}, s{sKG}, 1
    s_lshl_b32 s{sT0}, s{sT0}, 9
    s_add_u32 s{sT0}, s{sT0}, {F_KF}
    v_and_b32 v{vFP}, 3, v2
    v_lshlrev_b32 v{vFP}, 7, v{vFP}
    v_add_u32 v{vFP}, s{sT0}, v{vFP}
    s_lshl_b32 s{sT0}, s{sKG}, 2
    s_add_u32 s{sT0}, s{sT0}, s{sWV}
    s_lshl_b32 s{sT0}, s{sT0}, 7
    s_add_u32 s{sFK}, s{sT0}, {F_KF}
    v_lshlrev_b32 v{vCW}, 4, v0
    s_cmp_eq_u32 s{sHH}, 0
    s_cselect_b32 s{sT3}, 1984, 0
    v_mov_b32 v{vKS}, 0x7fff0000
    v_cmp_le_u32 vcc, s{sT3}, v{vCW}
    v_cndmask_b32 v{vKS}, v{vKS}, v{vCW}, vcc
    v_add_u32 v{vC4}, {2*KS-8}, v{vCW}
    v_add_u32 v{vC4+1}, {3*KS-8}, v{vCW}
    v_add_u32 v{vC4+2}, {KSL+2*KS-8}, v{vCW}
    v_add_u32 v{vC4+3}, {KSL+3*KS-8}, v{vCW}
    s_mul_i32 s{sT0}, s{sWV}, {UB}
    s_add_u32 s{sT0}, s{sT0}, {UBASE}
    v_add_u32 v{vUW}, s{sT0}, v3
    """)
    a(f"""
    s_cmp_eq_u32 s{sWV}, 1
    s_cselect_b32 s{sT0}, 4, 8
    s_cselect_b32 s{sT3}, 2, 8
    s_cselect_b32 s{sT4}, 256, 0
    s_cselect_b32 s{sPH}, 384, 4
    s_cmp_eq_u32 s{sWV}, 2
    s_cselect_b32 s{sT0}, 1, s{sT0}
    s_cselect_b32 s{sT3}, 1, s{sT3}
    s_cselect_b32 s{sT4}, 512, s{sT4}
    s_cselect_b32 s{sPH}, 640, s{sPH}
    s_cselect_b32 s{sIT}, 32, 1
    v_mul_u32_u24 v{AD}, s{sT0}, v{t0}
    v_add_u32 v{AD}, s{sT4}, v{AD}
    v_mul_u32_u24 v{AD+1}, s{sT3}, v{t0}
    v_add_u32 v{AD+1}, s{sPH}, v{AD+1}
    v_cmp_gt_u32 vcc, 32, v2
    s_lshl_b32 s{sT0}, s{sIT}, 1
    s_cmp_eq_u32 s{sWV}, 0
    s_cselect_b32 s{sT3}, 2, 64
    v_mov_b32 v{t2}, s{sT3}
    v_mov_b32 v{t3}, s{sT0}
    v_cndmask_b32 v{AD}, v{AD+1}, v{AD}, vcc
    v_cndmask_b32 v{t3}, v{t2}, v{t3}, vcc
    v_add_u32 v{AD+1}, s{sIT}, v{AD}
    v_add_u32 v{AD+2}, v{AD}, v{t3}
    v_add_u32 v{AD+3}, s{sIT}, v{AD+2}
    v_mov_b32 v{t3}, {TTAB}
    """)
    for i in range(4): a(f"v_lshl_add_u32 v{AD+i}, v{AD+i}, 1, v{t3}")
    a(f"v_lshlrev_b32 v{t2}, 3, v0\nv_sub_u32 v{t2}, 2047, v{t2}")
    for e in range(9):
        a(f"v_subrev_u32 v{EA+e}, {e}, v{t2}")
        a(f"v_cvt_f32_i32 v{FR+e}, v{EA+e}")
    for e in range(0, 10, 2):
        a(f"v_cvt_pk_bf16_f32 v{FR+e}, v{FR+e}, v{FR+min(e+1,8)}")
        if e < 8: a(f"v_lshrrev_b32 v{FR+e+1}, 16, v{FR+e}")
        a(f"v_and_b32 v{FR+e}, 0xffff, v{FR+e}")
    for e in range(9):
        if e in (0, 8): a(f"v_cmp_gt_i32 vcc, 128, v{EA+e}")
        a(f"v_subrev_u32 v{FR+e}, 17024, v{FR+e}")
        a(f"v_cndmask_b32 v{EA+e}, v{FR+e}, v{EA+e}, vcc")
        a(f"v_lshl_add_u32 v{EA+e}, v{EA+e}, 1, v{t3}")
    a(f"""
    v_and_b32 v5, 3, v2
    v_sub_u32 v5, 3, v5
    v_mul_u32_u24 v{vKL}, {KS}, v5
    v_lshrrev_b32 v6, 4, v2
    v_lshl_add_u32 v{vKL}, v6, 4, v{vKL}
    v_bfe_u32 v7, v2, 2, 2
    v_lshlrev_b32 v7, 4, v7
    v_sub_u32 v{vKL}, v{vKL}, v7
    s_and_b32 s{sT0}, s{sWV}, 1
    s_lshl_b32 s{sT0}, s{sT0}, 8
    s_lshr_b32 s{sT3}, s{sWV}, 1
    s_mul_i32 s{sT3}, s{sT3}, {KSL}
    s_add_u32 s{sT3}, s{sT3}, {2*(2040-1792)}
    s_sub_u32 s{sT3}, s{sT3}, s{sT0}
    v_add_u32 v{vKL}, s{sT3}, v{vKL}
    v_and_b32 v5, 1, v2
    v_sub_u32 v5, 1, v5
    v_mul_u32_u24 v{vZL}, {U1-U0}, v5
    v_add_u32 v{vZL}, {UBASE}, v{vZL}
    v_bfe_u32 v5, v2, 1, 3
    v_lshl_add_u32 v{vUL}, v5, 6, v{vZL}
    v_lshl_add_u32 v{vUL}, v6, 4, v{vUL}
    s_sub_u32 s{sT3}, 16, s{sT0}
    v_add_u32 v{vUL}, s{sT3}, v{vUL}
    """)
    st(1)
    def kgen(c):
        P = P0 + 8 * c
        AC = ACC + 16 * c
        if c == 0:
            a("s_waitcnt vmcnt(25)")
        a(f"""
        v_mul_f32 v{t0}, {LOG2E}, v{P+6}
        v_exp_f32 v{t0}, v{t0}
        v_cvt_pk_bf16_f32 v{t0}, v{t0}, v{t0}
        v_lshlrev_b32 v{t0}, 16, v{t0}
        v_mul_f32 v{t1}, v{t0}, v{P}
        v_mul_f32 v{t2}, v{t0}, v{P+1}
        v_mul_f32 v{t1}, {LOG2E}, v{t1}
        v_mul_f32 v{t2}, {INV2PI}, v{t2}
        v_mul_f32 v{P+2}, v{t0}, v{P+2}
        v_mul_f32 v{P+3}, v{t0}, v{P+3}
        """)
        cmul(a, Wc, P + 4, P + 2)
        for (E, m, cj) in ((E8, 8.0, True), (E1, 1.0, False), (E256, 256.0, False)):
            if m != 1.0:
                a(f"v_mul_f32 v{t0}, {f2u(m)}, v{t1}\nv_mul_f32 v{t3}, {f2u(m)}, v{t2}\nv_exp_f32 v{t0}, v{t0}\nv_fract_f32 v{t3}, v{t3}")
            else:
                a(f"v_exp_f32 v{t0}, v{t1}\nv_fract_f32 v{t3}, v{t2}")
            a(f"""
            v_cos_f32 v{E}, v{t3}
            v_sin_f32 v{E+1}, v{t3}
            v_mul_f32 v{E}, v{E}, v{t0}
            v_mul_f32_e64 v{E+1}, {'-' if cj else ''}v{E+1}, v{t0}
            """)
        cmul(a, E2, E1, E1); cmul(a, E4, E2, E2)
        yield "head"
        cnt = [0]
        def put(row, src):
            r = pk + (cnt[0] & 3); cnt[0] += 1
            a(f"v_cvt_pk_bf16_f32 v{r}, v{src}, v{src+1}")
            a(f"ds_write_addtid_b32 v{r} offset:{row * ROWB}")
        if c == 0:
            a(f"v_mov_b32 v{t0}, 0x3f80")
            a(f"ds_write_addtid_b32 v{t0} offset:{21*ROWB}")
        put(22, E8); put(0, Wc)
        fine, cur = [], E8
        for f in range(2, 32):
            nxt = X0 if cur != X0 else X1
            fine.append((nxt, cur, E8, 21 + f)); cur = nxt
        coarse, cur = [], Wc
        for cc in range(1, 8):
            nxt = Y0 if cur != Y0 else Y1
            coarse.append((nxt, cur, E1, cc)); cur = nxt
        coarse.append((G0, Wc, E256, 8)); cur = G0
        for cc in range(1, 4):
            nxt = Y0 if cur != Y0 else Y1
            coarse.append((nxt, cur, E2, 8 + cc)); cur = nxt
        coarse += [(G1, G0, E256, 12), (Y0, G1, E4, 13), (G0, G1, E256, 14), (Y0, G0, E4, 15)]
        g = G0
        for i in range(5):
            n = G1 if g == G0 else G0
            coarse.append((n, g, E256, 16 + i)); g = n
        seq = []
        for i in range(max(len(fine), len(coarse))):
            if i < len(fine): seq.append(fine[i])
            if i < len(coarse): seq.append(coarse[i])
        for n, (d, x, y, row) in enumerate(seq):
            cmul(a, d, x, y); put(row, d)
            if n == (int(os.environ.get('MID', 16)) if c == 0 else 24): yield "mid"
        if c == 0: yield "end"
        a("s_waitcnt lgkmcnt(0)")
        bufs = [FR, FR + 8, vT, vT + 8]
        for jj in range(4):
            a(f"ds_read_b128 {vr(bufs[jj],4)}, v{KA} offset:{32*jj}")
            a(f"ds_read_b128 {vr(bufs[jj]+4,4)}, v{KB_} offset:{21*ROWB+32*jj}")
        yield "reads"
        for j in range(8):
            fb = bufs[j & 3]
            a(f"s_waitcnt lgkmcnt({6 if j < 5 else 2*(7-j)})")
            a(f"v_mfma_f32_32x32x16_bf16 {vr(AC,16)}, {vr(fb,4)}, {vr(fb+4,4)}, {'0' if j == 0 else vr(AC,16)}")
            if j + 4 < 8:
                a(f"ds_read_b128 {vr(fb,4)}, v{KA} offset:{32*(j+4)}")
                a(f"ds_read_b128 {vr(fb+4,4)}, v{KB_} offset:{21*ROWB+32*(j+4)}")
        yield "done"
    g0, g1 = kgen(0), kgen(1)
    next(g0)
    a(f"v_cmp_eq_u32 vcc, 0, v0\nv_cndmask_b32 v{P0+7}, 0, v{P0+7}, vcc")
    next(g0)
    a("s_waitcnt vmcnt(0)")
    vm.drain()
    k.init_check(vm)
    for i in range(8): a(f"v_or_b32 v{UG+i}, v{UG+i}, v{UG2+i}")
    for i in range(2): a(f"ds_write_b128 v{vGS}, {vr(UG+4*i,4)} offset:{16*i}")
    a("s_waitcnt lgkmcnt(0)\ns_barrier")
    for i in range(2): a(f"ds_read_b128 {vr(UG+4*i,4)}, v{vGR} offset:{8*144*i}")
    for i in range(2):
        a(f"s_waitcnt lgkmcnt({1-i})")
        a(f"buffer_store_dwordx4 {vr(UG+4*i,4)}, v{vGO}, {WSR}, s{sT1} offen {SC}")
        if i < 1: a(f"s_add_u32 s{sT1}, s{sT1}, 32768")
    next(g0)
    a("s_waitcnt vmcnt(0)")
    k.flag(Cnt(a, "vmcnt"), sFU)
    next(g0)
    st(2)
    next(g1)
    a(f"v_cmp_eq_u32 vcc, 0, v0\nv_cndmask_b32 v{P0+15}, 0, v{P0+15}, vcc")
    next(g0)
    st(3)
    next(g1)
    a(f"""
    s_lshl_b32 s{sT0}, s{sCG}, 2
    s_add_u32 s{sT0}, s{sT0}, s{sWV}
    s_lshl_b32 s{sT0}, s{sT0}, 12
    s_add_u32 s{sT4}, s{sT0}, {WS_UT}
    """)
    next(g1)
    st(4)
    a(k.poll_ld(vFU, IN))
    ul = "\n".join(f"buffer_load_dwordx4 {vr(UR+4*i,4)}, v3, {WSR}, s{sT4} offen offset:{1024*i} {SC}" for i in range(4))
    next(g1)
    st(6)
    for c in range(2):
        for q in range(3):
            a(f"ds_write_b128 v{vPW}, {vr(ACC+16*c+4*q,4)} offset:{(3*c+q)*1024}")
    a(f"""
    s_waitcnt vmcnt(0)
    {k.poll_cmp(IN)}
    s_mov_b64 s[{sC1}:{sC1+1}], vcc
    s_cmp_eq_u64 vcc, 0
    s_cbranch_scc0 L_ulate
    {ul}
    s_branch L_nopoll2
    L_ulate:
    {k.poll_ld(vFU, IN)}
    L_nopoll2:
    """)
    a(f"""
    s_lshl_b32 s{sT1}, s{sKG}, 13
    s_add_u32 s{sT1}, s{sT1}, {WS_KF}
    s_add_u32 s{sT2}, s{sT1}, 4096
    s_cmp_eq_u32 s{sWV}, 3
    s_waitcnt lgkmcnt(0)
    s_barrier
    s_cbranch_scc1 L_nored
    """)
    RD = ACC
    for c in range(2):
        for w in range(4):
            a(f"ds_read_b128 {vr(RD+16*c+4*w,4)}, v{vRR} offset:{w*WREG + c*3072}")
    for c in range(2):
        a("s_waitcnt lgkmcnt(4)")
        b = RD + 16 * c
        a(f"""
        v_add_f32 v{b}, v{P0+8*c+7}, v{b}
        v_add_f32 v{b+0}, v{b+0}, v{b+4}
        v_add_f32 v{b+8}, v{b+8}, v{b+12}
        v_add_f32 v{b+1}, v{b+1}, v{b+5}
        v_add_f32 v{b+9}, v{b+9}, v{b+13}
        v_add_f32 v{b+2}, v{b+2}, v{b+6}
        v_add_f32 v{b+10}, v{b+10}, v{b+14}
        v_add_f32 v{b+3}, v{b+3}, v{b+7}
        v_add_f32 v{b+11}, v{b+11}, v{b+15}
        v_add_f32 v{b+0}, v{b+0}, v{b+8}
        v_add_f32 v{b+1}, v{b+1}, v{b+9}
        v_add_f32 v{b+2}, v{b+2}, v{b+10}
        v_add_f32 v{b+3}, v{b+3}, v{b+11}
        v_cvt_pk_bf16_f32 v{b}, v{b}, v{b+1}
        v_cvt_pk_bf16_f32 v{b+1}, v{b+2}, v{b+3}
        ds_write_b16 v{AD}, v{b} offset:{c*TSTR}
        ds_write_b16_d16_hi v{AD+1}, v{b} offset:{c*TSTR}
        ds_write_b16 v{AD+2}, v{b+1} offset:{c*TSTR}
        ds_write_b16_d16_hi v{AD+3}, v{b+1} offset:{c*TSTR}
        """)
    a(f"""
    L_nored:
    v_mov_b32 v{vT}, 0
    v_mov_b32 v{vT+1}, 0
    v_mov_b32 v{vT+2}, 0
    v_mov_b32 v{vT+3}, 0
    v_cmp_eq_u32 vcc, 255, v0
    s_waitcnt lgkmcnt(0)
    s_barrier
    """)
    GE = 96
    CW = 64
    for c in range(2):
        for e in range(9):
            a(f"ds_read_u16 v{GE+10*c+e}, v{EA+e} offset:{c*TSTR}")
    a(f"ds_write_b64 v{vZF}, {vr(vT,2)}\nds_write_b128 v{vZU}, {vr(vT,4)}")
    def kwrite(addr, a4, q0, q1, off, off8=0):
        a(f"ds_write_b128 v{addr}, {vr(q0,4)} offset:{off}")
        a(f"ds_write2_b64 v{a4}, {vr(q0,2)}, {vr(q0+2,2)} offset0:{off8} offset1:{off8+1}")
        a(f"ds_write_b128 v{addr}, {vr(q1,4)} offset:{off+KS}")
        a(f"ds_write2_b64 v{a4+1}, {vr(q1,2)}, {vr(q1+2,2)} offset0:{off8} offset1:{off8+1}")
    for c in range(2):
        g = GE + 10 * c
        a(f"s_waitcnt lgkmcnt({11 if c == 0 else 6})")
        for i in range(4): a(f"v_lshl_or_b32 v{CW+8*c+i}, v{g+2*i+1}, 16, v{g+2*i}")
        a(f"s_mov_b64 exec, s[{sC1+0}:{sC1+1}]" if False else "")
        a(f"buffer_store_dwordx4 {vr(CW+8*c,4)}, v{vKS}, {WSR}, s{sT1 if c == 0 else sT2} offen {SC}")
        a(f"v_cndmask_b32 v{g+8}, v{g+8}, 0, vcc")
        for i in range(4): a(f"v_lshl_or_b32 v{CW+8*c+4+i}, v{g+2*i+2}, 16, v{g+2*i+1}")
        kwrite(vCW, vC4 + 2 * c, CW + 8 * c, CW + 8 * c + 4, c * KSL)
    a(f"s_cmp_eq_u64 s[{sC1}:{sC1+1}], 0\ns_cbranch_scc1 L_haveu")
    vm.drain(); vm.q = ["poll"]
    k.poll(vm, vFU, IN, issued=True)
    a(ul + "\nL_haveu:\ns_waitcnt vmcnt(0)")
    k.flag(Cnt(a, "vmcnt"), sFK)
    st(5)
    UB_ = 80
    for i in range(4):
        b = UR + 4 * i; d = UB_ + 4 * i
        a(f"ds_write_b128 v{vUW}, {vr(b,4)} offset:{U0 + 1024*i}")
        if i == 0: a(f"v_mov_b32 v{d}, 0")
        else: a(f"v_readlane_b32 s{sT0}, v{b-1}, 63")
        for q in range(3): a(f"v_mov_b32 v{d+1+q}, v{b+q}")
        if i: a(f"v_mov_b32 v{d}, s{sT0}")
        a(f"v_mov_b32_dpp v{d}, v{b+3} wave_shr:1 row_mask:0xf bank_mask:0xf")
        a(f"ds_write_b128 v{vUW}, {vr(d,4)} offset:{U1 + 1024*i}")
    vKA, vUA, vU0, vZ, vXS, vXR, vSG, vPL = 5, 6, 7, 8, 9, 10, 11, 12
    A = 16; KF0, UF0 = 48, 112
    PKR = 176
    STG, SS = 66304, 2112
    sMK = sIDX
    a(f"""
    s_setprio {os.environ.get('SPRIO2', 1)}
    v_mov_b32 v{vPL}, v{vFP}
    v_mov_b32 v32, v{vZL}
    s_lshr_b32 s{sT0}, s{sWV}, 1
    s_lshl_b32 s{sT2}, s{sHH}, 1
    s_add_u32 s{sJB}, s{sT0}, s{sT2}
    s_mul_i32 s{sKB}, s{sJB}, {UB}
    s_and_b32 s{sT1}, s{sWV}, 1
    s_lshl_b32 s{sT2}, s{sT1}, 11
    s_add_u32 s{sT3}, s{sKB}, {UBASE}
    s_add_u32 s{sT4}, s{sT3}, s{sT2}
    v_add_u32 v{vXS}, s{sT4}, v3
    s_add_u32 s{sT3}, s{sT3}, 2048
    s_sub_u32 s{sT3}, s{sT3}, s{sT2}
    v_add_u32 v{vXR}, s{sT3}, v3
    v_bfe_u32 v{vSG}, v2, 1, 3
    v_lshlrev_b32 v{vSG}, 6, v{vSG}
    v_lshrrev_b32 v13, 4, v2
    v_lshl_add_u32 v{vSG}, v13, 4, v{vSG}
    v_and_b32 v13, 1, v2
    v_lshl_add_u32 v{vSG}, v13, 2, v{vSG}
    s_lshl_b32 s{sT4}, s{sT1}, 10
    s_add_u32 s{sT4}, s{sT4}, {STG}
    v_add_u32 v{vSG}, s{sT4}, v{vSG}
    s_xor_b32 s{sFU}, s{sKG}, 1
    s_lshl_b32 s{sFU}, s{sFU}, 13
    s_lshl_b32 s{sT3}, s{sWV}, 11
    s_add_u32 s{sFU}, s{sFU}, s{sT3}
    s_add_u32 s{sFU}, s{sFU}, {WS_KF}
    s_mul_i32 s{sFK}, s{sT0}, {KSL}
    s_add_u32 s{sFK}, s{sFK}, s{sT2}
    s_sub_u32 s{sMK}, s{sT1}, 1
    s_and_b32 s{sT3}, s{sMK}, s{sHH}
    s_mul_i32 s{sT4}, s{sT3}, 960
    s_mul_i32 s{sT3}, s{sT3}, 0x7fff0000
    v_add_u32 v38, s{sT3}, v3
    v_mov_b32 v39, 0x7fff0000
    v_cmp_le_u32 vcc, s{sT4}, v3
    v_cndmask_b32 v39, v39, v3, vcc
    s_mov_b32 s{sPH}, 0
    v_mov_b32 v{vKA}, v{vKL}
    v_add_u32 v{vUA}, s{sKB}, v{vUL}
    v_add_u32 v{vZ}, s{sKB}, v32
    v_max_i32 v{vU0}, v{vZ}, v{vUA}
    s_mov_b32 s{sIT}, 0
    {k.poll_ld(vPL, 14)}
    s_cmp_eq_u32 s{sHH}, 1
    s_waitcnt lgkmcnt(0)
    s_barrier
    """)
    st(7)
    a("s_cbranch_scc1 L_cv1pre")
    TS = {0: [4, 5, 6, 7], 1: [0, 1, 2, 3]}
    def loadlist(s, H):
        L = []; K_, U_ = KF0 + 32 * s, UF0 + 32 * s
        for x in range(4 if H else 8):
            L.append(f"ds_read_b128 {vr(U_+4*x,4)}, v{vU0 if x == 0 else vUA} offset:{512*x}")
            L.append(f"ds_read_b128 {vr(K_+4*x,4)}, v{vKA} offset:{512*(7-x)}")
        return L
    stepL = [f"v_subrev_u32 v{vKA}, 64, v{vKA}", f"v_subrev_u32 v{vUA}, 64, v{vUA}", f"v_max_i32 v{vU0}, v{vZ}, v{vUA}"]
    kl = f"""
    buffer_load_dwordx4 {vr(PKR,4)}, v38, {WSR}, s{sFU} offen {SC}
    buffer_load_dwordx4 {vr(PKR+6,4)}, v39, {WSR}, s{sFU} offen offset:1024 {SC}
    buffer_load_dword v{PKR+11}, off, {WSR}, s{sFU} offset:2048 {SC}
    """
    for H in (0, 1):
        a(f"L_cv{H}pre:")
        if H == 0: pass
        for l in loadlist(0, H) + stepL: a(l)
        for i in range(16): a(f"v_mov_b32 v{A+i}, 0")
        a(f"L_cv{H}:")
        for s_ in range(2):
            L = loadlist(1 - s_, H); nl = len(L)
            K_, U_ = KF0 + 32 * s_, UF0 + 32 * s_
            prs = [(c, mt - c, n) for n, mt in enumerate(TS[H]) for c in range(mt + 1)]
            prs.sort(key=lambda x: (max(x[0], x[1]), x[2]))
            issued = 0; done = -1
            L2 = L + stepL
            st0 = 4 if H == 0 else 0
            for n, (c, m, tn) in enumerate(prs):
                need = max(c, m)
                if need > done:
                    a(f"s_waitcnt lgkmcnt({min(15, nl - 2*(need+1) + min(issued, nl))})"); done = need
                acc = vr(A + 4 * tn, 4)
                a(f"v_mfma_f32_16x16x32_bf16 {acc}, {vr(K_+4*c,4)}, {vr(U_+4*m,4)}, {acc}")
                if n >= st0 and issued < len(L2): a(L2[issued]); issued += 1
            while issued < len(L2): a(L2[issued]); issued += 1
        a(f"""
        s_add_u32 s{sIT}, s{sIT}, 1
        s_cmp_eq_u32 s{sIT}, 2
        s_cbranch_scc1 L_cvdone
        s_cmp_eq_u32 s{sPH}, 1
        s_cbranch_scc1 L_cv{H}
        s_waitcnt vmcnt(0)
        {k.poll_cmp(14)}
        s_mov_b64 s[{sC1}:{sC1+1}], vcc
        s_cmp_eq_u64 vcc, 0
        s_cbranch_scc0 L_late{H}
        {kl}
        s_branch L_cv{H}
        L_late{H}:
        {k.poll_ld(vPL, 14)}
        s_branch L_cv{H}
        """)
    a(f"""
    L_cvdone:
    s_cmp_eq_u32 s{sPH}, 1
    s_cbranch_scc1 L_ph1
    s_cmp_eq_u64 s[{sC1}:{sC1+1}], 0
    s_cbranch_scc1 L_havek
    """)
    vm.drain(); vm.q = ["poll"]
    k.poll(vm, vPL, 14, issued=True)
    a(kl + "L_havek:")
    st(8)
    a("s_waitcnt lgkmcnt(0)\ns_barrier\nL_ph1:")
    a(f"s_mul_i32 s{sT0}, s{sJB}, {SS}\nv_add_u32 v33, s{sT0}, v{vSG}")
    a(f"s_bitcmp1_b32 s{sWV}, 0\ns_cbranch_scc1 L_xodd")
    def exch(keep, send):
        for q in range(2): a(f"ds_write_b128 v{vXS}, {vr(send+4*q,4)} offset:{1024*q}")
        a(f"s_cmp_eq_u32 s{sPH}, 1\ns_cbranch_scc1 L_nok{keep}")
        a(f"""
        v_add_u32 v13, s{sFK}, v3
        v_add_u32 v14, {2*KS-8}, v13
        v_add_u32 v15, {3*KS-8}, v13
        s_waitcnt vmcnt(0)
        v_and_b32 v{PKR+10}, s{sMK}, v{PKR+11}
        v_readlane_b32 s{sT0}, v{PKR+6}, 0
        v_mov_b32_dpp v{PKR+10}, v{PKR+6} wave_shl:1 row_mask:0xf bank_mask:0xf
        v_mov_b32 v{PKR+4}, s{sT0}
        v_mov_b32_dpp v{PKR+4}, v{PKR} wave_shl:1 row_mask:0xf bank_mask:0xf
        """)
        for i in (1, 0):
            b = PKR + 6 * i
            for q in range(4): a(f"v_alignbit_b32 v{KF0+4*i+q}, v{b+q+1}, v{b+q}, 16")
            kwrite(13, 14, b, KF0 + 4 * i, 1024 * i, 128 * i)
        a(f"L_nok{keep}:\ns_waitcnt lgkmcnt(0)\ns_barrier")
        for q in range(2): a(f"ds_read_b128 {vr(send+4*q,4)}, v{vXR} offset:{1024*q}")
        for q in range(2):
            a(f"s_waitcnt lgkmcnt(1)")
            for i in range(4): a(f"v_add_f32 v{keep+4*q+i}, v{keep+4*q+i}, v{send+4*q+i}")
            a(f"v_cvt_pk_bf16_f32 v{34+2*q}, v{keep+4*q}, v{keep+4*q+1}")
            a(f"v_cvt_pk_bf16_f32 v{35+2*q}, v{keep+4*q+2}, v{keep+4*q+3}")
            a(f"ds_write2_b32 v33, v{34+2*q}, v{35+2*q} offset0:{128*q} offset1:{128*q+2}")
    exch(A, A + 8)
    a("s_branch L_xdone\nL_xodd:")
    exch(A + 8, A)
    a(f"""
    L_xdone:
    s_cmp_eq_u32 s{sPH}, 1
    s_cbranch_scc1 L_cvend
    s_mov_b32 s{sPH}, 1
    s_xor_b32 s{sJB}, s{sJB}, 2
    s_mul_i32 s{sKB}, s{sJB}, {UB}
    """)
    st(9)
    a(f"""
    v_mov_b32 v{vKA}, v{vKL}
    v_add_u32 v{vUA}, s{sKB}, v{vUL}
    v_add_u32 v{vZ}, s{sKB}, v32
    v_max_i32 v{vU0}, v{vZ}, v{vUA}
    s_mov_b32 s{sIT}, 0
    s_cmp_eq_u32 s{sHH}, 1
    s_cbranch_scc1 L_cv1pre
    s_branch L_cv0pre
    L_cvend:
    v_bfe_u32 v10, v2, 2, 2
    v_mul_u32_u24 v10, {SS}, v10
    v_lshrrev_b32 v8, 4, v2
    v_lshl_add_u32 v10, v8, 5, v10
    v_and_b32 v8, 3, v2
    v_lshl_add_u32 v10, v8, 3, v10
    s_lshl_b32 s{sT0}, s{sWV}, 9
    s_add_u32 s{sT0}, s{sT0}, {STG}
    v_add_u32 v10, s{sT0}, v10
    v_mul_u32_u24 v11, 1792, v2
    s_xor_b32 s{sT2}, s{sHH}, 1
    s_lshl_b32 s{sT2}, s{sT2}, 2
    s_add_u32 s{sT2}, s{sT2}, s{sWV}
    s_mul_i32 s{sT2}, s{sT2}, {256*1792}
    s_lshl_b32 s{sT3}, s{sCG}, 3
    s_add_u32 s{sT2}, s{sT2}, s{sT3}
    s_waitcnt lgkmcnt(0)
    s_barrier
    """)
    st(10)
    for it in range(4): a(f"ds_read_b64_tr_b16 {vr(KF0+2*it,2)}, v10 offset:{128*it}")
    for it in range(4):
        a(f"s_waitcnt lgkmcnt({3-it})")
        a(f"buffer_store_dwordx2 {vr(KF0+2*it,2)}, v11, s[{SO}:{SO+3}], s{sT2} offen")
        if it < 3: a(f"s_add_u32 s{sT2}, s{sT2}, {64*1792}")
    a("L_send:")
    st.end(0)
    a("s_endpgm")
    a(f"""
    L_aux:
    s_cmp_ge_u32 s{sIDX}, 5
    s_cbranch_scc1 L_end
    s_cmp_lg_u32 s{sIDX}, 0
    s_cbranch_scc1 L_zkv
    s_cmp_lg_u32 s{sWV}, 0
    s_cbranch_scc1 L_end
    s_memrealtime s[{sN}:{sN+1}]
    s_waitcnt lgkmcnt(0)
    s_or_b32 s{sN}, s{sN}, 1
    v_mov_b32 v8, s{sN}
    v_mov_b32 v9, s{sN+1}
    s_mov_b64 exec, 1
    global_store_dwordx2 v4, v[8:9], s[42:43] {SC}
    s_endpgm
    L_zkv:
    v_mov_b32 v8, 0
    v_mov_b32 v9, 0
    v_mov_b32 v10, 0
    v_mov_b32 v11, 0
    v_lshlrev_b32 v5, 4, v0
    s_lshl_b32 s{sT0}, s{sIDX}, 7
    s_add_u32 s{sT0}, s{sT0}, {F_Z - 128}
    s_lshl_b32 s{sT1}, s{sIDX}, 14
    s_add_u32 s{sT1}, s{sT1}, {WS_KVA - 16384}
    s_waitcnt lgkmcnt(0)
    """)
    srd(a, SWS, 44, 45, WS_SIZE)
    for i in range(4):
        a(f"buffer_store_dwordx4 v[8:11], v5, {WSR}, s{sT1} offen {SC}")
        if i < 3: a(f"s_add_u32 s{sT1}, s{sT1}, 4096")
    vm = Cnt(a, "vmcnt")
    k.init_issue(vm); k.init_check(vm)
    a(f"s_barrier\ns_cmp_lg_u32 s{sWV}, 0\ns_cbranch_scc1 L_send")
    k.flag(vm, sT0)
    a("s_branch L_send")
```

```python
import struct, os
from asmlib import *
from stamp import Stamper

WS_PQ  = 0x000000
WS_KVA = 0x200000
WS_FLG = 0x210000
WS_KF  = 0x300000
WS_UT  = 0x500000
WS_SIZE = 0x700000
F_UT, F_KF, F_Q, F_KV, F_Z = [WS_FLG + 128 * x for x in (0, 896, 1792, 2304, 2432)]
LDS = 81920
LOG2E = 0x3fb8aa3b
INV2PI = 0x3e22f983
def f2u(x): return hex(struct.unpack("<I", struct.pack("<f", x))[0])
EPS = f2u(1e-6)
SC = "sc1"

def cmul(a, d, x, y):
    assert d != x and d != y
    if os.environ.get('PK', '0') == '0':
        a(f"v_mul_f32 v{d}, v{x}, v{y}\nv_mul_f32 v{d+1}, v{x}, v{y+1}\nv_fma_f32 v{d}, -v{x+1}, v{y+1}, v{d}\nv_fmac_f32 v{d+1}, v{x+1}, v{y}")
        return
    a(f"v_pk_mul_f32 {vr(d,2)}, {vr(x,2)}, {vr(y,2)} op_sel:[0,0] op_sel_hi:[0,1]")
    a(f"v_pk_fma_f32 {vr(d,2)}, {vr(x,2)}, {vr(y,2)}, {vr(d,2)} op_sel:[1,1,0] op_sel_hi:[1,0,1] neg_lo:[1,0,0]")
def srd(a, S, lo, hi, n):
    a(f"s_mov_b32 s{S}, s{lo}\ns_mov_b32 s{S+1}, s{hi}\ns_mov_b32 s{S+2}, {n}\ns_mov_b32 s{S+3}, 0x20000")
def weave(main, fill, start=0):
    n, m, j = len(main), len(fill), 0
    for i, f in enumerate(main):
        f()
        tgt = 0 if i < start else min(m, ((i - start + 1) * m + (n - start) - 1) // (n - start))
        while j < tgt: fill[j](); j += 1
    while j < m: fill[j](); j += 1

SWS, SX, SW, SO = 48, 52, 56, 60
sC1 = 64
sN = 46
NV = 190
sWV, sT0, sT1, sT2, sT3, sT4, sA, sB, sC, sD, sE, sF, sG, sH, sI, sJ = range(66, 82)
WSR = f"s[{SWS}:{SWS+3}]"

class K:
    def __init__(self):
        self.a = Asm(); self.nl = 0
    def lab(self, p="L"):
        self.nl += 1; return f"{p}_{self.nl}"
    def _spin(self, vm, tag, cmp, ld, post=""):
        a = self.a; L, Lok = self.lab("Lp"), self.lab("Lpo")
        vm.wait(tag)
        a(f"""{L}:
        {cmp}
        s_cmp_eq_u64 vcc, 0
        s_cbranch_scc1 {Lok}
        s_sub_u32 s15, s15, 1
        s_cbranch_scc1 L_end
        s_mov_b64 exec, vcc
        s_sleep {os.environ.get('SLP', 1)}
        {ld}
        s_waitcnt vmcnt(0)
        s_branch {L}
        {Lok}:
        s_mov_b64 exec, -1
        {post}""")
    def init_issue(self, vm, t=None): vm.op(f"global_load_dwordx2 {vr(NV,2)}, v4, s[42:43] {SC}", "init")
    def init_check(self, vm, t=None):
        self._spin(vm, "init", f"v_cmp_eq_u32 vcc, 0, v{NV}", f"global_load_dwordx2 {vr(NV,2)}, v4, s[42:43] {SC}",
                   f"v_readfirstlane_b32 s{sN}, v{NV}\nv_readfirstlane_b32 s{sN+1}, v{NV+1}")
    def poll_ld(self, vaddr, t): return f"buffer_load_dwordx2 {vr(t,2)}, v{vaddr}, {WSR}, 0 offen {SC}"
    def poll_cmp(self, t): return f"v_cmp_ne_u64 vcc, s[{sN}:{sN+1}], {vr(t,2)}"
    def poll_issue(self, vm, vaddr, t): vm.op(self.poll_ld(vaddr, t), "poll")
    def poll(self, vm, vaddr, t, issued=False, tag="poll"):
        if not issued: self.poll_issue(vm, vaddr, t)
        self._spin(vm, tag, self.poll_cmp(t), self.poll_ld(vaddr, t))
    def flag(self, vm, soff, vone=None):
        self.a("s_mov_b64 exec, 1")
        vm.op(f"buffer_store_dwordx2 {vr(NV,2)}, off, {WSR}, s{soff} {SC}", "flag")
        self.a("s_mov_b64 exec, -1")

def gen():
    k = K(); a = k.a
    st = Stamper(a, 0, 44, sWV)
    a("s_cmp_ge_u32 s2, 512\ns_cbranch_scc1 L_end")
    st.start()
    a(f"""
    s_load_dwordx16 s[16:31], s[0:1], 0
    s_load_dwordx8 s[32:39], s[0:1], 64
    s_load_dwordx4 s[40:43], s[0:1], 96
    s_load_dwordx2 s[44:45], s[0:1], 112
    v_lshrrev_b32 v1, 6, v0
    v_and_b32 v2, 63, v0
    v_readfirstlane_b32 s{sWV}, v1
    v_lshlrev_b32 v3, 4, v2
    v_mov_b32 v4, 64
    s_mov_b32 s15, 40000
    s_cmp_lt_u32 s2, 256
    s_cbranch_scc1 L_S
    s_sub_u32 s2, s2, 256
    """)
    gen_G(k, st)
    gen_S(k, st)
    a("L_end:\ns_endpgm")
    return a

def gen_G(k, st):
    a = k.a
    if os.environ.get('SKIP_G'): a('s_endpgm')
    sRB, sP, sKX, sFL, sXO, sWO, sXM, sWM, sTY, sAT = sA, sB, sC, sD, sE, sF, sG, sH, sI, sJ
    vXD, vWD, vXA, vWA = 8, 12, 16, 20
    vWO, vFQ, vFK, vWS = 21, 22, 23, 24
    vFT, vEX, vFZ = 26, 5, 6
    vAT = 28
    vT = 36
    GA = 64; XF, WF = 128, 144
    a(f"""
    s_setprio {os.environ.get('GPRIO', 1)}
    s_and_b32 s{sT0}, s2, 7
    s_lshr_b32 s{sT1}, s2, 3
    s_lshr_b32 s{sTY}, s2, 7
    s_lshr_b32 s{sRB}, s{sT0}, 1
    s_lshl_b32 s{sRB}, s{sRB}, 2
    s_bfe_u32 s{sT2}, s{sT1}, 0x20002
    s_add_u32 s{sRB}, s{sRB}, s{sT2}
    s_and_b32 s{sP}, s{sT0}, 1
    s_lshl_b32 s{sP}, s{sP}, 2
    s_and_b32 s{sT3}, s{sT1}, 3
    s_add_u32 s{sP}, s{sP}, s{sT3}
    s_lshl_b32 s{sKX}, s{sT3}, 1
    s_add_u32 s{sKX}, s{sKX}, s{sTY}
    s_mul_i32 s{sT2}, s{sT2}, 3
    s_add_u32 s{sKX}, s{sKX}, s{sT2}
    s_cmp_ge_u32 s{sKX}, 14
    s_cselect_b32 s{sT2}, 14, 0
    s_sub_u32 s{sKX}, s{sKX}, s{sT2}
    s_cmp_ge_u32 s{sKX}, 7
    s_cselect_b32 s{sT2}, 7, 0
    s_sub_u32 s{sKX}, s{sKX}, s{sT2}
    s_lshl_b32 s{sXO}, s{sKX}, 7
    s_mul_i32 s{sWO}, s{sKX}, {64*2688}
    v_lshrrev_b32 v{vT+1}, 3, v2
    v_and_b32 v{vT+2}, 7, v2
    v_lshrrev_b32 v{vT+3}, 4, v2
    v_xor_b32 v{vT+6}, v{vT+2}, v{vT+3}
    v_lshlrev_b32 v{vT+6}, 4, v{vT+6}
    v_mul_u32_u24 v{vT+7}, 896, v{vT+1}
    s_lshl_b32 s{sT0}, s{sRB}, 2
    s_add_u32 s{sT0}, s{sT0}, s{sWV}
    s_mul_i32 s{sT0}, s{sT0}, {32*896}
    v_add3_u32 v{vXD}, v{vT+6}, v{vT+7}, s{sT0}
    v_xor_b32 v{vT+6}, 64, v{vT+6}
    v_add3_u32 v{vXD+1}, v{vT+6}, v{vT+7}, s{sT0}
    v_add_u32 v{vXD+1}, {7168-1024}, v{vXD+1}
    v_add_u32 v{vXD+2}, {2*(7168-1024)}, v{vXD}
    v_add_u32 v{vXD+3}, {2*(7168-1024)}, v{vXD+1}
    v_and_b32 v{vT+6}, 1, v{vT+3}
    v_lshlrev_b32 v{vT+6}, 2, v{vT+6}
    v_xor_b32 v{vT+8}, v{vT+6}, v{vT+2}
    v_min_u32 v{vT+6}, 6, v{vT+8}
    v_lshlrev_b32 v{vT+6}, 4, v{vT+6}
    v_mul_u32_u24 v{vT+9}, 2688, v{vT+1}
    s_lshr_b32 s{sT0}, s{sWV}, 1
    s_add_u32 s{sT0}, s{sT0}, 1
    s_mul_i32 s{sT0}, s{sT0}, 896
    s_and_b32 s{sT1}, s{sWV}, 1
    s_mul_i32 s{sT1}, s{sT1}, {32*2688}
    s_add_u32 s{sT0}, s{sT0}, s{sT1}
    s_mul_i32 s{sT1}, s{sWV}, {16*2688}
    s_lshl_b32 s{sXM}, s{sWV}, 12
    s_lshl_b32 s{sT2}, s{sWV}, 11
    s_cmp_eq_u32 s{sTY}, 0
    s_cselect_b32 s{sT0}, s{sT1}, s{sT0}
    s_cselect_b32 s{sWM}, s{sT2}, s{sXM}
    s_add_u32 s{sWM}, s{sWM}, 49152
    s_mul_i32 s{sT1}, s{sP}, 112
    s_add_u32 s{sT0}, s{sT0}, s{sT1}
    v_add3_u32 v{vWD}, v{vT+6}, v{vT+9}, s{sT0}
    v_add_u32 v{vWD+1}, {8*2688-1024}, v{vWD}
    v_add_u32 v{vWD+2}, {2*(8*2688-1024)}, v{vWD}
    v_add_u32 v{vWD+3}, {3*(8*2688-1024)}, v{vWD}
    s_mov_b32 s{SX+2}, {2048*896}
    s_mov_b32 s{SX+3}, 0x20000
    s_mov_b32 s{SW+2}, {448*2688}
    s_mov_b32 s{SW+3}, 0x20000
    s_cmp_eq_u32 s{sTY}, 0
    s_waitcnt lgkmcnt(0)
    s_mov_b32 s{SX}, s34
    s_mov_b32 s{SX+1}, s35
    s_mov_b32 s{SW}, s36
    s_mov_b32 s{SW+1}, s37
    """)
    st(0)
    a("s_cbranch_scc1 L_GQ")
    def setup(kv, vm):
        a(f"""
        v_and_b32 v{vT+6}, 31, v2
        v_lshrrev_b32 v{vT+4}, 5, v2
        v_bfe_u32 v{vT+5}, v2, 1, 3
        v_xor_b32 v{vT+5}, v{vT+5}, v{vT+4}
        v_lshlrev_b32 v{vT+5}, 4, v{vT+5}
        v_lshl_add_u32 v{vT+5}, v{vT+6}, 7, v{vT+5}
        s_lshr_b32 s{sT0}, s{sWV}, 1
        s_lshl_b32 s{sT0}, s{sT0}, 13
        v_add_u32 v{vXA}, s{sT0}, v{vT+5}
        v_xor_b32 v{vXA+1}, 32, v{vXA}
        v_xor_b32 v{vXA+2}, 64, v{vXA}
        v_xor_b32 v{vXA+3}, 96, v{vXA}
        v_bfe_u32 v{vT+5}, v2, 2, 2
        v_lshl_add_u32 v{vT+5}, v{vT+4}, 3, v{vT+5}
        v_lshlrev_b32 v{vT+5}, 7, v{vT+5}
        v_and_b32 v{vT+9}, 3, v2
        v_lshlrev_b32 v{vT+10}, 3, v{vT+9}
        v_bfe_u32 v{vT+11}, v2, 4, 1
        v_lshl_add_u32 v{vT+10}, v{vT+11}, 5, v{vT+10}
        s_and_b32 s{sT0}, s{sWV}, 1
        s_mul_i32 s{sT0}, s{sT0}, 56
        v_add_u32 v{vT+10}, s{sT0}, v{vT+10}
        v_bfe_u32 v{vT+11}, v2, 3, 1
        v_lshlrev_b32 v{vT+11}, 6, v{vT+11}
        v_xor_b32 v{vT+10}, v{vT+10}, v{vT+11}
        v_add_u32 v{vT+5}, v{vT+5}, v{vT+10}
        v_add_u32 v{vWA}, 49152, v{vT+5}
        s_and_b32 s{sT0}, s2, 31
        s_lshl_b32 s{sT0}, s{sT0}, 4
        s_lshl_b32 s{sT1}, s{sWV}, 2
        s_add_u32 s{sT0}, s{sT0}, s{sT1}
        s_lshl_b32 s{sT0}, s{sT0}, 7
        s_add_u32 s{sT0}, s{sT0}, {F_Q}
        v_lshlrev_b32 v{vT+9}, 7, v{vT+9}
        v_add_u32 v{vFQ}, s{sT0}, v{vT+9}
        s_lshl_b32 s{sT0}, s{sWV}, 12
        s_add_u32 s{sT0}, s{sT0}, {F_KV}
        v_lshlrev_b32 v{vFK}, 7, v{vT+6}
        v_add_u32 v{vFK}, s{sT0}, v{vFK}
        v_lshlrev_b32 v{vT+8}, 4, v{vT+8}
        s_mul_i32 s{sT0}, s{sWV}, {112*896}
        s_lshr_b32 s{sT1}, s2, 5
        s_lshl_b32 s{sT1}, s{sT1}, 7
        s_add_u32 s{sT0}, s{sT0}, s{sT1}
        v_add3_u32 v{vWO}, v{vT+8}, v{vT+7}, s{sT0}
        v_add_u32 v{vWS}, s{sXM}, v3
        v_add_u32 v{vWS+1}, s{sWM}, v3
        s_mov_b32 s{sC1}, {LOG2E}
        s_mov_b32 s{sC1+1}, {LOG2E}
        """)
        srd(a, SWS, 44, 45, WS_SIZE)
        srd(a, SO, 40, 41, 2048 * 1792)
        if os.environ.get('TLB'):
            a(f"""
            v_lshlrev_b32 v{vT+10}, {os.environ['TLB']}, v2
            v_mul_u32_u24 v{vT+11}, 57344, v2
            s_lshl_b32 s{sT0}, s{sWV}, {int(os.environ['TLB'])-2}
            """)
            vm.op(f"buffer_load_dword v{vT+10}, v{vT+10}, {WSR}, s{sT0} offen", "tlb")
            vm.op(f"buffer_load_dword v{vT+11}, v{vT+11}, s[{SO}:{SO+3}], 0 offen", "tlb")
            vm.op(f"global_load_dword v{vT+9}, v3, s[38:39]", "tlb")
        if kv:
            a(f"""
            s_mul_i32 s{sT0}, s{sWV}, 20480
            s_add_u32 s{sT0}, s{sT0}, 16384
            v_add_u32 v{vEX}, s{sT0}, v3
            s_and_b32 s{sT0}, s{sWV}, 1
            s_lshr_b32 s{sT1}, s{sWV}, 1
            s_lshl_b32 s{sT1}, s{sT1}, 11
            s_mul_i32 s{sT2}, s{sT0}, 20480
            s_add_u32 s{sT2}, s{sT2}, s{sT1}
            s_add_u32 s{sT2}, s{sT2}, 16384
            s_and_b32 s{sT3}, s{sRB}, 7
            s_lshl_b32 s{sT3}, s{sT3}, 8
            s_add_u32 s{sT3}, s{sT3}, s{sT2}
            v_lshlrev_b32 v{vT+4}, 2, v2
            v_add_u32 v{vAT}, s{sT3}, v{vT+4}
            s_lshl_b32 s{sT0}, s{sT0}, 12
            s_add_u32 s{sT0}, s{sT0}, s{sT1}
            s_lshl_b32 s{sAT}, s{sP}, 13
            s_add_u32 s{sAT}, s{sAT}, s{sT0}
            s_add_u32 s{sAT}, s{sAT}, {WS_KVA}
            s_sub_u32 s{sAT}, s{sAT}, s{sT2}
            s_lshl_b32 s{sFL}, s{sP}, 4
            s_add_u32 s{sFL}, s{sFL}, s{sRB}
            s_lshl_b32 s{sFL}, s{sFL}, 7
            s_add_u32 s{sFL}, s{sFL}, {F_KV}
            """)
            for i in range(1, 8): a(f"v_xor_b32 v{vAT+i}, {i << 8}, v{vAT}")
            a(f"v_and_b32 v{vFZ}, 3, v2\nv_lshlrev_b32 v{vFZ}, 7, v{vFZ}\nv_add_u32 v{vFZ}, {F_Z}, v{vFZ}")
        else:
            a(f"""
            s_lshl_b32 s{sT3}, s{sRB}, 1
            s_lshr_b32 s{sT1}, s{sWV}, 1
            s_add_u32 s{sT3}, s{sT3}, s{sT1}
            s_lshl_b32 s{sT3}, s{sT3}, 4
            s_lshl_b32 s{sT1}, s{sP}, 1
            s_add_u32 s{sT1}, s{sT1}, s{sT3}
            s_and_b32 s{sT2}, s{sWV}, 1
            s_add_u32 s{sT1}, s{sT1}, s{sT2}
            s_lshl_b32 s{sFL}, s{sT1}, 7
            s_add_u32 s{sFL}, s{sFL}, {F_Q}
            s_add_u32 s{sT1}, s{sT1}, s{sT3}
            s_lshl_b32 s{sAT}, s{sT1}, 11
            s_add_u32 s{sKX}, s{sAT}, 32768
            """)
        for i in range(32): a(f"v_mov_b32 v{GA+i}, {EPS}")
    def gemm(kv):
        vm, lg = Cnt(a, "vmcnt"), Cnt(a, "lgkmcnt")
        nt = 2 if kv else 1
        nws = 2 if kv else 4
        wsz = 16384 if kv else 8192
        stage = {}
        def ld(kind, c, regs=None):
            n = 4 if kind == "x" else 2 * nt
            vD, S, sO = (vXD, SX, sXO) if kind == "x" else (vWD, SW, sWO)
            step, end = (128, 896) if kind == "x" else (64 * 2688, 448 * 2688)
            if regs is not None: stage[(kind, c)] = regs
            T = []
            for j in range(n):
                def f(j=j):
                    if regs is None:
                        if j == 0: a(f"s_add_u32 m0, s{sXM if kind == 'x' else sWM}, {16384*(c%3) if kind == 'x' else wsz*(c%nws)}")
                        vm.op(f"buffer_load_dwordx4 v{vD+j}, s[{S}:{S+3}], s{sO} offen offset:{1024*j} {os.environ.get('NTG','')} lds", f"{kind}{c}")
                    else:
                        vm.op(f"buffer_load_dwordx4 {vr(regs[1]+4*j,4,regs[0])}, v{vD+j}, s[{S}:{S+3}], s{sO} offen offset:{1024*j} {os.environ.get('NTG','')}", f"{kind}{c}")
                    if j == n - 1: a(f"s_add_u32 s{sO}, s{sO}, {step}\ns_cmp_eq_u32 s{sO}, {end}\ns_cselect_b32 s{sO}, 0, s{sO}")
                T.append(f)
            return T
        def wr(kind, c):
            regs = stage[(kind, c)]
            n = 4 if kind == "x" else 2 * nt
            T = []
            for j in range(n):
                def f(j=j):
                    if j == 0: vm.wait(f"{kind}{c}")
                    off = (16384 * (c % 3) if kind == "x" else wsz * (c % nws)) + 1024 * j
                    lg.op(f"ds_write_b128 v{vWS + (0 if kind == 'x' else 1)}, {vr(regs[1]+4*j,4,regs[0])} offset:{off}", "wr")
                T.append(f)
            return T
        def F(c, ks):
            b = ks & 1
            for n in range(nt):
                for i in range(2):
                    lg.op(f"ds_read_b64_tr_b16 {vr(WF+8*b+4*n+2*i,2)}, v{vWA} offset:{wsz*(c%nws) + ks*2048 + i*512 + n*8192}", f"f{c}{ks}")
            for t in range(2):
                lg.op(f"ds_read_b128 {vr(XF+8*b+4*t,4)}, v{vXA+ks} offset:{16384*(c%3) + 4096*t}", f"f{c}{ks}")
        def M(c, ks, fill=()):
            b = ks & 1
            lg.wait(f"f{c}{ks}")
            T = []
            for n in range(nt):
                for t in range(2):
                    acc = vr(GA + 16 * (n * 2 + t), 16)
                    cin = "0" if (c == 0 and ks == 0 and n == 1) else acc
                    xf, wf = vr(XF + 8 * b + 4 * t, 4), vr(WF + 8 * b + 4 * n, 4)
                    T.append(lambda s=(f"v_mfma_f32_32x32x16_bf16 {acc}, {xf}, {wf}, {cin}" if kv else f"v_mfma_f32_32x32x16_bf16 {acc}, {wf}, {xf}, {cin}"): a(s))
            weave(T, list(fill))
        run = lambda T: [f() for f in T]
        if kv:
            for x in (("x", 0), ("w", 0), ("x", 1), ("w", 1)): run(ld(*x))
            R = [("a", 0), ("a", 16), ("a", 32)]
            lds_ = {0: [("w", 2, R[0]), ("x", 2), ("w", 3, R[1])], 1: [("x", 3), ("w", 4, R[2])], 2: [("x", 4), ("w", 5, R[0])],
                    3: [("x", 5), ("w", 6, R[1])], 4: [("x", 6)]}
            wrs = {c: [("w", c + 2)] for c in range(5)}
            setup(kv, vm)
            vm.wait(["x0", "w0"]); a("s_barrier")
            st(1)
            F(0, 0); F(0, 1)
            pend = []
            for c in range(7):
                L = sum([ld(*l) for l in lds_.get(c, [])], [])
                if c == 3: L.append(lambda: k.init_issue(vm))
                if c == 5: L.append(lambda: (k.init_check(vm), vm.op(k.poll_ld(vFZ, vFT), "zp")))
                q = max(1, (len(L) + 2) // 3); w = max(1, (len(pend) + 2) // 3)
                M(c, 0, L[:q] + pend[:w]); F(c, 2)
                M(c, 1, L[q:2*q] + pend[w:2*w]); F(c, 3)
                M(c, 2, L[2*q:] + pend[2*w:])
                if c < 6:
                    dma = [f"{kd}{c+1}" for kd in "xw" if (kd, c + 1) not in stage]
                    if dma and vm.n_after(dma) is not None: vm.wait(dma, "lgkmcnt(0)")
                    else: a("s_waitcnt lgkmcnt(0)")
                    lg.drain()
                    a("s_barrier")
                    F(c + 1, 0)
                    pend = sum([wr(*x) for x in wrs.get(c, [])], [])
                    M(c, 3, pend[:1]); pend = pend[1:]
                    F(c + 1, 1)
                else:
                    lg.wait(f"f{c}3")
                    a("s_barrier")
                    M(c, 3)
            return vm
        RX = [("a", 0), ("a", 16), ("a", 32), ("a", 48)]
        RW = [("v", 160), ("v", 168), ("v", 176), ("v", 96)]
        for c in range(2): run(ld("x", c, RX[c])); run(ld("w", c, RW[c]))
        setup(kv, vm)
        run(wr("x", 0)); run(wr("w", 0))
        a("s_waitcnt lgkmcnt(0)\ns_barrier"); lg.drain()
        st(1)
        F(0, 0); F(0, 1)
        for c in range(7):
            cs = [2, 3] if c == 0 else ([c + 3] if c + 3 < 7 else [])
            L = sum([ld("x", x, RX[x % 4]) + ld("w", x, RW[x % 4]) for x in cs], [])
            if c == 4: L.append(lambda: k.init_issue(vm, vFT))
            P = (wr("x", c + 1) + wr("w", c + 1)) if c + 1 < 7 else []
            q = (len(L) + 1) // 2
            M(c, 0, L[:q]); F(c, 2)
            M(c, 1, L[q:] + P[:2]); F(c, 3)
            M(c, 2, P[2:])
            if c < 6:
                a("s_waitcnt lgkmcnt(0)\ns_barrier"); lg.drain()
                F(c + 1, 0)
                M(c, 3)
                F(c + 1, 1)
            else:
                lg.wait(f"f{c}3")
                M(c, 3)
        return vm
    def phi_t(base, n, dst, pk=True):
        T = []
        for i in range(0, n, 2):
            t = vT + 2 * ((i // 2) & 3)
            x = base + i
            if not pk:
                T.append(lambda t=t, x=x, i=i: a(f"""
                v_mul_f32 v{t}, s{sC1}, v{x}
                v_mul_f32 v{t+1}, s{sC1}, v{x+1}
                v_exp_f32_e64 v{t}, v{t} clamp
                v_exp_f32_e64 v{t+1}, v{t+1} clamp
                v_max_f32 v{x}, {EPS}, v{x}
                v_max_f32 v{x+1}, {EPS}, v{x+1}
                v_add_f32 v{x}, v{x}, v{t}
                v_add_f32 v{x+1}, v{x+1}, v{t+1}
                v_cvt_pk_bf16_f32 v{dst + i//2}, v{x}, v{x+1}
                """))
                continue
            T.append(lambda t=t, x=x, i=i: a(f"""
            v_pk_mul_f32 {vr(t,2)}, {vr(x,2)}, s[{sC1}:{sC1+1}]
            v_max_f32 v{x}, {EPS}, v{x}
            v_exp_f32_e64 v{t}, v{t} clamp
            v_exp_f32_e64 v{t+1}, v{t+1} clamp
            v_max_f32 v{x+1}, {EPS}, v{x+1}
            v_pk_add_f32 {vr(x,2)}, {vr(x,2)}, {vr(t,2)}
            v_cvt_pk_bf16_f32 v{dst + i//2}, v{x}, v{x+1}
            """))
        return T
    def wo_dma(vm):
        T = []
        for i in range(15):
            def f(i=i):
                if i == 0:
                    srd(a, SW, 38, 39, 448 * 896)
                    a(f"s_mul_i32 s{sT1}, s{sWV}, 20480\ns_mov_b32 s{sT0}, 0")
                a(f"s_add_u32 m0, s{sT1}, {1024*i}")
                if i: a(f"s_add_u32 s{sT0}, s{sT0}, 7168")
                vm.op(f"buffer_load_dwordx4 v{vWO}, s[{SW}:{SW+3}], s{sT0} offen lds", "wo")
            T.append(f)
        return T
    PK, PV, KVD = 128, 144, 48
    vm = gemm(True)
    st(3)
    a(f"s_setprio {os.environ.get('GPRIO1', 3)}")
    for f in phi_t(GA, 16, PK, os.environ.get('KVPK')): f()
    for t in range(2):
        for i in range(8):
            a(f"v_cvt_pk_bf16_f32 v{PV+8*t+i}, v{GA+32+16*t+2*i}, v{GA+32+16*t+2*i+1}")
    a(f"s_mov_b32 exec_lo, {1<<28}\ns_mov_b32 exec_hi, {1<<28}")
    for i in range(16): a(f"v_mov_b32 v{PV+i}, 0x3f803f80")
    a("s_mov_b64 exec, -1")
    for u in range(2):
        a(f"v_mfma_f32_32x32x16_bf16 {vr(KVD,16)}, {vr(PK+4*u,4)}, {vr(PV+4*u,4)}, {'0' if u == 0 else vr(KVD,16)}")
    for f in phi_t(GA + 16, 16, PK + 8, os.environ.get('KVPK')): f()
    for u in range(2):
        a(f"v_mfma_f32_32x32x16_bf16 {vr(KVD,16)}, {vr(PK+8+4*u,4)}, {vr(PV+8+4*u,4)}, {vr(KVD,16)}")
    st(4)
    k.poll(vm, vFZ, vFT, issued=True, tag="zp")
    for q in range(3):
        a(f"ds_write_b128 v{vEX}, {vr(KVD+4*q,4)} offset:{1024*q}")
    a("s_mov_b32 exec_lo, 0")
    for i in range(12, 16): a(f"v_mov_b32 v{KVD+i}, 0")
    a("s_mov_b64 exec, -1")
    a(f"ds_write_b128 v{vEX}, {vr(KVD+12,4)} offset:3072")
    a("s_waitcnt lgkmcnt(0)\ns_barrier")
    for i in range(8):
        a(f"ds_read2st64_b32 {vr(GA+2*i,2)}, v{vAT+i} offset0:0 offset1:160")
    for i in range(8):
        a(f"s_waitcnt lgkmcnt({7-i})")
        a(f"v_add_f32 v{GA+2*i}, v{GA+2*i}, v{GA+2*i+1}")
        a(f"buffer_atomic_add_f32 v{GA+2*i}, v{vAT+i}, {WSR}, s{sAT} offen sc1")
    st(5)
    vm.drain()
    k.poll_issue(vm, vFQ, vFT)
    W = wo_dma(vm)
    a("s_cmp_ge_u32 s2, 224\ns_cbranch_scc1 L_kvw")
    for f in W[:6]: f()
    a("s_waitcnt vmcnt(7)\nL_kvw:\ns_cbranch_scc0 L_kvw2\ns_waitcnt vmcnt(1)\nL_kvw2:")
    a(f"s_barrier\ns_cmp_lg_u32 s{sWV}, 0\ns_cbranch_scc1 L_kvf")
    k.flag(vm, sFL, 1)
    a("L_kvf:")
    st(6)
    a("s_cmp_ge_u32 s2, 224\ns_cbranch_scc1 L_kvend")
    for f in W[6:]: f()
    a("s_waitcnt vmcnt(9)\ns_branch L_fin3")
    a("L_GQ:")
    vm = gemm(False)
    st(3)
    a(f"s_setprio {os.environ.get('GPRIO1', 3)}")
    for t in range(2):
        for f in phi_t(GA + 16 * t, 16, PK + 8 * t, False): f()
        for ks in range(2):
            vm.op(f"buffer_store_dwordx4 {vr(PK+8*t+4*ks,4)}, v3, {WSR}, s{sAT if t == 0 else sKX} offen offset:{WS_PQ + 1024*ks} {SC}", "pqs")
    st(4)
    k.init_check(vm, vFT)
    st(5)
    vm.wait("pqs")
    k.flag(vm, sFL, 1)
    a("s_barrier")
    st(6)
    a(k.poll_ld(vFQ, vFT) + "\ns_waitcnt vmcnt(0)")
    A1, O, A2, KB, K23, WOFR = 16, 48, 64, 128, 144, 176
    vm = Cnt(a, "vmcnt"); lg = Cnt(a, "lgkmcnt")
    a("L_fin3:")
    a(f"s_setprio {os.environ.get('GPRIO2', 1)}")
    a(f"v_mov_b32 v12, v{vFK}")
    k.poll(vm, vFQ, vFT, issued=True)
    st(7)
    a(f"""
    s_and_b32 s{sT0}, s2, 31
    s_lshl_b32 s{sT0}, s{sT0}, 16
    s_lshl_b32 s{sT1}, s{sWV}, 13
    s_add_u32 s{sT0}, s{sT0}, s{sT1}
    s_add_u32 s{sT1}, s{sT0}, 32768
    s_add_u32 s{sT2}, s{sT0}, 4096
    s_add_u32 s{sT3}, s{sT1}, 4096
    """)
    for hl in range(4):
        for t in range(2):
            for ks in range(2):
                so = [[sT0, sT1], [sT2, sT3]][hl >> 1][t]
                vm.op(f"buffer_load_dwordx4 {ar(16*hl+8*t+4*ks,4)}, v3, {WSR}, s{so} offen offset:{WS_PQ + 2048*(hl&1) + 1024*ks} {SC}", "pq")
    a(f"s_cmp_lg_u32 s{sTY}, 0\ns_cbranch_scc1 L_havewo")
    for f in wo_dma(Cnt(a, "vmcnt")): f()
    a("L_havewo:")
    k.poll_issue(vm, 12, 8)
    a(f"""
    s_lshl_b32 s{sT0}, s{sWV}, 14
    s_add_u32 s{sT0}, s{sT0}, {WS_KVA}
    s_mul_i32 s{sT1}, s{sWV}, 20480
    v_bfe_u32 v5, v2, 2, 2
    v_lshrrev_b32 v6, 5, v2
    v_lshl_add_u32 v5, v6, 2, v5
    v_lshlrev_b32 v5, 7, v5
    v_and_b32 v7, 1, v2
    v_lshl_add_u32 v5, v7, 5, v5
    v_bfe_u32 v7, v2, 4, 1
    v_lshl_add_u32 v5, v7, 4, v5
    v_bfe_u32 v7, v2, 1, 1
    v_lshl_add_u32 v5, v7, 3, v5
    v_bfe_u32 v7, v2, 3, 1
    v_lshl_add_u32 v5, v7, 6, v5
    v_xor_b32 v15, 64, v5
    v_add_u32 v5, s{sT1}, v5
    v_add_u32 v15, s{sT1}, v15
    s_mov_b32 s{sT2}, {EPS}
    s_mov_b32 s{sC1}, -1
    s_mov_b32 s{sC1+1}, 0
    v_and_b32 v13, 31, v2
    v_mul_u32_u24 v13, 272, v13
    v_lshl_add_u32 v13, v6, 6, v13
    v_add_u32 v13, s{sT1}, v13
    v_lshrrev_b32 v7, 3, v0
    v_and_b32 v14, 7, v0
    v_mul_u32_u24 v10, 272, v7
    v_lshl_add_u32 v10, v14, 5, v10
    v_mul_u32_u24 v11, 1792, v7
    v_lshl_add_u32 v11, v14, 4, v11
    s_and_b32 s{sT3}, s2, 31
    s_mul_i32 s{sT3}, s{sT3}, {64*1792}
    s_lshr_b32 s{sT4}, s2, 5
    s_lshl_b32 s{sT4}, s{sT4}, 7
    s_add_u32 s{sT3}, s{sT3}, s{sT4}
    s_add_u32 s{sT3}, s{sT3}, 896
    s_add_u32 s{sT4}, s{sT3}, {32*1792}
    v_mov_b32 v14, 0x7fff0000
    v_cndmask_b32 v14, v14, v3, s[{sC1}:{sC1+1}]
    """)
    def ldwo(hl):
        for ks in range(2):
            for ct in range(2):
                for i in range(2):
                    lg.op(f"ds_read_b64_tr_b16 {vr(WOFR+8*ks+4*ct+2*i,2)}, v{15 if ct else 5} offset:{128*(28*hl+16*ks+8*i)}", f"wo{hl}")
    k.poll(vm, 12, 8, issued=True)
    vm.drain()
    st(8)
    def kvsrc(hl): return A1 + 16 * hl if hl < 2 else K23 + 16 * (hl - 2)
    def kvb(hl): return KB + 8 * hl if hl < 2 else K23 + 16 * (hl - 2)
    for hl in range(4):
        for q in range(4):
            vm.op(f"buffer_load_dwordx4 {vr(kvsrc(hl)+4*q,4)}, v{14 if q == 3 else 3}, {WSR}, s{sT0} offen offset:{1024*q} {SC}", f"kv{hl}")
        if hl < 3: a(f"s_add_u32 s{sT0}, s{sT0}, 4096")
    ldwo(0)
    a(f"v_add_u32 v12, 40960, v10")
    def cvtkv(hl):
        T = []
        for i in range(8):
            def f(i=i):
                if i == 0: vm.wait(f"kv{hl}")
                a(f"v_cvt_pk_bf16_f32 v{kvb(hl)+i}, v{kvsrc(hl)+2*i}, v{kvsrc(hl)+2*i+1}")
            T.append(f)
        return T
    def s1(u):
        hl, t = u >> 1, u & 1
        A = vr(A1 + 16 * (u & 1), 16)
        return [lambda: a(f"v_mfma_f32_32x32x16_bf16 {A}, {vr(kvb(hl),4)}, {ar(16*hl+8*t,4)}, 0"),
                lambda: a(f"v_mfma_f32_32x32x16_bf16 {A}, {vr(kvb(hl)+4,4)}, {ar(16*hl+8*t+4,4)}, {A}")]
    DN = 6
    def scale(u):
        A = A1 + 16 * (u & 1); Ou = O + 8 * (u & 1)
        L = [f"v_mov_b32 v{DN}, v{A+12}", f"v_mov_b32 v{DN+2}, v{A+12}", f"v_permlane32_swap_b32 v{DN}, v{DN+2}",
             f"v_add_f32 v{DN+2}, s{sT2}, v{DN+2}", f"v_rcp_f32 v{DN+2}, v{DN+2}"]
        for i in range(8):
            L.append(f"v_mul_f32 v{A+2*i}, v{A+2*i}, v{DN+2}")
            L.append(f"v_mul_f32 v{A+2*i+1}, v{A+2*i+1}, v{DN+2}")
            L.append(f"v_cvt_pk_bf16_f32 v{Ou+i}, v{A+2*i}, v{A+2*i+1}")
        L += [f"v_cndmask_b32 v{Ou+6}, 0, v{Ou+6}, s[{sC1}:{sC1+1}]", f"v_cndmask_b32 v{Ou+7}, 0, v{Ou+7}, s[{sC1}:{sC1+1}]"]
        return [lambda s=s: a(s) for s in L]
    def s2(u):
        hl, t = u >> 1, u & 1
        Ou = O + 8 * (u & 1); T = []
        for ks in range(2):
            for ct in range(2):
                acc = vr(A2 + 32 * t + 16 * ct, 16)
                cin = "0" if (hl == 0 and ks == 0) else acc
                def f(s=f"v_mfma_f32_32x32x16_bf16 {acc}, {vr(WOFR+8*ks+4*ct,4)}, {vr(Ou+4*ks,4)}, {cin}", first=(ks == 0 and ct == 0), last=(ks == 1 and ct == 1)):
                    if first and t == 0: lg.wait(f"wo{hl}")
                    a(s)
                    if last and t == 1 and hl < 3: ldwo(hl + 1)
                T.append(f)
        return T
    run = lambda T: [f() for f in T]
    run(cvtkv(0)); run(cvtkv(1))
    run(s1(0)); run(s1(1)); run(scale(0))
    for u in range(8):
        main = s2(u)
        fill = scale(u + 1) if u + 1 < 8 else []
        if u + 2 < 8:
            if u + 2 in (4, 6): run(cvtkv((u + 2) >> 1))
            main = s1(u + 2) + main
        if u == 7:
            fill = [lambda ct=ct, i=i: a(f"ds_write_b128 v13, {vr(A2+16*ct+4*i,4)} offset:{128*ct + 16*i}") for ct in range(2) for i in range(4)]
            weave(main, fill, start=1)
        else:
            weave(main, fill)
    st(9)
    for ct in range(2):
        for i in range(4):
            a(f"ds_write_b128 v13, {vr(A2+32+16*ct+4*i,4)} offset:{32*272 + 128*ct + 16*i}")
    a("s_waitcnt lgkmcnt(0)\ns_barrier")
    st(10)
    R = 64
    for t in range(2):
        for w in range(4):
            for h in range(2):
                a(f"ds_read_b128 {vr(R+32*t+8*w+4*h,4)}, v{10 if w < 2 else 12} offset:{20480*(w&1) + 32*272*t + 16*h}")
    for t in range(2):
        b = R + 32 * t
        a(f"s_waitcnt lgkmcnt({8 if t == 0 else 0})")
        for i in range(8):
            a(f"v_add_f32 v{b+i}, v{b+i}, v{b+8+i}")
            a(f"v_add_f32 v{b+16+i}, v{b+16+i}, v{b+24+i}")
        for i in range(8):
            a(f"v_add_f32 v{b+i}, v{b+i}, v{b+16+i}")
        for i in range(4):
            a(f"v_cvt_pk_bf16_f32 v{b+8+i}, v{b+2*i}, v{b+2*i+1}")
        a(f"buffer_store_dwordx4 {vr(b+8,4)}, v11, s[{SO}:{SO+3}], s{sT3 if t == 0 else sT4} offen {os.environ.get('NTO','')}")
    a("L_kvend:")
    st.end(1)
    a("s_endpgm")

from v6s import gen_S
```

```python
import struct, os
from asmlib import *
from stamp import Stamper

WS_PQ  = 0x000000
WS_KVA = 0x200000
WS_FLG = 0x210000
WS_KF  = 0x300000
WS_UT  = 0x500000
WS_SIZE = 0x700000
F_UT, F_KF, F_Q, F_KV, F_Z = [WS_FLG + 128 * x for x in (0, 896, 1792, 2304, 2432)]
LDS = 81920
LOG2E = 0x3fb8aa3b
INV2PI = 0x3e22f983
def f2u(x): return hex(struct.unpack("<I", struct.pack("<f", x))[0])
EPS = f2u(1e-6)
SC = "sc1"

def cmul(a, d, x, y):
    assert d != x and d != y
    if os.environ.get('PK', '0') == '0':
        a(f"v_mul_f32 v{d}, v{x}, v{y}\nv_mul_f32 v{d+1}, v{x}, v{y+1}\nv_fma_f32 v{d}, -v{x+1}, v{y+1}, v{d}\nv_fmac_f32 v{d+1}, v{x+1}, v{y}")
        return
    a(f"v_pk_mul_f32 {vr(d,2)}, {vr(x,2)}, {vr(y,2)} op_sel:[0,0] op_sel_hi:[0,1]")
    a(f"v_pk_fma_f32 {vr(d,2)}, {vr(x,2)}, {vr(y,2)}, {vr(d,2)} op_sel:[1,1,0] op_sel_hi:[1,0,1] neg_lo:[1,0,0]")
def srd(a, S, lo, hi, n):
    a(f"s_mov_b32 s{S}, s{lo}\ns_mov_b32 s{S+1}, s{hi}\ns_mov_b32 s{S+2}, {n}\ns_mov_b32 s{S+3}, 0x20000")
def weave(main, fill, start=0):
    n, m, j = len(main), len(fill), 0
    for i, f in enumerate(main):
        f()
        tgt = 0 if i < start else min(m, ((i - start + 1) * m + (n - start) - 1) // (n - start))
        while j < tgt: fill[j](); j += 1
    while j < m: fill[j](); j += 1

SWS, SX, SW, SO = 48, 52, 56, 60
sC1 = 64
sN = 46
NV = 190
sWV, sT0, sT1, sT2, sT3, sT4, sA, sB, sC, sD, sE, sF, sG, sH, sI, sJ = range(66, 82)
WSR = f"s[{SWS}:{SWS+3}]"

class K:
    def __init__(self):
        self.a = Asm(); self.nl = 0
    def lab(self, p="L"):
        self.nl += 1; return f"{p}_{self.nl}"
    def _spin(self, vm, tag, cmp, ld, post=""):
        a = self.a; L, Lok = self.lab("Lp"), self.lab("Lpo")
        vm.wait(tag)
        a(f"""{L}:
        {cmp}
        s_cmp_eq_u64 vcc, 0
        s_cbranch_scc1 {Lok}
        s_sub_u32 s15, s15, 1
        s_cbranch_scc1 L_end
        s_mov_b64 exec, vcc
        s_sleep {os.environ.get('SLP', 1)}
        {ld}
        s_waitcnt vmcnt(0)
        s_branch {L}
        {Lok}:
        s_mov_b64 exec, -1
        {post}""")
    def init_issue(self, vm, t=None): vm.op(f"global_load_dwordx2 {vr(NV,2)}, v4, s[42:43] {SC}", "init")
    def init_check(self, vm, t=None):
        self._spin(vm, "init", f"v_cmp_eq_u32 vcc, 0, v{NV}", f"global_load_dwordx2 {vr(NV,2)}, v4, s[42:43] {SC}",
                   f"v_readfirstlane_b32 s{sN}, v{NV}\nv_readfirstlane_b32 s{sN+1}, v{NV+1}")
    def poll_ld(self, vaddr, t): return f"buffer_load_dwordx2 {vr(t,2)}, v{vaddr}, {WSR}, 0 offen {SC}"
    def poll_cmp(self, t): return f"v_cmp_ne_u64 vcc, s[{sN}:{sN+1}], {vr(t,2)}"
    def poll_issue(self, vm, vaddr, t): vm.op(self.poll_ld(vaddr, t), "poll")
    def poll(self, vm, vaddr, t, issued=False, tag="poll"):
        if not issued: self.poll_issue(vm, vaddr, t)
        self._spin(vm, tag, self.poll_cmp(t), self.poll_ld(vaddr, t))
    def flag(self, vm, soff, vone=None):
        self.a("s_mov_b64 exec, 1")
        vm.op(f"buffer_store_dwordx2 {vr(NV,2)}, off, {WSR}, s{soff} {SC}", "flag")
        self.a("s_mov_b64 exec, -1")

def gen():
    k = K(); a = k.a
    st = Stamper(a, 0, 44, sWV)
    a("s_cmp_ge_u32 s2, 512\ns_cbranch_scc1 L_end")
    st.start()
    a(f"""
    s_load_dwordx16 s[16:31], s[0:1], 0
    s_load_dwordx8 s[32:39], s[0:1], 64
    s_load_dwordx4 s[40:43], s[0:1], 96
    s_load_dwordx2 s[44:45], s[0:1], 112
    v_lshrrev_b32 v1, 6, v0
    v_and_b32 v2, 63, v0
    v_readfirstlane_b32 s{sWV}, v1
    v_lshlrev_b32 v3, 4, v2
    v_mov_b32 v4, 64
    s_mov_b32 s15, 40000
    {'s_xor_b32 s2, s2, 256' if os.environ.get('GFIRST') else ''}
    s_cmp_lt_u32 s2, 256
    s_cbranch_scc1 L_S
    s_sub_u32 s2, s2, 256
    """)
    gen_G(k, st)
    gen_S(k, st)
    a("L_end:\ns_endpgm")
    return a

def gen_G(k, st):
    a = k.a
    if os.environ.get('SKIP_G'): a('s_endpgm')
    sRB, sP, sKX, sFL, sXO, sWO, sXM, sWM, sTY, sAT = sA, sB, sC, sD, sE, sF, sG, sH, sI, sJ
    vXD, vWD, vXA, vWA = 8, 12, 16, 20
    vWO, vFQ, vFK, vWS = 21, 22, 23, 24
    vFT, vEX, vFZ = 26, 5, 6
    vAT = 28
    vT = 36
    GA = 64; XF, WF = 128, 144
    a(f"""
    s_setprio {os.environ.get('GPRIO', 1)}
    s_and_b32 s{sT0}, s2, 7
    s_lshr_b32 s{sT1}, s2, 3
    s_lshr_b32 s{sTY}, s2, 7
    s_lshr_b32 s{sRB}, s{sT0}, 1
    s_lshl_b32 s{sRB}, s{sRB}, 2
    s_bfe_u32 s{sT2}, s{sT1}, 0x20002
    s_add_u32 s{sRB}, s{sRB}, s{sT2}
    s_and_b32 s{sP}, s{sT0}, 1
    s_lshl_b32 s{sP}, s{sP}, 2
    s_and_b32 s{sT3}, s{sT1}, 3
    s_add_u32 s{sP}, s{sP}, s{sT3}
    s_lshl_b32 s{sKX}, s{sT3}, 1
    s_add_u32 s{sKX}, s{sKX}, s{sTY}
    s_mul_i32 s{sT2}, s{sT2}, 3
    s_add_u32 s{sKX}, s{sKX}, s{sT2}
    s_cmp_ge_u32 s{sKX}, 14
    s_cselect_b32 s{sT2}, 14, 0
    s_sub_u32 s{sKX}, s{sKX}, s{sT2}
    s_cmp_ge_u32 s{sKX}, 7
    s_cselect_b32 s{sT2}, 7, 0
    s_sub_u32 s{sKX}, s{sKX}, s{sT2}
    {f's_mov_b32 s{sKX}, 0' if os.environ.get('NOROT') else ''}
    s_lshl_b32 s{sXO}, s{sKX}, 7
    s_mul_i32 s{sWO}, s{sKX}, {64*2688}
    v_lshrrev_b32 v{vT+1}, 3, v2
    v_and_b32 v{vT+2}, 7, v2
    v_lshrrev_b32 v{vT+3}, 4, v2
    v_xor_b32 v{vT+6}, v{vT+2}, v{vT+3}
    v_lshlrev_b32 v{vT+6}, 4, v{vT+6}
    v_mul_u32_u24 v{vT+7}, 896, v{vT+1}
    s_lshl_b32 s{sT0}, s{sRB}, 2
    s_add_u32 s{sT0}, s{sT0}, s{sWV}
    s_mul_i32 s{sT0}, s{sT0}, {32*896}
    v_add3_u32 v{vXD}, v{vT+6}, v{vT+7}, s{sT0}
    v_xor_b32 v{vT+6}, 64, v{vT+6}
    v_add3_u32 v{vXD+1}, v{vT+6}, v{vT+7}, s{sT0}
    v_add_u32 v{vXD+1}, {7168-1024}, v{vXD+1}
    v_add_u32 v{vXD+2}, {2*(7168-1024)}, v{vXD}
    v_add_u32 v{vXD+3}, {2*(7168-1024)}, v{vXD+1}
    v_and_b32 v{vT+6}, 1, v{vT+3}
    v_lshlrev_b32 v{vT+6}, 2, v{vT+6}
    v_xor_b32 v{vT+8}, v{vT+6}, v{vT+2}
    v_min_u32 v{vT+6}, 6, v{vT+8}
    v_lshlrev_b32 v{vT+6}, 4, v{vT+6}
    v_mul_u32_u24 v{vT+9}, 2688, v{vT+1}
    s_lshr_b32 s{sT0}, s{sWV}, 1
    s_add_u32 s{sT0}, s{sT0}, 1
    s_mul_i32 s{sT0}, s{sT0}, 896
    s_and_b32 s{sT1}, s{sWV}, 1
    s_mul_i32 s{sT1}, s{sT1}, {32*2688}
    s_add_u32 s{sT0}, s{sT0}, s{sT1}
    s_mul_i32 s{sT1}, s{sWV}, {16*2688}
    s_lshl_b32 s{sXM}, s{sWV}, 12
    s_lshl_b32 s{sT2}, s{sWV}, 11
    s_cmp_eq_u32 s{sTY}, 0
    s_cselect_b32 s{sT0}, s{sT1}, s{sT0}
    s_cselect_b32 s{sWM}, s{sT2}, s{sXM}
    s_add_u32 s{sWM}, s{sWM}, 49152
    s_mul_i32 s{sT1}, s{sP}, 112
    s_add_u32 s{sT0}, s{sT0}, s{sT1}
    v_add3_u32 v{vWD}, v{vT+6}, v{vT+9}, s{sT0}
    v_add_u32 v{vWD+1}, {8*2688-1024}, v{vWD}
    v_add_u32 v{vWD+2}, {2*(8*2688-1024)}, v{vWD}
    v_add_u32 v{vWD+3}, {3*(8*2688-1024)}, v{vWD}
    s_mov_b32 s{SX+2}, {2048*896}
    s_mov_b32 s{SX+3}, 0x20000
    s_mov_b32 s{SW+2}, {448*2688}
    s_mov_b32 s{SW+3}, 0x20000
    s_cmp_eq_u32 s{sTY}, 0
    s_waitcnt lgkmcnt(0)
    s_mov_b32 s{SX}, s34
    s_mov_b32 s{SX+1}, s35
    s_mov_b32 s{SW}, s36
    s_mov_b32 s{SW+1}, s37
    """)
    st(0)
    a("s_cbranch_scc1 L_GQ")
    def setup(kv, vm):
        a(f"""
        v_and_b32 v{vT+6}, 31, v2
        v_lshrrev_b32 v{vT+4}, 5, v2
        v_bfe_u32 v{vT+5}, v2, 1, 3
        v_xor_b32 v{vT+5}, v{vT+5}, v{vT+4}
        v_lshlrev_b32 v{vT+5}, 4, v{vT+5}
        v_lshl_add_u32 v{vT+5}, v{vT+6}, 7, v{vT+5}
        s_lshr_b32 s{sT0}, s{sWV}, 1
        s_lshl_b32 s{sT0}, s{sT0}, 13
        v_add_u32 v{vXA}, s{sT0}, v{vT+5}
        v_xor_b32 v{vXA+1}, 32, v{vXA}
        v_xor_b32 v{vXA+2}, 64, v{vXA}
        v_xor_b32 v{vXA+3}, 96, v{vXA}
        v_bfe_u32 v{vT+5}, v2, 2, 2
        v_lshl_add_u32 v{vT+5}, v{vT+4}, 3, v{vT+5}
        v_lshlrev_b32 v{vT+5}, 7, v{vT+5}
        v_and_b32 v{vT+9}, 3, v2
        v_lshlrev_b32 v{vT+10}, 3, v{vT+9}
        v_bfe_u32 v{vT+11}, v2, 4, 1
        v_lshl_add_u32 v{vT+10}, v{vT+11}, 5, v{vT+10}
        s_and_b32 s{sT0}, s{sWV}, 1
        s_mul_i32 s{sT0}, s{sT0}, 56
        v_add_u32 v{vT+10}, s{sT0}, v{vT+10}
        v_bfe_u32 v{vT+11}, v2, 3, 1
        v_lshlrev_b32 v{vT+11}, 6, v{vT+11}
        v_xor_b32 v{vT+10}, v{vT+10}, v{vT+11}
        v_add_u32 v{vT+5}, v{vT+5}, v{vT+10}
        v_add_u32 v{vWA}, 49152, v{vT+5}
        s_and_b32 s{sT0}, s2, 31
        s_lshl_b32 s{sT0}, s{sT0}, 4
        s_lshl_b32 s{sT1}, s{sWV}, 2
        s_add_u32 s{sT0}, s{sT0}, s{sT1}
        s_lshl_b32 s{sT0}, s{sT0}, 7
        s_add_u32 s{sT0}, s{sT0}, {F_Q}
        v_lshlrev_b32 v{vT+9}, 7, v{vT+9}
        v_add_u32 v{vFQ}, s{sT0}, v{vT+9}
        s_lshl_b32 s{sT0}, s{sWV}, 12
        s_add_u32 s{sT0}, s{sT0}, {F_KV}
        v_lshlrev_b32 v{vFK}, 7, v{vT+6}
        v_add_u32 v{vFK}, s{sT0}, v{vFK}
        v_lshlrev_b32 v{vT+8}, 4, v{vT+8}
        s_mul_i32 s{sT0}, s{sWV}, {112*896}
        s_lshr_b32 s{sT1}, s2, 5
        s_lshl_b32 s{sT1}, s{sT1}, 7
        s_add_u32 s{sT0}, s{sT0}, s{sT1}
        v_add3_u32 v{vWO}, v{vT+8}, v{vT+7}, s{sT0}
        v_add_u32 v{vWS}, s{sXM}, v3
        v_add_u32 v{vWS+1}, s{sWM}, v3
        s_mov_b32 s{sC1}, {LOG2E}
        s_mov_b32 s{sC1+1}, {LOG2E}
        """)
        srd(a, SWS, 44, 45, WS_SIZE)
        srd(a, SO, 40, 41, 2048 * 1792)
        if os.environ.get('TLB'):
            a(f"""
            v_lshlrev_b32 v{vT+10}, {os.environ['TLB']}, v2
            v_mul_u32_u24 v{vT+11}, 57344, v2
            s_lshl_b32 s{sT0}, s{sWV}, {int(os.environ['TLB'])-2}
            """)
            vm.op(f"buffer_load_dword v{vT+10}, v{vT+10}, {WSR}, s{sT0} offen", "tlb")
            vm.op(f"buffer_load_dword v{vT+11}, v{vT+11}, s[{SO}:{SO+3}], 0 offen", "tlb")
            vm.op(f"global_load_dword v{vT+9}, v3, s[38:39]", "tlb")
        if kv:
            a(f"""
            s_mul_i32 s{sT0}, s{sWV}, 20480
            s_add_u32 s{sT0}, s{sT0}, 16384
            v_add_u32 v{vEX}, s{sT0}, v3
            s_and_b32 s{sT0}, s{sWV}, 1
            s_lshr_b32 s{sT1}, s{sWV}, 1
            s_lshl_b32 s{sT1}, s{sT1}, 11
            s_mul_i32 s{sT2}, s{sT0}, 20480
            s_add_u32 s{sT2}, s{sT2}, s{sT1}
            s_add_u32 s{sT2}, s{sT2}, 16384
            s_and_b32 s{sT3}, s{sRB}, 7
            s_lshl_b32 s{sT3}, s{sT3}, 8
            s_add_u32 s{sT3}, s{sT3}, s{sT2}
            v_lshlrev_b32 v{vT+4}, 2, v2
            v_add_u32 v{vAT}, s{sT3}, v{vT+4}
            s_lshl_b32 s{sT0}, s{sT0}, 12
            s_add_u32 s{sT0}, s{sT0}, s{sT1}
            s_lshl_b32 s{sAT}, s{sP}, 13
            s_add_u32 s{sAT}, s{sAT}, s{sT0}
            s_add_u32 s{sAT}, s{sAT}, {WS_KVA}
            s_sub_u32 s{sAT}, s{sAT}, s{sT2}
            s_lshl_b32 s{sFL}, s{sP}, 4
            s_add_u32 s{sFL}, s{sFL}, s{sRB}
            s_lshl_b32 s{sFL}, s{sFL}, 7
            s_add_u32 s{sFL}, s{sFL}, {F_KV}
            """)
            for i in range(1, 8): a(f"v_xor_b32 v{vAT+i}, {i << 8}, v{vAT}")
            a(f"v_and_b32 v{vFZ}, 3, v2\nv_lshlrev_b32 v{vFZ}, 7, v{vFZ}\nv_add_u32 v{vFZ}, {F_Z}, v{vFZ}")
        else:
            a(f"""
            s_lshl_b32 s{sT3}, s{sRB}, 1
            s_lshr_b32 s{sT1}, s{sWV}, 1
            s_add_u32 s{sT3}, s{sT3}, s{sT1}
            s_lshl_b32 s{sT3}, s{sT3}, 4
            s_lshl_b32 s{sT1}, s{sP}, 1
            s_add_u32 s{sT1}, s{sT1}, s{sT3}
            s_and_b32 s{sT2}, s{sWV}, 1
            s_add_u32 s{sT1}, s{sT1}, s{sT2}
            s_lshl_b32 s{sFL}, s{sT1}, 7
            s_add_u32 s{sFL}, s{sFL}, {F_Q}
            s_add_u32 s{sT1}, s{sT1}, s{sT3}
            s_lshl_b32 s{sAT}, s{sT1}, 11
            s_add_u32 s{sKX}, s{sAT}, 32768
            """)
        for i in range(32): a(f"v_mov_b32 v{GA+i}, {EPS}")
    def gemm(kv):
        vm, lg = Cnt(a, "vmcnt"), Cnt(a, "lgkmcnt")
        nt = 2 if kv else 1
        nws = 2 if kv else 4
        wsz = 16384 if kv else 8192
        stage = {}
        def ld(kind, c, regs=None):
            n = 4 if kind == "x" else 2 * nt
            vD, S, sO = (vXD, SX, sXO) if kind == "x" else (vWD, SW, sWO)
            step, end = (128, 896) if kind == "x" else (64 * 2688, 448 * 2688)
            if regs is not None: stage[(kind, c)] = regs
            T = []
            for j in range(n):
                def f(j=j):
                    if regs is None:
                        if j == 0: a(f"s_add_u32 m0, s{sXM if kind == 'x' else sWM}, {16384*(c%3) if kind == 'x' else wsz*(c%nws)}")
                        vm.op(f"buffer_load_dwordx4 v{vD+j}, s[{S}:{S+3}], s{sO} offen offset:{1024*j} {os.environ.get('NTG','')} lds", f"{kind}{c}")
                    else:
                        vm.op(f"buffer_load_dwordx4 {vr(regs[1]+4*j,4,regs[0])}, v{vD+j}, s[{S}:{S+3}], s{sO} offen offset:{1024*j} {os.environ.get('NTG','')}", f"{kind}{c}")
                    if j == n - 1: a(f"s_add_u32 s{sO}, s{sO}, {step}\ns_cmp_eq_u32 s{sO}, {end}\ns_cselect_b32 s{sO}, 0, s{sO}")
                T.append(f)
            return T
        def wr(kind, c):
            regs = stage[(kind, c)]
            n = 4 if kind == "x" else 2 * nt
            T = []
            for j in range(n):
                def f(j=j):
                    if j == 0: vm.wait(f"{kind}{c}")
                    off = (16384 * (c % 3) if kind == "x" else wsz * (c % nws)) + 1024 * j
                    lg.op(f"ds_write_b128 v{vWS + (0 if kind == 'x' else 1)}, {vr(regs[1]+4*j,4,regs[0])} offset:{off}", "wr")
                T.append(f)
            return T
        def F(c, ks):
            b = ks & 1
            for n in range(nt):
                for i in range(2):
                    lg.op(f"ds_read_b64_tr_b16 {vr(WF+8*b+4*n+2*i,2)}, v{vWA} offset:{wsz*(c%nws) + ks*2048 + i*512 + n*8192}", f"f{c}{ks}")
            for t in range(2):
                lg.op(f"ds_read_b128 {vr(XF+8*b+4*t,4)}, v{vXA+ks} offset:{16384*(c%3) + 4096*t}", f"f{c}{ks}")
        def M(c, ks, fill=()):
            b = ks & 1
            lg.wait(f"f{c}{ks}")
            T = []
            for n in range(nt):
                for t in range(2):
                    acc = vr(GA + 16 * (n * 2 + t), 16)
                    cin = "0" if (c == 0 and ks == 0 and n == 1) else acc
                    xf, wf = vr(XF + 8 * b + 4 * t, 4), vr(WF + 8 * b + 4 * n, 4)
                    T.append(lambda s=(f"v_mfma_f32_32x32x16_bf16 {acc}, {xf}, {wf}, {cin}" if kv else f"v_mfma_f32_32x32x16_bf16 {acc}, {wf}, {xf}, {cin}"): a(s))
            weave(T, list(fill))
        run = lambda T: [f() for f in T]
        if kv or os.environ.get('QDMA'):
            for x in (("x", 0), ("w", 0), ("x", 1), ("w", 1)): run(ld(*x))
            R = [("a", 0), ("a", 16), ("a", 32)]
            lds_ = {0: [("w", 2, R[0]), ("x", 2), ("w", 3, R[1])], 1: [("x", 3), ("w", 4, R[2])], 2: [("x", 4), ("w", 5, R[0])],
                    3: [("x", 5), ("w", 6, R[1])], 4: [("x", 6)]}
            wrs = {c: [("w", c + 2)] for c in range(5)}
            if not kv:
                lds_ = {0: [("x", 2), ("w", 2), ("w", 3)], 1: [("x", 3), ("w", 4)], 2: [("x", 4), ("w", 5)], 3: [("x", 5), ("w", 6)], 4: [("x", 6)]}
                wrs = {}
            setup(kv, vm)
            vm.wait(["x0", "w0"]); a("s_barrier")
            st(1)
            F(0, 0); F(0, 1)
            pend = []
            for c in range(7):
                L = sum([ld(*l) for l in lds_.get(c, [])], [])
                if c == 3: L.append(lambda: k.init_issue(vm))
                if c == 5 and kv: L.append(lambda: (k.init_check(vm), vm.op(k.poll_ld(vFZ, vFT), "zp")))
                q = max(1, (len(L) + 2) // 3); w = max(1, (len(pend) + 2) // 3)
                M(c, 0, L[:q] + pend[:w]); F(c, 2)
                M(c, 1, L[q:2*q] + pend[w:2*w]); F(c, 3)
                M(c, 2, L[2*q:] + pend[2*w:])
                if c < 6:
                    dma = [f"{kd}{c+1}" for kd in "xw" if (kd, c + 1) not in stage]
                    if dma and vm.n_after(dma) is not None: vm.wait(dma, "lgkmcnt(0)")
                    else: a("s_waitcnt lgkmcnt(0)")
                    lg.drain()
                    a("s_barrier")
                    F(c + 1, 0)
                    pend = sum([wr(*x) for x in wrs.get(c, [])], [])
                    M(c, 3, pend[:1]); pend = pend[1:]
                    F(c + 1, 1)
                else:
                    lg.wait(f"f{c}3")
                    a("s_barrier")
                    M(c, 3)
            return vm
        RX = [("a", 0), ("a", 16), ("a", 32), ("a", 48)]
        RW = [("v", 160), ("v", 168), ("v", 176), ("v", 96)]
        for c in range(2): run(ld("x", c, RX[c])); run(ld("w", c, RW[c]))
        setup(kv, vm)
        run(wr("x", 0)); run(wr("w", 0))
        a("s_waitcnt lgkmcnt(0)\ns_barrier"); lg.drain()
        st(1)
        F(0, 0); F(0, 1)
        for c in range(7):
            cs = [2, 3] if c == 0 else ([c + 3] if c + 3 < 7 else [])
            L = sum([ld("x", x, RX[x % 4]) + ld("w", x, RW[x % 4]) for x in cs], [])
            if c == 4: L.append(lambda: k.init_issue(vm, vFT))
            P = (wr("x", c + 1) + wr("w", c + 1)) if c + 1 < 7 else []
            q = (len(L) + 1) // 2
            M(c, 0, L[:q]); F(c, 2)
            M(c, 1, L[q:] + P[:2]); F(c, 3)
            M(c, 2, P[2:])
            if c < 6:
                a("s_waitcnt lgkmcnt(0)\ns_barrier"); lg.drain()
                F(c + 1, 0)
                M(c, 3)
                F(c + 1, 1)
            else:
                lg.wait(f"f{c}3")
                M(c, 3)
        return vm
    def phi_t(base, n, dst, pk=True):
        T = []
        for i in range(0, n, 2):
            t = vT + 2 * ((i // 2) & 3)
            x = base + i
            if not pk:
                T.append(lambda t=t, x=x, i=i: a(f"""
                v_mul_f32 v{t}, s{sC1}, v{x}
                v_mul_f32 v{t+1}, s{sC1}, v{x+1}
                v_exp_f32_e64 v{t}, v{t} clamp
                v_exp_f32_e64 v{t+1}, v{t+1} clamp
                v_max_f32 v{x}, {EPS}, v{x}
                v_max_f32 v{x+1}, {EPS}, v{x+1}
                v_add_f32 v{x}, v{x}, v{t}
                v_add_f32 v{x+1}, v{x+1}, v{t+1}
                v_cvt_pk_bf16_f32 v{dst + i//2}, v{x}, v{x+1}
                """))
                continue
            T.append(lambda t=t, x=x, i=i: a(f"""
            v_pk_mul_f32 {vr(t,2)}, {vr(x,2)}, s[{sC1}:{sC1+1}]
            v_max_f32 v{x}, {EPS}, v{x}
            v_exp_f32_e64 v{t}, v{t} clamp
            v_exp_f32_e64 v{t+1}, v{t+1} clamp
            v_max_f32 v{x+1}, {EPS}, v{x+1}
            v_pk_add_f32 {vr(x,2)}, {vr(x,2)}, {vr(t,2)}
            v_cvt_pk_bf16_f32 v{dst + i//2}, v{x}, v{x+1}
            """))
        return T
    def wo_dma(vm):
        T = []
        for i in range(15):
            def f(i=i):
                if i == 0:
                    srd(a, SW, 38, 39, 448 * 896)
                    a(f"s_mul_i32 s{sT1}, s{sWV}, 20480\ns_mov_b32 s{sT0}, 0")
                a(f"s_add_u32 m0, s{sT1}, {1024*i}")
                if i: a(f"s_add_u32 s{sT0}, s{sT0}, 7168")
                vm.op(f"buffer_load_dwordx4 v{vWO}, s[{SW}:{SW+3}], s{sT0} offen lds", "wo")
            T.append(f)
        return T
    PK, PV, KVD = 128, 144, 48
    vm = gemm(True)
    st(3)
    a(f"s_setprio {os.environ.get('GPRIO1', 3)}")
    for f in phi_t(GA, 16, PK, os.environ.get('KVPK')): f()
    for t in range(2):
        for i in range(8):
            a(f"v_cvt_pk_bf16_f32 v{PV+8*t+i}, v{GA+32+16*t+2*i}, v{GA+32+16*t+2*i+1}")
    a(f"s_mov_b32 exec_lo, {1<<28}\ns_mov_b32 exec_hi, {1<<28}")
    for i in range(16): a(f"v_mov_b32 v{PV+i}, 0x3f803f80")
    a("s_mov_b64 exec, -1")
    for u in range(2):
        a(f"v_mfma_f32_32x32x16_bf16 {vr(KVD,16)}, {vr(PK+4*u,4)}, {vr(PV+4*u,4)}, {'0' if u == 0 else vr(KVD,16)}")
    for f in phi_t(GA + 16, 16, PK + 8, os.environ.get('KVPK')): f()
    for u in range(2):
        a(f"v_mfma_f32_32x32x16_bf16 {vr(KVD,16)}, {vr(PK+8+4*u,4)}, {vr(PV+8+4*u,4)}, {vr(KVD,16)}")
    st(4)
    k.poll(vm, vFZ, vFT, issued=True, tag="zp")
    for q in range(3):
        a(f"ds_write_b128 v{vEX}, {vr(KVD+4*q,4)} offset:{1024*q}")
    a("s_mov_b32 exec_lo, 0")
    for i in range(12, 16): a(f"v_mov_b32 v{KVD+i}, 0")
    a("s_mov_b64 exec, -1")
    a(f"ds_write_b128 v{vEX}, {vr(KVD+12,4)} offset:3072")
    a("s_waitcnt lgkmcnt(0)\ns_barrier")
    for i in range(8):
        a(f"ds_read2st64_b32 {vr(GA+2*i,2)}, v{vAT+i} offset0:0 offset1:160")
    for i in range(8):
        a(f"s_waitcnt lgkmcnt({7-i})")
        a(f"v_add_f32 v{GA+2*i}, v{GA+2*i}, v{GA+2*i+1}")
        a(f"buffer_atomic_add_f32 v{GA+2*i}, v{vAT+i}, {WSR}, s{sAT} offen sc1")
    st(5)
    vm.drain()
    k.poll_issue(vm, vFQ, vFT)
    W = wo_dma(vm)
    a("s_cmp_ge_u32 s2, 224\ns_cbranch_scc1 L_kvw")
    for f in W[:6]: f()
    a("s_waitcnt vmcnt(7)\nL_kvw:\ns_cbranch_scc0 L_kvw2\ns_waitcnt vmcnt(1)\nL_kvw2:")
    a(f"s_barrier\ns_cmp_lg_u32 s{sWV}, 0\ns_cbranch_scc1 L_kvf")
    k.flag(vm, sFL, 1)
    a("L_kvf:")
    st(6)
    a("s_cmp_ge_u32 s2, 224\ns_cbranch_scc1 L_kvend")
    for f in W[6:]: f()
    a("s_waitcnt vmcnt(9)\ns_branch L_fin3")
    a("L_GQ:")
    vm = gemm(False)
    st(3)
    a(f"s_setprio {os.environ.get('GPRIO1', 3)}")
    for t in range(2):
        for f in phi_t(GA + 16 * t, 16, PK + 8 * t, False): f()
        for ks in range(2):
            vm.op(f"buffer_store_dwordx4 {vr(PK+8*t+4*ks,4)}, v3, {WSR}, s{sAT if t == 0 else sKX} offen offset:{WS_PQ + 1024*ks} {SC}", "pqs")
    st(4)
    k.init_check(vm, vFT)
    st(5)
    vm.wait("pqs")
    k.flag(vm, sFL, 1)
    a("s_barrier")
    st(6)
    a(k.poll_ld(vFQ, vFT) + "\ns_waitcnt vmcnt(0)")
    A1, O, A2, KB, K23, WOFR = 16, 48, 64, 128, 144, 176
    vm = Cnt(a, "vmcnt"); lg = Cnt(a, "lgkmcnt")
    a("L_fin3:")
    a(f"s_setprio {os.environ.get('GPRIO2', 1)}")
    a(f"v_mov_b32 v12, v{vFK}")
    k.poll(vm, vFQ, vFT, issued=True)
    st(7)
    a(f"""
    s_and_b32 s{sT0}, s2, 31
    s_lshl_b32 s{sT0}, s{sT0}, 16
    s_lshl_b32 s{sT1}, s{sWV}, 13
    s_add_u32 s{sT0}, s{sT0}, s{sT1}
    s_add_u32 s{sT1}, s{sT0}, 32768
    s_add_u32 s{sT2}, s{sT0}, 4096
    s_add_u32 s{sT3}, s{sT1}, 4096
    """)
    for hl in range(4):
        for t in range(2):
            for ks in range(2):
                so = [[sT0, sT1], [sT2, sT3]][hl >> 1][t]
                vm.op(f"buffer_load_dwordx4 {ar(16*hl+8*t+4*ks,4)}, v3, {WSR}, s{so} offen offset:{WS_PQ + 2048*(hl&1) + 1024*ks} {SC}", "pq")
    a(f"s_cmp_lg_u32 s{sTY}, 0\ns_cbranch_scc1 L_havewo")
    for f in wo_dma(Cnt(a, "vmcnt")): f()
    a("L_havewo:")
    k.poll_issue(vm, 12, 8)
    a(f"""
    s_lshl_b32 s{sT0}, s{sWV}, 14
    s_add_u32 s{sT0}, s{sT0}, {WS_KVA}
    s_mul_i32 s{sT1}, s{sWV}, 20480
    v_bfe_u32 v5, v2, 2, 2
    v_lshrrev_b32 v6, 5, v2
    v_lshl_add_u32 v5, v6, 2, v5
    v_lshlrev_b32 v5, 7, v5
    v_and_b32 v7, 1, v2
    v_lshl_add_u32 v5, v7, 5, v5
    v_bfe_u32 v7, v2, 4, 1
    v_lshl_add_u32 v5, v7, 4, v5
    v_bfe_u32 v7, v2, 1, 1
    v_lshl_add_u32 v5, v7, 3, v5
    v_bfe_u32 v7, v2, 3, 1
    v_lshl_add_u32 v5, v7, 6, v5
    v_xor_b32 v15, 64, v5
    v_add_u32 v5, s{sT1}, v5
    v_add_u32 v15, s{sT1}, v15
    s_mov_b32 s{sT2}, {EPS}
    s_mov_b32 s{sC1}, -1
    s_mov_b32 s{sC1+1}, 0
    v_and_b32 v13, 31, v2
    v_mul_u32_u24 v13, 272, v13
    v_lshl_add_u32 v13, v6, 6, v13
    v_add_u32 v13, s{sT1}, v13
    v_lshrrev_b32 v7, 3, v0
    v_and_b32 v14, 7, v0
    v_mul_u32_u24 v10, 272, v7
    v_lshl_add_u32 v10, v14, 5, v10
    v_mul_u32_u24 v11, 1792, v7
    v_lshl_add_u32 v11, v14, 4, v11
    s_and_b32 s{sT3}, s2, 31
    s_mul_i32 s{sT3}, s{sT3}, {64*1792}
    s_lshr_b32 s{sT4}, s2, 5
    s_lshl_b32 s{sT4}, s{sT4}, 7
    s_add_u32 s{sT3}, s{sT3}, s{sT4}
    s_add_u32 s{sT3}, s{sT3}, 896
    s_add_u32 s{sT4}, s{sT3}, {32*1792}
    v_mov_b32 v14, 0x7fff0000
    v_cndmask_b32 v14, v14, v3, s[{sC1}:{sC1+1}]
    """)
    def ldwo(hl):
        for ks in range(2):
            for ct in range(2):
                for i in range(2):
                    lg.op(f"ds_read_b64_tr_b16 {vr(WOFR+8*ks+4*ct+2*i,2)}, v{15 if ct else 5} offset:{128*(28*hl+16*ks+8*i)}", f"wo{hl}")
    k.poll(vm, 12, 8, issued=True)
    vm.drain()
    st(8)
    def kvsrc(hl): return A1 + 16 * hl if hl < 2 else K23 + 16 * (hl - 2)
    def kvb(hl): return KB + 8 * hl if hl < 2 else K23 + 16 * (hl - 2)
    for hl in range(4):
        for q in range(4):
            vm.op(f"buffer_load_dwordx4 {vr(kvsrc(hl)+4*q,4)}, v{14 if q == 3 else 3}, {WSR}, s{sT0} offen offset:{1024*q} {SC}", f"kv{hl}")
        if hl < 3: a(f"s_add_u32 s{sT0}, s{sT0}, 4096")
    ldwo(0)
    a(f"v_add_u32 v12, 40960, v10")
    def cvtkv(hl):
        T = []
        for i in range(8):
            def f(i=i):
                if i == 0: vm.wait(f"kv{hl}")
                a(f"v_cvt_pk_bf16_f32 v{kvb(hl)+i}, v{kvsrc(hl)+2*i}, v{kvsrc(hl)+2*i+1}")
            T.append(f)
        return T
    def s1(u):
        hl, t = u >> 1, u & 1
        A = vr(A1 + 16 * (u & 1), 16)
        return [lambda: a(f"v_mfma_f32_32x32x16_bf16 {A}, {vr(kvb(hl),4)}, {ar(16*hl+8*t,4)}, 0"),
                lambda: a(f"v_mfma_f32_32x32x16_bf16 {A}, {vr(kvb(hl)+4,4)}, {ar(16*hl+8*t+4,4)}, {A}")]
    DN = 6
    def scale(u):
        A = A1 + 16 * (u & 1); Ou = O + 8 * (u & 1)
        L = [f"v_mov_b32 v{DN}, v{A+12}", f"v_mov_b32 v{DN+2}, v{A+12}", f"v_permlane32_swap_b32 v{DN}, v{DN+2}",
             f"v_add_f32 v{DN+2}, s{sT2}, v{DN+2}", f"v_rcp_f32 v{DN+2}, v{DN+2}"]
        for i in range(8):
            L.append(f"v_mul_f32 v{A+2*i}, v{A+2*i}, v{DN+2}")
            L.append(f"v_mul_f32 v{A+2*i+1}, v{A+2*i+1}, v{DN+2}")
            L.append(f"v_cvt_pk_bf16_f32 v{Ou+i}, v{A+2*i}, v{A+2*i+1}")
        L += [f"v_cndmask_b32 v{Ou+6}, 0, v{Ou+6}, s[{sC1}:{sC1+1}]", f"v_cndmask_b32 v{Ou+7}, 0, v{Ou+7}, s[{sC1}:{sC1+1}]"]
        return [lambda s=s: a(s) for s in L]
    def s2(u):
        hl, t = u >> 1, u & 1
        Ou = O + 8 * (u & 1); T = []
        for ks in range(2):
            for ct in range(2):
                acc = vr(A2 + 32 * t + 16 * ct, 16)
                cin = "0" if (hl == 0 and ks == 0) else acc
                def f(s=f"v_mfma_f32_32x32x16_bf16 {acc}, {vr(WOFR+8*ks+4*ct,4)}, {vr(Ou+4*ks,4)}, {cin}", first=(ks == 0 and ct == 0), last=(ks == 1 and ct == 1)):
                    if first and t == 0: lg.wait(f"wo{hl}")
                    a(s)
                    if last and t == 1 and hl < 3: ldwo(hl + 1)
                T.append(f)
        return T
    run = lambda T: [f() for f in T]
    run(cvtkv(0)); run(cvtkv(1))
    run(s1(0)); run(s1(1)); run(scale(0))
    for u in range(8):
        main = s2(u)
        fill = scale(u + 1) if u + 1 < 8 else []
        if u + 2 < 8:
            if u + 2 in (4, 6): run(cvtkv((u + 2) >> 1))
            main = s1(u + 2) + main
        if u == 7:
            fill = [lambda ct=ct, i=i: a(f"ds_write_b128 v13, {vr(A2+16*ct+4*i,4)} offset:{128*ct + 16*i}") for ct in range(2) for i in range(4)]
            weave(main, fill, start=1)
        else:
            weave(main, fill)
    st(9)
    for ct in range(2):
        for i in range(4):
            a(f"ds_write_b128 v13, {vr(A2+32+16*ct+4*i,4)} offset:{32*272 + 128*ct + 16*i}")
    a("s_waitcnt lgkmcnt(0)\ns_barrier")
    st(10)
    R = 64
    for t in range(2):
        for w in range(4):
            for h in range(2):
                a(f"ds_read_b128 {vr(R+32*t+8*w+4*h,4)}, v{10 if w < 2 else 12} offset:{20480*(w&1) + 32*272*t + 16*h}")
    for t in range(2):
        b = R + 32 * t
        a(f"s_waitcnt lgkmcnt({8 if t == 0 else 0})")
        for i in range(8):
            a(f"v_add_f32 v{b+i}, v{b+i}, v{b+8+i}")
            a(f"v_add_f32 v{b+16+i}, v{b+16+i}, v{b+24+i}")
        for i in range(8):
            a(f"v_add_f32 v{b+i}, v{b+i}, v{b+16+i}")
        for i in range(4):
            a(f"v_cvt_pk_bf16_f32 v{b+8+i}, v{b+2*i}, v{b+2*i+1}")
        a(f"buffer_store_dwordx4 {vr(b+8,4)}, v11, s[{SO}:{SO+3}], s{sT3 if t == 0 else sT4} offen {os.environ.get('NTO','')}")
    a("L_kvend:")
    st.end(1)
    a("s_endpgm")

from v6s import gen_S
```

```python
import os
from asmlib import *
from v6 import *

ROWB = 272
WREG = 53 * ROWB
KS, KSL = 4160, 16640
UBASE, UB, U0, U1 = 33280, 8256, 16, 16 + 4096 + 32
TTAB, TSTR = 66304, 1536
USTG = 57664

def gen_S(k, st):
    a = k.a
    sJB, sIDX, sCG, sHH, sKB, sFU, sIT, sPH, sKG, sFK = sA, sB, sC, sD, sE, sF, sG, sH, sI, sJ
    vm = Cnt(a, "vmcnt")
    P0 = 8
    UG, UG2 = 24, 32
    vT = 40
    IN = 56
    KA, KB_ = 60, 61
    ACC = 64; FR = 96
    E1, E8, E256, E2, E4, Wc, X0, X1, G0, G1, Y0, Y1 = [112 + 2 * i for i in range(12)]
    t0, t1, t2, t3, pk = 136, 137, 138, 139, 140
    EA = 144; AD = 153
    vFU, vFP, vGS, vGR, vGO = 157, 158, 159, 62, 63
    UR = 160
    vPW, vRR, vZF, vZU, vCW, vC4, vUW = 176, 177, 178, 179, 180, 181, 185
    vKL, vUL, vZL, vKS = 188, 189, 59, 58
    a(f"""
    L_S:
    s_setprio 3
    s_and_b32 s{sJB}, s2, 7
    s_lshr_b32 s{sIDX}, s2, 3
    s_cmp_eq_u32 s{sJB}, 7
    s_cbranch_scc1 L_aux
    {'s_endpgm' if os.environ.get('SKIP_S') else ''}
    s_lshl_b32 s{sT0}, s{sJB}, 4
    s_and_b32 s{sCG}, s{sIDX}, 15
    s_add_u32 s{sCG}, s{sCG}, s{sT0}
    s_lshr_b32 s{sHH}, s{sIDX}, 4
    s_lshl_b32 s{sKG}, s{sCG}, 1
    s_add_u32 s{sKG}, s{sKG}, s{sHH}
    s_lshl_b32 s{sT1}, s{sKG}, 10
    v_lshlrev_b32 v5, 1, v0
    v_add_u32 v5, s{sT1}, v5
    s_lshl_b32 s{sT1}, s{sKG}, 2
    v_mov_b32 v6, s{sT1}
    s_lshl_b32 s{sT1}, s{sIDX}, 2
    s_add_u32 s{sT1}, s{sT1}, s{sWV}
    s_mul_i32 s{sT1}, s{sT1}, {16*896}
    s_lshl_b32 s{sT2}, s{sJB}, 7
    s_add_u32 s{sT1}, s{sT1}, s{sT2}
    v_lshlrev_b32 v7, 1, v2
    v_add_u32 v7, s{sT1}, v7
    s_waitcnt lgkmcnt(0)
    """)
    st(0)
    for c in range(2):
        vm.op(f"global_load_short_d16_hi v{P0+8*c+6}, v6, s[30:31] offset:{2*c}", f"p{c}")
        for i in range(6):
            vm.op(f"global_load_short_d16_hi v{P0+8*c+i}, v5, s[{18+2*i}:{19+2*i}] offset:{512*c} {os.environ.get('NTS','nt')}", f"p{c}")
        vm.op(f"global_load_short_d16_hi v{P0+8*c+7}, v6, s[32:33] offset:{2*c}", f"p{c}")
    k.init_issue(vm)
    UG, UG2 = 160, 80
    for i in range(16):
        if i and i % 4 == 0: a(f"v_add_u32 v7, {4*896}, v7")
        a(f"global_load_{'short_d16_hi' if i&1 else 'ushort'} v{(UG2 if i&1 else UG)+i//2}, v7, s[16:17] offset:{(i%4)*896} {os.environ.get('NTS','nt')}")
    a(f"s_setprio {os.environ.get('SPRIO', 2)}")
    srd(a, SWS, 44, 45, WS_SIZE)
    srd(a, SO, 40, 41, 2048 * 1792)
    a(f"""
    s_mul_i32 s{sKB}, s{sWV}, {WREG}
    v_and_b32 v{t0}, 31, v2
    v_lshrrev_b32 v{t1}, 5, v2
    v_lshlrev_b32 v{t1}, 4, v{t1}
    v_add_u32 v{t1}, s{sKB}, v{t1}
    v_min_u32 v{t2}, 20, v{t0}
    v_mul_u32_u24 v{t2}, {ROWB}, v{t2}
    v_add_u32 v{KA}, v{t2}, v{t1}
    v_mul_u32_u24 v{t2}, {ROWB}, v{t0}
    v_add_u32 v{KB_}, v{t2}, v{t1}
    s_mov_b32 m0, s{sKB}
    v_add_u32 v{vPW}, s{sKB}, v3
    s_lshl_b32 s{sT0}, s{sWV}, 10
    v_add_u32 v{vRR}, s{sT0}, v3
    v_mul_u32_u24 v{vGS}, 144, v2
    s_lshl_b32 s{sT0}, s{sWV}, 5
    s_add_u32 s{sT0}, s{sT0}, {USTG}
    v_add_u32 v{vGS}, s{sT0}, v{vGS}
    v_lshrrev_b32 v{t2}, 3, v2
    v_and_b32 v{t3}, 7, v2
    v_lshrrev_b32 v{vGO}, 3, v2
    v_and_b32 v{vZF}, 7, v2
    v_mul_u32_u24 v{vGR}, 144, v{vGO}
    v_lshl_add_u32 v{vGR}, v{vZF}, 4, v{vGR}
    s_mul_i32 s{sT0}, s{sWV}, {16*144}
    s_add_u32 s{sT0}, s{sT0}, {USTG}
    v_add_u32 v{vGR}, s{sT0}, v{vGR}
    v_lshlrev_b32 v{vGO}, 12, v{vGO}
    v_lshl_add_u32 v{vGO}, v{vZF}, 4, v{vGO}
    v_mul_u32_u24 v{vZF}, {KS}, v{t2}
    v_lshl_add_u32 v{vZF}, v{t3}, 3, v{vZF}
    v_add_u32 v{vZF}, 4088, v{vZF}
    v_and_b32 v{t3}, 23, v2
    v_cmp_eq_u32 vcc, 0, v{t3}
    v_add_u32 v{t3}, 56, v{vZF}
    v_bfe_u32 v{vZU}, v2, 1, 2
    v_mul_u32_u24 v{vZU}, {UB}, v{vZU}
    v_cndmask_b32 v{vZF}, v{vZF}, v{t3}, vcc
    v_and_b32 v{t3}, 1, v2
    v_mul_u32_u24 v{t3}, {U1-U0}, v{t3}
    v_add3_u32 v{vZU}, v{vZU}, v{t3}, s{sT0}
    s_add_u32 s{sT0}, s{sT0}, {-UBASE & 0xffffffff}
    v_subrev_u32 v{vZU}, s{sT0}, v{vZU}
    s_lshl_b32 s{sT0}, s{sJB}, 2
    s_add_u32 s{sT0}, s{sT0}, s{sWV}
    s_lshl_b32 s{sT1}, s{sT0}, 16
    s_lshl_b32 s{sT2}, s{sIDX}, 7
    s_add_u32 s{sT1}, s{sT1}, s{sT2}
    s_add_u32 s{sT1}, s{sT1}, {WS_UT}
    s_lshl_b32 s{sT0}, s{sT0}, 5
    s_add_u32 s{sT0}, s{sT0}, s{sIDX}
    s_lshl_b32 s{sT0}, s{sT0}, 7
    s_add_u32 s{sFU}, s{sT0}, {F_UT}
    s_lshr_b32 s{sT0}, s{sCG}, 2
    s_lshl_b32 s{sT0}, s{sT0}, 12
    s_add_u32 s{sT0}, s{sT0}, {F_UT}
    s_cmp_eq_u32 s{sHH}, 1
    s_cselect_b32 s{sT3}, {31 if os.environ.get('TSB') else 15}, 31
    v_and_b32 v{vFU}, s{sT3}, v2
    v_lshlrev_b32 v{vFU}, 7, v{vFU}
    v_add_u32 v{vFU}, s{sT0}, v{vFU}
    s_xor_b32 s{sT0}, s{sKG}, 1
    s_lshl_b32 s{sT0}, s{sT0}, 9
    s_add_u32 s{sT0}, s{sT0}, {F_KF}
    v_and_b32 v{vFP}, 3, v2
    v_lshlrev_b32 v{vFP}, 7, v{vFP}
    v_add_u32 v{vFP}, s{sT0}, v{vFP}
    s_lshl_b32 s{sT0}, s{sKG}, 2
    s_add_u32 s{sT0}, s{sT0}, s{sWV}
    s_lshl_b32 s{sT0}, s{sT0}, 7
    s_add_u32 s{sFK}, s{sT0}, {F_KF}
    v_lshlrev_b32 v{vCW}, 4, v0
    s_cmp_eq_u32 s{sHH}, 0
    s_cselect_b32 s{sT3}, {0 if os.environ.get('TSB') else 1984}, 0
    v_mov_b32 v{vKS}, 0x7fff0000
    v_cmp_le_u32 vcc, s{sT3}, v{vCW}
    v_cndmask_b32 v{vKS}, v{vKS}, v{vCW}, vcc
    v_add_u32 v{vC4}, {2*KS-8}, v{vCW}
    v_add_u32 v{vC4+1}, {3*KS-8}, v{vCW}
    v_add_u32 v{vC4+2}, {KSL+2*KS-8}, v{vCW}
    v_add_u32 v{vC4+3}, {KSL+3*KS-8}, v{vCW}
    s_mul_i32 s{sT0}, s{sWV}, {UB}
    s_add_u32 s{sT0}, s{sT0}, {UBASE}
    v_add_u32 v{vUW}, s{sT0}, v3
    """)
    a(f"""
    s_cmp_eq_u32 s{sWV}, 1
    s_cselect_b32 s{sT0}, 4, 8
    s_cselect_b32 s{sT3}, 2, 8
    s_cselect_b32 s{sT4}, 256, 0
    s_cselect_b32 s{sPH}, 384, 4
    s_cmp_eq_u32 s{sWV}, 2
    s_cselect_b32 s{sT0}, 1, s{sT0}
    s_cselect_b32 s{sT3}, 1, s{sT3}
    s_cselect_b32 s{sT4}, 512, s{sT4}
    s_cselect_b32 s{sPH}, 640, s{sPH}
    s_cselect_b32 s{sIT}, 32, 1
    v_mul_u32_u24 v{AD}, s{sT0}, v{t0}
    v_add_u32 v{AD}, s{sT4}, v{AD}
    v_mul_u32_u24 v{AD+1}, s{sT3}, v{t0}
    v_add_u32 v{AD+1}, s{sPH}, v{AD+1}
    v_cmp_gt_u32 vcc, 32, v2
    s_lshl_b32 s{sT0}, s{sIT}, 1
    s_cmp_eq_u32 s{sWV}, 0
    s_cselect_b32 s{sT3}, 2, 64
    v_mov_b32 v{t2}, s{sT3}
    v_mov_b32 v{t3}, s{sT0}
    v_cndmask_b32 v{AD}, v{AD+1}, v{AD}, vcc
    v_cndmask_b32 v{t3}, v{t2}, v{t3}, vcc
    v_add_u32 v{AD+1}, s{sIT}, v{AD}
    v_add_u32 v{AD+2}, v{AD}, v{t3}
    v_add_u32 v{AD+3}, s{sIT}, v{AD+2}
    v_mov_b32 v{t3}, {TTAB}
    """)
    for i in range(4): a(f"v_lshl_add_u32 v{AD+i}, v{AD+i}, 1, v{t3}")
    a(f"v_lshlrev_b32 v{t2}, 3, v0\nv_sub_u32 v{t2}, 2047, v{t2}")
    for e in range(9):
        a(f"v_subrev_u32 v{EA+e}, {e}, v{t2}")
        a(f"v_cvt_f32_i32 v{FR+e}, v{EA+e}")
    for e in range(0, 10, 2):
        a(f"v_cvt_pk_bf16_f32 v{FR+e}, v{FR+e}, v{FR+min(e+1,8)}")
        if e < 8: a(f"v_lshrrev_b32 v{FR+e+1}, 16, v{FR+e}")
        a(f"v_and_b32 v{FR+e}, 0xffff, v{FR+e}")
    for e in range(9):
        if e in (0, 8): a(f"v_cmp_gt_i32 vcc, 128, v{EA+e}")
        a(f"v_subrev_u32 v{FR+e}, 17024, v{FR+e}")
        a(f"v_cndmask_b32 v{EA+e}, v{FR+e}, v{EA+e}, vcc")
        a(f"v_lshl_add_u32 v{EA+e}, v{EA+e}, 1, v{t3}")
    a(f"""
    v_and_b32 v5, 3, v2
    v_sub_u32 v5, 3, v5
    v_mul_u32_u24 v{vKL}, {KS}, v5
    v_lshrrev_b32 v6, 4, v2
    v_lshl_add_u32 v{vKL}, v6, 4, v{vKL}
    v_bfe_u32 v7, v2, 2, 2
    v_lshlrev_b32 v7, 4, v7
    v_sub_u32 v{vKL}, v{vKL}, v7
    s_and_b32 s{sT0}, s{sWV}, 1
    s_lshl_b32 s{sT0}, s{sT0}, 8
    s_lshr_b32 s{sT3}, s{sWV}, 1
    s_mul_i32 s{sT3}, s{sT3}, {KSL}
    s_add_u32 s{sT3}, s{sT3}, {2*(2040-1792)}
    s_sub_u32 s{sT3}, s{sT3}, s{sT0}
    v_add_u32 v{vKL}, s{sT3}, v{vKL}
    v_and_b32 v5, 1, v2
    v_sub_u32 v5, 1, v5
    v_mul_u32_u24 v{vZL}, {U1-U0}, v5
    v_add_u32 v{vZL}, {UBASE}, v{vZL}
    v_bfe_u32 v5, v2, 1, 3
    v_lshl_add_u32 v{vUL}, v5, 6, v{vZL}
    v_lshl_add_u32 v{vUL}, v6, 4, v{vUL}
    s_sub_u32 s{sT3}, 16, s{sT0}
    v_add_u32 v{vUL}, s{sT3}, v{vUL}
    """)
    st(1)
    def kgen(c):
        P = P0 + 8 * c
        AC = ACC + 16 * c
        if c == 0:
            a("s_waitcnt vmcnt(25)")
        a(f"""
        v_mul_f32 v{t0}, {LOG2E}, v{P+6}
        v_exp_f32 v{t0}, v{t0}
        v_cvt_pk_bf16_f32 v{t0}, v{t0}, v{t0}
        v_lshlrev_b32 v{t0}, 16, v{t0}
        v_mul_f32 v{t1}, v{t0}, v{P}
        v_mul_f32 v{t2}, v{t0}, v{P+1}
        v_mul_f32 v{t1}, {LOG2E}, v{t1}
        v_mul_f32 v{t2}, {INV2PI}, v{t2}
        v_mul_f32 v{P+2}, v{t0}, v{P+2}
        v_mul_f32 v{P+3}, v{t0}, v{P+3}
        """)
        cmul(a, Wc, P + 4, P + 2)
        for (E, m, cj) in ((E8, 8.0, True), (E1, 1.0, False), (E256, 256.0, False)):
            if m != 1.0:
                a(f"v_mul_f32 v{t0}, {f2u(m)}, v{t1}\nv_mul_f32 v{t3}, {f2u(m)}, v{t2}\nv_exp_f32 v{t0}, v{t0}\nv_fract_f32 v{t3}, v{t3}")
            else:
                a(f"v_exp_f32 v{t0}, v{t1}\nv_fract_f32 v{t3}, v{t2}")
            a(f"""
            v_cos_f32 v{E}, v{t3}
            v_sin_f32 v{E+1}, v{t3}
            v_mul_f32 v{E}, v{E}, v{t0}
            v_mul_f32_e64 v{E+1}, {'-' if cj else ''}v{E+1}, v{t0}
            """)
        cmul(a, E2, E1, E1); cmul(a, E4, E2, E2)
        yield "head"
        cnt = [0]
        def put(row, src):
            r = pk + (cnt[0] & 3); cnt[0] += 1
            a(f"v_cvt_pk_bf16_f32 v{r}, v{src}, v{src+1}")
            a(f"ds_write_addtid_b32 v{r} offset:{row * ROWB}")
        if c == 0:
            a(f"v_mov_b32 v{t0}, 0x3f80")
            a(f"ds_write_addtid_b32 v{t0} offset:{21*ROWB}")
        put(22, E8); put(0, Wc)
        fine, cur = [], E8
        for f in range(2, 32):
            nxt = X0 if cur != X0 else X1
            fine.append((nxt, cur, E8, 21 + f)); cur = nxt
        coarse, cur = [], Wc
        for cc in range(1, 8):
            nxt = Y0 if cur != Y0 else Y1
            coarse.append((nxt, cur, E1, cc)); cur = nxt
        coarse.append((G0, Wc, E256, 8)); cur = G0
        for cc in range(1, 4):
            nxt = Y0 if cur != Y0 else Y1
            coarse.append((nxt, cur, E2, 8 + cc)); cur = nxt
        coarse += [(G1, G0, E256, 12), (Y0, G1, E4, 13), (G0, G1, E256, 14), (Y0, G0, E4, 15)]
        g = G0
        for i in range(5):
            n = G1 if g == G0 else G0
            coarse.append((n, g, E256, 16 + i)); g = n
        seq = []
        for i in range(max(len(fine), len(coarse))):
            if i < len(fine): seq.append(fine[i])
            if i < len(coarse): seq.append(coarse[i])
        for n, (d, x, y, row) in enumerate(seq):
            cmul(a, d, x, y); put(row, d)
            if n == (int(os.environ.get('MID', 16)) if c == 0 else 24): yield "mid"
        if c == 0: yield "end"
        a("s_waitcnt lgkmcnt(0)")
        bufs = [FR, FR + 8, vT, vT + 8]
        for jj in range(4):
            a(f"ds_read_b128 {vr(bufs[jj],4)}, v{KA} offset:{32*jj}")
            a(f"ds_read_b128 {vr(bufs[jj]+4,4)}, v{KB_} offset:{21*ROWB+32*jj}")
        yield "reads"
        for j in range(8):
            fb = bufs[j & 3]
            a(f"s_waitcnt lgkmcnt({6 if j < 5 else 2*(7-j)})")
            a(f"v_mfma_f32_32x32x16_bf16 {vr(AC,16)}, {vr(fb,4)}, {vr(fb+4,4)}, {'0' if j == 0 else vr(AC,16)}")
            if j + 4 < 8:
                a(f"ds_read_b128 {vr(fb,4)}, v{KA} offset:{32*(j+4)}")
                a(f"ds_read_b128 {vr(fb+4,4)}, v{KB_} offset:{21*ROWB+32*(j+4)}")
        yield "done"
    g0, g1 = kgen(0), kgen(1)
    next(g0)
    a(f"v_cmp_eq_u32 vcc, 0, v0\nv_cndmask_b32 v{P0+7}, 0, v{P0+7}, vcc")
    next(g0)
    a("s_waitcnt vmcnt(0)")
    vm.drain()
    k.init_check(vm)
    for i in range(8): a(f"v_or_b32 v{UG+i}, v{UG+i}, v{UG2+i}")
    for i in range(2): a(f"ds_write_b128 v{vGS}, {vr(UG+4*i,4)} offset:{16*i}")
    a("s_waitcnt lgkmcnt(0)\ns_barrier")
    for i in range(2): a(f"ds_read_b128 {vr(UG+4*i,4)}, v{vGR} offset:{8*144*i}")
    for i in range(2):
        a(f"s_waitcnt lgkmcnt({1-i})")
        a(f"buffer_store_dwordx4 {vr(UG+4*i,4)}, v{vGO}, {WSR}, s{sT1} offen {SC}")
        if i < 1: a(f"s_add_u32 s{sT1}, s{sT1}, 32768")
    next(g0)
    a("s_waitcnt vmcnt(0)")
    k.flag(Cnt(a, "vmcnt"), sFU)
    next(g0)
    st(2)
    next(g1)
    a(f"v_cmp_eq_u32 vcc, 0, v0\nv_cndmask_b32 v{P0+15}, 0, v{P0+15}, vcc")
    next(g0)
    st(3)
    next(g1)
    a(f"""
    s_lshl_b32 s{sT0}, s{sCG}, 2
    s_add_u32 s{sT0}, s{sT0}, s{sWV}
    s_lshl_b32 s{sT0}, s{sT0}, 12
    s_add_u32 s{sT4}, s{sT0}, {WS_UT}
    """)
    next(g1)
    st(4)
    a(k.poll_ld(vFU, IN))
    ul = "\n".join(f"buffer_load_dwordx4 {vr(UR+4*i,4)}, v3, {WSR}, s{sT4} offen offset:{1024*i} {SC}" for i in range(4))
    next(g1)
    st(6)
    for c in range(2):
        for q in range(3):
            a(f"ds_write_b128 v{vPW}, {vr(ACC+16*c+4*q,4)} offset:{(3*c+q)*1024}")
    a(f"""
    s_waitcnt vmcnt(0)
    {k.poll_cmp(IN)}
    s_mov_b64 s[{sC1}:{sC1+1}], vcc
    s_cmp_eq_u64 vcc, 0
    s_cbranch_scc0 L_ulate
    {ul}
    s_branch L_nopoll2
    L_ulate:
    {k.poll_ld(vFU, IN)}
    L_nopoll2:
    """)
    a(f"""
    s_lshl_b32 s{sT1}, s{sKG}, 13
    s_add_u32 s{sT1}, s{sT1}, {WS_KF}
    s_add_u32 s{sT2}, s{sT1}, 4096
    s_cmp_eq_u32 s{sWV}, 3
    s_waitcnt lgkmcnt(0)
    s_barrier
    s_cbranch_scc1 L_nored
    """)
    RD = ACC
    for c in range(2):
        for w in range(4):
            a(f"ds_read_b128 {vr(RD+16*c+4*w,4)}, v{vRR} offset:{w*WREG + c*3072}")
    for c in range(2):
        a("s_waitcnt lgkmcnt(4)")
        b = RD + 16 * c
        a(f"""
        v_add_f32 v{b}, v{P0+8*c+7}, v{b}
        v_add_f32 v{b+0}, v{b+0}, v{b+4}
        v_add_f32 v{b+8}, v{b+8}, v{b+12}
        v_add_f32 v{b+1}, v{b+1}, v{b+5}
        v_add_f32 v{b+9}, v{b+9}, v{b+13}
        v_add_f32 v{b+2}, v{b+2}, v{b+6}
        v_add_f32 v{b+10}, v{b+10}, v{b+14}
        v_add_f32 v{b+3}, v{b+3}, v{b+7}
        v_add_f32 v{b+11}, v{b+11}, v{b+15}
        v_add_f32 v{b+0}, v{b+0}, v{b+8}
        v_add_f32 v{b+1}, v{b+1}, v{b+9}
        v_add_f32 v{b+2}, v{b+2}, v{b+10}
        v_add_f32 v{b+3}, v{b+3}, v{b+11}
        v_cvt_pk_bf16_f32 v{b}, v{b}, v{b+1}
        v_cvt_pk_bf16_f32 v{b+1}, v{b+2}, v{b+3}
        ds_write_b16 v{AD}, v{b} offset:{c*TSTR}
        ds_write_b16_d16_hi v{AD+1}, v{b} offset:{c*TSTR}
        ds_write_b16 v{AD+2}, v{b+1} offset:{c*TSTR}
        ds_write_b16_d16_hi v{AD+3}, v{b+1} offset:{c*TSTR}
        """)
    a(f"""
    L_nored:
    v_mov_b32 v{vT}, 0
    v_mov_b32 v{vT+1}, 0
    v_mov_b32 v{vT+2}, 0
    v_mov_b32 v{vT+3}, 0
    v_cmp_eq_u32 vcc, 255, v0
    s_waitcnt lgkmcnt(0)
    s_barrier
    """)
    GE = 96
    CW = 64
    for c in range(2):
        for e in range(9):
            a(f"ds_read_u16 v{GE+10*c+e}, v{EA+e} offset:{c*TSTR}")
    a(f"ds_write_b64 v{vZF}, {vr(vT,2)}\nds_write_b128 v{vZU}, {vr(vT,4)}")
    def kwrite(addr, a4, q0, q1, off, off8=0):
        a(f"ds_write_b128 v{addr}, {vr(q0,4)} offset:{off}")
        a(f"ds_write2_b64 v{a4}, {vr(q0,2)}, {vr(q0+2,2)} offset0:{off8} offset1:{off8+1}")
        a(f"ds_write_b128 v{addr}, {vr(q1,4)} offset:{off+KS}")
        a(f"ds_write2_b64 v{a4+1}, {vr(q1,2)}, {vr(q1+2,2)} offset0:{off8} offset1:{off8+1}")
    for c in range(2):
        g = GE + 10 * c
        a(f"s_waitcnt lgkmcnt({11 if c == 0 else 6})")
        for i in range(4): a(f"v_lshl_or_b32 v{CW+8*c+i}, v{g+2*i+1}, 16, v{g+2*i}")
        a(f"s_mov_b64 exec, s[{sC1+0}:{sC1+1}]" if False else "")
        a(f"buffer_store_dwordx4 {vr(CW+8*c,4)}, v{vKS}, {WSR}, s{sT1 if c == 0 else sT2} offen {SC}")
        a(f"v_cndmask_b32 v{g+8}, v{g+8}, 0, vcc")
        for i in range(4): a(f"v_lshl_or_b32 v{CW+8*c+4+i}, v{g+2*i+2}, 16, v{g+2*i+1}")
        kwrite(vCW, vC4 + 2 * c, CW + 8 * c, CW + 8 * c + 4, c * KSL)
    a(f"s_cmp_eq_u64 s[{sC1}:{sC1+1}], 0\ns_cbranch_scc1 L_haveu")
    vm.drain(); vm.q = ["poll"]
    k.poll(vm, vFU, IN, issued=True)
    a(ul + "\nL_haveu:\ns_waitcnt vmcnt(0)")
    k.flag(Cnt(a, "vmcnt"), sFK)
    st(5)
    UB_ = 80
    for i in range(4):
        b = UR + 4 * i; d = UB_ + 4 * i
        a(f"ds_write_b128 v{vUW}, {vr(b,4)} offset:{U0 + 1024*i}")
        if i == 0: a(f"v_mov_b32 v{d}, 0")
        else: a(f"v_readlane_b32 s{sT0}, v{b-1}, 63")
        for q in range(3): a(f"v_mov_b32 v{d+1+q}, v{b+q}")
        if i: a(f"v_mov_b32 v{d}, s{sT0}")
        a(f"v_mov_b32_dpp v{d}, v{b+3} wave_shr:1 row_mask:0xf bank_mask:0xf")
        a(f"ds_write_b128 v{vUW}, {vr(d,4)} offset:{U1 + 1024*i}")
    vKA, vUA, vU0, vZ, vXS, vXR, vSG, vPL = 5, 6, 7, 8, 9, 10, 11, 12
    A = 16; KF0, UF0 = 48, 112
    PKR = 176
    STG, SS = 66304, 2112
    sMK = sIDX
    a(f"""
    s_setprio {os.environ.get('SPRIO2', 1)}
    v_mov_b32 v{vPL}, v{vFP}
    v_mov_b32 v32, v{vZL}
    s_lshr_b32 s{sT0}, s{sWV}, 1
    s_lshl_b32 s{sT2}, s{sHH}, 1
    s_add_u32 s{sJB}, s{sT0}, s{sT2}
    s_mul_i32 s{sKB}, s{sJB}, {UB}
    s_and_b32 s{sT1}, s{sWV}, 1
    s_lshl_b32 s{sT2}, s{sT1}, 11
    s_add_u32 s{sT3}, s{sKB}, {UBASE}
    s_add_u32 s{sT4}, s{sT3}, s{sT2}
    v_add_u32 v{vXS}, s{sT4}, v3
    s_add_u32 s{sT3}, s{sT3}, 2048
    s_sub_u32 s{sT3}, s{sT3}, s{sT2}
    v_add_u32 v{vXR}, s{sT3}, v3
    v_bfe_u32 v{vSG}, v2, 1, 3
    v_lshlrev_b32 v{vSG}, 6, v{vSG}
    v_lshrrev_b32 v13, 4, v2
    v_lshl_add_u32 v{vSG}, v13, 4, v{vSG}
    v_and_b32 v13, 1, v2
    v_lshl_add_u32 v{vSG}, v13, 2, v{vSG}
    s_lshl_b32 s{sT4}, s{sT1}, 10
    s_add_u32 s{sT4}, s{sT4}, {STG}
    v_add_u32 v{vSG}, s{sT4}, v{vSG}
    s_xor_b32 s{sFU}, s{sKG}, 1
    s_lshl_b32 s{sFU}, s{sFU}, 13
    s_lshl_b32 s{sT3}, s{sWV}, 11
    s_add_u32 s{sFU}, s{sFU}, s{sT3}
    s_add_u32 s{sFU}, s{sFU}, {WS_KF}
    s_mul_i32 s{sFK}, s{sT0}, {KSL}
    s_add_u32 s{sFK}, s{sFK}, s{sT2}
    s_sub_u32 s{sMK}, s{sT1}, 1
    s_and_b32 s{sT3}, s{sMK}, {0 if os.environ.get('TSB') else 's%d' % sHH}
    s_mul_i32 s{sT4}, s{sT3}, 960
    s_mul_i32 s{sT3}, s{sT3}, 0x7fff0000
    v_add_u32 v38, s{sT3}, v3
    v_mov_b32 v39, 0x7fff0000
    v_cmp_le_u32 vcc, s{sT4}, v3
    v_cndmask_b32 v39, v39, v3, vcc
    s_mov_b32 s{sPH}, 0
    v_mov_b32 v{vKA}, v{vKL}
    v_add_u32 v{vUA}, s{sKB}, v{vUL}
    v_add_u32 v{vZ}, s{sKB}, v32
    v_max_i32 v{vU0}, v{vZ}, v{vUA}
    s_mov_b32 s{sIT}, 0
    {k.poll_ld(vPL, 14)}
    s_cmp_eq_u32 s{sHH}, 1
    s_waitcnt lgkmcnt(0)
    s_barrier
    """)
    st(7)
    a("s_cbranch_scc1 L_cv1pre")
    TS = {0: [4, 5, 6, 7], 1: [0, 1, 2, 3]} if not os.environ.get('TSB') else {0: [2, 5, 6, 7], 1: [0, 1, 3, 4]}
    def loadlist(s, H):
        L = []; K_, U_ = KF0 + 32 * s, UF0 + 32 * s
        for x in range(max(TS[H]) + 1):
            L.append(f"ds_read_b128 {vr(U_+4*x,4)}, v{vU0 if x == 0 else vUA} offset:{512*x}")
            L.append(f"ds_read_b128 {vr(K_+4*x,4)}, v{vKA} offset:{512*(7-x)}")
        return L
    stepL = [f"v_subrev_u32 v{vKA}, 64, v{vKA}", f"v_subrev_u32 v{vUA}, 64, v{vUA}", f"v_max_i32 v{vU0}, v{vZ}, v{vUA}"]
    kl = f"""
    buffer_load_dwordx4 {vr(PKR,4)}, v38, {WSR}, s{sFU} offen {SC}
    buffer_load_dwordx4 {vr(PKR+6,4)}, v39, {WSR}, s{sFU} offen offset:1024 {SC}
    buffer_load_dword v{PKR+11}, off, {WSR}, s{sFU} offset:2048 {SC}
    """
    for H in (0, 1):
        a(f"L_cv{H}pre:")
        if H == 0: pass
        for l in loadlist(0, H) + stepL: a(l)
        for i in range(16): a(f"v_mov_b32 v{A+i}, 0")
        a(f"L_cv{H}:")
        for s_ in range(2):
            L = loadlist(1 - s_, H); nl = len(L)
            K_, U_ = KF0 + 32 * s_, UF0 + 32 * s_
            prs = [(c, mt - c, n) for n, mt in enumerate(TS[H]) for c in range(mt + 1)]
            prs.sort(key=lambda x: (max(x[0], x[1]), x[2]))
            issued = 0; done = -1
            L2 = L + stepL
            st0 = 4 if H == 0 else 0
            for n, (c, m, tn) in enumerate(prs):
                need = max(c, m)
                if need > done:
                    a(f"s_waitcnt lgkmcnt({min(15, nl - 2*(need+1) + min(issued, nl))})"); done = need
                acc = vr(A + 4 * tn, 4)
                a(f"v_mfma_f32_16x16x32_bf16 {acc}, {vr(K_+4*c,4)}, {vr(U_+4*m,4)}, {acc}")
                if n >= st0 and issued < len(L2): a(L2[issued]); issued += 1
            while issued < len(L2): a(L2[issued]); issued += 1
        a(f"""
        s_add_u32 s{sIT}, s{sIT}, 1
        s_cmp_eq_u32 s{sIT}, 2
        s_cbranch_scc1 L_cvdone
        s_cmp_eq_u32 s{sPH}, 1
        s_cbranch_scc1 L_cv{H}
        s_waitcnt vmcnt(0)
        {k.poll_cmp(14)}
        s_mov_b64 s[{sC1}:{sC1+1}], vcc
        s_cmp_eq_u64 vcc, 0
        s_cbranch_scc0 L_late{H}
        {kl}
        s_branch L_cv{H}
        L_late{H}:
        {k.poll_ld(vPL, 14)}
        s_branch L_cv{H}
        """)
    a(f"""
    L_cvdone:
    s_cmp_eq_u32 s{sPH}, 1
    s_cbranch_scc1 L_ph1
    s_cmp_eq_u64 s[{sC1}:{sC1+1}], 0
    s_cbranch_scc1 L_havek
    """)
    vm.drain(); vm.q = ["poll"]
    k.poll(vm, vPL, 14, issued=True)
    a(kl + "L_havek:")
    st(8)
    a("s_waitcnt lgkmcnt(0)\ns_barrier\nL_ph1:")
    a(f"s_mul_i32 s{sT0}, s{sJB}, {SS}\nv_add_u32 v33, s{sT0}, v{vSG}")
    a(f"s_bitcmp1_b32 s{sWV}, 0\ns_cbranch_scc1 L_xodd")
    def exch(keep, send):
        for q in range(2): a(f"ds_write_b128 v{vXS}, {vr(send+4*q,4)} offset:{1024*q}")
        a(f"s_cmp_eq_u32 s{sPH}, 1\ns_cbranch_scc1 L_nok{keep}")
        a(f"""
        v_add_u32 v13, s{sFK}, v3
        v_add_u32 v14, {2*KS-8}, v13
        v_add_u32 v15, {3*KS-8}, v13
        s_waitcnt vmcnt(0)
        v_and_b32 v{PKR+10}, s{sMK}, v{PKR+11}
        v_readlane_b32 s{sT0}, v{PKR+6}, 0
        v_mov_b32_dpp v{PKR+10}, v{PKR+6} wave_shl:1 row_mask:0xf bank_mask:0xf
        v_mov_b32 v{PKR+4}, s{sT0}
        v_mov_b32_dpp v{PKR+4}, v{PKR} wave_shl:1 row_mask:0xf bank_mask:0xf
        """)
        for i in (1, 0):
            b = PKR + 6 * i
            for q in range(4): a(f"v_alignbit_b32 v{KF0+4*i+q}, v{b+q+1}, v{b+q}, 16")
            kwrite(13, 14, b, KF0 + 4 * i, 1024 * i, 128 * i)
        a(f"L_nok{keep}:\ns_waitcnt lgkmcnt(0)\ns_barrier")
        for q in range(2): a(f"ds_read_b128 {vr(send+4*q,4)}, v{vXR} offset:{1024*q}")
        for q in range(2):
            a(f"s_waitcnt lgkmcnt(1)")
            for i in range(4): a(f"v_add_f32 v{keep+4*q+i}, v{keep+4*q+i}, v{send+4*q+i}")
            a(f"v_cvt_pk_bf16_f32 v{34+2*q}, v{keep+4*q}, v{keep+4*q+1}")
            a(f"v_cvt_pk_bf16_f32 v{35+2*q}, v{keep+4*q+2}, v{keep+4*q+3}")
            a(f"ds_write2_b32 v33, v{34+2*q}, v{35+2*q} offset0:{128*q} offset1:{128*q+2}")
    exch(A, A + 8)
    a("s_branch L_xdone\nL_xodd:")
    exch(A + 8, A)
    a(f"""
    L_xdone:
    s_cmp_eq_u32 s{sPH}, 1
    s_cbranch_scc1 L_cvend
    s_mov_b32 s{sPH}, 1
    s_xor_b32 s{sJB}, s{sJB}, 2
    s_mul_i32 s{sKB}, s{sJB}, {UB}
    """)
    st(9)
    a(f"""
    v_mov_b32 v{vKA}, v{vKL}
    v_add_u32 v{vUA}, s{sKB}, v{vUL}
    v_add_u32 v{vZ}, s{sKB}, v32
    v_max_i32 v{vU0}, v{vZ}, v{vUA}
    s_mov_b32 s{sIT}, 0
    s_cmp_eq_u32 s{sHH}, 1
    s_cbranch_scc1 L_cv1pre
    s_branch L_cv0pre
    L_cvend:
    v_bfe_u32 v10, v2, 2, 2
    v_mul_u32_u24 v10, {SS}, v10
    v_lshrrev_b32 v8, 4, v2
    v_lshl_add_u32 v10, v8, 5, v10
    v_and_b32 v8, 3, v2
    v_lshl_add_u32 v10, v8, 3, v10
    s_lshl_b32 s{sT0}, s{sWV}, 9
    s_add_u32 s{sT0}, s{sT0}, {STG}
    v_add_u32 v10, s{sT0}, v10
    v_mul_u32_u24 v11, 1792, v2
    s_lshl_b32 s{sT2}, s{sHH}, 4
    s_lshl_b32 s{sT3}, s{sWV}, 2
    s_add_u32 s{sT2}, s{sT2}, s{sT3}
    s_lshr_b32 s{sT2}, {sum(t << (4*i) for i, t in enumerate(TS[0] + TS[1]))}, s{sT2}
    s_and_b32 s{sT2}, s{sT2}, 15
    s_mul_i32 s{sT2}, s{sT2}, {256*1792}
    s_lshl_b32 s{sT3}, s{sCG}, 3
    s_add_u32 s{sT2}, s{sT2}, s{sT3}
    s_waitcnt lgkmcnt(0)
    s_barrier
    """)
    st(10)
    for it in range(4): a(f"ds_read_b64_tr_b16 {vr(KF0+2*it,2)}, v10 offset:{128*it}")
    for it in range(4):
        a(f"s_waitcnt lgkmcnt({3-it})")
        a(f"buffer_store_dwordx2 {vr(KF0+2*it,2)}, v11, s[{SO}:{SO+3}], s{sT2} offen")
        if it < 3: a(f"s_add_u32 s{sT2}, s{sT2}, {64*1792}")
    a("L_send:")
    st.end(0)
    a("s_endpgm")
    a(f"""
    L_aux:
    s_cmp_ge_u32 s{sIDX}, 5
    s_cbranch_scc1 L_end
    s_cmp_lg_u32 s{sIDX}, 0
    s_cbranch_scc1 L_zkv
    s_cmp_lg_u32 s{sWV}, 0
    s_cbranch_scc1 L_end
    s_memrealtime s[{sN}:{sN+1}]
    s_waitcnt lgkmcnt(0)
    s_or_b32 s{sN}, s{sN}, 1
    v_mov_b32 v8, s{sN}
    v_mov_b32 v9, s{sN+1}
    s_mov_b64 exec, 1
    global_store_dwordx2 v4, v[8:9], s[42:43] {SC}
    s_endpgm
    L_zkv:
    v_mov_b32 v8, 0
    v_mov_b32 v9, 0
    v_mov_b32 v10, 0
    v_mov_b32 v11, 0
    v_lshlrev_b32 v5, 4, v0
    s_lshl_b32 s{sT0}, s{sIDX}, 7
    s_add_u32 s{sT0}, s{sT0}, {F_Z - 128}
    s_lshl_b32 s{sT1}, s{sIDX}, 14
    s_add_u32 s{sT1}, s{sT1}, {WS_KVA - 16384}
    s_waitcnt lgkmcnt(0)
    """)
    srd(a, SWS, 44, 45, WS_SIZE)
    for i in range(4):
        a(f"buffer_store_dwordx4 v[8:11], v5, {WSR}, s{sT1} offen {SC}")
        if i < 3: a(f"s_add_u32 s{sT1}, s{sT1}, 4096")
    vm = Cnt(a, "vmcnt")
    k.init_issue(vm); k.init_check(vm)
    a(f"s_barrier\ns_cmp_lg_u32 s{sWV}, 0\ns_cbranch_scc1 L_send")
    k.flag(vm, sT0)
    a("s_branch L_send")
```

```python
import struct, os
from asmlib import *
from stamp import Stamper

WS_PQ  = 0x000000
WS_KVA = 0x200000
WS_FLG = 0x210000
WS_KF  = 0x300000
WS_UT  = 0x500000
WS_SIZE = 0x700000
F_UT, F_KF, F_Q, F_KV, F_Z = [WS_FLG + 128 * x for x in (0, 896, 1792, 2304, 2432)]
LDS = 81920
LOG2E = 0x3fb8aa3b
INV2PI = 0x3e22f983
def f2u(x): return hex(struct.unpack("<I", struct.pack("<f", x))[0])
EPS = f2u(1e-6)
SC = "sc1"

def cmul(a, d, x, y):
    assert d != x and d != y
    if os.environ.get('PK', '0') == '0':
        a(f"v_mul_f32 v{d}, v{x}, v{y}\nv_mul_f32 v{d+1}, v{x}, v{y+1}\nv_fma_f32 v{d}, -v{x+1}, v{y+1}, v{d}\nv_fmac_f32 v{d+1}, v{x+1}, v{y}")
        return
    a(f"v_pk_mul_f32 {vr(d,2)}, {vr(x,2)}, {vr(y,2)} op_sel:[0,0] op_sel_hi:[0,1]")
    a(f"v_pk_fma_f32 {vr(d,2)}, {vr(x,2)}, {vr(y,2)}, {vr(d,2)} op_sel:[1,1,0] op_sel_hi:[1,0,1] neg_lo:[1,0,0]")
def srd(a, S, lo, hi, n):
    a(f"s_mov_b32 s{S}, s{lo}\ns_mov_b32 s{S+1}, s{hi}\ns_mov_b32 s{S+2}, {n}\ns_mov_b32 s{S+3}, 0x20000")
def weave(main, fill, start=0):
    n, m, j = len(main), len(fill), 0
    for i, f in enumerate(main):
        f()
        tgt = 0 if i < start else min(m, ((i - start + 1) * m + (n - start) - 1) // (n - start))
        while j < tgt: fill[j](); j += 1
    while j < m: fill[j](); j += 1

SWS, SX, SW, SO = 48, 52, 56, 60
sC1 = 64
sN = 46
NV = 190
sWV, sT0, sT1, sT2, sT3, sT4, sA, sB, sC, sD, sE, sF, sG, sH, sI, sJ = range(66, 82)
WSR = f"s[{SWS}:{SWS+3}]"

class K:
    def __init__(self):
        self.a = Asm(); self.nl = 0; self.NV = NV
    def lab(self, p="L"):
        self.nl += 1; return f"{p}_{self.nl}"
    def _spin(self, vm, tag, cmp, ld, post=""):
        a = self.a; L, Lok = self.lab("Lp"), self.lab("Lpo")
        vm.wait(tag)
        a(f"""{L}:
        {cmp}
        s_cmp_eq_u64 vcc, 0
        s_cbranch_scc1 {Lok}
        s_sub_u32 s15, s15, 1
        s_cbranch_scc1 L_end
        s_mov_b64 exec, vcc
        s_sleep {os.environ.get('SLP', 1)}
        {ld}
        s_waitcnt vmcnt(0)
        s_branch {L}
        {Lok}:
        s_mov_b64 exec, -1
        {post}""")
    def init_issue(self, vm, t=None): vm.op(f"global_load_dwordx2 {vr(self.NV,2)}, v4, s[42:43] {SC}", "init")
    def init_check(self, vm, t=None):
        self._spin(vm, "init", f"v_cmp_eq_u32 vcc, 0, v{self.NV}", f"global_load_dwordx2 {vr(self.NV,2)}, v4, s[42:43] {SC}",
                   f"v_readfirstlane_b32 s{sN}, v{self.NV}\nv_readfirstlane_b32 s{sN+1}, v{self.NV+1}")
    def poll_ld(self, vaddr, t): return f"buffer_load_dwordx2 {vr(t,2)}, v{vaddr}, {WSR}, 0 offen {SC}"
    def poll_cmp(self, t): return f"v_cmp_ne_u64 vcc, s[{sN}:{sN+1}], {vr(t,2)}"
    def poll_issue(self, vm, vaddr, t): vm.op(self.poll_ld(vaddr, t), "poll")
    def poll(self, vm, vaddr, t, issued=False, tag="poll"):
        if not issued: self.poll_issue(vm, vaddr, t)
        self._spin(vm, tag, self.poll_cmp(t), self.poll_ld(vaddr, t))
    def flag(self, vm, soff, vone=None):
        self.a("s_mov_b64 exec, 1")
        vm.op(f"buffer_store_dwordx2 {vr(self.NV,2)}, off, {WSR}, s{soff} {SC}", "flag")
        self.a("s_mov_b64 exec, -1")

def gen():
    k = K(); a = k.a
    st = Stamper(a, 0, 44, sWV)
    a("s_cmp_ge_u32 s2, 512\ns_cbranch_scc1 L_end")
    st.start()
    a(f"""
    s_load_dwordx16 s[16:31], s[0:1], 0
    s_load_dwordx8 s[32:39], s[0:1], 64
    s_load_dwordx4 s[40:43], s[0:1], 96
    s_load_dwordx2 s[44:45], s[0:1], 112
    v_lshrrev_b32 v1, 6, v0
    v_and_b32 v2, 63, v0
    v_readfirstlane_b32 s{sWV}, v1
    v_lshlrev_b32 v3, 4, v2
    v_mov_b32 v4, 64
    s_mov_b32 s15, 40000
    {'s_xor_b32 s2, s2, 256' if os.environ.get('GFIRST') else ''}
    s_cmp_lt_u32 s2, 256
    s_cbranch_scc1 L_S
    s_sub_u32 s2, s2, 256
    """)
    k.NV = 46
    gen_G(k, st)
    k.NV = NV
    gen_S(k, st)
    a("L_end:\ns_endpgm")
    return a

def gen_G(k, st):
    a = k.a
    if os.environ.get('SKIP_G'): a('s_endpgm')
    sRB, sP, sKX, sFL, sXO, sWO, sXM, sWM, sTY, sAT = sA, sB, sC, sD, sE, sF, sG, sH, sI, sJ
    vXD, vWD, vXA, vWA = 8, 12, 16, 20
    vWO, vFQ, vFK, vWS = 21, 22, 23, 24
    vFT, vEX, vFZ = 26, 5, 6
    vAT = 28
    vT = 36
    GA = 64; XF, WF = 128, 144
    a(f"""
    s_setprio {os.environ.get('GPRIO', 1)}
    s_and_b32 s{sT0}, s2, 7
    s_lshr_b32 s{sT1}, s2, 3
    s_lshr_b32 s{sTY}, s2, 7
    s_lshr_b32 s{sRB}, s{sT0}, 1
    s_lshl_b32 s{sRB}, s{sRB}, 2
    s_bfe_u32 s{sT2}, s{sT1}, 0x20002
    s_add_u32 s{sRB}, s{sRB}, s{sT2}
    s_and_b32 s{sP}, s{sT0}, 1
    s_lshl_b32 s{sP}, s{sP}, 2
    s_and_b32 s{sT3}, s{sT1}, 3
    s_add_u32 s{sP}, s{sP}, s{sT3}
    s_lshl_b32 s{sKX}, s{sT3}, 1
    s_add_u32 s{sKX}, s{sKX}, s{sTY}
    s_mul_i32 s{sT2}, s{sT2}, 3
    s_add_u32 s{sKX}, s{sKX}, s{sT2}
    s_cmp_ge_u32 s{sKX}, 14
    s_cselect_b32 s{sT2}, 14, 0
    s_sub_u32 s{sKX}, s{sKX}, s{sT2}
    s_cmp_ge_u32 s{sKX}, 7
    s_cselect_b32 s{sT2}, 7, 0
    s_sub_u32 s{sKX}, s{sKX}, s{sT2}
    {f's_mov_b32 s{sKX}, 0' if not os.environ.get('ROT') else ''}
    s_lshl_b32 s{sXO}, s{sKX}, 7
    s_mul_i32 s{sWO}, s{sKX}, {64*2688}
    v_lshrrev_b32 v{vT+1}, 3, v2
    v_and_b32 v{vT+2}, 7, v2
    v_lshrrev_b32 v{vT+3}, 4, v2
    v_xor_b32 v{vT+6}, v{vT+2}, v{vT+3}
    v_lshlrev_b32 v{vT+6}, 4, v{vT+6}
    v_mul_u32_u24 v{vT+7}, 896, v{vT+1}
    s_lshl_b32 s{sT0}, s{sRB}, 2
    s_add_u32 s{sT0}, s{sT0}, s{sWV}
    s_mul_i32 s{sT0}, s{sT0}, {32*896}
    v_add3_u32 v{vXD}, v{vT+6}, v{vT+7}, s{sT0}
    v_xor_b32 v{vT+6}, 64, v{vT+6}
    v_add3_u32 v{vXD+1}, v{vT+6}, v{vT+7}, s{sT0}
    v_add_u32 v{vXD+1}, {7168-1024}, v{vXD+1}
    v_add_u32 v{vXD+2}, {2*(7168-1024)}, v{vXD}
    v_add_u32 v{vXD+3}, {2*(7168-1024)}, v{vXD+1}
    v_and_b32 v{vT+6}, 1, v{vT+3}
    v_lshlrev_b32 v{vT+6}, 2, v{vT+6}
    v_xor_b32 v{vT+8}, v{vT+6}, v{vT+2}
    v_min_u32 v{vT+6}, 6, v{vT+8}
    v_lshlrev_b32 v{vT+6}, 4, v{vT+6}
    v_mul_u32_u24 v{vT+9}, 2688, v{vT+1}
    s_lshr_b32 s{sT0}, s{sWV}, 1
    s_add_u32 s{sT0}, s{sT0}, 1
    s_mul_i32 s{sT0}, s{sT0}, 896
    s_and_b32 s{sT1}, s{sWV}, 1
    s_mul_i32 s{sT1}, s{sT1}, {32*2688}
    s_add_u32 s{sT0}, s{sT0}, s{sT1}
    s_mul_i32 s{sT1}, s{sWV}, {16*2688}
    s_lshl_b32 s{sXM}, s{sWV}, 12
    s_lshl_b32 s{sT2}, s{sWV}, 11
    s_cmp_eq_u32 s{sTY}, 0
    s_cselect_b32 s{sT0}, s{sT1}, s{sT0}
    s_cselect_b32 s{sWM}, s{sT2}, s{sXM}
    s_add_u32 s{sWM}, s{sWM}, 49152
    s_mul_i32 s{sT1}, s{sP}, 112
    s_add_u32 s{sT0}, s{sT0}, s{sT1}
    v_add3_u32 v{vWD}, v{vT+6}, v{vT+9}, s{sT0}
    v_add_u32 v{vWD+1}, {8*2688-1024}, v{vWD}
    v_add_u32 v{vWD+2}, {2*(8*2688-1024)}, v{vWD}
    v_add_u32 v{vWD+3}, {3*(8*2688-1024)}, v{vWD}
    s_mov_b32 s{SX+2}, {2048*896}
    s_mov_b32 s{SX+3}, 0x20000
    s_mov_b32 s{SW+2}, {448*2688}
    s_mov_b32 s{SW+3}, 0x20000
    s_cmp_eq_u32 s{sTY}, 0
    s_waitcnt lgkmcnt(0)
    s_mov_b32 s{SX}, s34
    s_mov_b32 s{SX+1}, s35
    s_mov_b32 s{SW}, s36
    s_mov_b32 s{SW+1}, s37
    """)
    st(0)
    a("s_cbranch_scc1 L_GQ")
    def setup(kv, vm):
        a(f"""
        v_and_b32 v{vT+6}, 31, v2
        v_lshrrev_b32 v{vT+4}, 5, v2
        v_bfe_u32 v{vT+5}, v2, 1, 3
        v_xor_b32 v{vT+5}, v{vT+5}, v{vT+4}
        v_lshlrev_b32 v{vT+5}, 4, v{vT+5}
        v_lshl_add_u32 v{vT+5}, v{vT+6}, 7, v{vT+5}
        s_lshr_b32 s{sT0}, s{sWV}, 1
        s_lshl_b32 s{sT0}, s{sT0}, 13
        v_add_u32 v{vXA}, s{sT0}, v{vT+5}
        v_xor_b32 v{vXA+1}, 32, v{vXA}
        v_xor_b32 v{vXA+2}, 64, v{vXA}
        v_xor_b32 v{vXA+3}, 96, v{vXA}
        v_bfe_u32 v{vT+5}, v2, 2, 2
        v_lshl_add_u32 v{vT+5}, v{vT+4}, 3, v{vT+5}
        v_lshlrev_b32 v{vT+5}, 7, v{vT+5}
        v_and_b32 v{vT+9}, 3, v2
        v_lshlrev_b32 v{vT+10}, 3, v{vT+9}
        v_bfe_u32 v{vT+11}, v2, 4, 1
        v_lshl_add_u32 v{vT+10}, v{vT+11}, 5, v{vT+10}
        s_and_b32 s{sT0}, s{sWV}, 1
        s_mul_i32 s{sT0}, s{sT0}, 56
        v_add_u32 v{vT+10}, s{sT0}, v{vT+10}
        v_bfe_u32 v{vT+11}, v2, 3, 1
        v_lshlrev_b32 v{vT+11}, 6, v{vT+11}
        v_xor_b32 v{vT+10}, v{vT+10}, v{vT+11}
        v_add_u32 v{vT+5}, v{vT+5}, v{vT+10}
        v_add_u32 v{vWA}, 49152, v{vT+5}
        s_and_b32 s{sT0}, s2, 31
        s_lshl_b32 s{sT0}, s{sT0}, 4
        s_lshl_b32 s{sT1}, s{sWV}, 2
        s_add_u32 s{sT0}, s{sT0}, s{sT1}
        s_lshl_b32 s{sT0}, s{sT0}, 7
        s_add_u32 s{sT0}, s{sT0}, {F_Q}
        v_lshlrev_b32 v{vT+9}, 7, v{vT+9}
        v_add_u32 v{vFQ}, s{sT0}, v{vT+9}
        s_lshl_b32 s{sT0}, s{sWV}, 12
        s_add_u32 s{sT0}, s{sT0}, {F_KV}
        v_lshlrev_b32 v{vFK}, 7, v{vT+6}
        v_add_u32 v{vFK}, s{sT0}, v{vFK}
        v_lshlrev_b32 v{vT+8}, 4, v{vT+8}
        s_mul_i32 s{sT0}, s{sWV}, {112*896}
        s_lshr_b32 s{sT1}, s2, 5
        s_lshl_b32 s{sT1}, s{sT1}, 7
        s_add_u32 s{sT0}, s{sT0}, s{sT1}
        v_add3_u32 v{vWO}, v{vT+8}, v{vT+7}, s{sT0}
        v_add_u32 v{vWS}, s{sXM}, v3
        v_add_u32 v{vWS+1}, s{sWM}, v3
        s_mov_b32 s{sC1}, {LOG2E}
        s_mov_b32 s{sC1+1}, {LOG2E}
        """)
        srd(a, SWS, 44, 45, WS_SIZE)
        srd(a, SO, 40, 41, 2048 * 1792)
        if os.environ.get('TLB'):
            a(f"""
            v_lshlrev_b32 v{vT+10}, {os.environ['TLB']}, v2
            v_mul_u32_u24 v{vT+11}, 57344, v2
            s_lshl_b32 s{sT0}, s{sWV}, {int(os.environ['TLB'])-2}
            """)
            vm.op(f"buffer_load_dword v{vT+10}, v{vT+10}, {WSR}, s{sT0} offen", "tlb")
            vm.op(f"buffer_load_dword v{vT+11}, v{vT+11}, s[{SO}:{SO+3}], 0 offen", "tlb")
            vm.op(f"global_load_dword v{vT+9}, v3, s[38:39]", "tlb")
        if kv:
            a(f"""
            s_mul_i32 s{sT0}, s{sWV}, 20480
            s_add_u32 s{sT0}, s{sT0}, 16384
            v_add_u32 v{vEX}, s{sT0}, v3
            s_and_b32 s{sT0}, s{sWV}, 1
            s_lshr_b32 s{sT1}, s{sWV}, 1
            s_lshl_b32 s{sT1}, s{sT1}, 11
            s_mul_i32 s{sT2}, s{sT0}, 20480
            s_add_u32 s{sT2}, s{sT2}, s{sT1}
            s_add_u32 s{sT2}, s{sT2}, 16384
            s_and_b32 s{sT3}, s{sRB}, 7
            s_lshl_b32 s{sT3}, s{sT3}, 8
            s_add_u32 s{sT3}, s{sT3}, s{sT2}
            v_lshlrev_b32 v{vT+4}, 2, v2
            v_add_u32 v{vAT}, s{sT3}, v{vT+4}
            s_lshl_b32 s{sT0}, s{sT0}, 12
            s_add_u32 s{sT0}, s{sT0}, s{sT1}
            s_lshl_b32 s{sAT}, s{sP}, 13
            s_add_u32 s{sAT}, s{sAT}, s{sT0}
            s_add_u32 s{sAT}, s{sAT}, {WS_KVA}
            s_sub_u32 s{sAT}, s{sAT}, s{sT2}
            s_lshl_b32 s{sFL}, s{sP}, 4
            s_add_u32 s{sFL}, s{sFL}, s{sRB}
            s_lshl_b32 s{sFL}, s{sFL}, 7
            s_add_u32 s{sFL}, s{sFL}, {F_KV}
            """)
            for i in range(1, 8): a(f"v_xor_b32 v{vAT+i}, {i << 8}, v{vAT}")
            a(f"v_and_b32 v{vFZ}, 3, v2\nv_lshlrev_b32 v{vFZ}, 7, v{vFZ}\nv_add_u32 v{vFZ}, {F_Z}, v{vFZ}")
        else:
            a(f"""
            s_lshl_b32 s{sT3}, s{sRB}, 1
            s_lshr_b32 s{sT1}, s{sWV}, 1
            s_add_u32 s{sT3}, s{sT3}, s{sT1}
            s_lshl_b32 s{sT3}, s{sT3}, 4
            s_lshl_b32 s{sT1}, s{sP}, 1
            s_add_u32 s{sT1}, s{sT1}, s{sT3}
            s_and_b32 s{sT2}, s{sWV}, 1
            s_add_u32 s{sT1}, s{sT1}, s{sT2}
            s_lshl_b32 s{sFL}, s{sT1}, 7
            s_add_u32 s{sFL}, s{sFL}, {F_Q}
            s_add_u32 s{sT1}, s{sT1}, s{sT3}
            s_lshl_b32 s{sAT}, s{sT1}, 11
            s_add_u32 s{sKX}, s{sAT}, 32768
            """)
        for i in range(32): a(f"v_mov_b32 v{GA+i}, {EPS}")
    def gemm(kv):
        vm, lg = Cnt(a, "vmcnt"), Cnt(a, "lgkmcnt")
        nt = 2 if kv else 1
        nws = 2 if kv else 4
        wsz = 16384 if kv else 8192
        stage = {}
        def ld(kind, c, regs=None):
            n = 4 if kind == "x" else 2 * nt
            vD, S, sO = (vXD, SX, sXO) if kind == "x" else (vWD, SW, sWO)
            step, end = (128, 896) if kind == "x" else (64 * 2688, 448 * 2688)
            if regs is not None: stage[(kind, c)] = regs
            T = []
            for j in range(n):
                def f(j=j):
                    if regs is None:
                        if j == 0: a(f"s_add_u32 m0, s{sXM if kind == 'x' else sWM}, {16384*(c%3) if kind == 'x' else wsz*(c%nws)}")
                        vm.op(f"buffer_load_dwordx4 v{vD+j}, s[{S}:{S+3}], s{sO} offen offset:{1024*j} {os.environ.get('NTG','')} lds", f"{kind}{c}")
                    else:
                        vm.op(f"buffer_load_dwordx4 {vr(regs[1]+4*j,4,regs[0])}, v{vD+j}, s[{S}:{S+3}], s{sO} offen offset:{1024*j} {os.environ.get('NTG','')}", f"{kind}{c}")
                    if j == n - 1: a(f"s_add_u32 s{sO}, s{sO}, {step}\ns_cmp_eq_u32 s{sO}, {end}\ns_cselect_b32 s{sO}, 0, s{sO}")
                T.append(f)
            return T
        def wr(kind, c):
            regs = stage[(kind, c)]
            n = 4 if kind == "x" else 2 * nt
            T = []
            for j in range(n):
                def f(j=j):
                    if j == 0: vm.wait(f"{kind}{c}")
                    off = (16384 * (c % 3) if kind == "x" else wsz * (c % nws)) + 1024 * j
                    lg.op(f"ds_write_b128 v{vWS + (0 if kind == 'x' else 1)}, {vr(regs[1]+4*j,4,regs[0])} offset:{off}", "wr")
                T.append(f)
            return T
        def F(c, ks):
            b = ks & 1
            for n in range(nt):
                for i in range(2):
                    lg.op(f"ds_read_b64_tr_b16 {vr(WF+8*b+4*n+2*i,2)}, v{vWA} offset:{wsz*(c%nws) + ks*2048 + i*512 + n*8192}", f"f{c}{ks}")
            for t in range(2):
                lg.op(f"ds_read_b128 {vr(XF+8*b+4*t,4)}, v{vXA+ks} offset:{16384*(c%3) + 4096*t}", f"f{c}{ks}")
        def M(c, ks, fill=()):
            b = ks & 1
            lg.wait(f"f{c}{ks}")
            T = []
            for n in range(nt):
                for t in range(2):
                    acc = vr(GA + 16 * (n * 2 + t), 16)
                    cin = "0" if (c == 0 and ks == 0 and n == 1) else acc
                    xf, wf = vr(XF + 8 * b + 4 * t, 4), vr(WF + 8 * b + 4 * n, 4)
                    T.append(lambda s=(f"v_mfma_f32_32x32x16_bf16 {acc}, {xf}, {wf}, {cin}" if kv else f"v_mfma_f32_32x32x16_bf16 {acc}, {wf}, {xf}, {cin}"): a(s))
            weave(T, list(fill))
        run = lambda T: [f() for f in T]
        if kv and not os.environ.get('KVREG'):
            for x in (("x", 0), ("w", 0), ("x", 1), ("w", 1)): run(ld(*x))
            R = [("a", 0), ("a", 16), ("a", 32)]
            lds_ = {0: [("w", 2, R[0]), ("x", 2), ("w", 3, R[1])], 1: [("x", 3), ("w", 4, R[2])], 2: [("x", 4), ("w", 5, R[0])],
                    3: [("x", 5), ("w", 6, R[1])], 4: [("x", 6)]}
            wrs = {c: [("w", c + 2)] for c in range(5)}
            if not kv:
                lds_ = {0: [("x", 2), ("w", 2), ("w", 3)], 1: [("x", 3), ("w", 4)], 2: [("x", 4), ("w", 5)], 3: [("x", 5), ("w", 6)], 4: [("x", 6)]}
                wrs = {}
            setup(kv, vm)
            vm.wait(["x0", "w0"]); a("s_barrier")
            st(1)
            F(0, 0); F(0, 1)
            pend = []
            for c in range(7):
                L = sum([ld(*l) for l in lds_.get(c, [])], [])
                if c == 3: L.append(lambda: k.init_issue(vm))
                if c == 5 and kv: L.append(lambda: (k.init_check(vm), vm.op(k.poll_ld(vFZ, vFT), "zp")))
                q = max(1, (len(L) + 2) // 3); w = max(1, (len(pend) + 2) // 3)
                M(c, 0, L[:q] + pend[:w]); F(c, 2)
                M(c, 1, L[q:2*q] + pend[w:2*w]); F(c, 3)
                M(c, 2, L[2*q:] + pend[2*w:])
                if c < 6:
                    dma = [f"{kd}{c+1}" for kd in "xw" if (kd, c + 1) not in stage]
                    if dma and vm.n_after(dma) is not None: vm.wait(dma, "lgkmcnt(0)")
                    else: a("s_waitcnt lgkmcnt(0)")
                    lg.drain()
                    a("s_barrier")
                    F(c + 1, 0)
                    pend = sum([wr(*x) for x in wrs.get(c, [])], [])
                    M(c, 3, pend[:1]); pend = pend[1:]
                    F(c + 1, 1)
                else:
                    lg.wait(f"f{c}3")
                    a("s_barrier")
                    M(c, 3)
            return vm
        if kv:
            RX = [("a", 0), ("a", 16), ("a", 32)]; RW = [("a", 48), ("v", 160), ("v", 176)]
        else:
            RX = [("a", 0), ("a", 16), ("a", 32), ("a", 48)]; RW = [("v", 160), ("v", 168), ("v", 176), ("v", 96)]
        NS = len(RX)
        for c in range(2): run(ld("x", c, RX[c])); run(ld("w", c, RW[c]))
        setup(kv, vm)
        run(wr("x", 0)); run(wr("w", 0))
        run(ld("x", 2, RX[2])); run(ld("w", 2, RW[2]))
        a("s_waitcnt lgkmcnt(0)\ns_barrier"); lg.drain()
        st(1)
        F(0, 0); F(0, 1)
        P = wr("x", 1) + wr("w", 1)
        nxt = 3
        for c in range(7):
            L = []
            while nxt < 7 and nxt - NS <= c:
                L += ld("x", nxt, RX[nxt % NS]) + ld("w", nxt, RW[nxt % NS]); nxt += 1
            if c == 3: L.append(lambda: k.init_issue(vm))
            if c == 5 and kv: L.append(lambda: (k.init_check(vm), vm.op(k.poll_ld(vFZ, vFT), "zp")))
            h = (len(P) + 1) // 2; q = (len(L) + 1) // 2
            M(c, 0, P[:h]); F(c, 2)
            M(c, 1, P[h:] + L[:q//2]); F(c, 3)
            M(c, 2, L[q//2:q])
            if c < 6:
                a("s_waitcnt lgkmcnt(0)\ns_barrier"); lg.drain()
                F(c + 1, 0)
                P = (wr("x", c + 2) + wr("w", c + 2)) if c + 2 < 7 else []
                n0 = len(P) // 4
                M(c, 3, L[q:] + P[:n0]); P = P[n0:]
                F(c + 1, 1)
            else:
                lg.wait(f"f{c}3")
                if kv: a("s_barrier")
                M(c, 3, L[q:])
        return vm
    def phi_t(base, n, dst, pk=True):
        T = []
        for i in range(0, n, 2):
            t = vT + 2 * ((i // 2) & 3)
            x = base + i
            if not pk:
                T.append(lambda t=t, x=x, i=i: a(f"""
                v_mul_f32 v{t}, s{sC1}, v{x}
                v_mul_f32 v{t+1}, s{sC1}, v{x+1}
                v_exp_f32_e64 v{t}, v{t} clamp
                v_exp_f32_e64 v{t+1}, v{t+1} clamp
                v_max_f32 v{x}, {EPS}, v{x}
                v_max_f32 v{x+1}, {EPS}, v{x+1}
                v_add_f32 v{x}, v{x}, v{t}
                v_add_f32 v{x+1}, v{x+1}, v{t+1}
                v_cvt_pk_bf16_f32 v{dst + i//2}, v{x}, v{x+1}
                """))
                continue
            T.append(lambda t=t, x=x, i=i: a(f"""
            v_pk_mul_f32 {vr(t,2)}, {vr(x,2)}, s[{sC1}:{sC1+1}]
            v_max_f32 v{x}, {EPS}, v{x}
            v_exp_f32_e64 v{t}, v{t} clamp
            v_exp_f32_e64 v{t+1}, v{t+1} clamp
            v_max_f32 v{x+1}, {EPS}, v{x+1}
            v_pk_add_f32 {vr(x,2)}, {vr(x,2)}, {vr(t,2)}
            v_cvt_pk_bf16_f32 v{dst + i//2}, v{x}, v{x+1}
            """))
        return T
    def wo_dma(vm):
        T = []
        for i in range(15):
            def f(i=i):
                if i == 0:
                    srd(a, SW, 38, 39, 448 * 896)
                    a(f"s_mul_i32 s{sT1}, s{sWV}, 20480\ns_mov_b32 s{sT0}, 0")
                a(f"s_add_u32 m0, s{sT1}, {1024*i}")
                if i: a(f"s_add_u32 s{sT0}, s{sT0}, 7168")
                vm.op(f"buffer_load_dwordx4 v{vWO}, s[{SW}:{SW+3}], s{sT0} offen lds", "wo")
            T.append(f)
        return T
    PK, PV, KVD = 128, 144, 48
    vm = gemm(True)
    st(3)
    a(f"s_setprio {os.environ.get('GPRIO1', 3)}")
    for f in phi_t(GA, 16, PK, os.environ.get('KVPK')): f()
    for t in range(2):
        for i in range(8):
            a(f"v_cvt_pk_bf16_f32 v{PV+8*t+i}, v{GA+32+16*t+2*i}, v{GA+32+16*t+2*i+1}")
    a(f"s_mov_b32 exec_lo, {1<<28}\ns_mov_b32 exec_hi, {1<<28}")
    for i in range(16): a(f"v_mov_b32 v{PV+i}, 0x3f803f80")
    a("s_mov_b64 exec, -1")
    for u in range(2):
        a(f"v_mfma_f32_32x32x16_bf16 {vr(KVD,16)}, {vr(PK+4*u,4)}, {vr(PV+4*u,4)}, {'0' if u == 0 else vr(KVD,16)}")
    for f in phi_t(GA + 16, 16, PK + 8, os.environ.get('KVPK')): f()
    for u in range(2):
        a(f"v_mfma_f32_32x32x16_bf16 {vr(KVD,16)}, {vr(PK+8+4*u,4)}, {vr(PV+8+4*u,4)}, {vr(KVD,16)}")
    st(4)
    k.poll(vm, vFZ, vFT, issued=True, tag="zp")
    for q in range(3):
        a(f"ds_write_b128 v{vEX}, {vr(KVD+4*q,4)} offset:{1024*q}")
    a("s_mov_b32 exec_lo, 0")
    for i in range(12, 16): a(f"v_mov_b32 v{KVD+i}, 0")
    a("s_mov_b64 exec, -1")
    a(f"ds_write_b128 v{vEX}, {vr(KVD+12,4)} offset:3072")
    a("s_waitcnt lgkmcnt(0)\ns_barrier")
    for i in range(8):
        a(f"ds_read2st64_b32 {vr(GA+2*i,2)}, v{vAT+i} offset0:0 offset1:160")
    for i in range(8):
        a(f"s_waitcnt lgkmcnt({7-i})")
        a(f"v_add_f32 v{GA+2*i}, v{GA+2*i}, v{GA+2*i+1}")
        a(f"buffer_atomic_add_f32 v{GA+2*i}, v{vAT+i}, {WSR}, s{sAT} offen sc1")
    st(5)
    vm.drain()
    k.poll_issue(vm, vFQ, vFT)
    W = wo_dma(vm)
    a("s_cmp_ge_u32 s2, 224\ns_cbranch_scc1 L_kvw")
    for f in W[:6]: f()
    a("s_waitcnt vmcnt(7)\nL_kvw:\ns_cbranch_scc0 L_kvw2\ns_waitcnt vmcnt(1)\nL_kvw2:")
    a(f"s_barrier\ns_cmp_lg_u32 s{sWV}, 0\ns_cbranch_scc1 L_kvf")
    k.flag(vm, sFL, 1)
    a("L_kvf:")
    st(6)
    a("s_cmp_ge_u32 s2, 224\ns_cbranch_scc1 L_kvend")
    for f in W[6:]: f()
    a("s_waitcnt vmcnt(9)\ns_branch L_fin3")
    a("L_GQ:")
    if os.environ.get('QPRIO'): a(f"s_setprio {os.environ['QPRIO']}")
    vm = gemm(False)
    st(3)
    a(f"s_setprio {os.environ.get('GPRIO1', 3)}")
    for t in range(2):
        for f in phi_t(GA + 16 * t, 16, PK + 8 * t, False): f()
        for ks in range(2):
            vm.op(f"buffer_store_dwordx4 {vr(PK+8*t+4*ks,4)}, v3, {WSR}, s{sAT if t == 0 else sKX} offen offset:{WS_PQ + 1024*ks} {SC}", "pqs")
    st(4)
    k.init_check(vm, vFT)
    st(5)
    vm.wait("pqs")
    k.flag(vm, sFL, 1)
    a("s_barrier")
    st(6)
    if os.environ.get('WOEARLY'):
        for f in wo_dma(Cnt(a, "vmcnt")): f()
    a(k.poll_ld(vFQ, vFT) + "\ns_waitcnt vmcnt(0)")
    A1, O, A2, KB, K23, WOFR = 16, 48, 64, 128, 144, 176
    vm = Cnt(a, "vmcnt"); lg = Cnt(a, "lgkmcnt")
    a("L_fin3:")
    a(f"s_setprio {os.environ.get('GPRIO2', 1)}")
    a(f"v_mov_b32 v12, v{vFK}")
    k.poll(vm, vFQ, vFT, issued=True)
    st(7)
    a(f"""
    s_and_b32 s{sT0}, s2, 31
    s_lshl_b32 s{sT0}, s{sT0}, 16
    s_lshl_b32 s{sT1}, s{sWV}, 13
    s_add_u32 s{sT0}, s{sT0}, s{sT1}
    s_add_u32 s{sT1}, s{sT0}, 32768
    s_add_u32 s{sT2}, s{sT0}, 4096
    s_add_u32 s{sT3}, s{sT1}, 4096
    """)
    for hl in range(4):
        for t in range(2):
            for ks in range(2):
                so = [[sT0, sT1], [sT2, sT3]][hl >> 1][t]
                vm.op(f"buffer_load_dwordx4 {ar(16*hl+8*t+4*ks,4)}, v3, {WSR}, s{so} offen offset:{WS_PQ + 2048*(hl&1) + 1024*ks} {SC}", "pq")
    if not os.environ.get('WOEARLY'):
        a(f"s_cmp_lg_u32 s{sTY}, 0\ns_cbranch_scc1 L_havewo")
        for f in wo_dma(Cnt(a, "vmcnt")): f()
        a("L_havewo:")
    k.poll_issue(vm, 12, 8)
    a(f"""
    s_lshl_b32 s{sT0}, s{sWV}, 14
    s_add_u32 s{sT0}, s{sT0}, {WS_KVA}
    s_mul_i32 s{sT1}, s{sWV}, 20480
    v_bfe_u32 v5, v2, 2, 2
    v_lshrrev_b32 v6, 5, v2
    v_lshl_add_u32 v5, v6, 2, v5
    v_lshlrev_b32 v5, 7, v5
    v_and_b32 v7, 1, v2
    v_lshl_add_u32 v5, v7, 5, v5
    v_bfe_u32 v7, v2, 4, 1
    v_lshl_add_u32 v5, v7, 4, v5
    v_bfe_u32 v7, v2, 1, 1
    v_lshl_add_u32 v5, v7, 3, v5
    v_bfe_u32 v7, v2, 3, 1
    v_lshl_add_u32 v5, v7, 6, v5
    v_xor_b32 v15, 64, v5
    v_add_u32 v5, s{sT1}, v5
    v_add_u32 v15, s{sT1}, v15
    s_mov_b32 s{sT2}, {EPS}
    s_mov_b32 s{sC1}, -1
    s_mov_b32 s{sC1+1}, 0
    v_and_b32 v13, 31, v2
    v_mul_u32_u24 v13, 272, v13
    v_lshl_add_u32 v13, v6, 6, v13
    v_add_u32 v13, s{sT1}, v13
    v_lshrrev_b32 v7, 3, v0
    v_and_b32 v14, 7, v0
    v_mul_u32_u24 v10, 272, v7
    v_lshl_add_u32 v10, v14, 5, v10
    v_mul_u32_u24 v11, 1792, v7
    v_lshl_add_u32 v11, v14, 4, v11
    s_and_b32 s{sT3}, s2, 31
    s_mul_i32 s{sT3}, s{sT3}, {64*1792}
    s_lshr_b32 s{sT4}, s2, 5
    s_lshl_b32 s{sT4}, s{sT4}, 7
    s_add_u32 s{sT3}, s{sT3}, s{sT4}
    s_add_u32 s{sT3}, s{sT3}, 896
    s_add_u32 s{sT4}, s{sT3}, {32*1792}
    v_mov_b32 v14, 0x7fff0000
    v_cndmask_b32 v14, v14, v3, s[{sC1}:{sC1+1}]
    """)
    def ldwo(hl):
        for ks in range(2):
            for ct in range(2):
                for i in range(2):
                    lg.op(f"ds_read_b64_tr_b16 {vr(WOFR+8*ks+4*ct+2*i,2)}, v{15 if ct else 5} offset:{128*(28*hl+16*ks+8*i)}", f"wo{hl}")
    k.poll(vm, 12, 8, issued=True)
    vm.drain()
    st(8)
    def kvsrc(hl): return A1 + 16 * hl if hl < 2 else K23 + 16 * (hl - 2)
    def kvb(hl): return KB + 8 * hl if hl < 2 else K23 + 16 * (hl - 2)
    for hl in range(4):
        for q in range(4):
            vm.op(f"buffer_load_dwordx4 {vr(kvsrc(hl)+4*q,4)}, v{14 if q == 3 else 3}, {WSR}, s{sT0} offen offset:{1024*q} {SC}", f"kv{hl}")
        if hl < 3: a(f"s_add_u32 s{sT0}, s{sT0}, 4096")
    ldwo(0)
    a(f"v_add_u32 v12, 40960, v10")
    def cvtkv(hl):
        T = []
        for i in range(8):
            def f(i=i):
                if i == 0: vm.wait(f"kv{hl}")
                a(f"v_cvt_pk_bf16_f32 v{kvb(hl)+i}, v{kvsrc(hl)+2*i}, v{kvsrc(hl)+2*i+1}")
            T.append(f)
        return T
    def s1(u):
        hl, t = u >> 1, u & 1
        A = vr(A1 + 16 * (u & 1), 16)
        return [lambda: a(f"v_mfma_f32_32x32x16_bf16 {A}, {vr(kvb(hl),4)}, {ar(16*hl+8*t,4)}, 0"),
                lambda: a(f"v_mfma_f32_32x32x16_bf16 {A}, {vr(kvb(hl)+4,4)}, {ar(16*hl+8*t+4,4)}, {A}")]
    DN = 6
    def scale(u):
        A = A1 + 16 * (u & 1); Ou = O + 8 * (u & 1)
        L = [f"v_mov_b32 v{DN}, v{A+12}", f"v_mov_b32 v{DN+2}, v{A+12}", f"v_permlane32_swap_b32 v{DN}, v{DN+2}",
             f"v_add_f32 v{DN+2}, s{sT2}, v{DN+2}", f"v_rcp_f32 v{DN+2}, v{DN+2}"]
        for i in range(8):
            L.append(f"v_mul_f32 v{A+2*i}, v{A+2*i}, v{DN+2}")
            L.append(f"v_mul_f32 v{A+2*i+1}, v{A+2*i+1}, v{DN+2}")
            L.append(f"v_cvt_pk_bf16_f32 v{Ou+i}, v{A+2*i}, v{A+2*i+1}")
        L += [f"v_cndmask_b32 v{Ou+6}, 0, v{Ou+6}, s[{sC1}:{sC1+1}]", f"v_cndmask_b32 v{Ou+7}, 0, v{Ou+7}, s[{sC1}:{sC1+1}]"]
        return [lambda s=s: a(s) for s in L]
    def s2(u):
        hl, t = u >> 1, u & 1
        Ou = O + 8 * (u & 1); T = []
        for ks in range(2):
            for ct in range(2):
                acc = vr(A2 + 32 * t + 16 * ct, 16)
                cin = "0" if (hl == 0 and ks == 0) else acc
                def f(s=f"v_mfma_f32_32x32x16_bf16 {acc}, {vr(WOFR+8*ks+4*ct,4)}, {vr(Ou+4*ks,4)}, {cin}", first=(ks == 0 and ct == 0), last=(ks == 1 and ct == 1)):
                    if first and t == 0: lg.wait(f"wo{hl}")
                    a(s)
                    if last and t == 1 and hl < 3: ldwo(hl + 1)
                T.append(f)
        return T
    run = lambda T: [f() for f in T]
    run(cvtkv(0)); run(cvtkv(1))
    run(s1(0)); run(s1(1)); run(scale(0))
    for u in range(8):
        main = s2(u)
        fill = scale(u + 1) if u + 1 < 8 else []
        if u + 2 < 8:
            if u + 2 in (4, 6): run(cvtkv((u + 2) >> 1))
            main = s1(u + 2) + main
        if u == 7:
            fill = [lambda ct=ct, i=i: a(f"ds_write_b128 v13, {vr(A2+16*ct+4*i,4)} offset:{128*ct + 16*i}") for ct in range(2) for i in range(4)]
            weave(main, fill, start=1)
        else:
            weave(main, fill)
    st(9)
    for ct in range(2):
        for i in range(4):
            a(f"ds_write_b128 v13, {vr(A2+32+16*ct+4*i,4)} offset:{32*272 + 128*ct + 16*i}")
    a("s_waitcnt lgkmcnt(0)\ns_barrier")
    st(10)
    R = 64
    for t in range(2):
        for w in range(4):
            for h in range(2):
                a(f"ds_read_b128 {vr(R+32*t+8*w+4*h,4)}, v{10 if w < 2 else 12} offset:{20480*(w&1) + 32*272*t + 16*h}")
    for t in range(2):
        b = R + 32 * t
        a(f"s_waitcnt lgkmcnt({8 if t == 0 else 0})")
        for i in range(8):
            a(f"v_add_f32 v{b+i}, v{b+i}, v{b+8+i}")
            a(f"v_add_f32 v{b+16+i}, v{b+16+i}, v{b+24+i}")
        for i in range(8):
            a(f"v_add_f32 v{b+i}, v{b+i}, v{b+16+i}")
        for i in range(4):
            a(f"v_cvt_pk_bf16_f32 v{b+8+i}, v{b+2*i}, v{b+2*i+1}")
        a(f"buffer_store_dwordx4 {vr(b+8,4)}, v11, s[{SO}:{SO+3}], s{sT3 if t == 0 else sT4} offen {os.environ.get('NTO','')}")
    a("L_kvend:")
    st.end(1)
    a("s_endpgm")

from v6s import gen_S
```

```python
import os
from asmlib import *
from v6 import *

ROWB = 272
WREG = 53 * ROWB
KS, KSL = 4160, 16640
UBASE, UB, U0, U1 = 33280, 8256, 16, 16 + 4096 + 32
TTAB, TSTR = 66304, 1536
USTG = 57664

def gen_S(k, st):
    a = k.a
    sJB, sIDX, sCG, sHH, sKB, sFU, sIT, sPH, sKG, sFK = sA, sB, sC, sD, sE, sF, sG, sH, sI, sJ
    vm = Cnt(a, "vmcnt")
    P0 = 8
    UG, UG2 = 24, 32
    vT = 40
    IN = 56
    KA, KB_ = 60, 61
    ACC = 64; FR = 96
    E1, E8, E256, E2, E4, Wc, X0, X1, G0, G1, Y0, Y1 = [112 + 2 * i for i in range(12)]
    t0, t1, t2, t3, pk = 136, 137, 138, 139, 140
    EA = 144; AD = 153
    vFU, vFP, vGS, vGR, vGO = 157, 158, 159, 62, 63
    UR = 160
    vPW, vRR, vZF, vZU, vCW, vC4, vUW = 176, 177, 178, 179, 180, 181, 185
    vKL, vUL, vZL, vKS, vU2 = 188, 189, 59, 58, 187
    a(f"""
    L_S:
    s_setprio 3
    s_and_b32 s{sJB}, s2, 7
    s_lshr_b32 s{sIDX}, s2, 3
    s_cmp_eq_u32 s{sJB}, 7
    s_cbranch_scc1 L_aux
    {'s_endpgm' if os.environ.get('SKIP_S') else ''}
    s_lshl_b32 s{sT0}, s{sJB}, 4
    s_and_b32 s{sCG}, s{sIDX}, 15
    s_add_u32 s{sCG}, s{sCG}, s{sT0}
    s_lshr_b32 s{sHH}, s{sIDX}, 4
    s_lshl_b32 s{sKG}, s{sCG}, 1
    s_add_u32 s{sKG}, s{sKG}, s{sHH}
    v_and_b32 v{t0}, 31, v2
    """)
    a(f"""
    s_cmp_eq_u32 s{sWV}, 1
    s_cselect_b32 s{sT0}, 4, 8
    s_cselect_b32 s{sT3}, 2, 8
    s_cselect_b32 s{sT4}, 256, 0
    s_cselect_b32 s{sPH}, 384, 4
    s_cmp_eq_u32 s{sWV}, 2
    s_cselect_b32 s{sT0}, 1, s{sT0}
    s_cselect_b32 s{sT3}, 1, s{sT3}
    s_cselect_b32 s{sT4}, 512, s{sT4}
    s_cselect_b32 s{sPH}, 640, s{sPH}
    s_cselect_b32 s{sIT}, 32, 1
    v_mul_u32_u24 v{AD}, s{sT0}, v{t0}
    v_add_u32 v{AD}, s{sT4}, v{AD}
    v_mul_u32_u24 v{AD+1}, s{sT3}, v{t0}
    v_add_u32 v{AD+1}, s{sPH}, v{AD+1}
    v_cmp_gt_u32 vcc, 32, v2
    s_lshl_b32 s{sT0}, s{sIT}, 1
    s_cmp_eq_u32 s{sWV}, 0
    s_cselect_b32 s{sT3}, 2, 64
    v_mov_b32 v{t2}, s{sT3}
    v_mov_b32 v{t3}, s{sT0}
    v_cndmask_b32 v{AD}, v{AD+1}, v{AD}, vcc
    v_cndmask_b32 v{t3}, v{t2}, v{t3}, vcc
    v_add_u32 v{AD+1}, s{sIT}, v{AD}
    v_add_u32 v{AD+2}, v{AD}, v{t3}
    v_add_u32 v{AD+3}, s{sIT}, v{AD+2}
    v_mov_b32 v{t3}, {TTAB}
    """)
    for i in range(4): a(f"v_lshl_add_u32 v{AD+i}, v{AD+i}, 1, v{t3}")
    a(f"v_lshlrev_b32 v{t2}, 3, v0\nv_sub_u32 v{t2}, 2047, v{t2}")
    for e in range(9):
        a(f"v_subrev_u32 v{EA+e}, {e}, v{t2}")
        a(f"v_cvt_f32_i32 v{FR+e}, v{EA+e}")
    for e in range(0, 10, 2):
        a(f"v_cvt_pk_bf16_f32 v{FR+e}, v{FR+e}, v{FR+min(e+1,8)}")
        if e < 8: a(f"v_lshrrev_b32 v{FR+e+1}, 16, v{FR+e}")
        a(f"v_and_b32 v{FR+e}, 0xffff, v{FR+e}")
    for e in range(9):
        if e in (0, 8): a(f"v_cmp_gt_i32 vcc, 128, v{EA+e}")
        a(f"v_subrev_u32 v{FR+e}, 17024, v{FR+e}")
        a(f"v_cndmask_b32 v{EA+e}, v{FR+e}, v{EA+e}, vcc")
        a(f"v_lshl_add_u32 v{EA+e}, v{EA+e}, 1, v{t3}")
    a(f"""
    v_and_b32 v5, 3, v2
    v_sub_u32 v5, 3, v5
    v_mul_u32_u24 v{vKL}, {KS}, v5
    v_lshrrev_b32 v6, 4, v2
    v_lshl_add_u32 v{vKL}, v6, 4, v{vKL}
    v_bfe_u32 v7, v2, 2, 2
    v_lshlrev_b32 v7, 4, v7
    v_sub_u32 v{vKL}, v{vKL}, v7
    s_and_b32 s{sT0}, s{sWV}, 1
    s_lshl_b32 s{sT0}, s{sT0}, 8
    s_lshr_b32 s{sT3}, s{sWV}, 1
    s_mul_i32 s{sT3}, s{sT3}, {KSL}
    s_add_u32 s{sT3}, s{sT3}, {2*(2040-1792)}
    s_sub_u32 s{sT3}, s{sT3}, s{sT0}
    v_add_u32 v{vKL}, s{sT3}, v{vKL}
    v_and_b32 v5, 1, v2
    v_sub_u32 v5, 1, v5
    v_mul_u32_u24 v{vZL}, {U1-U0}, v5
    v_add_u32 v{vZL}, {UBASE}, v{vZL}
    v_bfe_u32 v5, v2, 1, 3
    v_lshl_add_u32 v{vUL}, v5, 6, v{vZL}
    v_lshl_add_u32 v{vUL}, v6, 4, v{vUL}
    s_sub_u32 s{sT3}, 16, s{sT0}
    v_add_u32 v{vUL}, s{sT3}, v{vUL}
    """)
    a(f"""
    s_lshl_b32 s{sT1}, s{sKG}, 10
    s_lshl_b32 s{sT2}, s{sWV}, 7
    s_add_u32 s{sT1}, s{sT1}, s{sT2}
    v_lshrrev_b32 v7, 5, v2
    v_lshlrev_b32 v5, 2, v{t0}
    v_lshl_add_u32 v6, v7, 9, v5
    v_add_u32 v{vT}, s{sT1}, v6
    s_lshl_b32 s{sT1}, s{sKG}, 2
    v_lshl_add_u32 v6, v7, 1, s{sT1}
    s_lshl_b32 s{sT1}, s{sIDX}, 2
    s_add_u32 s{sT1}, s{sT1}, s{sWV}
    s_mul_i32 s{sT1}, s{sT1}, {16*896}
    s_lshl_b32 s{sT2}, s{sJB}, 7
    s_add_u32 s{sT1}, s{sT1}, s{sT2}
    v_mul_u32_u24 v7, {8*896}, v7
    v_add3_u32 v7, v7, v5, s{sT1}
    v_add_u32 v5, {4*896}, v7
    s_waitcnt lgkmcnt(0)
    """)
    st(0)
    PR = P0 + 8
    a(f"global_load_short_d16_hi v{P0+6}, v6, s[30:31]")
    for i in range(6): a(f"global_load_dword v{PR+i}, v{vT}, s[{18+2*i}:{19+2*i}] nt")
    a(f"global_load_short_d16_hi v{P0+7}, v6, s[32:33]")
    k.init_issue(vm)
    UG, UG2 = 160, 80
    for i in range(8): a(f"global_load_dword v{UG2+i}, v{7 if i < 4 else 5}, s[16:17] offset:{(i%4)*896} nt")
    a(f"s_setprio {os.environ.get('SPRIO', 2)}")
    srd(a, SWS, 44, 45, WS_SIZE)
    srd(a, SO, 40, 41, 2048 * 1792)
    a(f"""
    s_mul_i32 s{sKB}, s{sWV}, {WREG}
    v_and_b32 v{t0}, 31, v2
    v_lshrrev_b32 v{t1}, 5, v2
    v_lshlrev_b32 v{t1}, 4, v{t1}
    v_add_u32 v{t1}, s{sKB}, v{t1}
    v_min_u32 v{t2}, 20, v{t0}
    v_mul_u32_u24 v{t2}, {ROWB}, v{t2}
    v_add_u32 v{KA}, v{t2}, v{t1}
    v_mul_u32_u24 v{t2}, {ROWB}, v{t0}
    v_add_u32 v{KB_}, v{t2}, v{t1}
    s_mov_b32 m0, s{sKB}
    v_add_u32 v{vPW}, s{sKB}, v3
    s_lshl_b32 s{sT0}, s{sWV}, 10
    v_add_u32 v{vRR}, s{sT0}, v3
    v_mul_u32_u24 v{vGS}, 288, v{t0}
    v_lshrrev_b32 v{t2}, 5, v2
    v_lshl_add_u32 v{vGS}, v{t2}, 4, v{vGS}
    s_mov_b32 s{sFK}, 0x05040100
    v_mov_b32 v{PR+6}, s{sFK}
    s_mov_b32 s{sFK}, 0x07060302
    v_mov_b32 v{PR+7}, s{sFK}
    s_lshl_b32 s{sT0}, s{sWV}, 5
    s_add_u32 s{sT0}, s{sT0}, {USTG}
    v_add_u32 v{vGS}, s{sT0}, v{vGS}
    v_lshrrev_b32 v{t2}, 3, v2
    v_and_b32 v{t3}, 7, v2
    v_lshrrev_b32 v{vGO}, 3, v2
    v_and_b32 v{vZF}, 7, v2
    v_mul_u32_u24 v{vGR}, 144, v{vGO}
    v_lshl_add_u32 v{vGR}, v{vZF}, 4, v{vGR}
    s_mul_i32 s{sT0}, s{sWV}, {16*144}
    s_add_u32 s{sT0}, s{sT0}, {USTG}
    v_add_u32 v{vGR}, s{sT0}, v{vGR}
    v_lshlrev_b32 v{vGO}, 12, v{vGO}
    v_lshl_add_u32 v{vGO}, v{vZF}, 4, v{vGO}
    v_mul_u32_u24 v{vZF}, {KS}, v{t2}
    v_lshl_add_u32 v{vZF}, v{t3}, 3, v{vZF}
    v_add_u32 v{vZF}, 4088, v{vZF}
    v_and_b32 v{t3}, 23, v2
    v_cmp_eq_u32 vcc, 0, v{t3}
    v_add_u32 v{t3}, 56, v{vZF}
    v_bfe_u32 v{vZU}, v2, 1, 2
    v_mul_u32_u24 v{vZU}, {UB}, v{vZU}
    v_cndmask_b32 v{vZF}, v{vZF}, v{t3}, vcc
    v_and_b32 v{t3}, 1, v2
    v_mul_u32_u24 v{t3}, {U1-U0}, v{t3}
    v_add3_u32 v{vZU}, v{vZU}, v{t3}, s{sT0}
    s_add_u32 s{sT0}, s{sT0}, {-UBASE & 0xffffffff}
    v_subrev_u32 v{vZU}, s{sT0}, v{vZU}
    s_lshl_b32 s{sT0}, s{sJB}, 2
    s_add_u32 s{sT0}, s{sT0}, s{sWV}
    s_lshl_b32 s{sT1}, s{sT0}, 16
    s_lshl_b32 s{sT2}, s{sIDX}, 7
    s_add_u32 s{sT1}, s{sT1}, s{sT2}
    s_add_u32 s{sT1}, s{sT1}, {WS_UT}
    s_lshl_b32 s{sT0}, s{sT0}, 5
    s_add_u32 s{sT0}, s{sT0}, s{sIDX}
    s_lshl_b32 s{sT0}, s{sT0}, 7
    s_add_u32 s{sFU}, s{sT0}, {F_UT}
    s_lshr_b32 s{sT0}, s{sCG}, 2
    s_lshl_b32 s{sT0}, s{sT0}, 12
    s_add_u32 s{sT0}, s{sT0}, {F_UT}
    s_cmp_eq_u32 s{sHH}, 1
    s_cselect_b32 s{sT3}, {31 if os.environ.get('TSB') else 15}, 31
    v_and_b32 v{vFU}, s{sT3}, v2
    v_lshlrev_b32 v{vFU}, 7, v{vFU}
    v_add_u32 v{vFU}, s{sT0}, v{vFU}
    s_xor_b32 s{sT0}, s{sKG}, 1
    s_lshl_b32 s{sT0}, s{sT0}, 9
    s_add_u32 s{sT0}, s{sT0}, {F_KF}
    v_and_b32 v{vFP}, 3, v2
    v_lshlrev_b32 v{vFP}, 7, v{vFP}
    v_add_u32 v{vFP}, s{sT0}, v{vFP}
    s_lshl_b32 s{sT0}, s{sKG}, 2
    s_add_u32 s{sT0}, s{sT0}, s{sWV}
    s_lshl_b32 s{sT0}, s{sT0}, 7
    s_add_u32 s{sFK}, s{sT0}, {F_KF}
    v_lshlrev_b32 v{vCW}, 4, v0
    s_mul_i32 s{sT3}, s{sHH}, 0x7fff0000
    v_add_u32 v{vU2}, s{sT3}, v3
    s_cmp_eq_u32 s{sHH}, 0
    s_cselect_b32 s{sT3}, 2048, 0
    v_mov_b32 v{vKS}, 0x7fff0000
    v_cmp_le_u32 vcc, s{sT3}, v{vCW}
    v_cndmask_b32 v{vKS}, v{vKS}, v{vCW}, vcc
    v_add_u32 v{vC4}, {2*KS-8}, v{vCW}
    v_add_u32 v{vC4+1}, {3*KS-8}, v{vCW}
    v_add_u32 v{vC4+2}, {KSL+2*KS-8}, v{vCW}
    v_add_u32 v{vC4+3}, {KSL+3*KS-8}, v{vCW}
    s_mul_i32 s{sT0}, s{sWV}, {UB}
    s_add_u32 s{sT0}, s{sT0}, {UBASE}
    v_add_u32 v{vUW}, s{sT0}, v3
    """)
    st(1)
    X = os.environ.get('SX', '')
    if X == '1': a('s_waitcnt vmcnt(0)\ns_endpgm')
    def kgen(c):
        P = P0 + 8 * c
        AC = ACC + 16 * c
        P = P0
        if c == 0:
            a(f"""
            s_waitcnt vmcnt(9)
            v_mul_f32 v{P+6}, {LOG2E}, v{P+6}
            v_exp_f32 v{P+6}, v{P+6}
            v_cvt_pk_bf16_f32 v{P+6}, v{P+6}, v{P+6}
            v_lshlrev_b32 v{P+6}, 16, v{P+6}
            """)
        for i in range(6):
            a(f"v_lshlrev_b32 v{P+i}, 16, v{PR+i}" if c == 0 else f"v_and_b32 v{P+i}, 0xffff0000, v{PR+i}")
        a(f"""
        v_mul_f32 v{t1}, v{P+6}, v{P}
        v_mul_f32 v{t2}, v{P+6}, v{P+1}
        v_mul_f32 v{t1}, {LOG2E}, v{t1}
        v_mul_f32 v{t2}, {INV2PI}, v{t2}
        v_mul_f32 v{P+2}, v{P+6}, v{P+2}
        v_mul_f32 v{P+3}, v{P+6}, v{P+3}
        """)
        cmul(a, Wc, P + 4, P + 2)
        for (E, m, cj) in ((E8, 8.0, True), (E1, 1.0, False), (E256, 256.0, False)):
            if m != 1.0:
                a(f"v_mul_f32 v{t0}, {f2u(m)}, v{t1}\nv_mul_f32 v{t3}, {f2u(m)}, v{t2}\nv_exp_f32 v{t0}, v{t0}\nv_fract_f32 v{t3}, v{t3}")
            else:
                a(f"v_exp_f32 v{t0}, v{t1}\nv_fract_f32 v{t3}, v{t2}")
            a(f"""
            v_cos_f32 v{E}, v{t3}
            v_sin_f32 v{E+1}, v{t3}
            v_mul_f32 v{E}, v{E}, v{t0}
            v_mul_f32_e64 v{E+1}, {'-' if cj else ''}v{E+1}, v{t0}
            """)
        cmul(a, E2, E1, E1); cmul(a, E4, E2, E2)
        yield "head"
        cnt = [0]
        def put(row, src):
            r = pk + (cnt[0] & 3); cnt[0] += 1
            a(f"v_cvt_pk_bf16_f32 v{r}, v{src}, v{src+1}")
            a(f"ds_write_addtid_b32 v{r} offset:{row * ROWB}")
        if c == 0:
            a(f"v_mov_b32 v{t0}, 0x3f80")
            a(f"ds_write_addtid_b32 v{t0} offset:{21*ROWB}")
        put(22, E8); put(0, Wc)
        fine, cur = [], E8
        for f in range(2, 32):
            nxt = X0 if cur != X0 else X1
            fine.append((nxt, cur, E8, 21 + f)); cur = nxt
        coarse, cur = [], Wc
        for cc in range(1, 8):
            nxt = Y0 if cur != Y0 else Y1
            coarse.append((nxt, cur, E1, cc)); cur = nxt
        coarse.append((G0, Wc, E256, 8)); cur = G0
        for cc in range(1, 4):
            nxt = Y0 if cur != Y0 else Y1
            coarse.append((nxt, cur, E2, 8 + cc)); cur = nxt
        coarse += [(G1, G0, E256, 12), (Y0, G1, E4, 13), (G0, G1, E256, 14), (Y0, G0, E4, 15)]
        g = G0
        for i in range(5):
            n = G1 if g == G0 else G0
            coarse.append((n, g, E256, 16 + i)); g = n
        seq = []
        for i in range(max(len(fine), len(coarse))):
            if i < len(fine): seq.append(fine[i])
            if i < len(coarse): seq.append(coarse[i])
        for n, (d, x, y, row) in enumerate(seq):
            cmul(a, d, x, y); put(row, d)
            if n == (int(os.environ.get('MID', 16)) if c == 0 else 24): yield "mid"
        if c == 0: yield "end"
        a("s_waitcnt lgkmcnt(0)")
        bufs = [FR, FR + 8, vT, vT + 8]
        for jj in range(4):
            a(f"ds_read_b128 {vr(bufs[jj],4)}, v{KA} offset:{32*jj}")
            a(f"ds_read_b128 {vr(bufs[jj]+4,4)}, v{KB_} offset:{21*ROWB+32*jj}")
        yield "reads"
        for j in range(8):
            fb = bufs[j & 3]
            a(f"s_waitcnt lgkmcnt({6 if j < 5 else 2*(7-j)})")
            AC = ACC + 16 * (j >> 2)
            a(f"v_mfma_f32_32x32x16_bf16 {vr(AC,16)}, {vr(fb,4)}, {vr(fb+4,4)}, {'0' if (c == 0 and j & 3 == 0) else vr(AC,16)}")
            if j + 4 < 8:
                a(f"ds_read_b128 {vr(fb,4)}, v{KA} offset:{32*(j+4)}")
                a(f"ds_read_b128 {vr(fb+4,4)}, v{KB_} offset:{21*ROWB+32*(j+4)}")
        yield "done"
    g0, g1 = kgen(0), kgen(1)
    next(g0)
    next(g0)
    a("s_waitcnt vmcnt(0)")
    vm.drain()
    k.init_check(vm)
    for i in range(4):
        a(f"v_perm_b32 v{UG+i}, v{UG2+2*i+1}, v{UG2+2*i}, v{PR+6}")
        a(f"v_perm_b32 v{UG+4+i}, v{UG2+2*i+1}, v{UG2+2*i}, v{PR+7}")
    for i in range(2): a(f"ds_write_b128 v{vGS}, {vr(UG+4*i,4)} offset:{144*i}")
    a("s_waitcnt lgkmcnt(0)\ns_barrier")
    for i in range(2): a(f"ds_read_b128 {vr(UG+4*i,4)}, v{vGR} offset:{8*144*i}")
    for i in range(2):
        a(f"s_waitcnt lgkmcnt({1-i})")
        a(f"buffer_store_dwordx4 {vr(UG+4*i,4)}, v{vGO}, {WSR}, s{sT1} offen {SC}")
        if i < 1: a(f"s_add_u32 s{sT1}, s{sT1}, 32768")
    next(g0)
    a("s_waitcnt vmcnt(0)")
    k.flag(Cnt(a, "vmcnt"), sFU)
    if os.environ.get('SKP'): a(f"s_cmp_eq_u32 s{sHH}, 0\ns_cbranch_scc1 L_skp\ns_setprio {os.environ['SKP']}\nL_skp:")
    next(g0)
    st(2)
    if X == '2': a('s_endpgm')
    next(g1)
    a(f"v_readlane_b32 s{sT0}, v{P0+7}, 32\nv_cmp_eq_u32 vcc, 0, v0\nv_mov_b32 v{PR+7}, s{sT0}\nv_cndmask_b32 v{P0+7}, 0, v{P0+7}, vcc\nv_cndmask_b32 v{PR+7}, 0, v{PR+7}, vcc")
    next(g0)
    st(3)
    next(g1)
    a(f"""
    s_lshl_b32 s{sT0}, s{sCG}, 2
    s_add_u32 s{sT0}, s{sT0}, s{sWV}
    s_lshl_b32 s{sT0}, s{sT0}, 12
    s_add_u32 s{sT4}, s{sT0}, {WS_UT}
    """)
    next(g1)
    st(4)
    a(k.poll_ld(vFU, IN))
    ul = "\n".join(f"buffer_load_dwordx4 {vr(UR+4*i,4)}, v{3 if i < 2 else vU2}, {WSR}, s{sT4} offen offset:{1024*i} {SC}" for i in range(4))
    next(g1)
    st(6)
    if X == '3': a('s_endpgm')
    for c in range(2):
        for q in range(3):
            a(f"ds_write_b128 v{vPW}, {vr(ACC+16*c+4*q,4)} offset:{(3*c+q)*1024}")
    a(f"""
    s_waitcnt vmcnt(0)
    {k.poll_cmp(IN)}
    s_mov_b64 s[{sC1}:{sC1+1}], vcc
    s_cmp_eq_u64 vcc, 0
    s_cbranch_scc0 L_ulate
    {ul}
    s_branch L_nopoll2
    L_ulate:
    {k.poll_ld(vFU, IN)}
    L_nopoll2:
    """)
    a(f"""
    s_lshl_b32 s{sT1}, s{sKG}, 13
    s_add_u32 s{sT1}, s{sT1}, {WS_KF}
    s_add_u32 s{sT2}, s{sT1}, 4096
    s_cmp_eq_u32 s{sWV}, 3
    s_waitcnt lgkmcnt(0)
    s_barrier
    s_cbranch_scc1 L_nored
    """)
    RD = ACC
    for c in range(2):
        for w in range(4):
            a(f"ds_read_b128 {vr(RD+16*c+4*w,4)}, v{vRR} offset:{w*WREG + c*3072}")
    for c in range(2):
        a("s_waitcnt lgkmcnt(4)")
        b = RD + 16 * c
        a(f"""
        v_add_f32 v{b}, v{P0+8*c+7}, v{b}
        v_add_f32 v{b+0}, v{b+0}, v{b+4}
        v_add_f32 v{b+8}, v{b+8}, v{b+12}
        v_add_f32 v{b+1}, v{b+1}, v{b+5}
        v_add_f32 v{b+9}, v{b+9}, v{b+13}
        v_add_f32 v{b+2}, v{b+2}, v{b+6}
        v_add_f32 v{b+10}, v{b+10}, v{b+14}
        v_add_f32 v{b+3}, v{b+3}, v{b+7}
        v_add_f32 v{b+11}, v{b+11}, v{b+15}
        v_add_f32 v{b+0}, v{b+0}, v{b+8}
        v_add_f32 v{b+1}, v{b+1}, v{b+9}
        v_add_f32 v{b+2}, v{b+2}, v{b+10}
        v_add_f32 v{b+3}, v{b+3}, v{b+11}
        v_cvt_pk_bf16_f32 v{b}, v{b}, v{b+1}
        v_cvt_pk_bf16_f32 v{b+1}, v{b+2}, v{b+3}
        ds_write_b16 v{AD}, v{b} offset:{c*TSTR}
        ds_write_b16_d16_hi v{AD+1}, v{b} offset:{c*TSTR}
        ds_write_b16 v{AD+2}, v{b+1} offset:{c*TSTR}
        ds_write_b16_d16_hi v{AD+3}, v{b+1} offset:{c*TSTR}
        """)
    a(f"""
    L_nored:
    v_mov_b32 v{vT}, 0
    v_mov_b32 v{vT+1}, 0
    v_mov_b32 v{vT+2}, 0
    v_mov_b32 v{vT+3}, 0
    v_cmp_eq_u32 vcc, 255, v0
    s_waitcnt lgkmcnt(0)
    s_barrier
    """)
    GE = 96
    CW = 64
    for c in range(2):
        for e in range(9):
            a(f"ds_read_u16 v{GE+10*c+e}, v{EA+e} offset:{c*TSTR}")
    a(f"ds_write_b64 v{vZF}, {vr(vT,2)}\nds_write_b128 v{vZU}, {vr(vT,4)}")
    a(f"s_lshl_b32 s{sT0}, s{sHH}, 1\ns_cmp_lt_u32 s{sWV}, s{sT0}")
    def kwrite(addr, a4, q0, q1, off, off8=0):
        a(f"ds_write_b128 v{addr}, {vr(q0,4)} offset:{off}")
        a(f"ds_write2_b64 v{a4}, {vr(q0,2)}, {vr(q0+2,2)} offset0:{off8} offset1:{off8+1}")
        a(f"ds_write_b128 v{addr}, {vr(q1,4)} offset:{off+KS}")
        a(f"ds_write2_b64 v{a4+1}, {vr(q1,2)}, {vr(q1+2,2)} offset0:{off8} offset1:{off8+1}")
    for c in range(2):
        g = GE + 10 * c
        a(f"s_waitcnt lgkmcnt({11 if c == 0 else 2})")
        for i in range(4): a(f"v_lshl_or_b32 v{CW+8*c+i}, v{g+2*i+1}, 16, v{g+2*i}")
        a(f"s_mov_b64 exec, s[{sC1+0}:{sC1+1}]" if False else "")
        a(f"buffer_store_dwordx4 {vr(CW+8*c,4)}, v{vKS}, {WSR}, s{sT1 if c == 0 else sT2} offen {SC}")
        a(f"v_cndmask_b32 v{g+8}, v{g+8}, 0, vcc")
        for i in range(4): a(f"v_lshl_or_b32 v{CW+8*c+4+i}, v{g+2*i+2}, 16, v{g+2*i+1}")
        a(f"s_cbranch_scc1 L_skw{c}")
        kwrite(vCW, vC4 + 2 * c, CW + 8 * c, CW + 8 * c + 4, c * KSL)
        a(f"L_skw{c}:")
    a(f"s_cmp_eq_u64 s[{sC1}:{sC1+1}], 0\ns_cbranch_scc1 L_haveu")
    vm.drain(); vm.q = ["poll"]
    k.poll(vm, vFU, IN, issued=True)
    a(ul + "\nL_haveu:\ns_waitcnt vmcnt(0)")
    k.flag(Cnt(a, "vmcnt"), sFK)
    st(5)
    UB_ = 80
    for i in range(4):
        b = UR + 4 * i; d = UB_ + 4 * i
        if i == 2: a(f"s_cmp_eq_u32 s{sHH}, 1\ns_cbranch_scc1 L_sku")
        a(f"ds_write_b128 v{vUW}, {vr(b,4)} offset:{U0 + 1024*i}")
        if i == 0: a(f"v_mov_b32 v{d}, 0")
        else: a(f"v_readlane_b32 s{sT0}, v{b-1}, 63")
        for q in range(3): a(f"v_mov_b32 v{d+1+q}, v{b+q}")
        if i: a(f"v_mov_b32 v{d}, s{sT0}")
        a(f"v_mov_b32_dpp v{d}, v{b+3} wave_shr:1 row_mask:0xf bank_mask:0xf")
        a(f"ds_write_b128 v{vUW}, {vr(d,4)} offset:{U1 + 1024*i}")
    a("L_sku:")
    vKA, vUA, vU0, vZ, vXS, vXR, vSG, vPL = 5, 6, 7, 8, 9, 10, 11, 12
    A = 16; KF0, UF0 = 48, 112
    PKR = 176
    STG, SS = 66304, 2112
    sMK = sIDX
    a(f"""
    s_setprio {os.environ.get('SPRIO2', 1)}
    {f"s_cmp_eq_u32 s{sHH}, 0" if os.environ.get('SKP2') else ''}
    {"s_cbranch_scc1 L_skp2" if os.environ.get('SKP2') else ''}
    {f"s_setprio {os.environ.get('SKP2')}" if os.environ.get('SKP2') else ''}
    L_skp2:
    v_mov_b32 v{vPL}, v{vFP}
    v_mov_b32 v32, v{vZL}
    s_lshr_b32 s{sT0}, s{sWV}, 1
    s_lshl_b32 s{sT2}, s{sHH}, 1
    s_add_u32 s{sJB}, s{sT0}, s{sT2}
    s_mul_i32 s{sKB}, s{sJB}, {UB}
    s_and_b32 s{sT1}, s{sWV}, 1
    s_lshl_b32 s{sT2}, s{sT1}, 11
    s_add_u32 s{sT3}, s{sKB}, {UBASE}
    s_add_u32 s{sT4}, s{sT3}, s{sT2}
    v_add_u32 v{vXS}, s{sT4}, v3
    s_add_u32 s{sT3}, s{sT3}, 2048
    s_sub_u32 s{sT3}, s{sT3}, s{sT2}
    v_add_u32 v{vXR}, s{sT3}, v3
    v_bfe_u32 v{vSG}, v2, 1, 3
    v_lshlrev_b32 v{vSG}, 6, v{vSG}
    v_lshrrev_b32 v13, 4, v2
    v_lshl_add_u32 v{vSG}, v13, 4, v{vSG}
    v_and_b32 v13, 1, v2
    v_lshl_add_u32 v{vSG}, v13, 2, v{vSG}
    s_lshl_b32 s{sT4}, s{sT1}, 10
    s_add_u32 s{sT4}, s{sT4}, {STG}
    v_add_u32 v{vSG}, s{sT4}, v{vSG}
    s_xor_b32 s{sFU}, s{sKG}, 1
    s_lshl_b32 s{sFU}, s{sFU}, 13
    s_lshl_b32 s{sT3}, s{sWV}, 11
    s_add_u32 s{sFU}, s{sFU}, s{sT3}
    s_add_u32 s{sFU}, s{sFU}, {WS_KF}
    s_mul_i32 s{sFK}, s{sT0}, {KSL}
    s_add_u32 s{sFK}, s{sFK}, s{sT2}
    s_sub_u32 s{sMK}, s{sT1}, 1
    s_and_b32 s{sT3}, s{sMK}, {0 if os.environ.get('TSB') else 's%d' % sHH}
    s_mul_i32 s{sT4}, s{sT3}, 4096
    s_mul_i32 s{sT3}, s{sT3}, 0x7fff0000
    v_add_u32 v38, s{sT3}, v3
    v_mov_b32 v39, 0x7fff0000
    v_cmp_le_u32 vcc, s{sT4}, v3
    v_cndmask_b32 v39, v39, v3, vcc
    s_mov_b32 s{sPH}, 0
    v_mov_b32 v{vKA}, v{vKL}
    v_add_u32 v{vUA}, s{sKB}, v{vUL}
    v_add_u32 v{vZ}, s{sKB}, v32
    v_max_i32 v{vU0}, v{vZ}, v{vUA}
    s_mov_b32 s{sIT}, 0
    {k.poll_ld(vPL, 14)}
    s_cmp_eq_u32 s{sHH}, 1
    s_waitcnt lgkmcnt(0)
    s_barrier
    """)
    st(7)
    if X == '4': a('s_endpgm')
    a("s_cbranch_scc1 L_cv1pre")
    TS = {0: [4, 5, 6, 7], 1: [0, 1, 2, 3]} if not os.environ.get('TSB') else {0: [2, 5, 6, 7], 1: [0, 1, 3, 4]}
    def loadlist(s, H):
        L = []; K_, U_ = KF0 + 32 * s, UF0 + 32 * s
        for x in range(max(TS[H]) + 1):
            L.append(f"ds_read_b128 {vr(U_+4*x,4)}, v{vU0 if x == 0 else vUA} offset:{512*x}")
            L.append(f"ds_read_b128 {vr(K_+4*x,4)}, v{vKA} offset:{512*(7-x)}")
        return L
    stepL = [f"v_subrev_u32 v{vKA}, 64, v{vKA}", f"v_subrev_u32 v{vUA}, 64, v{vUA}", f"v_max_i32 v{vU0}, v{vZ}, v{vUA}"]
    kl = f"""
    buffer_load_dwordx4 {vr(PKR,4)}, v38, {WSR}, s{sFU} offen {SC}
    buffer_load_dwordx4 {vr(PKR+6,4)}, v39, {WSR}, s{sFU} offen offset:1024 {SC}
    buffer_load_dword v{PKR+11}, off, {WSR}, s{sFU} offset:2048 {SC}
    """
    for H in (0, 1):
        a(f"L_cv{H}pre:")
        if H == 0: pass
        for l in loadlist(0, H) + stepL: a(l)
        for i in range(16): a(f"v_mov_b32 v{A+i}, 0")
        a(f"L_cv{H}:")
        for s_ in range(2):
            L = loadlist(1 - s_, H); nl = len(L)
            K_, U_ = KF0 + 32 * s_, UF0 + 32 * s_
            prs = [(c, mt - c, n) for n, mt in enumerate(TS[H]) for c in range(mt + 1)]
            prs.sort(key=lambda x: (max(x[0], x[1]), x[2]))
            issued = 0; done = -1
            L2 = L + stepL
            st0 = 4 if H == 0 else 0
            for n, (c, m, tn) in enumerate(prs):
                need = max(c, m)
                if need > done:
                    a(f"s_waitcnt lgkmcnt({min(15, nl - 2*(need+1) + min(issued, nl))})"); done = need
                acc = vr(A + 4 * tn, 4)
                a(f"v_mfma_f32_16x16x32_bf16 {acc}, {vr(K_+4*c,4)}, {vr(U_+4*m,4)}, {acc}")
                if n >= st0 and issued < len(L2): a(L2[issued]); issued += 1
            while issued < len(L2): a(L2[issued]); issued += 1
        a(f"""
        s_add_u32 s{sIT}, s{sIT}, 1
        s_cmp_eq_u32 s{sIT}, 2
        s_cbranch_scc1 L_cvdone
        s_cmp_eq_u32 s{sPH}, 1
        s_cbranch_scc1 L_cv{H}
        s_waitcnt vmcnt(0)
        {k.poll_cmp(14)}
        s_mov_b64 s[{sC1}:{sC1+1}], vcc
        s_cmp_eq_u64 vcc, 0
        s_cbranch_scc0 L_late{H}
        {kl}
        s_branch L_cv{H}
        L_late{H}:
        {k.poll_ld(vPL, 14)}
        s_branch L_cv{H}
        """)
    a(f"""
    L_cvdone:
    s_cmp_eq_u32 s{sPH}, 1
    s_cbranch_scc1 L_ph1
    s_cmp_eq_u64 s[{sC1}:{sC1+1}], 0
    s_cbranch_scc1 L_havek
    """)
    vm.drain(); vm.q = ["poll"]
    k.poll(vm, vPL, 14, issued=True)
    a(kl + "L_havek:")
    st(8)
    a("s_waitcnt lgkmcnt(0)\ns_barrier\nL_ph1:")
    a(f"s_mul_i32 s{sT0}, s{sJB}, {SS}\nv_add_u32 v33, s{sT0}, v{vSG}")
    a(f"s_bitcmp1_b32 s{sWV}, 0\ns_cbranch_scc1 L_xodd")
    def exch(keep, send):
        for q in range(2): a(f"ds_write_b128 v{vXS}, {vr(send+4*q,4)} offset:{1024*q}")
        a(f"s_cmp_eq_u32 s{sPH}, 1\ns_cbranch_scc1 L_nok{keep}")
        if keep == A: a(f"s_cmp_eq_u32 s{sHH}, 1\ns_cbranch_scc1 L_nok{keep}")
        a(f"""
        v_add_u32 v13, s{sFK}, v3
        v_add_u32 v14, {2*KS-8}, v13
        v_add_u32 v15, {3*KS-8}, v13
        s_waitcnt vmcnt(0)
        v_and_b32 v{PKR+10}, s{sMK}, v{PKR+11}
        v_readlane_b32 s{sT0}, v{PKR+6}, 0
        v_mov_b32_dpp v{PKR+10}, v{PKR+6} wave_shl:1 row_mask:0xf bank_mask:0xf
        v_mov_b32 v{PKR+4}, s{sT0}
        v_mov_b32_dpp v{PKR+4}, v{PKR} wave_shl:1 row_mask:0xf bank_mask:0xf
        """)
        for i in (1, 0):
            b = PKR + 6 * i
            for q in range(4): a(f"v_alignbit_b32 v{KF0+4*i+q}, v{b+q+1}, v{b+q}, 16")
            kwrite(13, 14, b, KF0 + 4 * i, 1024 * i, 128 * i)
        a(f"L_nok{keep}:\ns_waitcnt lgkmcnt(0)\ns_barrier")
        for q in range(2): a(f"ds_read_b128 {vr(send+4*q,4)}, v{vXR} offset:{1024*q}")
        for q in range(2):
            a(f"s_waitcnt lgkmcnt(1)")
            for i in range(4): a(f"v_add_f32 v{keep+4*q+i}, v{keep+4*q+i}, v{send+4*q+i}")
            a(f"v_cvt_pk_bf16_f32 v{34+2*q}, v{keep+4*q}, v{keep+4*q+1}")
            a(f"v_cvt_pk_bf16_f32 v{35+2*q}, v{keep+4*q+2}, v{keep+4*q+3}")
            a(f"ds_write2_b32 v33, v{34+2*q}, v{35+2*q} offset0:{128*q} offset1:{128*q+2}")
    exch(A, A + 8)
    a("s_branch L_xdone\nL_xodd:")
    exch(A + 8, A)
    a(f"""
    L_xdone:
    s_cmp_eq_u32 s{sPH}, 1
    s_cbranch_scc1 L_cvend
    s_mov_b32 s{sPH}, 1
    s_xor_b32 s{sJB}, s{sJB}, 2
    s_mul_i32 s{sKB}, s{sJB}, {UB}
    """)
    st(9)
    a(f"""
    v_mov_b32 v{vKA}, v{vKL}
    v_add_u32 v{vUA}, s{sKB}, v{vUL}
    v_add_u32 v{vZ}, s{sKB}, v32
    v_max_i32 v{vU0}, v{vZ}, v{vUA}
    s_mov_b32 s{sIT}, 0
    s_cmp_eq_u32 s{sHH}, 1
    s_cbranch_scc1 L_cv1pre
    s_branch L_cv0pre
    L_cvend:
    v_bfe_u32 v10, v2, 2, 2
    v_mul_u32_u24 v10, {SS}, v10
    v_lshrrev_b32 v8, 4, v2
    v_lshl_add_u32 v10, v8, 5, v10
    v_and_b32 v8, 3, v2
    v_lshl_add_u32 v10, v8, 3, v10
    s_lshl_b32 s{sT0}, s{sWV}, 9
    s_add_u32 s{sT0}, s{sT0}, {STG}
    v_add_u32 v10, s{sT0}, v10
    v_mul_u32_u24 v11, 1792, v2
    s_lshl_b32 s{sT2}, s{sHH}, 4
    s_lshl_b32 s{sT3}, s{sWV}, 2
    s_add_u32 s{sT2}, s{sT2}, s{sT3}
    s_lshr_b32 s{sT2}, {sum(t << (4*i) for i, t in enumerate(TS[0] + TS[1]))}, s{sT2}
    s_and_b32 s{sT2}, s{sT2}, 15
    s_mul_i32 s{sT2}, s{sT2}, {256*1792}
    s_lshl_b32 s{sT3}, s{sCG}, 3
    s_add_u32 s{sT2}, s{sT2}, s{sT3}
    s_waitcnt lgkmcnt(0)
    s_barrier
    """)
    st(10)
    if X == '5': a('s_endpgm')
    for it in range(4): a(f"ds_read_b64_tr_b16 {vr(KF0+2*it,2)}, v10 offset:{128*it}")
    for it in range(4):
        a(f"s_waitcnt lgkmcnt({3-it})")
        a(f"buffer_store_dwordx2 {vr(KF0+2*it,2)}, v11, s[{SO}:{SO+3}], s{sT2} offen")
        if it < 3: a(f"s_add_u32 s{sT2}, s{sT2}, {64*1792}")
    a("L_send:")
    st.end(0)
    a("s_endpgm")
    a(f"""
    L_aux:
    s_cmp_ge_u32 s{sIDX}, 5
    s_cbranch_scc1 L_end
    s_cmp_lg_u32 s{sIDX}, 0
    s_cbranch_scc1 L_zkv
    s_cmp_lg_u32 s{sWV}, 0
    s_cbranch_scc1 L_end
    s_memrealtime s[{sN}:{sN+1}]
    s_waitcnt lgkmcnt(0)
    s_or_b32 s{sN}, s{sN}, 1
    v_mov_b32 v8, s{sN}
    v_mov_b32 v9, s{sN+1}
    s_mov_b64 exec, 1
    global_store_dwordx2 v4, v[8:9], s[42:43] {SC}
    s_endpgm
    L_zkv:
    v_mov_b32 v8, 0
    v_mov_b32 v9, 0
    v_mov_b32 v10, 0
    v_mov_b32 v11, 0
    v_lshlrev_b32 v5, 4, v0
    s_lshl_b32 s{sT0}, s{sIDX}, 7
    s_add_u32 s{sT0}, s{sT0}, {F_Z - 128}
    s_lshl_b32 s{sT1}, s{sIDX}, 14
    s_add_u32 s{sT1}, s{sT1}, {WS_KVA - 16384}
    s_waitcnt lgkmcnt(0)
    """)
    srd(a, SWS, 44, 45, WS_SIZE)
    for i in range(4):
        a(f"buffer_store_dwordx4 v[8:11], v5, {WSR}, s{sT1} offen {SC}")
        if i < 3: a(f"s_add_u32 s{sT1}, s{sT1}, 4096")
    vm = Cnt(a, "vmcnt")
    k.init_issue(vm); k.init_check(vm)
    a(f"s_barrier\ns_cmp_lg_u32 s{sWV}, 0\ns_cbranch_scc1 L_send")
    k.flag(vm, sT0)
    a("s_branch L_send")
```

```python
import struct, os
from asmlib import *
from stamp import Stamper

WS_PQ  = 0x000000
WS_KVA = 0x200000
WS_FLG = 0x210000
WS_KF  = 0x300000
WS_UT  = 0x500000
WS_SIZE = 0x700000
F_UT, F_KF, F_Q, F_KV, F_Z = [WS_FLG + 128 * x for x in (0, 896, 1792, 2304, 2432)]
LDS = 81920
LOG2E = 0x3fb8aa3b
INV2PI = 0x3e22f983
def f2u(x): return hex(struct.unpack("<I", struct.pack("<f", x))[0])
EPS = f2u(1e-6)
SC = "sc1"

def cmul(a, d, x, y):
    assert d != x and d != y
    if os.environ.get('PK', '0') == '0':
        a(f"v_mul_f32 v{d}, v{x}, v{y}\nv_mul_f32 v{d+1}, v{x}, v{y+1}\nv_fma_f32 v{d}, -v{x+1}, v{y+1}, v{d}\nv_fmac_f32 v{d+1}, v{x+1}, v{y}")
        return
    a(f"v_pk_mul_f32 {vr(d,2)}, {vr(x,2)}, {vr(y,2)} op_sel:[0,0] op_sel_hi:[0,1]")
    a(f"v_pk_fma_f32 {vr(d,2)}, {vr(x,2)}, {vr(y,2)}, {vr(d,2)} op_sel:[1,1,0] op_sel_hi:[1,0,1] neg_lo:[1,0,0]")
def srd(a, S, lo, hi, n):
    a(f"s_mov_b32 s{S}, s{lo}\ns_mov_b32 s{S+1}, s{hi}\ns_mov_b32 s{S+2}, {n}\ns_mov_b32 s{S+3}, 0x20000")
def weave(main, fill, start=0):
    n, m, j = len(main), len(fill), 0
    for i, f in enumerate(main):
        f()
        tgt = 0 if i < start else min(m, ((i - start + 1) * m + (n - start) - 1) // (n - start))
        while j < tgt: fill[j](); j += 1
    while j < m: fill[j](); j += 1

SWS, SX, SW, SO = 48, 52, 56, 60
sC1 = 64
sN = 46
NV = 190
sWV, sT0, sT1, sT2, sT3, sT4, sA, sB, sC, sD, sE, sF, sG, sH, sI, sJ = range(66, 82)
WSR = f"s[{SWS}:{SWS+3}]"

class K:
    def __init__(self):
        self.a = Asm(); self.nl = 0; self.NV = NV
    def lab(self, p="L"):
        self.nl += 1; return f"{p}_{self.nl}"
    def _spin(self, vm, tag, cmp, ld, post=""):
        a = self.a; L, Lok = self.lab("Lp"), self.lab("Lpo")
        vm.wait(tag)
        a(f"""{L}:
        {cmp}
        s_cmp_eq_u64 vcc, 0
        s_cbranch_scc1 {Lok}
        s_sub_u32 s15, s15, 1
        s_cbranch_scc1 L_end
        s_mov_b64 exec, vcc
        s_sleep {os.environ.get('SLP', 1)}
        {ld}
        s_waitcnt vmcnt(0)
        s_branch {L}
        {Lok}:
        s_mov_b64 exec, -1
        {post}""")
    def init_issue(self, vm, t=None): vm.op(f"global_load_dwordx2 {vr(self.NV,2)}, v4, s[42:43] {SC}", "init")
    def init_check(self, vm, t=None):
        self._spin(vm, "init", f"v_cmp_eq_u32 vcc, 0, v{self.NV}", f"global_load_dwordx2 {vr(self.NV,2)}, v4, s[42:43] {SC}",
                   f"v_readfirstlane_b32 s{sN}, v{self.NV}\nv_readfirstlane_b32 s{sN+1}, v{self.NV+1}")
    def poll_ld(self, vaddr, t): return f"buffer_load_dwordx2 {vr(t,2)}, v{vaddr}, {WSR}, 0 offen {SC}"
    def poll_cmp(self, t): return f"v_cmp_ne_u64 vcc, s[{sN}:{sN+1}], {vr(t,2)}"
    def poll_issue(self, vm, vaddr, t): vm.op(self.poll_ld(vaddr, t), "poll")
    def poll(self, vm, vaddr, t, issued=False, tag="poll"):
        if not issued: self.poll_issue(vm, vaddr, t)
        self._spin(vm, tag, self.poll_cmp(t), self.poll_ld(vaddr, t))
    def flag(self, vm, soff, vone=None):
        self.a("s_mov_b64 exec, 1")
        vm.op(f"buffer_store_dwordx2 {vr(self.NV,2)}, off, {WSR}, s{soff} {SC}", "flag")
        self.a("s_mov_b64 exec, -1")

def gen():
    k = K(); a = k.a
    st = Stamper(a, 0, 44, sWV)
    a("s_cmp_ge_u32 s2, 512\ns_cbranch_scc1 L_end")
    st.start()
    a(f"""
    s_load_dwordx16 s[16:31], s[0:1], 0
    s_load_dwordx8 s[32:39], s[0:1], 64
    s_load_dwordx4 s[40:43], s[0:1], 96
    s_load_dwordx2 s[44:45], s[0:1], 112
    v_lshrrev_b32 v1, 6, v0
    v_and_b32 v2, 63, v0
    v_readfirstlane_b32 s{sWV}, v1
    v_lshlrev_b32 v3, 4, v2
    v_mov_b32 v4, 64
    s_mov_b32 s15, 40000
    {'s_xor_b32 s2, s2, 256' if os.environ.get('GFIRST') else ''}
    s_cmp_lt_u32 s2, 256
    s_cbranch_scc1 L_S
    s_sub_u32 s2, s2, 256
    """)
    k.NV = 46
    gen_G(k, st)
    k.NV = NV
    gen_S(k, st)
    a("L_end:\ns_endpgm")
    return a

def gen_G(k, st):
    a = k.a
    if os.environ.get('SKIP_G'): a('s_endpgm')
    sRB, sP, sKX, sFL, sXO, sWO, sXM, sWM, sTY, sAT = sA, sB, sC, sD, sE, sF, sG, sH, sI, sJ
    vXD, vWD, vXA, vWA = 8, 12, 16, 20
    vWO, vFQ, vFK, vWS = 21, 22, 23, 24
    vFT, vEX, vFZ = 26, 5, 6
    vAT = 28
    vT = 36
    GA = 64; XF, WF = 128, 144
    a(f"""
    s_setprio {os.environ.get('GPRIO', 1)}
    """)
    if os.environ.get('XMAP'):
        lo = os.environ['XMAP'] == '1'
        a(f"""
        s_bfe_u32 s{sTY}, s2, 0x10002
        {f's_xor_b32 s{sTY}, s{sTY}, 1' if lo else ''}
        s_and_b32 s{sRB}, s2, 3
        s_lshl_b32 s{sRB}, s{sRB}, 2
        s_lshr_b32 s{sT2}, s2, 6
        s_add_u32 s{sRB}, s{sRB}, s{sT2}
        s_bfe_u32 s{sP}, s2, 0x30003
        """)
    else:
        a(f"""
    s_and_b32 s{sT0}, s2, 7
    s_lshr_b32 s{sT1}, s2, 3
    s_lshr_b32 s{sTY}, s2, 7
    s_lshr_b32 s{sRB}, s{sT0}, 1
    s_lshl_b32 s{sRB}, s{sRB}, 2
    s_bfe_u32 s{sT2}, s{sT1}, 0x20002
    s_add_u32 s{sRB}, s{sRB}, s{sT2}
    s_and_b32 s{sP}, s{sT0}, 1
    s_lshl_b32 s{sP}, s{sP}, 2
    s_and_b32 s{sT3}, s{sT1}, 3
    s_add_u32 s{sP}, s{sP}, s{sT3}
    s_lshl_b32 s{sKX}, s{sT3}, 1
    s_add_u32 s{sKX}, s{sKX}, s{sTY}
    s_mul_i32 s{sT2}, s{sT2}, 3
    s_add_u32 s{sKX}, s{sKX}, s{sT2}
    s_cmp_ge_u32 s{sKX}, 14
    s_cselect_b32 s{sT2}, 14, 0
    s_sub_u32 s{sKX}, s{sKX}, s{sT2}
    s_cmp_ge_u32 s{sKX}, 7
    s_cselect_b32 s{sT2}, 7, 0
    s_sub_u32 s{sKX}, s{sKX}, s{sT2}
        """)
    a(f"""
    {f's_mov_b32 s{sKX}, 0' if not os.environ.get('ROT') else ''}
    s_lshl_b32 s{sXO}, s{sKX}, 7
    s_mul_i32 s{sWO}, s{sKX}, {64*2688}
    v_lshrrev_b32 v{vT+1}, 3, v2
    v_and_b32 v{vT+2}, 7, v2
    v_lshrrev_b32 v{vT+3}, 4, v2
    v_xor_b32 v{vT+6}, v{vT+2}, v{vT+3}
    v_lshlrev_b32 v{vT+6}, 4, v{vT+6}
    v_mul_u32_u24 v{vT+7}, 896, v{vT+1}
    s_lshl_b32 s{sT0}, s{sRB}, 2
    s_add_u32 s{sT0}, s{sT0}, s{sWV}
    s_mul_i32 s{sT0}, s{sT0}, {32*896}
    v_add3_u32 v{vXD}, v{vT+6}, v{vT+7}, s{sT0}
    v_xor_b32 v{vT+6}, 64, v{vT+6}
    v_add3_u32 v{vXD+1}, v{vT+6}, v{vT+7}, s{sT0}
    v_add_u32 v{vXD+1}, {7168-1024}, v{vXD+1}
    v_add_u32 v{vXD+2}, {2*(7168-1024)}, v{vXD}
    v_add_u32 v{vXD+3}, {2*(7168-1024)}, v{vXD+1}
    v_and_b32 v{vT+6}, 1, v{vT+3}
    v_lshlrev_b32 v{vT+6}, 2, v{vT+6}
    v_xor_b32 v{vT+8}, v{vT+6}, v{vT+2}
    v_min_u32 v{vT+6}, 6, v{vT+8}
    v_lshlrev_b32 v{vT+6}, 4, v{vT+6}
    v_mul_u32_u24 v{vT+9}, 2688, v{vT+1}
    s_lshr_b32 s{sT0}, s{sWV}, 1
    s_add_u32 s{sT0}, s{sT0}, 1
    s_mul_i32 s{sT0}, s{sT0}, 896
    s_and_b32 s{sT1}, s{sWV}, 1
    s_mul_i32 s{sT1}, s{sT1}, {32*2688}
    s_add_u32 s{sT0}, s{sT0}, s{sT1}
    s_mul_i32 s{sT1}, s{sWV}, {16*2688}
    s_lshl_b32 s{sXM}, s{sWV}, 12
    s_lshl_b32 s{sT2}, s{sWV}, 11
    s_cmp_eq_u32 s{sTY}, 0
    s_cselect_b32 s{sT0}, s{sT1}, s{sT0}
    s_cselect_b32 s{sWM}, s{sT2}, s{sXM}
    s_add_u32 s{sWM}, s{sWM}, 49152
    s_mul_i32 s{sT1}, s{sP}, 112
    s_add_u32 s{sT0}, s{sT0}, s{sT1}
    v_add3_u32 v{vWD}, v{vT+6}, v{vT+9}, s{sT0}
    v_add_u32 v{vWD+1}, {8*2688-1024}, v{vWD}
    v_add_u32 v{vWD+2}, {2*(8*2688-1024)}, v{vWD}
    v_add_u32 v{vWD+3}, {3*(8*2688-1024)}, v{vWD}
    s_mov_b32 s{SX+2}, {2048*896}
    s_mov_b32 s{SX+3}, 0x20000
    s_mov_b32 s{SW+2}, {448*2688}
    s_mov_b32 s{SW+3}, 0x20000
    s_cmp_eq_u32 s{sTY}, 0
    s_waitcnt lgkmcnt(0)
    s_mov_b32 s{SX}, s34
    s_mov_b32 s{SX+1}, s35
    s_mov_b32 s{SW}, s36
    s_mov_b32 s{SW+1}, s37
    """)
    st(0)
    a("s_cbranch_scc1 L_GQ")
    def setup(kv, vm):
        a(f"""
        v_and_b32 v{vT+6}, 31, v2
        v_lshrrev_b32 v{vT+4}, 5, v2
        v_bfe_u32 v{vT+5}, v2, 1, 3
        v_xor_b32 v{vT+5}, v{vT+5}, v{vT+4}
        v_lshlrev_b32 v{vT+5}, 4, v{vT+5}
        v_lshl_add_u32 v{vT+5}, v{vT+6}, 7, v{vT+5}
        s_lshr_b32 s{sT0}, s{sWV}, 1
        s_lshl_b32 s{sT0}, s{sT0}, 13
        v_add_u32 v{vXA}, s{sT0}, v{vT+5}
        v_xor_b32 v{vXA+1}, 32, v{vXA}
        v_xor_b32 v{vXA+2}, 64, v{vXA}
        v_xor_b32 v{vXA+3}, 96, v{vXA}
        v_bfe_u32 v{vT+5}, v2, 2, 2
        v_lshl_add_u32 v{vT+5}, v{vT+4}, 3, v{vT+5}
        v_lshlrev_b32 v{vT+5}, 7, v{vT+5}
        v_and_b32 v{vT+9}, 3, v2
        v_lshlrev_b32 v{vT+10}, 3, v{vT+9}
        v_bfe_u32 v{vT+11}, v2, 4, 1
        v_lshl_add_u32 v{vT+10}, v{vT+11}, 5, v{vT+10}
        s_and_b32 s{sT0}, s{sWV}, 1
        s_mul_i32 s{sT0}, s{sT0}, 56
        v_add_u32 v{vT+10}, s{sT0}, v{vT+10}
        v_bfe_u32 v{vT+11}, v2, 3, 1
        v_lshlrev_b32 v{vT+11}, 6, v{vT+11}
        v_xor_b32 v{vT+10}, v{vT+10}, v{vT+11}
        v_add_u32 v{vT+5}, v{vT+5}, v{vT+10}
        v_add_u32 v{vWA}, 49152, v{vT+5}
        s_and_b32 s{sT0}, s2, 31
        s_lshl_b32 s{sT0}, s{sT0}, 4
        s_lshl_b32 s{sT1}, s{sWV}, 2
        s_add_u32 s{sT0}, s{sT0}, s{sT1}
        s_lshl_b32 s{sT0}, s{sT0}, 7
        s_add_u32 s{sT0}, s{sT0}, {F_Q}
        v_lshlrev_b32 v{vT+9}, 7, v{vT+9}
        v_add_u32 v{vFQ}, s{sT0}, v{vT+9}
        s_lshl_b32 s{sT0}, s{sWV}, 12
        s_add_u32 s{sT0}, s{sT0}, {F_KV}
        v_lshlrev_b32 v{vFK}, 7, v{vT+6}
        v_add_u32 v{vFK}, s{sT0}, v{vFK}
        v_lshlrev_b32 v{vT+8}, 4, v{vT+8}
        s_mul_i32 s{sT0}, s{sWV}, {112*896}
        s_lshr_b32 s{sT1}, s2, 5
        s_lshl_b32 s{sT1}, s{sT1}, 7
        s_add_u32 s{sT0}, s{sT0}, s{sT1}
        v_add3_u32 v{vWO}, v{vT+8}, v{vT+7}, s{sT0}
        v_add_u32 v{vWS}, s{sXM}, v3
        v_add_u32 v{vWS+1}, s{sWM}, v3
        s_mov_b32 s{sC1}, {LOG2E}
        s_mov_b32 s{sC1+1}, {LOG2E}
        """)
        srd(a, SWS, 44, 45, WS_SIZE)
        srd(a, SO, 40, 41, 2048 * 1792)
        if os.environ.get('TLB'):
            a(f"""
            v_lshlrev_b32 v{vT+10}, {os.environ['TLB']}, v2
            v_mul_u32_u24 v{vT+11}, 57344, v2
            s_lshl_b32 s{sT0}, s{sWV}, {int(os.environ['TLB'])-2}
            """)
            vm.op(f"buffer_load_dword v{vT+10}, v{vT+10}, {WSR}, s{sT0} offen", "tlb")
            vm.op(f"buffer_load_dword v{vT+11}, v{vT+11}, s[{SO}:{SO+3}], 0 offen", "tlb")
            vm.op(f"global_load_dword v{vT+9}, v3, s[38:39]", "tlb")
        if kv:
            a(f"""
            s_mul_i32 s{sT0}, s{sWV}, 20480
            s_add_u32 s{sT0}, s{sT0}, 16384
            v_add_u32 v{vEX}, s{sT0}, v3
            s_and_b32 s{sT0}, s{sWV}, 1
            s_lshr_b32 s{sT1}, s{sWV}, 1
            s_lshl_b32 s{sT1}, s{sT1}, 11
            s_mul_i32 s{sT2}, s{sT0}, 20480
            s_add_u32 s{sT2}, s{sT2}, s{sT1}
            s_add_u32 s{sT2}, s{sT2}, 16384
            s_and_b32 s{sT3}, s{sRB}, 7
            s_lshl_b32 s{sT3}, s{sT3}, 8
            s_add_u32 s{sT3}, s{sT3}, s{sT2}
            v_lshlrev_b32 v{vT+4}, 2, v2
            v_add_u32 v{vAT}, s{sT3}, v{vT+4}
            s_lshl_b32 s{sT0}, s{sT0}, 12
            s_add_u32 s{sT0}, s{sT0}, s{sT1}
            s_lshl_b32 s{sAT}, s{sP}, 13
            s_add_u32 s{sAT}, s{sAT}, s{sT0}
            s_add_u32 s{sAT}, s{sAT}, {WS_KVA}
            s_sub_u32 s{sAT}, s{sAT}, s{sT2}
            s_lshl_b32 s{sFL}, s{sP}, 4
            s_add_u32 s{sFL}, s{sFL}, s{sRB}
            s_lshl_b32 s{sFL}, s{sFL}, 7
            s_add_u32 s{sFL}, s{sFL}, {F_KV}
            """)
            for i in range(1, 8): a(f"v_xor_b32 v{vAT+i}, {i << 8}, v{vAT}")
            a(f"v_and_b32 v{vFZ}, 3, v2\nv_lshlrev_b32 v{vFZ}, 7, v{vFZ}\nv_add_u32 v{vFZ}, {F_Z}, v{vFZ}")
        else:
            a(f"""
            s_lshl_b32 s{sT3}, s{sRB}, 1
            s_lshr_b32 s{sT1}, s{sWV}, 1
            s_add_u32 s{sT3}, s{sT3}, s{sT1}
            s_lshl_b32 s{sT3}, s{sT3}, 4
            s_lshl_b32 s{sT1}, s{sP}, 1
            s_add_u32 s{sT1}, s{sT1}, s{sT3}
            s_and_b32 s{sT2}, s{sWV}, 1
            s_add_u32 s{sT1}, s{sT1}, s{sT2}
            s_lshl_b32 s{sFL}, s{sT1}, 7
            s_add_u32 s{sFL}, s{sFL}, {F_Q}
            s_add_u32 s{sT1}, s{sT1}, s{sT3}
            s_lshl_b32 s{sAT}, s{sT1}, 11
            s_add_u32 s{sKX}, s{sAT}, 32768
            """)
        for i in range(32): a(f"v_mov_b32 v{GA+i}, {EPS}")
    def gemm(kv):
        vm, lg = Cnt(a, "vmcnt"), Cnt(a, "lgkmcnt")
        nt = 2 if kv else 1
        nws = 2 if kv else 4
        wsz = 16384 if kv else 8192
        stage = {}
        def ld(kind, c, regs=None):
            n = 4 if kind == "x" else 2 * nt
            vD, S, sO = (vXD, SX, sXO) if kind == "x" else (vWD, SW, sWO)
            step, end = (128, 896) if kind == "x" else (64 * 2688, 448 * 2688)
            if regs is not None: stage[(kind, c)] = regs
            T = []
            for j in range(n):
                def f(j=j):
                    if regs is None:
                        if j == 0: a(f"s_add_u32 m0, s{sXM if kind == 'x' else sWM}, {16384*(c%3) if kind == 'x' else wsz*(c%nws)}")
                        vm.op(f"buffer_load_dwordx4 v{vD+j}, s[{S}:{S+3}], s{sO} offen offset:{1024*j} {os.environ.get('NTG','')} lds", f"{kind}{c}")
                    else:
                        vm.op(f"buffer_load_dwordx4 {vr(regs[1]+4*j,4,regs[0])}, v{vD+j}, s[{S}:{S+3}], s{sO} offen offset:{1024*j} {os.environ.get('NTG','')}", f"{kind}{c}")
                    if j == n - 1: a(f"s_add_u32 s{sO}, s{sO}, {step}\ns_cmp_eq_u32 s{sO}, {end}\ns_cselect_b32 s{sO}, 0, s{sO}")
                T.append(f)
            return T
        def wr(kind, c):
            regs = stage[(kind, c)]
            n = 4 if kind == "x" else 2 * nt
            T = []
            for j in range(n):
                def f(j=j):
                    if j == 0: vm.wait(f"{kind}{c}")
                    off = (16384 * (c % 3) if kind == "x" else wsz * (c % nws)) + 1024 * j
                    lg.op(f"ds_write_b128 v{vWS + (0 if kind == 'x' else 1)}, {vr(regs[1]+4*j,4,regs[0])} offset:{off}", "wr")
                T.append(f)
            return T
        def F(c, ks):
            b = ks & 1
            for n in range(nt):
                for i in range(2):
                    lg.op(f"ds_read_b64_tr_b16 {vr(WF+8*b+4*n+2*i,2)}, v{vWA} offset:{wsz*(c%nws) + ks*2048 + i*512 + n*8192}", f"f{c}{ks}")
            for t in range(2):
                lg.op(f"ds_read_b128 {vr(XF+8*b+4*t,4)}, v{vXA+ks} offset:{16384*(c%3) + 4096*t}", f"f{c}{ks}")
        def M(c, ks, fill=()):
            b = ks & 1
            lg.wait(f"f{c}{ks}")
            T = []
            for n in range(nt):
                for t in range(2):
                    acc = vr(GA + 16 * (n * 2 + t), 16)
                    cin = "0" if (c == 0 and ks == 0 and n == 1) else acc
                    xf, wf = vr(XF + 8 * b + 4 * t, 4), vr(WF + 8 * b + 4 * n, 4)
                    T.append(lambda s=(f"v_mfma_f32_32x32x16_bf16 {acc}, {xf}, {wf}, {cin}" if kv else f"v_mfma_f32_32x32x16_bf16 {acc}, {wf}, {xf}, {cin}"): a(s))
            weave(T, list(fill))
        run = lambda T: [f() for f in T]
        if kv and not os.environ.get('KVREG'):
            for x in (("x", 0), ("w", 0), ("x", 1), ("w", 1)): run(ld(*x))
            R = [("a", 0), ("a", 16), ("a", 32)]
            lds_ = {0: [("w", 2, R[0]), ("x", 2), ("w", 3, R[1])], 1: [("x", 3), ("w", 4, R[2])], 2: [("x", 4), ("w", 5, R[0])],
                    3: [("x", 5), ("w", 6, R[1])], 4: [("x", 6)]}
            wrs = {c: [("w", c + 2)] for c in range(5)}
            if not kv:
                lds_ = {0: [("x", 2), ("w", 2), ("w", 3)], 1: [("x", 3), ("w", 4)], 2: [("x", 4), ("w", 5)], 3: [("x", 5), ("w", 6)], 4: [("x", 6)]}
                wrs = {}
            setup(kv, vm)
            vm.wait(["x0", "w0"]); a("s_barrier")
            st(1)
            F(0, 0); F(0, 1)
            pend = []
            for c in range(7):
                L = sum([ld(*l) for l in lds_.get(c, [])], [])
                if c == 3: L.append(lambda: k.init_issue(vm))
                if c == 5 and kv: L.append(lambda: (k.init_check(vm), vm.op(k.poll_ld(vFZ, vFT), "zp")))
                q = max(1, (len(L) + 2) // 3); w = max(1, (len(pend) + 2) // 3)
                M(c, 0, L[:q] + pend[:w]); F(c, 2)
                M(c, 1, L[q:2*q] + pend[w:2*w]); F(c, 3)
                M(c, 2, L[2*q:] + pend[2*w:])
                if c < 6:
                    dma = [f"{kd}{c+1}" for kd in "xw" if (kd, c + 1) not in stage]
                    if dma and vm.n_after(dma) is not None: vm.wait(dma, "lgkmcnt(0)")
                    else: a("s_waitcnt lgkmcnt(0)")
                    lg.drain()
                    a("s_barrier")
                    F(c + 1, 0)
                    pend = sum([wr(*x) for x in wrs.get(c, [])], [])
                    M(c, 3, pend[:1]); pend = pend[1:]
                    F(c + 1, 1)
                else:
                    lg.wait(f"f{c}3")
                    a("s_barrier")
                    M(c, 3)
            return vm
        if kv:
            RX = [("a", 0), ("a", 16), ("a", 32)]; RW = [("a", 48), ("v", 160), ("v", 176)]
        else:
            RX = [("a", 0), ("a", 16), ("a", 32), ("a", 48)]; RW = [("v", 160), ("v", 168), ("v", 176), ("v", 96)]
        NS = len(RX)
        for c in range(2): run(ld("x", c, RX[c])); run(ld("w", c, RW[c]))
        setup(kv, vm)
        run(wr("x", 0)); run(wr("w", 0))
        run(ld("x", 2, RX[2])); run(ld("w", 2, RW[2]))
        a("s_waitcnt lgkmcnt(0)\ns_barrier"); lg.drain()
        st(1)
        F(0, 0); F(0, 1)
        P = wr("x", 1) + wr("w", 1)
        nxt = 3
        for c in range(7):
            L = []
            while nxt < 7 and nxt - NS <= c:
                L += ld("x", nxt, RX[nxt % NS]) + ld("w", nxt, RW[nxt % NS]); nxt += 1
            if c == 3: L.append(lambda: k.init_issue(vm))
            if c == 5 and kv: L.append(lambda: (k.init_check(vm), vm.op(k.poll_ld(vFZ, vFT), "zp")))
            h = (len(P) + 1) // 2; q = (len(L) + 1) // 2
            M(c, 0, P[:h]); F(c, 2)
            M(c, 1, P[h:] + L[:q//2]); F(c, 3)
            M(c, 2, L[q//2:q])
            if c < 6:
                a("s_waitcnt lgkmcnt(0)\ns_barrier"); lg.drain()
                F(c + 1, 0)
                P = (wr("x", c + 2) + wr("w", c + 2)) if c + 2 < 7 else []
                n0 = len(P) // 4
                M(c, 3, L[q:] + P[:n0]); P = P[n0:]
                F(c + 1, 1)
            else:
                lg.wait(f"f{c}3")
                if kv: a("s_barrier")
                M(c, 3, L[q:])
        return vm
    def phi_t(base, n, dst, pk=True):
        T = []
        for i in range(0, n, 2):
            t = vT + 2 * ((i // 2) & 3)
            x = base + i
            if not pk:
                T.append(lambda t=t, x=x, i=i: a(f"""
                v_mul_f32 v{t}, s{sC1}, v{x}
                v_mul_f32 v{t+1}, s{sC1}, v{x+1}
                v_exp_f32_e64 v{t}, v{t} clamp
                v_exp_f32_e64 v{t+1}, v{t+1} clamp
                v_max_f32 v{x}, {EPS}, v{x}
                v_max_f32 v{x+1}, {EPS}, v{x+1}
                v_add_f32 v{x}, v{x}, v{t}
                v_add_f32 v{x+1}, v{x+1}, v{t+1}
                v_cvt_pk_bf16_f32 v{dst + i//2}, v{x}, v{x+1}
                """))
                continue
            T.append(lambda t=t, x=x, i=i: a(f"""
            v_pk_mul_f32 {vr(t,2)}, {vr(x,2)}, s[{sC1}:{sC1+1}]
            v_max_f32 v{x}, {EPS}, v{x}
            v_exp_f32_e64 v{t}, v{t} clamp
            v_exp_f32_e64 v{t+1}, v{t+1} clamp
            v_max_f32 v{x+1}, {EPS}, v{x+1}
            v_pk_add_f32 {vr(x,2)}, {vr(x,2)}, {vr(t,2)}
            v_cvt_pk_bf16_f32 v{dst + i//2}, v{x}, v{x+1}
            """))
        return T
    def wo_dma(vm):
        T = []
        for i in range(15):
            def f(i=i):
                if i == 0:
                    srd(a, SW, 38, 39, 448 * 896)
                    a(f"s_mul_i32 s{sT1}, s{sWV}, 20480\ns_mov_b32 s{sT0}, 0")
                a(f"s_add_u32 m0, s{sT1}, {1024*i}")
                if i: a(f"s_add_u32 s{sT0}, s{sT0}, 7168")
                vm.op(f"buffer_load_dwordx4 v{vWO}, s[{SW}:{SW+3}], s{sT0} offen lds", "wo")
            T.append(f)
        return T
    PK, PV, KVD = 128, 144, 48
    vm = gemm(True)
    st(3)
    a(f"s_setprio {os.environ.get('GPRIO1', 3)}")
    for f in phi_t(GA, 16, PK, os.environ.get('KVPK')): f()
    for t in range(2):
        for i in range(8):
            a(f"v_cvt_pk_bf16_f32 v{PV+8*t+i}, v{GA+32+16*t+2*i}, v{GA+32+16*t+2*i+1}")
    a(f"s_mov_b32 exec_lo, {1<<28}\ns_mov_b32 exec_hi, {1<<28}")
    for i in range(16): a(f"v_mov_b32 v{PV+i}, 0x3f803f80")
    a("s_mov_b64 exec, -1")
    for u in range(2):
        a(f"v_mfma_f32_32x32x16_bf16 {vr(KVD,16)}, {vr(PK+4*u,4)}, {vr(PV+4*u,4)}, {'0' if u == 0 else vr(KVD,16)}")
    for f in phi_t(GA + 16, 16, PK + 8, os.environ.get('KVPK')): f()
    for u in range(2):
        a(f"v_mfma_f32_32x32x16_bf16 {vr(KVD,16)}, {vr(PK+8+4*u,4)}, {vr(PV+8+4*u,4)}, {vr(KVD,16)}")
    st(4)
    k.poll(vm, vFZ, vFT, issued=True, tag="zp")
    for q in range(3):
        a(f"ds_write_b128 v{vEX}, {vr(KVD+4*q,4)} offset:{1024*q}")
    a("s_mov_b32 exec_lo, 0")
    for i in range(12, 16): a(f"v_mov_b32 v{KVD+i}, 0")
    a("s_mov_b64 exec, -1")
    a(f"ds_write_b128 v{vEX}, {vr(KVD+12,4)} offset:3072")
    a("s_waitcnt lgkmcnt(0)\ns_barrier")
    for i in range(8):
        a(f"ds_read2st64_b32 {vr(GA+2*i,2)}, v{vAT+i} offset0:0 offset1:160")
    for i in range(8):
        a(f"s_waitcnt lgkmcnt({7-i})")
        a(f"v_add_f32 v{GA+2*i}, v{GA+2*i}, v{GA+2*i+1}")
        a(f"buffer_atomic_add_f32 v{GA+2*i}, v{vAT+i}, {WSR}, s{sAT} offen sc1")
    st(5)
    vm.drain()
    k.poll_issue(vm, vFQ, vFT)
    W = wo_dma(vm)
    a("s_cmp_ge_u32 s2, 224\ns_cbranch_scc1 L_kvw")
    for f in W[:6]: f()
    a("s_waitcnt vmcnt(7)\nL_kvw:\ns_cbranch_scc0 L_kvw2\ns_waitcnt vmcnt(1)\nL_kvw2:")
    a(f"s_barrier\ns_cmp_lg_u32 s{sWV}, 0\ns_cbranch_scc1 L_kvf")
    k.flag(vm, sFL, 1)
    a("L_kvf:")
    st(6)
    a("s_cmp_ge_u32 s2, 224\ns_cbranch_scc1 L_kvend")
    for f in W[6:]: f()
    a("s_waitcnt vmcnt(9)\ns_branch L_fin3")
    a("L_GQ:")
    if os.environ.get('QPRIO'): a(f"s_setprio {os.environ['QPRIO']}")
    vm = gemm(False)
    st(3)
    a(f"s_setprio {os.environ.get('GPRIO1', 3)}")
    for t in range(2):
        for f in phi_t(GA + 16 * t, 16, PK + 8 * t, False): f()
        for ks in range(2):
            vm.op(f"buffer_store_dwordx4 {vr(PK+8*t+4*ks,4)}, v3, {WSR}, s{sAT if t == 0 else sKX} offen offset:{WS_PQ + 1024*ks} {SC}", "pqs")
    st(4)
    k.init_check(vm, vFT)
    st(5)
    vm.wait("pqs")
    k.flag(vm, sFL, 1)
    a("s_cmp_ge_u32 s2, 224\ns_cbranch_scc1 L_kvend\ns_barrier")
    st(6)
    if os.environ.get('WOEARLY'):
        for f in wo_dma(Cnt(a, "vmcnt")): f()
    a(k.poll_ld(vFQ, vFT) + "\ns_waitcnt vmcnt(0)")
    A1, O, A2, KB, K23, WOFR = 16, 48, 64, 128, 144, 176
    vm = Cnt(a, "vmcnt"); lg = Cnt(a, "lgkmcnt")
    a("L_fin3:")
    a(f"s_setprio {os.environ.get('GPRIO2', 1)}")
    a(f"v_mov_b32 v12, v{vFK}")
    k.poll(vm, vFQ, vFT, issued=True)
    st(7)
    a(f"""
    s_and_b32 s{sT0}, s2, 31
    s_lshl_b32 s{sT0}, s{sT0}, 16
    s_lshl_b32 s{sT1}, s{sWV}, 13
    s_add_u32 s{sT0}, s{sT0}, s{sT1}
    s_add_u32 s{sT1}, s{sT0}, 32768
    s_add_u32 s{sT2}, s{sT0}, 4096
    s_add_u32 s{sT3}, s{sT1}, 4096
    """)
    for hl in range(4):
        for t in range(2):
            for ks in range(2):
                so = [[sT0, sT1], [sT2, sT3]][hl >> 1][t]
                vm.op(f"buffer_load_dwordx4 {ar(16*hl+8*t+4*ks,4)}, v3, {WSR}, s{so} offen offset:{WS_PQ + 2048*(hl&1) + 1024*ks} {SC}", "pq")
    if not os.environ.get('WOEARLY'):
        a(f"s_cmp_lg_u32 s{sTY}, 0\ns_cbranch_scc1 L_havewo")
        for f in wo_dma(Cnt(a, "vmcnt")): f()
        a("L_havewo:")
    k.poll_issue(vm, 12, 8)
    a(f"""
    s_lshl_b32 s{sT0}, s{sWV}, 14
    s_add_u32 s{sT0}, s{sT0}, {WS_KVA}
    s_mul_i32 s{sT1}, s{sWV}, 20480
    v_bfe_u32 v5, v2, 2, 2
    v_lshrrev_b32 v6, 5, v2
    v_lshl_add_u32 v5, v6, 2, v5
    v_lshlrev_b32 v5, 7, v5
    v_and_b32 v7, 1, v2
    v_lshl_add_u32 v5, v7, 5, v5
    v_bfe_u32 v7, v2, 4, 1
    v_lshl_add_u32 v5, v7, 4, v5
    v_bfe_u32 v7, v2, 1, 1
    v_lshl_add_u32 v5, v7, 3, v5
    v_bfe_u32 v7, v2, 3, 1
    v_lshl_add_u32 v5, v7, 6, v5
    v_xor_b32 v15, 64, v5
    v_add_u32 v5, s{sT1}, v5
    v_add_u32 v15, s{sT1}, v15
    s_mov_b32 s{sT2}, {EPS}
    s_mov_b32 s{sC1}, -1
    s_mov_b32 s{sC1+1}, 0
    v_and_b32 v13, 31, v2
    v_mul_u32_u24 v13, 272, v13
    v_lshl_add_u32 v13, v6, 6, v13
    v_add_u32 v13, s{sT1}, v13
    v_lshrrev_b32 v7, 3, v0
    v_and_b32 v14, 7, v0
    v_mul_u32_u24 v10, 272, v7
    v_lshl_add_u32 v10, v14, 5, v10
    v_mul_u32_u24 v11, 1792, v7
    v_lshl_add_u32 v11, v14, 4, v11
    s_and_b32 s{sT3}, s2, 31
    s_mul_i32 s{sT3}, s{sT3}, {64*1792}
    s_lshr_b32 s{sT4}, s2, 5
    s_lshl_b32 s{sT4}, s{sT4}, 7
    s_add_u32 s{sT3}, s{sT3}, s{sT4}
    s_add_u32 s{sT3}, s{sT3}, 896
    s_add_u32 s{sT4}, s{sT3}, {32*1792}
    v_mov_b32 v14, 0x7fff0000
    v_cndmask_b32 v14, v14, v3, s[{sC1}:{sC1+1}]
    """)
    def ldwo(hl):
        for ks in range(2):
            for ct in range(2):
                for i in range(2):
                    lg.op(f"ds_read_b64_tr_b16 {vr(WOFR+8*ks+4*ct+2*i,2)}, v{15 if ct else 5} offset:{128*(28*hl+16*ks+8*i)}", f"wo{hl}")
    k.poll(vm, 12, 8, issued=True)
    vm.drain()
    st(8)
    def kvsrc(hl): return A1 + 16 * hl if hl < 2 else K23 + 16 * (hl - 2)
    def kvb(hl): return KB + 8 * hl if hl < 2 else K23 + 16 * (hl - 2)
    for hl in range(4):
        for q in range(4):
            vm.op(f"buffer_load_dwordx4 {vr(kvsrc(hl)+4*q,4)}, v{14 if q == 3 else 3}, {WSR}, s{sT0} offen offset:{1024*q} {SC}", f"kv{hl}")
        if hl < 3: a(f"s_add_u32 s{sT0}, s{sT0}, 4096")
    ldwo(0)
    a(f"v_add_u32 v12, 40960, v10")
    def cvtkv(hl):
        T = []
        for i in range(8):
            def f(i=i):
                if i == 0: vm.wait(f"kv{hl}")
                a(f"v_cvt_pk_bf16_f32 v{kvb(hl)+i}, v{kvsrc(hl)+2*i}, v{kvsrc(hl)+2*i+1}")
            T.append(f)
        return T
    def s1(u):
        hl, t = u >> 1, u & 1
        A = vr(A1 + 16 * (u & 1), 16)
        return [lambda: a(f"v_mfma_f32_32x32x16_bf16 {A}, {vr(kvb(hl),4)}, {ar(16*hl+8*t,4)}, 0"),
                lambda: a(f"v_mfma_f32_32x32x16_bf16 {A}, {vr(kvb(hl)+4,4)}, {ar(16*hl+8*t+4,4)}, {A}")]
    DN = 6
    def scale(u):
        A = A1 + 16 * (u & 1); Ou = O + 8 * (u & 1)
        L = [f"v_mov_b32 v{DN}, v{A+12}", f"v_mov_b32 v{DN+2}, v{A+12}", f"v_permlane32_swap_b32 v{DN}, v{DN+2}",
             f"v_add_f32 v{DN+2}, s{sT2}, v{DN+2}", f"v_rcp_f32 v{DN+2}, v{DN+2}"]
        for i in range(8):
            L.append(f"v_mul_f32 v{A+2*i}, v{A+2*i}, v{DN+2}")
            L.append(f"v_mul_f32 v{A+2*i+1}, v{A+2*i+1}, v{DN+2}")
            L.append(f"v_cvt_pk_bf16_f32 v{Ou+i}, v{A+2*i}, v{A+2*i+1}")
        L += [f"v_cndmask_b32 v{Ou+6}, 0, v{Ou+6}, s[{sC1}:{sC1+1}]", f"v_cndmask_b32 v{Ou+7}, 0, v{Ou+7}, s[{sC1}:{sC1+1}]"]
        return [lambda s=s: a(s) for s in L]
    def s2(u):
        hl, t = u >> 1, u & 1
        Ou = O + 8 * (u & 1); T = []
        for ks in range(2):
            for ct in range(2):
                acc = vr(A2 + 32 * t + 16 * ct, 16)
                cin = "0" if (hl == 0 and ks == 0) else acc
                def f(s=f"v_mfma_f32_32x32x16_bf16 {acc}, {vr(WOFR+8*ks+4*ct,4)}, {vr(Ou+4*ks,4)}, {cin}", first=(ks == 0 and ct == 0), last=(ks == 1 and ct == 1)):
                    if first and t == 0: lg.wait(f"wo{hl}")
                    a(s)
                    if last and t == 1 and hl < 3: ldwo(hl + 1)
                T.append(f)
        return T
    run = lambda T: [f() for f in T]
    run(cvtkv(0)); run(cvtkv(1))
    run(s1(0)); run(s1(1)); run(scale(0))
    for u in range(8):
        main = s2(u)
        fill = scale(u + 1) if u + 1 < 8 else []
        if u + 2 < 8:
            if u + 2 in (4, 6): run(cvtkv((u + 2) >> 1))
            main = s1(u + 2) + main
        if u == 7:
            fill = [lambda ct=ct, i=i: a(f"ds_write_b128 v13, {vr(A2+16*ct+4*i,4)} offset:{128*ct + 16*i}") for ct in range(2) for i in range(4)]
            weave(main, fill, start=1)
        else:
            weave(main, fill)
    st(9)
    for ct in range(2):
        for i in range(4):
            a(f"ds_write_b128 v13, {vr(A2+32+16*ct+4*i,4)} offset:{32*272 + 128*ct + 16*i}")
    a("s_waitcnt lgkmcnt(0)\ns_barrier")
    st(10)
    R = 64
    for t in range(2):
        for w in range(4):
            for h in range(2):
                a(f"ds_read_b128 {vr(R+32*t+8*w+4*h,4)}, v{10 if w < 2 else 12} offset:{20480*(w&1) + 32*272*t + 16*h}")
    for t in range(2):
        b = R + 32 * t
        a(f"s_waitcnt lgkmcnt({8 if t == 0 else 0})")
        for i in range(8):
            a(f"v_add_f32 v{b+i}, v{b+i}, v{b+8+i}")
            a(f"v_add_f32 v{b+16+i}, v{b+16+i}, v{b+24+i}")
        for i in range(8):
            a(f"v_add_f32 v{b+i}, v{b+i}, v{b+16+i}")
        for i in range(4):
            a(f"v_cvt_pk_bf16_f32 v{b+8+i}, v{b+2*i}, v{b+2*i+1}")
        a(f"buffer_store_dwordx4 {vr(b+8,4)}, v11, s[{SO}:{SO+3}], s{sT3 if t == 0 else sT4} offen {os.environ.get('NTO','')}")
    a("L_kvend:")
    st.end(1)
    a("s_endpgm")

from v6s import gen_S
```

```python
import os
from asmlib import *
from v6 import *

ROWB = 272
WREG = 53 * ROWB
KS, KSL = 4160, 16640
UBASE, UB, U0, U1 = 33280, 8256, 16, 16 + 4096 + 32
TTAB, TSTR = 66304, 1536
USTG = 57664

def gen_S(k, st):
    a = k.a
    sJB, sIDX, sCG, sHH, sKB, sFU, sIT, sPH, sKG, sFK = sA, sB, sC, sD, sE, sF, sG, sH, sI, sJ
    vm = Cnt(a, "vmcnt")
    P0 = 8
    UG, UG2 = 24, 32
    vT = 40
    IN = 56
    KA, KB_ = 60, 61
    ACC = 64; FR = 96
    E1, E8, E256, E2, E4, Wc, X0, X1, G0, G1, Y0, Y1 = [112 + 2 * i for i in range(12)]
    t0, t1, t2, t3, pk = 136, 137, 138, 139, 140
    EA = 144; AD = 153
    vFU, vFP, vGS, vGR, vGO = 157, 158, 159, 62, 63
    UR = 160
    vPW, vRR, vZF, vZU, vCW, vC4, vUW = 176, 177, 178, 179, 180, 181, 185
    vKL, vUL, vZL, vKS, vU2 = 188, 189, 59, 58, 187
    a(f"""
    L_S:
    s_setprio 3
    """)
    if os.environ.get('XMAP'):
        lo = os.environ['XMAP'] in '15'
        a(f"""
        s_lshr_b32 s{sT0}, s2, 3
        s_bfe_u32 s{sHH}, s2, 0x10002
        {f's_xor_b32 s{sHH}, s{sHH}, 1' if lo else ''}
        s_and_b32 s{sT1}, s2, 3
        s_lshl_b32 s{sIDX}, s{sT0}, 3
        s_and_b32 s{sT2}, s2, 7
        s_add_u32 s{sIDX}, s{sIDX}, s{sT2}
        s_sub_u32 s{sIDX}, s{sIDX}, 224
        s_cmp_ge_u32 s{sT0}, 28
        s_cbranch_scc1 L_aux
        {'s_endpgm' if os.environ.get('SKIP_S') else ''}
        s_mul_i32 s{sCG}, s{sT1}, 28
        s_add_u32 s{sCG}, s{sCG}, s{sT0}
        s_lshr_b32 s{sJB}, s{sCG}, 4
        s_and_b32 s{sIDX}, s{sCG}, 15
        s_lshl_b32 s{sT0}, s{sHH}, 4
        s_add_u32 s{sIDX}, s{sIDX}, s{sT0}
        """)
    else:
        a(f"""
    s_and_b32 s{sJB}, s2, 7
    s_lshr_b32 s{sIDX}, s2, 3
    s_cmp_eq_u32 s{sJB}, 7
    s_cbranch_scc1 L_aux
    {'s_endpgm' if os.environ.get('SKIP_S') else ''}
    s_lshl_b32 s{sT0}, s{sJB}, 4
    s_and_b32 s{sCG}, s{sIDX}, 15
    s_add_u32 s{sCG}, s{sCG}, s{sT0}
    s_lshr_b32 s{sHH}, s{sIDX}, 4
        """)
    a(f"""
    s_lshl_b32 s{sKG}, s{sCG}, 1
    s_add_u32 s{sKG}, s{sKG}, s{sHH}
    v_and_b32 v{t0}, 31, v2
    """)
    a(f"""
    s_cmp_eq_u32 s{sWV}, 1
    s_cselect_b32 s{sT0}, 4, 8
    s_cselect_b32 s{sT3}, 2, 8
    s_cselect_b32 s{sT4}, 256, 0
    s_cselect_b32 s{sPH}, 384, 4
    s_cmp_eq_u32 s{sWV}, 2
    s_cselect_b32 s{sT0}, 1, s{sT0}
    s_cselect_b32 s{sT3}, 1, s{sT3}
    s_cselect_b32 s{sT4}, 512, s{sT4}
    s_cselect_b32 s{sPH}, 640, s{sPH}
    s_cselect_b32 s{sIT}, 32, 1
    v_mul_u32_u24 v{AD}, s{sT0}, v{t0}
    v_add_u32 v{AD}, s{sT4}, v{AD}
    v_mul_u32_u24 v{AD+1}, s{sT3}, v{t0}
    v_add_u32 v{AD+1}, s{sPH}, v{AD+1}
    v_cmp_gt_u32 vcc, 32, v2
    s_lshl_b32 s{sT0}, s{sIT}, 1
    s_cmp_eq_u32 s{sWV}, 0
    s_cselect_b32 s{sT3}, 2, 64
    v_mov_b32 v{t2}, s{sT3}
    v_mov_b32 v{t3}, s{sT0}
    v_cndmask_b32 v{AD}, v{AD+1}, v{AD}, vcc
    v_cndmask_b32 v{t3}, v{t2}, v{t3}, vcc
    v_add_u32 v{AD+1}, s{sIT}, v{AD}
    v_add_u32 v{AD+2}, v{AD}, v{t3}
    v_add_u32 v{AD+3}, s{sIT}, v{AD+2}
    v_mov_b32 v{t3}, {TTAB}
    """)
    for i in range(4): a(f"v_lshl_add_u32 v{AD+i}, v{AD+i}, 1, v{t3}")
    a(f"v_lshlrev_b32 v{t2}, 3, v0\nv_sub_u32 v{t2}, 2047, v{t2}")
    for e in range(9):
        a(f"v_subrev_u32 v{EA+e}, {e}, v{t2}")
        a(f"v_cvt_f32_i32 v{FR+e}, v{EA+e}")
    for e in range(0, 10, 2):
        a(f"v_cvt_pk_bf16_f32 v{FR+e}, v{FR+e}, v{FR+min(e+1,8)}")
        if e < 8: a(f"v_lshrrev_b32 v{FR+e+1}, 16, v{FR+e}")
        a(f"v_and_b32 v{FR+e}, 0xffff, v{FR+e}")
    for e in range(9):
        if e in (0, 8): a(f"v_cmp_gt_i32 vcc, 128, v{EA+e}")
        a(f"v_subrev_u32 v{FR+e}, 17024, v{FR+e}")
        a(f"v_cndmask_b32 v{EA+e}, v{FR+e}, v{EA+e}, vcc")
        a(f"v_lshl_add_u32 v{EA+e}, v{EA+e}, 1, v{t3}")
    a(f"""
    v_and_b32 v5, 3, v2
    v_sub_u32 v5, 3, v5
    v_mul_u32_u24 v{vKL}, {KS}, v5
    v_lshrrev_b32 v6, 4, v2
    v_lshl_add_u32 v{vKL}, v6, 4, v{vKL}
    v_bfe_u32 v7, v2, 2, 2
    v_lshlrev_b32 v7, 4, v7
    v_sub_u32 v{vKL}, v{vKL}, v7
    s_and_b32 s{sT0}, s{sWV}, 1
    s_lshl_b32 s{sT0}, s{sT0}, 8
    s_lshr_b32 s{sT3}, s{sWV}, 1
    s_mul_i32 s{sT3}, s{sT3}, {KSL}
    s_add_u32 s{sT3}, s{sT3}, {2*(2040-1792)}
    s_sub_u32 s{sT3}, s{sT3}, s{sT0}
    v_add_u32 v{vKL}, s{sT3}, v{vKL}
    v_and_b32 v5, 1, v2
    v_sub_u32 v5, 1, v5
    v_mul_u32_u24 v{vZL}, {U1-U0}, v5
    v_add_u32 v{vZL}, {UBASE}, v{vZL}
    v_bfe_u32 v5, v2, 1, 3
    v_lshl_add_u32 v{vUL}, v5, 6, v{vZL}
    v_lshl_add_u32 v{vUL}, v6, 4, v{vUL}
    s_sub_u32 s{sT3}, 16, s{sT0}
    v_add_u32 v{vUL}, s{sT3}, v{vUL}
    """)
    a(f"""
    s_lshl_b32 s{sT1}, s{sKG}, 10
    s_lshl_b32 s{sT2}, s{sWV}, 7
    s_add_u32 s{sT1}, s{sT1}, s{sT2}
    v_lshrrev_b32 v7, 5, v2
    v_lshlrev_b32 v5, 2, v{t0}
    v_lshl_add_u32 v6, v7, 9, v5
    v_add_u32 v{vT}, s{sT1}, v6
    s_lshl_b32 s{sT1}, s{sKG}, 2
    v_lshl_add_u32 v6, v7, 1, s{sT1}
    s_lshl_b32 s{sT1}, s{sIDX}, 2
    s_add_u32 s{sT1}, s{sT1}, s{sWV}
    s_mul_i32 s{sT1}, s{sT1}, {16*896}
    s_lshl_b32 s{sT2}, s{sJB}, 7
    s_add_u32 s{sT1}, s{sT1}, s{sT2}
    v_mul_u32_u24 v7, {8*896}, v7
    v_add3_u32 v7, v7, v5, s{sT1}
    v_add_u32 v5, {4*896}, v7
    s_waitcnt lgkmcnt(0)
    """)
    st(0)
    PR = P0 + 8
    a(f"global_load_short_d16_hi v{P0+6}, v6, s[30:31]")
    for i in range(6): a(f"global_load_dword v{PR+i}, v{vT}, s[{18+2*i}:{19+2*i}] nt")
    a(f"global_load_short_d16_hi v{P0+7}, v6, s[32:33]")
    k.init_issue(vm)
    UG, UG2 = 160, 80
    for i in range(8): a(f"global_load_dword v{UG2+i}, v{7 if i < 4 else 5}, s[16:17] offset:{(i%4)*896} nt")
    a(f"s_setprio {os.environ.get('SPRIO', 2)}")
    srd(a, SWS, 44, 45, WS_SIZE)
    srd(a, SO, 40, 41, 2048 * 1792)
    a(f"""
    s_mul_i32 s{sKB}, s{sWV}, {WREG}
    v_and_b32 v{t0}, 31, v2
    v_lshrrev_b32 v{t1}, 5, v2
    v_lshlrev_b32 v{t1}, 4, v{t1}
    v_add_u32 v{t1}, s{sKB}, v{t1}
    v_min_u32 v{t2}, 20, v{t0}
    v_mul_u32_u24 v{t2}, {ROWB}, v{t2}
    v_add_u32 v{KA}, v{t2}, v{t1}
    v_mul_u32_u24 v{t2}, {ROWB}, v{t0}
    v_add_u32 v{KB_}, v{t2}, v{t1}
    s_mov_b32 m0, s{sKB}
    v_add_u32 v{vPW}, s{sKB}, v3
    s_lshl_b32 s{sT0}, s{sWV}, 10
    v_add_u32 v{vRR}, s{sT0}, v3
    v_mul_u32_u24 v{vGS}, 288, v{t0}
    v_lshrrev_b32 v{t2}, 5, v2
    v_lshl_add_u32 v{vGS}, v{t2}, 4, v{vGS}
    s_mov_b32 s{sFK}, 0x05040100
    v_mov_b32 v{PR+6}, s{sFK}
    s_mov_b32 s{sFK}, 0x07060302
    v_mov_b32 v{PR+7}, s{sFK}
    s_lshl_b32 s{sT0}, s{sWV}, 5
    s_add_u32 s{sT0}, s{sT0}, {USTG}
    v_add_u32 v{vGS}, s{sT0}, v{vGS}
    v_lshrrev_b32 v{t2}, 3, v2
    v_and_b32 v{t3}, 7, v2
    v_lshrrev_b32 v{vGO}, 3, v2
    v_and_b32 v{vZF}, 7, v2
    v_mul_u32_u24 v{vGR}, 144, v{vGO}
    v_lshl_add_u32 v{vGR}, v{vZF}, 4, v{vGR}
    s_mul_i32 s{sT0}, s{sWV}, {16*144}
    s_add_u32 s{sT0}, s{sT0}, {USTG}
    v_add_u32 v{vGR}, s{sT0}, v{vGR}
    v_lshlrev_b32 v{vGO}, 12, v{vGO}
    v_lshl_add_u32 v{vGO}, v{vZF}, 4, v{vGO}
    v_mul_u32_u24 v{vZF}, {KS}, v{t2}
    v_lshl_add_u32 v{vZF}, v{t3}, 3, v{vZF}
    v_add_u32 v{vZF}, 4088, v{vZF}
    v_and_b32 v{t3}, 23, v2
    v_cmp_eq_u32 vcc, 0, v{t3}
    v_add_u32 v{t3}, 56, v{vZF}
    v_bfe_u32 v{vZU}, v2, 1, 2
    v_mul_u32_u24 v{vZU}, {UB}, v{vZU}
    v_cndmask_b32 v{vZF}, v{vZF}, v{t3}, vcc
    v_and_b32 v{t3}, 1, v2
    v_mul_u32_u24 v{t3}, {U1-U0}, v{t3}
    v_add3_u32 v{vZU}, v{vZU}, v{t3}, s{sT0}
    s_add_u32 s{sT0}, s{sT0}, {-UBASE & 0xffffffff}
    v_subrev_u32 v{vZU}, s{sT0}, v{vZU}
    s_lshl_b32 s{sT0}, s{sJB}, 2
    s_add_u32 s{sT0}, s{sT0}, s{sWV}
    s_lshl_b32 s{sT1}, s{sT0}, 16
    s_lshl_b32 s{sT2}, s{sIDX}, 7
    s_add_u32 s{sT1}, s{sT1}, s{sT2}
    s_add_u32 s{sT1}, s{sT1}, {WS_UT}
    s_lshl_b32 s{sT0}, s{sT0}, 5
    s_add_u32 s{sT0}, s{sT0}, s{sIDX}
    s_lshl_b32 s{sT0}, s{sT0}, 7
    s_add_u32 s{sFU}, s{sT0}, {F_UT}
    s_lshr_b32 s{sT0}, s{sCG}, 2
    s_lshl_b32 s{sT0}, s{sT0}, 12
    s_add_u32 s{sT0}, s{sT0}, {F_UT}
    s_cmp_eq_u32 s{sHH}, 1
    s_cselect_b32 s{sT3}, {31 if os.environ.get('TSB') else 15}, 31
    v_and_b32 v{vFU}, s{sT3}, v2
    v_lshlrev_b32 v{vFU}, 7, v{vFU}
    v_add_u32 v{vFU}, s{sT0}, v{vFU}
    s_xor_b32 s{sT0}, s{sKG}, 1
    s_lshl_b32 s{sT0}, s{sT0}, 9
    s_add_u32 s{sT0}, s{sT0}, {F_KF}
    v_and_b32 v{vFP}, 3, v2
    v_lshlrev_b32 v{vFP}, 7, v{vFP}
    v_add_u32 v{vFP}, s{sT0}, v{vFP}
    s_lshl_b32 s{sT0}, s{sKG}, 2
    s_add_u32 s{sT0}, s{sT0}, s{sWV}
    s_lshl_b32 s{sT0}, s{sT0}, 7
    s_add_u32 s{sFK}, s{sT0}, {F_KF}
    v_lshlrev_b32 v{vCW}, 4, v0
    s_mul_i32 s{sT3}, s{sHH}, 0x7fff0000
    v_add_u32 v{vU2}, s{sT3}, v3
    s_cmp_eq_u32 s{sHH}, 0
    s_cselect_b32 s{sT3}, 2048, 0
    v_mov_b32 v{vKS}, 0x7fff0000
    v_cmp_le_u32 vcc, s{sT3}, v{vCW}
    v_cndmask_b32 v{vKS}, v{vKS}, v{vCW}, vcc
    v_add_u32 v{vC4}, {2*KS-8}, v{vCW}
    v_add_u32 v{vC4+1}, {3*KS-8}, v{vCW}
    v_add_u32 v{vC4+2}, {KSL+2*KS-8}, v{vCW}
    v_add_u32 v{vC4+3}, {KSL+3*KS-8}, v{vCW}
    s_mul_i32 s{sT0}, s{sWV}, {UB}
    s_add_u32 s{sT0}, s{sT0}, {UBASE}
    v_add_u32 v{vUW}, s{sT0}, v3
    """)
    st(1)
    X = os.environ.get('SX', '')
    if X == '1': a('s_waitcnt vmcnt(0)\ns_endpgm')
    def kgen(c):
        P = P0 + 8 * c
        AC = ACC + 16 * c
        P = P0
        if c == 0:
            a(f"""
            s_waitcnt vmcnt(9)
            v_mul_f32 v{P+6}, {LOG2E}, v{P+6}
            v_exp_f32 v{P+6}, v{P+6}
            v_cvt_pk_bf16_f32 v{P+6}, v{P+6}, v{P+6}
            v_lshlrev_b32 v{P+6}, 16, v{P+6}
            """)
        for i in range(6):
            a(f"v_lshlrev_b32 v{P+i}, 16, v{PR+i}" if c == 0 else f"v_and_b32 v{P+i}, 0xffff0000, v{PR+i}")
        a(f"""
        v_mul_f32 v{t1}, v{P+6}, v{P}
        v_mul_f32 v{t2}, v{P+6}, v{P+1}
        v_mul_f32 v{t1}, {LOG2E}, v{t1}
        v_mul_f32 v{t2}, {INV2PI}, v{t2}
        v_mul_f32 v{P+2}, v{P+6}, v{P+2}
        v_mul_f32 v{P+3}, v{P+6}, v{P+3}
        """)
        cmul(a, Wc, P + 4, P + 2)
        for (E, m, cj) in ((E8, 8.0, True), (E1, 1.0, False), (E256, 256.0, False)):
            if m != 1.0:
                a(f"v_mul_f32 v{t0}, {f2u(m)}, v{t1}\nv_mul_f32 v{t3}, {f2u(m)}, v{t2}\nv_exp_f32 v{t0}, v{t0}\nv_fract_f32 v{t3}, v{t3}")
            else:
                a(f"v_exp_f32 v{t0}, v{t1}\nv_fract_f32 v{t3}, v{t2}")
            a(f"""
            v_cos_f32 v{E}, v{t3}
            v_sin_f32 v{E+1}, v{t3}
            v_mul_f32 v{E}, v{E}, v{t0}
            v_mul_f32_e64 v{E+1}, {'-' if cj else ''}v{E+1}, v{t0}
            """)
        cmul(a, E2, E1, E1); cmul(a, E4, E2, E2)
        yield "head"
        cnt = [0]
        def put(row, src):
            r = pk + (cnt[0] & 3); cnt[0] += 1
            a(f"v_cvt_pk_bf16_f32 v{r}, v{src}, v{src+1}")
            a(f"ds_write_addtid_b32 v{r} offset:{row * ROWB}")
        if c == 0:
            a(f"v_mov_b32 v{t0}, 0x3f80")
            a(f"ds_write_addtid_b32 v{t0} offset:{21*ROWB}")
        put(22, E8); put(0, Wc)
        fine, cur = [], E8
        for f in range(2, 32):
            nxt = X0 if cur != X0 else X1
            fine.append((nxt, cur, E8, 21 + f)); cur = nxt
        coarse, cur = [], Wc
        for cc in range(1, 8):
            nxt = Y0 if cur != Y0 else Y1
            coarse.append((nxt, cur, E1, cc)); cur = nxt
        coarse.append((G0, Wc, E256, 8)); cur = G0
        for cc in range(1, 4):
            nxt = Y0 if cur != Y0 else Y1
            coarse.append((nxt, cur, E2, 8 + cc)); cur = nxt
        coarse += [(G1, G0, E256, 12), (Y0, G1, E4, 13), (G0, G1, E256, 14), (Y0, G0, E4, 15)]
        g = G0
        for i in range(5):
            n = G1 if g == G0 else G0
            coarse.append((n, g, E256, 16 + i)); g = n
        seq = []
        for i in range(max(len(fine), len(coarse))):
            if i < len(fine): seq.append(fine[i])
            if i < len(coarse): seq.append(coarse[i])
        for n, (d, x, y, row) in enumerate(seq):
            cmul(a, d, x, y); put(row, d)
            if n == (int(os.environ.get('MID', 16)) if c == 0 else 24): yield "mid"
        if c == 0: yield "end"
        a("s_waitcnt lgkmcnt(0)")
        bufs = [FR, FR + 8, vT, vT + 8]
        for jj in range(4):
            a(f"ds_read_b128 {vr(bufs[jj],4)}, v{KA} offset:{32*jj}")
            a(f"ds_read_b128 {vr(bufs[jj]+4,4)}, v{KB_} offset:{21*ROWB+32*jj}")
        yield "reads"
        for j in range(8):
            fb = bufs[j & 3]
            a(f"s_waitcnt lgkmcnt({6 if j < 5 else 2*(7-j)})")
            AC = ACC + 16 * (j >> 2)
            a(f"v_mfma_f32_32x32x16_bf16 {vr(AC,16)}, {vr(fb,4)}, {vr(fb+4,4)}, {'0' if (c == 0 and j & 3 == 0) else vr(AC,16)}")
            if j + 4 < 8:
                a(f"ds_read_b128 {vr(fb,4)}, v{KA} offset:{32*(j+4)}")
                a(f"ds_read_b128 {vr(fb+4,4)}, v{KB_} offset:{21*ROWB+32*(j+4)}")
        yield "done"
    g0, g1 = kgen(0), kgen(1)
    next(g0)
    next(g0)
    a("s_waitcnt vmcnt(0)")
    vm.drain()
    k.init_check(vm)
    for i in range(4):
        a(f"v_perm_b32 v{UG+i}, v{UG2+2*i+1}, v{UG2+2*i}, v{PR+6}")
        a(f"v_perm_b32 v{UG+4+i}, v{UG2+2*i+1}, v{UG2+2*i}, v{PR+7}")
    for i in range(2): a(f"ds_write_b128 v{vGS}, {vr(UG+4*i,4)} offset:{144*i}")
    a("s_waitcnt lgkmcnt(0)\ns_barrier")
    for i in range(2): a(f"ds_read_b128 {vr(UG+4*i,4)}, v{vGR} offset:{8*144*i}")
    for i in range(2):
        a(f"s_waitcnt lgkmcnt({1-i})")
        a(f"buffer_store_dwordx4 {vr(UG+4*i,4)}, v{vGO}, {WSR}, s{sT1} offen {SC}")
        if i < 1: a(f"s_add_u32 s{sT1}, s{sT1}, 32768")
    next(g0)
    a("s_waitcnt vmcnt(0)")
    k.flag(Cnt(a, "vmcnt"), sFU)
    if os.environ.get('SKP'): a(f"s_cmp_eq_u32 s{sHH}, 0\ns_cbranch_scc1 L_skp\ns_setprio {os.environ['SKP']}\nL_skp:")
    next(g0)
    st(2)
    if X == '2': a('s_endpgm')
    next(g1)
    a(f"v_readlane_b32 s{sT0}, v{P0+7}, 32\nv_cmp_eq_u32 vcc, 0, v0\nv_mov_b32 v{PR+7}, s{sT0}\nv_cndmask_b32 v{P0+7}, 0, v{P0+7}, vcc\nv_cndmask_b32 v{PR+7}, 0, v{PR+7}, vcc")
    next(g0)
    st(3)
    next(g1)
    a(f"""
    s_lshl_b32 s{sT0}, s{sCG}, 2
    s_add_u32 s{sT0}, s{sT0}, s{sWV}
    s_lshl_b32 s{sT0}, s{sT0}, 12
    s_add_u32 s{sT4}, s{sT0}, {WS_UT}
    """)
    next(g1)
    st(4)
    a(k.poll_ld(vFU, IN))
    ul = "\n".join(f"buffer_load_dwordx4 {vr(UR+4*i,4)}, v{3 if i < 2 else vU2}, {WSR}, s{sT4} offen offset:{1024*i} {SC}" for i in range(4))
    next(g1)
    st(6)
    if X == '3': a('s_endpgm')
    for c in range(2):
        for q in range(3):
            a(f"ds_write_b128 v{vPW}, {vr(ACC+16*c+4*q,4)} offset:{(3*c+q)*1024}")
    a(f"""
    s_waitcnt vmcnt(0)
    {k.poll_cmp(IN)}
    s_mov_b64 s[{sC1}:{sC1+1}], vcc
    s_cmp_eq_u64 vcc, 0
    s_cbranch_scc0 L_ulate
    {ul}
    s_branch L_nopoll2
    L_ulate:
    {k.poll_ld(vFU, IN)}
    L_nopoll2:
    """)
    a(f"""
    s_lshl_b32 s{sT1}, s{sKG}, 13
    s_add_u32 s{sT1}, s{sT1}, {WS_KF}
    s_add_u32 s{sT2}, s{sT1}, 4096
    s_cmp_eq_u32 s{sWV}, 3
    s_waitcnt lgkmcnt(0)
    s_barrier
    s_cbranch_scc1 L_nored
    """)
    RD = ACC
    for c in range(2):
        for w in range(4):
            a(f"ds_read_b128 {vr(RD+16*c+4*w,4)}, v{vRR} offset:{w*WREG + c*3072}")
    for c in range(2):
        a("s_waitcnt lgkmcnt(4)")
        b = RD + 16 * c
        a(f"""
        v_add_f32 v{b}, v{P0+8*c+7}, v{b}
        v_add_f32 v{b+0}, v{b+0}, v{b+4}
        v_add_f32 v{b+8}, v{b+8}, v{b+12}
        v_add_f32 v{b+1}, v{b+1}, v{b+5}
        v_add_f32 v{b+9}, v{b+9}, v{b+13}
        v_add_f32 v{b+2}, v{b+2}, v{b+6}
        v_add_f32 v{b+10}, v{b+10}, v{b+14}
        v_add_f32 v{b+3}, v{b+3}, v{b+7}
        v_add_f32 v{b+11}, v{b+11}, v{b+15}
        v_add_f32 v{b+0}, v{b+0}, v{b+8}
        v_add_f32 v{b+1}, v{b+1}, v{b+9}
        v_add_f32 v{b+2}, v{b+2}, v{b+10}
        v_add_f32 v{b+3}, v{b+3}, v{b+11}
        v_cvt_pk_bf16_f32 v{b}, v{b}, v{b+1}
        v_cvt_pk_bf16_f32 v{b+1}, v{b+2}, v{b+3}
        ds_write_b16 v{AD}, v{b} offset:{c*TSTR}
        ds_write_b16_d16_hi v{AD+1}, v{b} offset:{c*TSTR}
        ds_write_b16 v{AD+2}, v{b+1} offset:{c*TSTR}
        ds_write_b16_d16_hi v{AD+3}, v{b+1} offset:{c*TSTR}
        """)
    a(f"""
    L_nored:
    v_mov_b32 v{vT}, 0
    v_mov_b32 v{vT+1}, 0
    v_mov_b32 v{vT+2}, 0
    v_mov_b32 v{vT+3}, 0
    v_cmp_eq_u32 vcc, 255, v0
    s_waitcnt lgkmcnt(0)
    s_barrier
    """)
    GE = 96
    CW = 64
    for c in range(2):
        for e in range(9):
            a(f"ds_read_u16 v{GE+10*c+e}, v{EA+e} offset:{c*TSTR}")
    a(f"ds_write_b64 v{vZF}, {vr(vT,2)}\nds_write_b128 v{vZU}, {vr(vT,4)}")
    a(f"s_lshl_b32 s{sT0}, s{sHH}, 1\ns_cmp_lt_u32 s{sWV}, s{sT0}")
    def kwrite(addr, a4, q0, q1, off, off8=0):
        a(f"ds_write_b128 v{addr}, {vr(q0,4)} offset:{off}")
        a(f"ds_write2_b64 v{a4}, {vr(q0,2)}, {vr(q0+2,2)} offset0:{off8} offset1:{off8+1}")
        a(f"ds_write_b128 v{addr}, {vr(q1,4)} offset:{off+KS}")
        a(f"ds_write2_b64 v{a4+1}, {vr(q1,2)}, {vr(q1+2,2)} offset0:{off8} offset1:{off8+1}")
    for c in range(2):
        g = GE + 10 * c
        a(f"s_waitcnt lgkmcnt({11 if c == 0 else 2})")
        for i in range(4): a(f"v_lshl_or_b32 v{CW+8*c+i}, v{g+2*i+1}, 16, v{g+2*i}")
        a(f"s_mov_b64 exec, s[{sC1+0}:{sC1+1}]" if False else "")
        a(f"buffer_store_dwordx4 {vr(CW+8*c,4)}, v{vKS}, {WSR}, s{sT1 if c == 0 else sT2} offen {SC}")
        a(f"v_cndmask_b32 v{g+8}, v{g+8}, 0, vcc")
        for i in range(4): a(f"v_lshl_or_b32 v{CW+8*c+4+i}, v{g+2*i+2}, 16, v{g+2*i+1}")
        a(f"s_cbranch_scc1 L_skw{c}")
        kwrite(vCW, vC4 + 2 * c, CW + 8 * c, CW + 8 * c + 4, c * KSL)
        a(f"L_skw{c}:")
    a(f"s_cmp_eq_u64 s[{sC1}:{sC1+1}], 0\ns_cbranch_scc1 L_haveu")
    vm.drain(); vm.q = ["poll"]
    k.poll(vm, vFU, IN, issued=True)
    a(ul + "\nL_haveu:\ns_waitcnt vmcnt(0)")
    k.flag(Cnt(a, "vmcnt"), sFK)
    st(5)
    UB_ = 80
    for i in range(4):
        b = UR + 4 * i; d = UB_ + 4 * i
        if i == 2: a(f"s_cmp_eq_u32 s{sHH}, 1\ns_cbranch_scc1 L_sku")
        a(f"ds_write_b128 v{vUW}, {vr(b,4)} offset:{U0 + 1024*i}")
        if i == 0: a(f"v_mov_b32 v{d}, 0")
        else: a(f"v_readlane_b32 s{sT0}, v{b-1}, 63")
        for q in range(3): a(f"v_mov_b32 v{d+1+q}, v{b+q}")
        if i: a(f"v_mov_b32 v{d}, s{sT0}")
        a(f"v_mov_b32_dpp v{d}, v{b+3} wave_shr:1 row_mask:0xf bank_mask:0xf")
        a(f"ds_write_b128 v{vUW}, {vr(d,4)} offset:{U1 + 1024*i}")
    a("L_sku:")
    vKA, vUA, vU0, vZ, vXS, vXR, vSG, vPL = 5, 6, 7, 8, 9, 10, 11, 12
    A = 16; KF0, UF0 = 48, 112
    PKR = 176
    STG, SS = 66304, 2112
    sMK = sIDX
    a(f"""
    s_setprio {os.environ.get('SPRIO2', 1)}
    {f"s_cmp_eq_u32 s{sHH}, 0" if os.environ.get('SKP2') else ''}
    {"s_cbranch_scc1 L_skp2" if os.environ.get('SKP2') else ''}
    {f"s_setprio {os.environ.get('SKP2')}" if os.environ.get('SKP2') else ''}
    L_skp2:
    v_mov_b32 v{vPL}, v{vFP}
    v_mov_b32 v32, v{vZL}
    s_lshr_b32 s{sT0}, s{sWV}, 1
    s_lshl_b32 s{sT2}, s{sHH}, 1
    s_add_u32 s{sJB}, s{sT0}, s{sT2}
    s_mul_i32 s{sKB}, s{sJB}, {UB}
    s_and_b32 s{sT1}, s{sWV}, 1
    s_lshl_b32 s{sT2}, s{sT1}, 11
    s_add_u32 s{sT3}, s{sKB}, {UBASE}
    s_add_u32 s{sT4}, s{sT3}, s{sT2}
    v_add_u32 v{vXS}, s{sT4}, v3
    s_add_u32 s{sT3}, s{sT3}, 2048
    s_sub_u32 s{sT3}, s{sT3}, s{sT2}
    v_add_u32 v{vXR}, s{sT3}, v3
    v_bfe_u32 v{vSG}, v2, 1, 3
    v_lshlrev_b32 v{vSG}, 6, v{vSG}
    v_lshrrev_b32 v13, 4, v2
    v_lshl_add_u32 v{vSG}, v13, 4, v{vSG}
    v_and_b32 v13, 1, v2
    v_lshl_add_u32 v{vSG}, v13, 2, v{vSG}
    s_lshl_b32 s{sT4}, s{sT1}, 10
    s_add_u32 s{sT4}, s{sT4}, {STG}
    v_add_u32 v{vSG}, s{sT4}, v{vSG}
    s_xor_b32 s{sFU}, s{sKG}, 1
    s_lshl_b32 s{sFU}, s{sFU}, 13
    s_lshl_b32 s{sT3}, s{sWV}, 11
    s_add_u32 s{sFU}, s{sFU}, s{sT3}
    s_add_u32 s{sFU}, s{sFU}, {WS_KF}
    s_mul_i32 s{sFK}, s{sT0}, {KSL}
    s_add_u32 s{sFK}, s{sFK}, s{sT2}
    s_sub_u32 s{sMK}, s{sT1}, 1
    s_and_b32 s{sT3}, s{sMK}, {0 if os.environ.get('TSB') else 's%d' % sHH}
    s_mul_i32 s{sT4}, s{sT3}, 4096
    s_mul_i32 s{sT3}, s{sT3}, 0x7fff0000
    v_add_u32 v38, s{sT3}, v3
    v_mov_b32 v39, 0x7fff0000
    v_cmp_le_u32 vcc, s{sT4}, v3
    v_cndmask_b32 v39, v39, v3, vcc
    s_mov_b32 s{sPH}, 0
    v_mov_b32 v{vKA}, v{vKL}
    v_add_u32 v{vUA}, s{sKB}, v{vUL}
    v_add_u32 v{vZ}, s{sKB}, v32
    v_max_i32 v{vU0}, v{vZ}, v{vUA}
    s_mov_b32 s{sIT}, 0
    {k.poll_ld(vPL, 14)}
    s_cmp_eq_u32 s{sHH}, 1
    s_waitcnt lgkmcnt(0)
    s_barrier
    """)
    st(7)
    if X == '4': a('s_endpgm')
    a("s_cbranch_scc1 L_cv1pre")
    TS = {0: [4, 5, 6, 7], 1: [0, 1, 2, 3]} if not os.environ.get('TSB') else {0: [2, 5, 6, 7], 1: [0, 1, 3, 4]}
    def loadlist(s, H):
        L = []; K_, U_ = KF0 + 32 * s, UF0 + 32 * s
        for x in range(max(TS[H]) + 1):
            L.append(f"ds_read_b128 {vr(U_+4*x,4)}, v{vU0 if x == 0 else vUA} offset:{512*x}")
            L.append(f"ds_read_b128 {vr(K_+4*x,4)}, v{vKA} offset:{512*(7-x)}")
        return L
    stepL = [f"v_subrev_u32 v{vKA}, 64, v{vKA}", f"v_subrev_u32 v{vUA}, 64, v{vUA}", f"v_max_i32 v{vU0}, v{vZ}, v{vUA}"]
    kl = f"""
    buffer_load_dwordx4 {vr(PKR,4)}, v38, {WSR}, s{sFU} offen {SC}
    buffer_load_dwordx4 {vr(PKR+6,4)}, v39, {WSR}, s{sFU} offen offset:1024 {SC}
    buffer_load_dword v{PKR+11}, off, {WSR}, s{sFU} offset:2048 {SC}
    """
    for H in (0, 1):
        a(f"L_cv{H}pre:")
        if H == 0: pass
        for l in loadlist(0, H) + stepL: a(l)
        for i in range(16): a(f"v_mov_b32 v{A+i}, 0")
        a(f"L_cv{H}:")
        for s_ in range(2):
            L = loadlist(1 - s_, H); nl = len(L)
            K_, U_ = KF0 + 32 * s_, UF0 + 32 * s_
            prs = [(c, mt - c, n) for n, mt in enumerate(TS[H]) for c in range(mt + 1)]
            prs.sort(key=lambda x: (max(x[0], x[1]), x[2]))
            issued = 0; done = -1
            L2 = L + stepL
            st0 = 4 if H == 0 else 0
            for n, (c, m, tn) in enumerate(prs):
                need = max(c, m)
                if need > done:
                    a(f"s_waitcnt lgkmcnt({min(15, nl - 2*(need+1) + min(issued, nl))})"); done = need
                acc = vr(A + 4 * tn, 4)
                a(f"v_mfma_f32_16x16x32_bf16 {acc}, {vr(K_+4*c,4)}, {vr(U_+4*m,4)}, {acc}")
                if n >= st0 and issued < len(L2): a(L2[issued]); issued += 1
            while issued < len(L2): a(L2[issued]); issued += 1
        a(f"""
        s_add_u32 s{sIT}, s{sIT}, 1
        s_cmp_eq_u32 s{sIT}, 2
        s_cbranch_scc1 L_cvdone
        s_cmp_eq_u32 s{sPH}, 1
        s_cbranch_scc1 L_cv{H}
        s_waitcnt vmcnt(0)
        {k.poll_cmp(14)}
        s_mov_b64 s[{sC1}:{sC1+1}], vcc
        s_cmp_eq_u64 vcc, 0
        s_cbranch_scc0 L_late{H}
        {kl}
        s_branch L_cv{H}
        L_late{H}:
        {k.poll_ld(vPL, 14)}
        s_branch L_cv{H}
        """)
    a(f"""
    L_cvdone:
    s_cmp_eq_u32 s{sPH}, 1
    s_cbranch_scc1 L_ph1
    s_cmp_eq_u64 s[{sC1}:{sC1+1}], 0
    s_cbranch_scc1 L_havek
    """)
    vm.drain(); vm.q = ["poll"]
    k.poll(vm, vPL, 14, issued=True)
    a(kl + "L_havek:")
    st(8)
    a("s_waitcnt lgkmcnt(0)\ns_barrier\nL_ph1:")
    a(f"s_mul_i32 s{sT0}, s{sJB}, {SS}\nv_add_u32 v33, s{sT0}, v{vSG}")
    a(f"s_bitcmp1_b32 s{sWV}, 0\ns_cbranch_scc1 L_xodd")
    def exch(keep, send):
        for q in range(2): a(f"ds_write_b128 v{vXS}, {vr(send+4*q,4)} offset:{1024*q}")
        a(f"s_cmp_eq_u32 s{sPH}, 1\ns_cbranch_scc1 L_nok{keep}")
        if keep == A: a(f"s_cmp_eq_u32 s{sHH}, 1\ns_cbranch_scc1 L_nok{keep}")
        a(f"""
        v_add_u32 v13, s{sFK}, v3
        v_add_u32 v14, {2*KS-8}, v13
        v_add_u32 v15, {3*KS-8}, v13
        s_waitcnt vmcnt(0)
        v_and_b32 v{PKR+10}, s{sMK}, v{PKR+11}
        v_readlane_b32 s{sT0}, v{PKR+6}, 0
        v_mov_b32_dpp v{PKR+10}, v{PKR+6} wave_shl:1 row_mask:0xf bank_mask:0xf
        v_mov_b32 v{PKR+4}, s{sT0}
        v_mov_b32_dpp v{PKR+4}, v{PKR} wave_shl:1 row_mask:0xf bank_mask:0xf
        """)
        for i in (1, 0):
            b = PKR + 6 * i
            for q in range(4): a(f"v_alignbit_b32 v{KF0+4*i+q}, v{b+q+1}, v{b+q}, 16")
            kwrite(13, 14, b, KF0 + 4 * i, 1024 * i, 128 * i)
        a(f"L_nok{keep}:\ns_waitcnt lgkmcnt(0)\ns_barrier")
        for q in range(2): a(f"ds_read_b128 {vr(send+4*q,4)}, v{vXR} offset:{1024*q}")
        for q in range(2):
            a(f"s_waitcnt lgkmcnt(1)")
            for i in range(4): a(f"v_add_f32 v{keep+4*q+i}, v{keep+4*q+i}, v{send+4*q+i}")
            a(f"v_cvt_pk_bf16_f32 v{34+2*q}, v{keep+4*q}, v{keep+4*q+1}")
            a(f"v_cvt_pk_bf16_f32 v{35+2*q}, v{keep+4*q+2}, v{keep+4*q+3}")
            a(f"ds_write2_b32 v33, v{34+2*q}, v{35+2*q} offset0:{128*q} offset1:{128*q+2}")
    exch(A, A + 8)
    a("s_branch L_xdone\nL_xodd:")
    exch(A + 8, A)
    a(f"""
    L_xdone:
    s_cmp_eq_u32 s{sPH}, 1
    s_cbranch_scc1 L_cvend
    s_mov_b32 s{sPH}, 1
    s_xor_b32 s{sJB}, s{sJB}, 2
    s_mul_i32 s{sKB}, s{sJB}, {UB}
    """)
    st(9)
    a(f"""
    v_mov_b32 v{vKA}, v{vKL}
    v_add_u32 v{vUA}, s{sKB}, v{vUL}
    v_add_u32 v{vZ}, s{sKB}, v32
    v_max_i32 v{vU0}, v{vZ}, v{vUA}
    s_mov_b32 s{sIT}, 0
    s_cmp_eq_u32 s{sHH}, 1
    s_cbranch_scc1 L_cv1pre
    s_branch L_cv0pre
    L_cvend:
    v_bfe_u32 v10, v2, 2, 2
    v_mul_u32_u24 v10, {SS}, v10
    v_lshrrev_b32 v8, 4, v2
    v_lshl_add_u32 v10, v8, 5, v10
    v_and_b32 v8, 3, v2
    v_lshl_add_u32 v10, v8, 3, v10
    s_lshl_b32 s{sT0}, s{sWV}, 9
    s_add_u32 s{sT0}, s{sT0}, {STG}
    v_add_u32 v10, s{sT0}, v10
    v_mul_u32_u24 v11, 1792, v2
    s_lshl_b32 s{sT2}, s{sHH}, 4
    s_lshl_b32 s{sT3}, s{sWV}, 2
    s_add_u32 s{sT2}, s{sT2}, s{sT3}
    s_lshr_b32 s{sT2}, {sum(t << (4*i) for i, t in enumerate(TS[0] + TS[1]))}, s{sT2}
    s_and_b32 s{sT2}, s{sT2}, 15
    s_mul_i32 s{sT2}, s{sT2}, {256*1792}
    s_lshl_b32 s{sT3}, s{sCG}, 3
    s_add_u32 s{sT2}, s{sT2}, s{sT3}
    s_waitcnt lgkmcnt(0)
    s_barrier
    """)
    st(10)
    if X == '5': a('s_endpgm')
    for it in range(4): a(f"ds_read_b64_tr_b16 {vr(KF0+2*it,2)}, v10 offset:{128*it}")
    for it in range(4):
        a(f"s_waitcnt lgkmcnt({3-it})")
        a(f"buffer_store_dwordx2 {vr(KF0+2*it,2)}, v11, s[{SO}:{SO+3}], s{sT2} offen")
        if it < 3: a(f"s_add_u32 s{sT2}, s{sT2}, {64*1792}")
    a("L_send:")
    st.end(0)
    a("s_endpgm")
    a(f"""
    L_aux:
    s_cmp_ge_u32 s{sIDX}, 5
    s_cbranch_scc1 L_end
    s_cmp_lg_u32 s{sIDX}, 0
    s_cbranch_scc1 L_zkv
    s_cmp_lg_u32 s{sWV}, 0
    s_cbranch_scc1 L_end
    s_memrealtime s[{sN}:{sN+1}]
    s_waitcnt lgkmcnt(0)
    s_or_b32 s{sN}, s{sN}, 1
    v_mov_b32 v8, s{sN}
    v_mov_b32 v9, s{sN+1}
    s_mov_b64 exec, 1
    global_store_dwordx2 v4, v[8:9], s[42:43] {SC}
    s_endpgm
    L_zkv:
    v_mov_b32 v8, 0
    v_mov_b32 v9, 0
    v_mov_b32 v10, 0
    v_mov_b32 v11, 0
    v_lshlrev_b32 v5, 4, v0
    s_lshl_b32 s{sT0}, s{sIDX}, 7
    s_add_u32 s{sT0}, s{sT0}, {F_Z - 128}
    s_lshl_b32 s{sT1}, s{sIDX}, 14
    s_add_u32 s{sT1}, s{sT1}, {WS_KVA - 16384}
    s_waitcnt lgkmcnt(0)
    """)
    srd(a, SWS, 44, 45, WS_SIZE)
    for i in range(4):
        a(f"buffer_store_dwordx4 v[8:11], v5, {WSR}, s{sT1} offen {SC}")
        if i < 3: a(f"s_add_u32 s{sT1}, s{sT1}, 4096")
    vm = Cnt(a, "vmcnt")
    k.init_issue(vm); k.init_check(vm)
    a(f"s_barrier\ns_cmp_lg_u32 s{sWV}, 0\ns_cbranch_scc1 L_send")
    k.flag(vm, sT0)
    a("s_branch L_send")
```

```python
import struct, os
from asmlib import *
from stamp import Stamper

WS_PQ  = 0x000000
WS_KVA = 0x200000
WS_FLG = 0x210000
WS_KF  = 0x300000
WS_UT  = 0x500000
WS_SIZE = 0x700000
F_UT, F_KF, F_Q, F_KV, F_Z = [WS_FLG + 128 * x for x in (0, 896, 1792, 2304, 2432)]
LDS = 81920
LOG2E = 0x3fb8aa3b
INV2PI = 0x3e22f983
def f2u(x): return hex(struct.unpack("<I", struct.pack("<f", x))[0])
EPS = f2u(1e-6)
SC = "sc1"

def cmul(a, d, x, y):
    assert d != x and d != y
    if os.environ.get('PK', '0') == '0':
        a(f"v_mul_f32 v{d}, v{x}, v{y}\nv_mul_f32 v{d+1}, v{x}, v{y+1}\nv_fma_f32 v{d}, -v{x+1}, v{y+1}, v{d}\nv_fmac_f32 v{d+1}, v{x+1}, v{y}")
        return
    a(f"v_pk_mul_f32 {vr(d,2)}, {vr(x,2)}, {vr(y,2)} op_sel:[0,0] op_sel_hi:[0,1]")
    a(f"v_pk_fma_f32 {vr(d,2)}, {vr(x,2)}, {vr(y,2)}, {vr(d,2)} op_sel:[1,1,0] op_sel_hi:[1,0,1] neg_lo:[1,0,0]")
def srd(a, S, lo, hi, n):
    a(f"s_mov_b32 s{S}, s{lo}\ns_mov_b32 s{S+1}, s{hi}\ns_mov_b32 s{S+2}, {n}\ns_mov_b32 s{S+3}, 0x20000")
def weave(main, fill, start=0):
    n, m, j = len(main), len(fill), 0
    for i, f in enumerate(main):
        f()
        tgt = 0 if i < start else min(m, ((i - start + 1) * m + (n - start) - 1) // (n - start))
        while j < tgt: fill[j](); j += 1
    while j < m: fill[j](); j += 1

SWS, SX, SW, SO = 48, 52, 56, 60
sC1 = 64
sN = 46
NV = 190
sWV, sT0, sT1, sT2, sT3, sT4, sA, sB, sC, sD, sE, sF, sG, sH, sI, sJ = range(66, 82)
WSR = f"s[{SWS}:{SWS+3}]"

class K:
    def __init__(self):
        self.a = Asm(); self.nl = 0; self.NV = NV
    def lab(self, p="L"):
        self.nl += 1; return f"{p}_{self.nl}"
    def _spin(self, vm, tag, cmp, ld, post=""):
        a = self.a; L, Lok = self.lab("Lp"), self.lab("Lpo")
        vm.wait(tag)
        one = os.environ.get('ONE', '1') == '1'
        a(f"""{'s_mov_b64 s[16:17], 0' if one else ''}
        {L}:
        {cmp}
        s_cmp_eq_u64 vcc, 0
        s_cbranch_scc1 {Lok}
        s_sub_u32 s15, s15, 1
        s_cbranch_scc1 L_end
        """)
        if one:
            a(f"""
            s_sub_u32 s18, vcc_lo, 1
            s_subb_u32 s19, vcc_hi, 0
            s_andn2_b64 s[18:19], vcc, s[18:19]
            s_cmp_eq_u64 vcc, s[16:17]
            s_mov_b64 s[16:17], vcc
            s_cselect_b64 exec, s[18:19], vcc
            """)
        else: a("s_mov_b64 exec, vcc")
        a(f"""
        s_sleep {os.environ.get('SLP', 1)}
        {ld}
        s_mov_b64 exec, -1
        s_waitcnt vmcnt(0)
        s_branch {L}
        {Lok}:
        s_mov_b64 exec, -1
        {post}""")
    def init_issue(self, vm, t=None): vm.op(f"global_load_dwordx2 {vr(self.NV,2)}, v4, s[42:43] {SC}", "init")
    def init_check(self, vm, t=None):
        self._spin(vm, "init", f"v_cmp_eq_u32 vcc, 0, v{self.NV}", f"global_load_dwordx2 {vr(self.NV,2)}, v4, s[42:43] {SC}",
                   f"v_readfirstlane_b32 s{sN}, v{self.NV}\nv_readfirstlane_b32 s{sN+1}, v{self.NV+1}")
    def poll_ld(self, vaddr, t): return f"buffer_load_dwordx2 {vr(t,2)}, v{vaddr}, {WSR}, 0 offen {SC}"
    def poll_cmp(self, t): return f"v_cmp_ne_u64 vcc, s[{sN}:{sN+1}], {vr(t,2)}"
    def poll_issue(self, vm, vaddr, t): vm.op(self.poll_ld(vaddr, t), "poll")
    def poll(self, vm, vaddr, t, issued=False, tag="poll"):
        if not issued: self.poll_issue(vm, vaddr, t)
        self._spin(vm, tag, self.poll_cmp(t), self.poll_ld(vaddr, t))
    def flag(self, vm, soff, vone=None):
        self.a("s_mov_b64 exec, 1")
        vm.op(f"buffer_store_dwordx2 {vr(self.NV,2)}, off, {WSR}, s{soff} {SC}", "flag")
        self.a("s_mov_b64 exec, -1")

def gen():
    k = K(); a = k.a
    st = Stamper(a, 0, 44, sWV)
    a("s_cmp_ge_u32 s2, 512\ns_cbranch_scc1 L_end")
    st.start()
    a(f"""
    s_load_dwordx16 s[16:31], s[0:1], 0
    s_load_dwordx8 s[32:39], s[0:1], 64
    s_load_dwordx4 s[40:43], s[0:1], 96
    s_load_dwordx2 s[44:45], s[0:1], 112
    v_lshrrev_b32 v1, 6, v0
    v_and_b32 v2, 63, v0
    v_readfirstlane_b32 s{sWV}, v1
    v_lshlrev_b32 v3, 4, v2
    v_mov_b32 v4, 64
    s_mov_b32 s15, 40000
    {'s_xor_b32 s2, s2, 256' if os.environ.get('GFIRST') else ''}
    s_cmp_lt_u32 s2, 256
    s_cbranch_scc1 L_S
    s_sub_u32 s2, s2, 256
    """)
    k.NV = 46
    gen_G(k, st)
    k.NV = NV
    gen_S(k, st)
    a("L_end:\ns_endpgm")
    return a

def gen_G(k, st):
    a = k.a
    if os.environ.get('SKIP_G'): a('s_endpgm')
    sRB, sP, sKX, sFL, sXO, sWO, sXM, sWM, sTY, sAT = sA, sB, sC, sD, sE, sF, sG, sH, sI, sJ
    vXD, vWD, vXA, vWA = 8, 12, 16, 20
    vWO, vFQ, vFK, vWS = 21, 22, 23, 24
    vFT, vEX, vFZ = 26, 5, 6
    vAT = 28
    vT = 36
    GA = 64; XF, WF = 128, 144
    a(f"""
    s_setprio {os.environ.get('GPRIO', 1)}
    """)
    if os.environ.get('XMAP', '4') in '123':
        lo = os.environ['XMAP'] in '13'
        a(f"""
        s_bfe_u32 s{sTY}, s2, 0x10002
        {f's_xor_b32 s{sTY}, s{sTY}, 1' if lo else ''}
        s_and_b32 s{sRB}, s2, 3
        s_lshl_b32 s{sRB}, s{sRB}, 2
        s_lshr_b32 s{sT2}, s2, 6
        s_add_u32 s{sRB}, s{sRB}, s{sT2}
        s_bfe_u32 s{sP}, s2, 0x30003
        """)
    else:
        a(f"""
    s_and_b32 s{sT0}, s2, 7
    s_lshr_b32 s{sT1}, s2, 3
    s_lshr_b32 s{sTY}, s2, 7
    s_lshr_b32 s{sRB}, s{sT0}, 1
    s_lshl_b32 s{sRB}, s{sRB}, 2
    s_bfe_u32 s{sT2}, s{sT1}, 0x20002
    s_add_u32 s{sRB}, s{sRB}, s{sT2}
    s_and_b32 s{sP}, s{sT0}, 1
    s_lshl_b32 s{sP}, s{sP}, 2
    s_and_b32 s{sT3}, s{sT1}, 3
    s_add_u32 s{sP}, s{sP}, s{sT3}
    s_lshl_b32 s{sKX}, s{sT3}, 1
    s_add_u32 s{sKX}, s{sKX}, s{sTY}
    s_mul_i32 s{sT2}, s{sT2}, 3
    s_add_u32 s{sKX}, s{sKX}, s{sT2}
    s_cmp_ge_u32 s{sKX}, 14
    s_cselect_b32 s{sT2}, 14, 0
    s_sub_u32 s{sKX}, s{sKX}, s{sT2}
    s_cmp_ge_u32 s{sKX}, 7
    s_cselect_b32 s{sT2}, 7, 0
    s_sub_u32 s{sKX}, s{sKX}, s{sT2}
        """)
    a(f"""
    {f's_mov_b32 s{sKX}, 0' if not os.environ.get('ROT') else ''}
    s_lshl_b32 s{sXO}, s{sKX}, 7
    s_mul_i32 s{sWO}, s{sKX}, {64*2688}
    v_lshrrev_b32 v{vT+1}, 3, v2
    v_and_b32 v{vT+2}, 7, v2
    v_lshrrev_b32 v{vT+3}, 4, v2
    v_xor_b32 v{vT+6}, v{vT+2}, v{vT+3}
    v_lshlrev_b32 v{vT+6}, 4, v{vT+6}
    v_mul_u32_u24 v{vT+7}, 896, v{vT+1}
    s_lshl_b32 s{sT0}, s{sRB}, 2
    s_add_u32 s{sT0}, s{sT0}, s{sWV}
    s_mul_i32 s{sT0}, s{sT0}, {32*896}
    v_add3_u32 v{vXD}, v{vT+6}, v{vT+7}, s{sT0}
    v_xor_b32 v{vT+6}, 64, v{vT+6}
    v_add3_u32 v{vXD+1}, v{vT+6}, v{vT+7}, s{sT0}
    v_add_u32 v{vXD+1}, {7168-1024}, v{vXD+1}
    v_add_u32 v{vXD+2}, {2*(7168-1024)}, v{vXD}
    v_add_u32 v{vXD+3}, {2*(7168-1024)}, v{vXD+1}
    v_and_b32 v{vT+6}, 1, v{vT+3}
    v_lshlrev_b32 v{vT+6}, 2, v{vT+6}
    v_xor_b32 v{vT+8}, v{vT+6}, v{vT+2}
    v_min_u32 v{vT+6}, 6, v{vT+8}
    v_lshlrev_b32 v{vT+6}, 4, v{vT+6}
    v_mul_u32_u24 v{vT+9}, 2688, v{vT+1}
    s_lshr_b32 s{sT0}, s{sWV}, 1
    s_add_u32 s{sT0}, s{sT0}, 1
    s_mul_i32 s{sT0}, s{sT0}, 896
    s_and_b32 s{sT1}, s{sWV}, 1
    s_mul_i32 s{sT1}, s{sT1}, {32*2688}
    s_add_u32 s{sT0}, s{sT0}, s{sT1}
    s_mul_i32 s{sT1}, s{sWV}, {16*2688}
    s_lshl_b32 s{sXM}, s{sWV}, 12
    s_lshl_b32 s{sT2}, s{sWV}, 11
    s_cmp_eq_u32 s{sTY}, 0
    s_cselect_b32 s{sT0}, s{sT1}, s{sT0}
    s_cselect_b32 s{sWM}, s{sT2}, s{sXM}
    s_add_u32 s{sWM}, s{sWM}, 49152
    s_mul_i32 s{sT1}, s{sP}, 112
    s_add_u32 s{sT0}, s{sT0}, s{sT1}
    v_add3_u32 v{vWD}, v{vT+6}, v{vT+9}, s{sT0}
    v_add_u32 v{vWD+1}, {8*2688-1024}, v{vWD}
    v_add_u32 v{vWD+2}, {2*(8*2688-1024)}, v{vWD}
    v_add_u32 v{vWD+3}, {3*(8*2688-1024)}, v{vWD}
    s_mov_b32 s{SX+2}, {2048*896}
    s_mov_b32 s{SX+3}, 0x20000
    s_mov_b32 s{SW+2}, {448*2688}
    s_mov_b32 s{SW+3}, 0x20000
    s_cmp_eq_u32 s{sTY}, 0
    s_waitcnt lgkmcnt(0)
    s_mov_b32 s{SX}, s34
    s_mov_b32 s{SX+1}, s35
    s_mov_b32 s{SW}, s36
    s_mov_b32 s{SW+1}, s37
    """)
    st(0)
    a("s_cbranch_scc1 L_GQ")
    def setup(kv, vm):
        a(f"""
        v_and_b32 v{vT+6}, 31, v2
        v_lshrrev_b32 v{vT+4}, 5, v2
        v_bfe_u32 v{vT+5}, v2, 1, 3
        v_xor_b32 v{vT+5}, v{vT+5}, v{vT+4}
        v_lshlrev_b32 v{vT+5}, 4, v{vT+5}
        v_lshl_add_u32 v{vT+5}, v{vT+6}, 7, v{vT+5}
        s_lshr_b32 s{sT0}, s{sWV}, 1
        s_lshl_b32 s{sT0}, s{sT0}, 13
        v_add_u32 v{vXA}, s{sT0}, v{vT+5}
        v_xor_b32 v{vXA+1}, 32, v{vXA}
        v_xor_b32 v{vXA+2}, 64, v{vXA}
        v_xor_b32 v{vXA+3}, 96, v{vXA}
        v_bfe_u32 v{vT+5}, v2, 2, 2
        v_lshl_add_u32 v{vT+5}, v{vT+4}, 3, v{vT+5}
        v_lshlrev_b32 v{vT+5}, 7, v{vT+5}
        v_and_b32 v{vT+9}, 3, v2
        v_lshlrev_b32 v{vT+10}, 3, v{vT+9}
        v_bfe_u32 v{vT+11}, v2, 4, 1
        v_lshl_add_u32 v{vT+10}, v{vT+11}, 5, v{vT+10}
        s_and_b32 s{sT0}, s{sWV}, 1
        s_mul_i32 s{sT0}, s{sT0}, 56
        v_add_u32 v{vT+10}, s{sT0}, v{vT+10}
        v_bfe_u32 v{vT+11}, v2, 3, 1
        v_lshlrev_b32 v{vT+11}, 6, v{vT+11}
        v_xor_b32 v{vT+10}, v{vT+10}, v{vT+11}
        v_add_u32 v{vT+5}, v{vT+5}, v{vT+10}
        v_add_u32 v{vWA}, 49152, v{vT+5}
        s_and_b32 s{sT0}, s2, 31
        s_lshl_b32 s{sT0}, s{sT0}, 4
        s_lshl_b32 s{sT1}, s{sWV}, 2
        s_add_u32 s{sT0}, s{sT0}, s{sT1}
        s_lshl_b32 s{sT0}, s{sT0}, 7
        s_add_u32 s{sT0}, s{sT0}, {F_Q}
        v_lshlrev_b32 v{vT+9}, 7, v{vT+9}
        v_add_u32 v{vFQ}, s{sT0}, v{vT+9}
        s_lshl_b32 s{sT0}, s{sWV}, 12
        s_add_u32 s{sT0}, s{sT0}, {F_KV}
        v_lshlrev_b32 v{vFK}, 7, v{vT+6}
        v_add_u32 v{vFK}, s{sT0}, v{vFK}
        v_lshlrev_b32 v{vT+8}, 4, v{vT+8}
        s_mul_i32 s{sT0}, s{sWV}, {112*896}
        s_lshr_b32 s{sT1}, s2, 5
        s_lshl_b32 s{sT1}, s{sT1}, 7
        s_add_u32 s{sT0}, s{sT0}, s{sT1}
        v_add3_u32 v{vWO}, v{vT+8}, v{vT+7}, s{sT0}
        v_add_u32 v{vWS}, s{sXM}, v3
        v_add_u32 v{vWS+1}, s{sWM}, v3
        s_mov_b32 s{sC1}, {LOG2E}
        s_mov_b32 s{sC1+1}, {LOG2E}
        """)
        srd(a, SWS, 44, 45, WS_SIZE)
        srd(a, SO, 40, 41, 2048 * 1792)
        if os.environ.get('TLB'):
            a(f"""
            v_lshlrev_b32 v{vT+10}, {os.environ['TLB']}, v2
            v_mul_u32_u24 v{vT+11}, 57344, v2
            s_lshl_b32 s{sT0}, s{sWV}, {int(os.environ['TLB'])-2}
            """)
            vm.op(f"buffer_load_dword v{vT+10}, v{vT+10}, {WSR}, s{sT0} offen", "tlb")
            vm.op(f"buffer_load_dword v{vT+11}, v{vT+11}, s[{SO}:{SO+3}], 0 offen", "tlb")
            vm.op(f"global_load_dword v{vT+9}, v3, s[38:39]", "tlb")
        if kv:
            a(f"""
            s_mul_i32 s{sT0}, s{sWV}, 20480
            s_add_u32 s{sT0}, s{sT0}, 16384
            v_add_u32 v{vEX}, s{sT0}, v3
            s_and_b32 s{sT0}, s{sWV}, 1
            s_lshr_b32 s{sT1}, s{sWV}, 1
            s_lshl_b32 s{sT1}, s{sT1}, 11
            s_mul_i32 s{sT2}, s{sT0}, 20480
            s_add_u32 s{sT2}, s{sT2}, s{sT1}
            s_add_u32 s{sT2}, s{sT2}, 16384
            s_and_b32 s{sT3}, s{sRB}, 7
            s_lshl_b32 s{sT3}, s{sT3}, 8
            s_add_u32 s{sT3}, s{sT3}, s{sT2}
            v_lshlrev_b32 v{vT+4}, 2, v2
            v_add_u32 v{vAT}, s{sT3}, v{vT+4}
            s_lshl_b32 s{sT0}, s{sT0}, 12
            s_add_u32 s{sT0}, s{sT0}, s{sT1}
            s_lshl_b32 s{sAT}, s{sP}, 13
            s_add_u32 s{sAT}, s{sAT}, s{sT0}
            s_add_u32 s{sAT}, s{sAT}, {WS_KVA}
            s_sub_u32 s{sAT}, s{sAT}, s{sT2}
            s_lshl_b32 s{sFL}, s{sP}, 4
            s_add_u32 s{sFL}, s{sFL}, s{sRB}
            s_lshl_b32 s{sFL}, s{sFL}, 7
            s_add_u32 s{sFL}, s{sFL}, {F_KV}
            """)
            for i in range(1, 8): a(f"v_xor_b32 v{vAT+i}, {i << 8}, v{vAT}")
            a(f"s_lshr_b32 s{sT0}, s{sWV}, 1\ns_lshl_b32 s{sT0}, s{sT0}, 3\ns_and_b32 s{sT1}, s{sRB}, 7\ns_or_b32 s{sT0}, s{sT0}, s{sT1}")
            for i in range(8):
                a(f"s_xor_b32 s{sT1}, s{sT0}, {i}\ns_cmp_ge_u32 s{sT1}, 14\ns_cselect_b32 s{sT1}, 0x7fff0000, 0\nv_add_u32 v{vAT+i}, s{sT1}, v{vAT+i}")
            a(f"v_and_b32 v{vFZ}, 3, v2\nv_lshlrev_b32 v{vFZ}, 7, v{vFZ}\nv_add_u32 v{vFZ}, {F_Z}, v{vFZ}")
        else:
            a(f"""
            s_lshl_b32 s{sT3}, s{sRB}, 1
            s_lshr_b32 s{sT1}, s{sWV}, 1
            s_add_u32 s{sT3}, s{sT3}, s{sT1}
            s_lshl_b32 s{sT3}, s{sT3}, 4
            s_lshl_b32 s{sT1}, s{sP}, 1
            s_add_u32 s{sT1}, s{sT1}, s{sT3}
            s_and_b32 s{sT2}, s{sWV}, 1
            s_add_u32 s{sT1}, s{sT1}, s{sT2}
            s_lshl_b32 s{sFL}, s{sT1}, 7
            s_add_u32 s{sFL}, s{sFL}, {F_Q}
            s_add_u32 s{sT1}, s{sT1}, s{sT3}
            s_lshl_b32 s{sAT}, s{sT1}, 11
            s_add_u32 s{sKX}, s{sAT}, 32768
            """)
        for i in range(32): a(f"v_mov_b32 v{GA+i}, {EPS}")
    def gemm(kv):
        vm, lg = Cnt(a, "vmcnt"), Cnt(a, "lgkmcnt")
        nt = 2 if kv else 1
        nws = 2 if kv else 4
        wsz = 16384 if kv else 8192
        stage = {}
        def ld(kind, c, regs=None):
            n = 4 if kind == "x" else 2 * nt
            vD, S, sO = (vXD, SX, sXO) if kind == "x" else (vWD, SW, sWO)
            step, end = (128, 896) if kind == "x" else (64 * 2688, 448 * 2688)
            if regs is not None: stage[(kind, c)] = regs
            T = []
            for j in range(n):
                def f(j=j):
                    if regs is None:
                        if j == 0: a(f"s_add_u32 m0, s{sXM if kind == 'x' else sWM}, {16384*(c%3) if kind == 'x' else wsz*(c%nws)}")
                        vm.op(f"buffer_load_dwordx4 v{vD+j}, s[{S}:{S+3}], s{sO} offen offset:{1024*j} {os.environ.get('NTG','')} lds", f"{kind}{c}")
                    else:
                        vm.op(f"buffer_load_dwordx4 {vr(regs[1]+4*j,4,regs[0])}, v{vD+j}, s[{S}:{S+3}], s{sO} offen offset:{1024*j} {os.environ.get('NTG','')}", f"{kind}{c}")
                    if j == n - 1: a(f"s_add_u32 s{sO}, s{sO}, {step}\ns_cmp_eq_u32 s{sO}, {end}\ns_cselect_b32 s{sO}, 0, s{sO}")
                T.append(f)
            return T
        def wr(kind, c):
            regs = stage[(kind, c)]
            n = 4 if kind == "x" else 2 * nt
            T = []
            for j in range(n):
                def f(j=j):
                    if j == 0: vm.wait(f"{kind}{c}")
                    off = (16384 * (c % 3) if kind == "x" else wsz * (c % nws)) + 1024 * j
                    lg.op(f"ds_write_b128 v{vWS + (0 if kind == 'x' else 1)}, {vr(regs[1]+4*j,4,regs[0])} offset:{off}", "wr")
                T.append(f)
            return T
        def F(c, ks):
            b = ks & 1
            for n in range(nt):
                for i in range(2):
                    lg.op(f"ds_read_b64_tr_b16 {vr(WF+8*b+4*n+2*i,2)}, v{vWA} offset:{wsz*(c%nws) + ks*2048 + i*512 + n*8192}", f"f{c}{ks}")
            for t in range(2):
                lg.op(f"ds_read_b128 {vr(XF+8*b+4*t,4)}, v{vXA+ks} offset:{16384*(c%3) + 4096*t}", f"f{c}{ks}")
        def M(c, ks, fill=()):
            b = ks & 1
            lg.wait(f"f{c}{ks}")
            T = []
            for n in range(nt):
                for t in range(2):
                    acc = vr(GA + 16 * (n * 2 + t), 16)
                    cin = "0" if (c == 0 and ks == 0 and n == 1) else acc
                    xf, wf = vr(XF + 8 * b + 4 * t, 4), vr(WF + 8 * b + 4 * n, 4)
                    T.append(lambda s=(f"v_mfma_f32_32x32x16_bf16 {acc}, {xf}, {wf}, {cin}" if kv else f"v_mfma_f32_32x32x16_bf16 {acc}, {wf}, {xf}, {cin}"): a(s))
            weave(T, list(fill))
        run = lambda T: [f() for f in T]
        if kv and not os.environ.get('KVREG'):
            for x in (("x", 0), ("w", 0), ("x", 1), ("w", 1)): run(ld(*x))
            R = [("a", 0), ("a", 16), ("a", 32)]
            lds_ = {0: [("w", 2, R[0]), ("x", 2), ("w", 3, R[1])], 1: [("x", 3), ("w", 4, R[2])], 2: [("x", 4), ("w", 5, R[0])],
                    3: [("x", 5), ("w", 6, R[1])], 4: [("x", 6)]}
            wrs = {c: [("w", c + 2)] for c in range(5)}
            if not kv:
                lds_ = {0: [("x", 2), ("w", 2), ("w", 3)], 1: [("x", 3), ("w", 4)], 2: [("x", 4), ("w", 5)], 3: [("x", 5), ("w", 6)], 4: [("x", 6)]}
                wrs = {}
            setup(kv, vm)
            vm.wait(["x0", "w0"]); a("s_barrier")
            st(1)
            F(0, 0); F(0, 1)
            pend = []
            for c in range(7):
                L = sum([ld(*l) for l in lds_.get(c, [])], [])
                if c == 3: L.append(lambda: k.init_issue(vm))
                if c == 5 and kv: L.append(lambda: (k.init_check(vm), vm.op(k.poll_ld(vFZ, vFT), "zp")))
                q = max(1, (len(L) + 2) // 3); w = max(1, (len(pend) + 2) // 3)
                M(c, 0, L[:q] + pend[:w]); F(c, 2)
                M(c, 1, L[q:2*q] + pend[w:2*w]); F(c, 3)
                M(c, 2, L[2*q:] + pend[2*w:])
                if c < 6:
                    dma = [f"{kd}{c+1}" for kd in "xw" if (kd, c + 1) not in stage]
                    if dma and vm.n_after(dma) is not None: vm.wait(dma, "lgkmcnt(0)")
                    else: a("s_waitcnt lgkmcnt(0)")
                    lg.drain()
                    a("s_barrier")
                    F(c + 1, 0)
                    pend = sum([wr(*x) for x in wrs.get(c, [])], [])
                    M(c, 3, pend[:1]); pend = pend[1:]
                    F(c + 1, 1)
                else:
                    lg.wait(f"f{c}3")
                    a("s_barrier")
                    M(c, 3)
            return vm
        if kv:
            RX = [("a", 0), ("a", 16), ("a", 32)]; RW = [("a", 48), ("v", 160), ("v", 176)]
        else:
            RX = [("a", 0), ("a", 16), ("a", 32), ("a", 48)]; RW = [("v", 160), ("v", 168), ("v", 176), ("v", 96)]
        NS = len(RX)
        for c in range(2): run(ld("x", c, RX[c])); run(ld("w", c, RW[c]))
        setup(kv, vm)
        run(wr("x", 0)); run(wr("w", 0))
        run(ld("x", 2, RX[2])); run(ld("w", 2, RW[2]))
        a("s_waitcnt lgkmcnt(0)\ns_barrier"); lg.drain()
        st(1)
        F(0, 0); F(0, 1)
        P = wr("x", 1) + wr("w", 1)
        nxt = 3
        for c in range(7):
            L = []
            while nxt < 7 and nxt - NS <= c:
                L += ld("x", nxt, RX[nxt % NS]) + ld("w", nxt, RW[nxt % NS]); nxt += 1
            if c == 3: L.append(lambda: k.init_issue(vm))
            if c == 5 and kv: L.append(lambda: (k.init_check(vm), vm.op(k.poll_ld(vFZ, vFT), "zp")))
            h = (len(P) + 1) // 2; q = (len(L) + 1) // 2
            M(c, 0, P[:h]); F(c, 2)
            M(c, 1, P[h:] + L[:q//2]); F(c, 3)
            M(c, 2, L[q//2:q])
            if c < 6:
                a("s_waitcnt lgkmcnt(0)\ns_barrier"); lg.drain()
                F(c + 1, 0)
                P = (wr("x", c + 2) + wr("w", c + 2)) if c + 2 < 7 else []
                n0 = len(P) // 4
                M(c, 3, L[q:] + P[:n0]); P = P[n0:]
                F(c + 1, 1)
            else:
                lg.wait(f"f{c}3")
                if kv: a("s_barrier")
                M(c, 3, L[q:])
        return vm
    def phi_t(base, n, dst, pk=True):
        T = []
        for i in range(0, n, 2):
            t = vT + 2 * ((i // 2) & 3)
            x = base + i
            if not pk:
                T.append(lambda t=t, x=x, i=i: a(f"""
                v_mul_f32 v{t}, s{sC1}, v{x}
                v_mul_f32 v{t+1}, s{sC1}, v{x+1}
                v_exp_f32_e64 v{t}, v{t} clamp
                v_exp_f32_e64 v{t+1}, v{t+1} clamp
                v_max_f32 v{x}, {EPS}, v{x}
                v_max_f32 v{x+1}, {EPS}, v{x+1}
                v_add_f32 v{x}, v{x}, v{t}
                v_add_f32 v{x+1}, v{x+1}, v{t+1}
                v_cvt_pk_bf16_f32 v{dst + i//2}, v{x}, v{x+1}
                """))
                continue
            T.append(lambda t=t, x=x, i=i: a(f"""
            v_pk_mul_f32 {vr(t,2)}, {vr(x,2)}, s[{sC1}:{sC1+1}]
            v_max_f32 v{x}, {EPS}, v{x}
            v_exp_f32_e64 v{t}, v{t} clamp
            v_exp_f32_e64 v{t+1}, v{t+1} clamp
            v_max_f32 v{x+1}, {EPS}, v{x+1}
            v_pk_add_f32 {vr(x,2)}, {vr(x,2)}, {vr(t,2)}
            v_cvt_pk_bf16_f32 v{dst + i//2}, v{x}, v{x+1}
            """))
        return T
    def wo_dma(vm):
        T = []
        for i in range(15):
            def f(i=i):
                if i == 0:
                    srd(a, SW, 38, 39, 448 * 896)
                    a(f"s_mul_i32 s{sT1}, s{sWV}, 20480\ns_mov_b32 s{sT0}, 0")
                a(f"s_add_u32 m0, s{sT1}, {1024*i}")
                if i: a(f"s_add_u32 s{sT0}, s{sT0}, 7168")
                vm.op(f"buffer_load_dwordx4 v{vWO}, s[{SW}:{SW+3}], s{sT0} offen lds", "wo")
            T.append(f)
        return T
    PK, PV, KVD = 128, 144, 48
    vm = gemm(True)
    st(3)
    a(f"s_setprio {os.environ.get('GPRIO1', 3)}")
    for f in phi_t(GA, 16, PK, os.environ.get('KVPK')): f()
    for t in range(2):
        for i in range(8):
            a(f"v_cvt_pk_bf16_f32 v{PV+8*t+i}, v{GA+32+16*t+2*i}, v{GA+32+16*t+2*i+1}")
    a(f"s_mov_b32 exec_lo, {1<<28}\ns_mov_b32 exec_hi, {1<<28}")
    for i in range(16): a(f"v_mov_b32 v{PV+i}, 0x3f803f80")
    a("s_mov_b64 exec, -1")
    for u in range(2):
        a(f"v_mfma_f32_32x32x16_bf16 {vr(KVD,16)}, {vr(PK+4*u,4)}, {vr(PV+4*u,4)}, {'0' if u == 0 else vr(KVD,16)}")
    for f in phi_t(GA + 16, 16, PK + 8, os.environ.get('KVPK')): f()
    for u in range(2):
        a(f"v_mfma_f32_32x32x16_bf16 {vr(KVD,16)}, {vr(PK+8+4*u,4)}, {vr(PV+8+4*u,4)}, {vr(KVD,16)}")
    st(4)
    k.poll(vm, vFZ, vFT, issued=True, tag="zp")
    for q in range(4):
        a(f"ds_write_b128 v{vEX}, {vr(KVD+4*q,4)} offset:{1024*q}")
    a("s_waitcnt lgkmcnt(0)\ns_barrier")
    for i in range(8):
        a(f"ds_read2st64_b32 {vr(GA+2*i,2)}, v{vAT+i} offset0:0 offset1:160")
    for i in range(8):
        a(f"s_waitcnt lgkmcnt({7-i})")
        a(f"v_add_f32 v{GA+2*i}, v{GA+2*i}, v{GA+2*i+1}")
        a(f"buffer_atomic_add_f32 v{GA+2*i}, v{vAT+i}, {WSR}, s{sAT} offen sc1")
    st(5)
    vm.drain()
    k.poll_issue(vm, vFQ, vFT)
    W = wo_dma(vm)
    a("s_cmp_ge_u32 s2, 224\ns_cbranch_scc1 L_kvw")
    for f in W[:6]: f()
    a("s_waitcnt vmcnt(7)\nL_kvw:\ns_cbranch_scc0 L_kvw2\ns_waitcnt vmcnt(1)\nL_kvw2:")
    a(f"s_barrier\ns_cmp_lg_u32 s{sWV}, 0\ns_cbranch_scc1 L_kvf")
    k.flag(vm, sFL, 1)
    a("L_kvf:")
    st(6)
    a("s_cmp_ge_u32 s2, 224\ns_cbranch_scc1 L_kvend")
    for f in W[6:]: f()
    a("s_waitcnt vmcnt(9)\ns_branch L_fin3")
    a("L_GQ:")
    if os.environ.get('QPRIO'): a(f"s_setprio {os.environ['QPRIO']}")
    vm = gemm(False)
    st(3)
    a(f"s_setprio {os.environ.get('GPRIO1', 3)}")
    for t in range(2):
        for f in phi_t(GA + 16 * t, 16, PK + 8 * t, False): f()
        for ks in range(2):
            vm.op(f"buffer_store_dwordx4 {vr(PK+8*t+4*ks,4)}, v3, {WSR}, s{sAT if t == 0 else sKX} offen offset:{WS_PQ + 1024*ks} {SC}", "pqs")
    st(4)
    k.init_check(vm, vFT)
    st(5)
    vm.wait("pqs")
    k.flag(vm, sFL, 1)
    a("s_cmp_ge_u32 s2, 224\ns_cbranch_scc1 L_kvend\ns_barrier")
    st(6)
    if os.environ.get('WOEARLY'):
        for f in wo_dma(Cnt(a, "vmcnt")): f()
    a(k.poll_ld(vFQ, vFT) + "\ns_waitcnt vmcnt(0)")
    A1, O, A2, KB, K23, WOFR = 16, 48, 64, 128, 144, 176
    vm = Cnt(a, "vmcnt"); lg = Cnt(a, "lgkmcnt")
    a("L_fin3:")
    a(f"s_setprio {os.environ.get('GPRIO2', 1)}")
    a(f"v_mov_b32 v12, v{vFK}")
    k.poll(vm, vFQ, vFT, issued=True)
    st(7)
    a(f"""
    s_and_b32 s{sT0}, s2, 31
    s_lshl_b32 s{sT0}, s{sT0}, 16
    s_lshl_b32 s{sT1}, s{sWV}, 13
    s_add_u32 s{sT0}, s{sT0}, s{sT1}
    s_add_u32 s{sT1}, s{sT0}, 32768
    s_add_u32 s{sT2}, s{sT0}, 4096
    s_add_u32 s{sT3}, s{sT1}, 4096
    """)
    for hl in range(4):
        for t in range(2):
            for ks in range(2):
                so = [[sT0, sT1], [sT2, sT3]][hl >> 1][t]
                vm.op(f"buffer_load_dwordx4 {ar(16*hl+8*t+4*ks,4)}, v3, {WSR}, s{so} offen offset:{WS_PQ + 2048*(hl&1) + 1024*ks} {SC}", "pq")
    if not os.environ.get('WOEARLY'):
        a(f"s_cmp_lg_u32 s{sTY}, 0\ns_cbranch_scc1 L_havewo")
        for f in wo_dma(Cnt(a, "vmcnt")): f()
        a("L_havewo:")
    k.poll_issue(vm, 12, 8)
    a(f"""
    s_lshl_b32 s{sT0}, s{sWV}, 14
    s_add_u32 s{sT0}, s{sT0}, {WS_KVA}
    s_mul_i32 s{sT1}, s{sWV}, 20480
    v_bfe_u32 v5, v2, 2, 2
    v_lshrrev_b32 v6, 5, v2
    v_lshl_add_u32 v5, v6, 2, v5
    v_lshlrev_b32 v5, 7, v5
    v_and_b32 v7, 1, v2
    v_lshl_add_u32 v5, v7, 5, v5
    v_bfe_u32 v7, v2, 4, 1
    v_lshl_add_u32 v5, v7, 4, v5
    v_bfe_u32 v7, v2, 1, 1
    v_lshl_add_u32 v5, v7, 3, v5
    v_bfe_u32 v7, v2, 3, 1
    v_lshl_add_u32 v5, v7, 6, v5
    v_xor_b32 v15, 64, v5
    v_add_u32 v5, s{sT1}, v5
    v_add_u32 v15, s{sT1}, v15
    s_mov_b32 s{sT2}, {EPS}
    s_mov_b32 s{sC1}, -1
    s_mov_b32 s{sC1+1}, 0
    v_and_b32 v13, 31, v2
    v_mul_u32_u24 v13, 272, v13
    v_lshl_add_u32 v13, v6, 6, v13
    v_add_u32 v13, s{sT1}, v13
    v_lshrrev_b32 v7, 3, v0
    v_and_b32 v14, 7, v0
    v_mul_u32_u24 v10, 272, v7
    v_lshl_add_u32 v10, v14, 5, v10
    v_mul_u32_u24 v11, 1792, v7
    v_lshl_add_u32 v11, v14, 4, v11
    s_and_b32 s{sT3}, s2, 31
    s_mul_i32 s{sT3}, s{sT3}, {64*1792}
    s_lshr_b32 s{sT4}, s2, 5
    s_lshl_b32 s{sT4}, s{sT4}, 7
    s_add_u32 s{sT3}, s{sT3}, s{sT4}
    s_add_u32 s{sT3}, s{sT3}, 896
    s_add_u32 s{sT4}, s{sT3}, {32*1792}
    v_mov_b32 v14, 0x7fff0000
    v_cndmask_b32 v14, v14, v3, s[{sC1}:{sC1+1}]
    """)
    def ldwo(hl):
        for ks in range(2):
            for ct in range(2):
                for i in range(2):
                    lg.op(f"ds_read_b64_tr_b16 {vr(WOFR+8*ks+4*ct+2*i,2)}, v{15 if ct else 5} offset:{128*(28*hl+16*ks+8*i)}", f"wo{hl}")
    k.poll(vm, 12, 8, issued=True)
    vm.drain()
    st(8)
    def kvsrc(hl): return A1 + 16 * hl if hl < 2 else K23 + 16 * (hl - 2)
    def kvb(hl): return KB + 8 * hl if hl < 2 else K23 + 16 * (hl - 2)
    for hl in range(4):
        for q in range(4):
            vm.op(f"buffer_load_dwordx4 {vr(kvsrc(hl)+4*q,4)}, v{14 if q == 3 else 3}, {WSR}, s{sT0} offen offset:{1024*q} {SC}", f"kv{hl}")
        if hl < 3: a(f"s_add_u32 s{sT0}, s{sT0}, 4096")
    ldwo(0)
    a(f"v_add_u32 v12, 40960, v10")
    def cvtkv(hl):
        T = []
        for i in range(8):
            def f(i=i):
                if i == 0: vm.wait(f"kv{hl}")
                a(f"v_cvt_pk_bf16_f32 v{kvb(hl)+i}, v{kvsrc(hl)+2*i}, v{kvsrc(hl)+2*i+1}")
            T.append(f)
        return T
    def s1(u):
        hl, t = u >> 1, u & 1
        A = vr(A1 + 16 * (u & 1), 16)
        return [lambda: a(f"v_mfma_f32_32x32x16_bf16 {A}, {vr(kvb(hl),4)}, {ar(16*hl+8*t,4)}, 0"),
                lambda: a(f"v_mfma_f32_32x32x16_bf16 {A}, {vr(kvb(hl)+4,4)}, {ar(16*hl+8*t+4,4)}, {A}")]
    DN = 6
    def scale(u):
        A = A1 + 16 * (u & 1); Ou = O + 8 * (u & 1)
        L = [f"v_mov_b32 v{DN}, v{A+12}", f"v_mov_b32 v{DN+2}, v{A+12}", f"v_permlane32_swap_b32 v{DN}, v{DN+2}",
             f"v_add_f32 v{DN+2}, s{sT2}, v{DN+2}", f"v_rcp_f32 v{DN+2}, v{DN+2}"]
        for i in range(8):
            L.append(f"v_mul_f32 v{A+2*i}, v{A+2*i}, v{DN+2}")
            L.append(f"v_mul_f32 v{A+2*i+1}, v{A+2*i+1}, v{DN+2}")
            L.append(f"v_cvt_pk_bf16_f32 v{Ou+i}, v{A+2*i}, v{A+2*i+1}")
        L += [f"v_cndmask_b32 v{Ou+6}, 0, v{Ou+6}, s[{sC1}:{sC1+1}]", f"v_cndmask_b32 v{Ou+7}, 0, v{Ou+7}, s[{sC1}:{sC1+1}]"]
        return [lambda s=s: a(s) for s in L]
    def s2(u):
        hl, t = u >> 1, u & 1
        Ou = O + 8 * (u & 1); T = []
        for ks in range(2):
            for ct in range(2):
                acc = vr(A2 + 32 * t + 16 * ct, 16)
                cin = "0" if (hl == 0 and ks == 0) else acc
                def f(s=f"v_mfma_f32_32x32x16_bf16 {acc}, {vr(WOFR+8*ks+4*ct,4)}, {vr(Ou+4*ks,4)}, {cin}", first=(ks == 0 and ct == 0), last=(ks == 1 and ct == 1)):
                    if first and t == 0: lg.wait(f"wo{hl}")
                    a(s)
                    if last and t == 1 and hl < 3: ldwo(hl + 1)
                T.append(f)
        return T
    run = lambda T: [f() for f in T]
    run(cvtkv(0)); run(cvtkv(1))
    run(s1(0)); run(s1(1)); run(scale(0))
    for u in range(8):
        main = s2(u)
        fill = scale(u + 1) if u + 1 < 8 else []
        if u + 2 < 8:
            if u + 2 in (4, 6): run(cvtkv((u + 2) >> 1))
            main = s1(u + 2) + main
        if u == 7:
            fill = [lambda ct=ct, i=i: a(f"ds_write_b128 v13, {vr(A2+16*ct+4*i,4)} offset:{128*ct + 16*i}") for ct in range(2) for i in range(4)]
            weave(main, fill, start=1)
        else:
            weave(main, fill)
    st(9)
    for ct in range(2):
        for i in range(4):
            a(f"ds_write_b128 v13, {vr(A2+32+16*ct+4*i,4)} offset:{32*272 + 128*ct + 16*i}")
    a("s_waitcnt lgkmcnt(0)\ns_barrier")
    st(10)
    R = 64
    for t in range(2):
        for w in range(4):
            for h in range(2):
                a(f"ds_read_b128 {vr(R+32*t+8*w+4*h,4)}, v{10 if w < 2 else 12} offset:{20480*(w&1) + 32*272*t + 16*h}")
    for t in range(2):
        b = R + 32 * t
        a(f"s_waitcnt lgkmcnt({8 if t == 0 else 0})")
        for i in range(8):
            a(f"v_add_f32 v{b+i}, v{b+i}, v{b+8+i}")
            a(f"v_add_f32 v{b+16+i}, v{b+16+i}, v{b+24+i}")
        for i in range(8):
            a(f"v_add_f32 v{b+i}, v{b+i}, v{b+16+i}")
        for i in range(4):
            a(f"v_cvt_pk_bf16_f32 v{b+8+i}, v{b+2*i}, v{b+2*i+1}")
        a(f"buffer_store_dwordx4 {vr(b+8,4)}, v11, s[{SO}:{SO+3}], s{sT3 if t == 0 else sT4} offen {os.environ.get('NTO','')}")
    a("L_kvend:")
    st.end(1)
    a("s_endpgm")

from v6s import gen_S
```

```python
STAMP_OFF = 0x800000
ENABLED = False
DBG = False
SLOTS = [88, 90, 92, 94, 96, 98, 4, 6, 8, 10, 12]
class Stamper:
    def __init__(self, a, kidx, wsreg, wave_sreg):
        self.a, self.k, self.n, self.ws, self.wv = a, kidx, 0, wsreg, wave_sreg
    def start(self):
        if not ENABLED: return
        self.a("s_memrealtime s[84:85]\ns_memtime s[86:87]\ns_mov_b32 s14, s2")
    def __call__(self, i):
        if not ENABLED: return
        r = SLOTS[i]; self.a(f"s_memtime s[{r}:{r+1}]")
    def end(self, role=0):
        if not ENABLED: return
        a = self.a
        if DBG == 2:
            if role == 1:
                a("s_waitcnt vmcnt(0)\ns_memrealtime s[82:83]\ns_sub_u32 s3, s14, 384\ns_cmp_lt_u32 s3, 8\ns_cbranch_scc0 L_end")
                a(f"s_cmp_lg_u32 s{self.wv}, 0\ns_cbranch_scc1 L_end\ns_lshl_b32 s3, s3, 2\nv_mov_b32 v0, s3\ns_waitcnt lgkmcnt(0)\nv_mov_b32 v1, s84\nv_mov_b32 v2, s82\ns_mov_b64 exec, 1")
                a("global_store_dword v0, v1, s[42:43]\nglobal_store_dword v0, v2, s[42:43] offset:32")
            return
        if DBG:
            a("s_waitcnt vmcnt(0)\ns_memtime s[100:101]\ns_memrealtime s[82:83]\ns_waitcnt lgkmcnt(0)")
            a("s_not_b32 s3, s84\ns_mov_b64 exec, 1\nv_mov_b32 v0, 0")
            items = [(0, "s82"), (1, "s3"), (2, "s84")]
            for w, r in items:
                a(f"v_mov_b32 v1, {r}\nglobal_atomic_umax v0, v1, s[42:43] offset:{4*w} sc1")
            sel = [(3, 1), (4, 7), (5, 9), (6, -1)] if role == 0 else [(7, 0), (8, 1), (9, 3), (10, 5), (11, 6), (12, 8), (13, 9), (14, -1)]
            for w, i in sel:
                r = SLOTS[i] if i >= 0 else 100
                a(f"s_sub_u32 s3, s{r}, s86\nv_mov_b32 v1, s3\nglobal_atomic_umax v0, v1, s[42:43] offset:{4*w} sc1")
            return
        a("s_waitcnt vmcnt(0)\ns_memtime s[100:101]\ns_memrealtime s[82:83]\ns_waitcnt lgkmcnt(0)")
        a(f"s_lshl_b32 s3, s14, 2\ns_add_u32 s3, s3, s{self.wv}\ns_lshl_b32 s3, s3, 7\ns_add_u32 s3, s3, {STAMP_OFF + self.k*0x40000}")
        a("v_mov_b32 v0, s3")
        vals = [84, 82, 86] + SLOTS + [100]
        for j, s in enumerate(vals):
            a(f"v_mov_b32 v1, s{s}")
            a(f"global_store_dword v0, v1, s[{self.ws}:{self.ws+1}] offset:{4*j}")
        a("s_getreg_b32 s3, hwreg(HW_REG_XCC_ID)\nv_mov_b32 v1, s3")
        a(f"global_store_dword v0, v1, s[{self.ws}:{self.ws+1}] offset:64")
        a("s_getreg_b32 s3, hwreg(HW_REG_HW_ID)\nv_mov_b32 v1, s3")
        a(f"global_store_dword v0, v1, s[{self.ws}:{self.ws+1}] offset:68")
```

```python
import struct, os
from asmlib import *
from stamp import Stamper

WS_PQ  = 0x000000
WS_KVA = 0x200000
WS_FLG = 0x210000
WS_KF  = 0x300000
WS_UT  = 0x500000
WS_SIZE = 0x700000
F_UT, F_KF, F_Q, F_KV, F_Z, F_L = [WS_FLG + 128 * x for x in (0, 896, 1792, 2304, 2432, 2560)]
LDS = 81920
LOG2E = 0x3fb8aa3b
INV2PI = 0x3e22f983
def f2u(x): return hex(struct.unpack("<I", struct.pack("<f", x))[0])
EPS = f2u(1e-6)
SC = "sc1"

def cmul(a, d, x, y):
    assert d != x and d != y
    if os.environ.get('PK', '0') == '0':
        a(f"v_mul_f32 v{d}, v{x}, v{y}\nv_mul_f32 v{d+1}, v{x}, v{y+1}\nv_fma_f32 v{d}, -v{x+1}, v{y+1}, v{d}\nv_fmac_f32 v{d+1}, v{x+1}, v{y}")
        return
    a(f"v_pk_mul_f32 {vr(d,2)}, {vr(x,2)}, {vr(y,2)} op_sel:[0,0] op_sel_hi:[0,1]")
    a(f"v_pk_fma_f32 {vr(d,2)}, {vr(x,2)}, {vr(y,2)}, {vr(d,2)} op_sel:[1,1,0] op_sel_hi:[1,0,1] neg_lo:[1,0,0]")
def srd(a, S, lo, hi, n):
    a(f"s_mov_b32 s{S}, s{lo}\ns_mov_b32 s{S+1}, s{hi}\ns_mov_b32 s{S+2}, {n}\ns_mov_b32 s{S+3}, 0x20000")
def weave(main, fill, start=0):
    n, m, j = len(main), len(fill), 0
    for i, f in enumerate(main):
        f()
        tgt = 0 if i < start else min(m, ((i - start + 1) * m + (n - start) - 1) // (n - start))
        while j < tgt: fill[j](); j += 1
    while j < m: fill[j](); j += 1

SWS, SX, SW, SO = 48, 52, 56, 60
sC1 = 64
sN = 46
NV = 190
sWV, sT0, sT1, sT2, sT3, sT4, sA, sB, sC, sD, sE, sF, sG, sH, sI, sJ = range(66, 82)
WSR = f"s[{SWS}:{SWS+3}]"

class K:
    def __init__(self):
        self.a = Asm(); self.nl = 0; self.NV = NV
    def lab(self, p="L"):
        self.nl += 1; return f"{p}_{self.nl}"
    def _spin(self, vm, tag, cmp, ld, post="", slp=None):
        a = self.a; L, Lok = self.lab("Lp"), self.lab("Lpo")
        vm.wait(tag)
        one = os.environ.get('ONE', '1') == '1'
        a(f"""{'s_mov_b64 s[16:17], 0' if one else ''}
        {L}:
        {cmp}
        s_cmp_eq_u64 vcc, 0
        s_cbranch_scc1 {Lok}
        s_sub_u32 s15, s15, 1
        s_cbranch_scc1 L_end
        """)
        if one:
            a(f"""
            s_sub_u32 s18, vcc_lo, 1
            s_subb_u32 s19, vcc_hi, 0
            s_andn2_b64 s[18:19], vcc, s[18:19]
            s_cmp_eq_u64 vcc, s[16:17]
            s_mov_b64 s[16:17], vcc
            s_cselect_b64 exec, s[18:19], vcc
            """)
        else: a("s_mov_b64 exec, vcc")
        a(f"""
        s_sleep {slp or os.environ.get('SLP', 1)}
        {ld}
        s_mov_b64 exec, -1
        s_waitcnt vmcnt(0)
        s_branch {L}
        {Lok}:
        s_mov_b64 exec, -1
        {post}""")
    def init_issue(self, vm, t=None): vm.op(f"global_load_dwordx2 {vr(self.NV,2)}, v4, s[42:43] {SC}", "init")
    def init_check(self, vm, t=None):
        self._spin(vm, "init", f"v_cmp_eq_u32 vcc, 0, v{self.NV}", f"global_load_dwordx2 {vr(self.NV,2)}, v4, s[42:43] {SC}",
                   f"v_readfirstlane_b32 s{sN}, v{self.NV}\nv_readfirstlane_b32 s{sN+1}, v{self.NV+1}")
    def poll_ld(self, vaddr, t): return f"buffer_load_dwordx2 {vr(t,2)}, v{vaddr}, {WSR}, 0 offen {SC}"
    def poll_cmp(self, t): return f"v_cmp_ne_u64 vcc, s[{sN}:{sN+1}], {vr(t,2)}"
    def poll_issue(self, vm, vaddr, t): vm.op(self.poll_ld(vaddr, t), "poll")
    def poll(self, vm, vaddr, t, issued=False, tag="poll", slp=None):
        if not issued: self.poll_issue(vm, vaddr, t)
        self._spin(vm, tag, self.poll_cmp(t), self.poll_ld(vaddr, t), slp=slp)
    def flag(self, vm, soff, vone=None):
        self.a("s_mov_b64 exec, 1")
        vm.op(f"buffer_store_dwordx2 {vr(self.NV,2)}, off, {WSR}, s{soff} {SC}", "flag")
        self.a("s_mov_b64 exec, -1")

def gen():
    k = K(); a = k.a
    st = Stamper(a, 0, 44, sWV)
    a("s_cmp_ge_u32 s2, 512\ns_cbranch_scc1 L_end")
    st.start()
    a(f"""
    s_load_dwordx16 s[16:31], s[0:1], 0
    s_load_dwordx8 s[32:39], s[0:1], 64
    s_load_dwordx4 s[40:43], s[0:1], 96
    s_load_dwordx2 s[44:45], s[0:1], 112
    v_lshrrev_b32 v1, 6, v0
    v_and_b32 v2, 63, v0
    v_readfirstlane_b32 s{sWV}, v1
    v_lshlrev_b32 v3, 4, v2
    v_mov_b32 v4, 64
    s_mov_b32 s15, 40000
    {'s_xor_b32 s2, s2, 256' if os.environ.get('GFIRST') else ''}
    s_cmp_lt_u32 s2, 256
    s_cbranch_scc1 L_S
    s_sub_u32 s2, s2, 256
    """)
    k.NV = 46
    gen_G(k, st)
    k.NV = NV
    gen_S(k, st)
    a("L_end:\ns_endpgm")
    return a

def gen_G(k, st):
    a = k.a
    if os.environ.get('SKIP_G'): a('s_endpgm')
    sRB, sP, sKX, sFL, sXO, sWO, sXM, sWM, sTY, sAT = sA, sB, sC, sD, sE, sF, sG, sH, sI, sJ
    vXD, vWD, vXA, vWA = 8, 12, 16, 20
    vWO, vFQ, vFK, vWS = 21, 22, 23, 24
    vFT, vEX, vFZ = 26, 5, 6
    vAT = 28
    vT = 36
    GA = 64; XF, WF = 128, 144
    a(f"""
    s_setprio {os.environ.get('GPRIO', 1)}
    """)
    if os.environ.get('XMAP', '4') in '123':
        lo = os.environ['XMAP'] in '13'
        a(f"""
        s_bfe_u32 s{sTY}, s2, 0x10002
        {f's_xor_b32 s{sTY}, s{sTY}, 1' if lo else ''}
        s_and_b32 s{sRB}, s2, 3
        s_lshl_b32 s{sRB}, s{sRB}, 2
        s_lshr_b32 s{sT2}, s2, 6
        s_add_u32 s{sRB}, s{sRB}, s{sT2}
        s_bfe_u32 s{sP}, s2, 0x30003
        """)
    else:
        a(f"""
    s_and_b32 s{sT0}, s2, 7
    s_lshr_b32 s{sT1}, s2, 3
    s_lshr_b32 s{sTY}, s2, 7
    s_lshr_b32 s{sRB}, s{sT0}, 1
    s_lshl_b32 s{sRB}, s{sRB}, 2
    s_bfe_u32 s{sT2}, s{sT1}, 0x20002
    s_add_u32 s{sRB}, s{sRB}, s{sT2}
    s_and_b32 s{sP}, s{sT0}, 1
    s_lshl_b32 s{sP}, s{sP}, 2
    s_and_b32 s{sT3}, s{sT1}, 3
    s_add_u32 s{sP}, s{sP}, s{sT3}
    s_lshl_b32 s{sKX}, s{sT3}, 1
    s_add_u32 s{sKX}, s{sKX}, s{sTY}
    s_mul_i32 s{sT2}, s{sT2}, 3
    s_add_u32 s{sKX}, s{sKX}, s{sT2}
    s_cmp_ge_u32 s{sKX}, 14
    s_cselect_b32 s{sT2}, 14, 0
    s_sub_u32 s{sKX}, s{sKX}, s{sT2}
    s_cmp_ge_u32 s{sKX}, 7
    s_cselect_b32 s{sT2}, 7, 0
    s_sub_u32 s{sKX}, s{sKX}, s{sT2}
        """)
    a(f"""
    {f's_mov_b32 s{sKX}, 0' if not os.environ.get('ROT') else ''}
    s_lshl_b32 s{sXO}, s{sKX}, 7
    s_mul_i32 s{sWO}, s{sKX}, {64*2688}
    v_lshrrev_b32 v{vT+1}, 3, v2
    v_and_b32 v{vT+2}, 7, v2
    v_lshrrev_b32 v{vT+3}, 4, v2
    v_xor_b32 v{vT+6}, v{vT+2}, v{vT+3}
    v_lshlrev_b32 v{vT+6}, 4, v{vT+6}
    v_mul_u32_u24 v{vT+7}, 896, v{vT+1}
    s_lshl_b32 s{sT0}, s{sRB}, 2
    s_add_u32 s{sT0}, s{sT0}, s{sWV}
    s_mul_i32 s{sT0}, s{sT0}, {32*896}
    v_add3_u32 v{vXD}, v{vT+6}, v{vT+7}, s{sT0}
    v_xor_b32 v{vT+6}, 64, v{vT+6}
    v_add3_u32 v{vXD+1}, v{vT+6}, v{vT+7}, s{sT0}
    v_add_u32 v{vXD+1}, {7168-1024}, v{vXD+1}
    v_add_u32 v{vXD+2}, {2*(7168-1024)}, v{vXD}
    v_add_u32 v{vXD+3}, {2*(7168-1024)}, v{vXD+1}
    v_and_b32 v{vT+6}, 1, v{vT+3}
    v_lshlrev_b32 v{vT+6}, 2, v{vT+6}
    v_xor_b32 v{vT+8}, v{vT+6}, v{vT+2}
    v_min_u32 v{vT+6}, 6, v{vT+8}
    v_lshlrev_b32 v{vT+6}, 4, v{vT+6}
    v_mul_u32_u24 v{vT+9}, 2688, v{vT+1}
    s_lshr_b32 s{sT0}, s{sWV}, 1
    s_add_u32 s{sT0}, s{sT0}, 1
    s_mul_i32 s{sT0}, s{sT0}, 896
    s_and_b32 s{sT1}, s{sWV}, 1
    s_mul_i32 s{sT1}, s{sT1}, {32*2688}
    s_add_u32 s{sT0}, s{sT0}, s{sT1}
    s_mul_i32 s{sT1}, s{sWV}, {16*2688}
    s_lshl_b32 s{sXM}, s{sWV}, 12
    s_lshl_b32 s{sT2}, s{sWV}, 11
    s_cmp_eq_u32 s{sTY}, 0
    s_cselect_b32 s{sT0}, s{sT1}, s{sT0}
    s_cselect_b32 s{sWM}, s{sT2}, s{sXM}
    s_add_u32 s{sWM}, s{sWM}, 49152
    s_mul_i32 s{sT1}, s{sP}, 112
    s_add_u32 s{sT0}, s{sT0}, s{sT1}
    v_add3_u32 v{vWD}, v{vT+6}, v{vT+9}, s{sT0}
    v_add_u32 v{vWD+1}, {8*2688-1024}, v{vWD}
    v_add_u32 v{vWD+2}, {2*(8*2688-1024)}, v{vWD}
    v_add_u32 v{vWD+3}, {3*(8*2688-1024)}, v{vWD}
    s_mov_b32 s{SX+2}, {2048*896}
    s_mov_b32 s{SX+3}, 0x20000
    s_mov_b32 s{SW+2}, {448*2688}
    s_mov_b32 s{SW+3}, 0x20000
    s_cmp_eq_u32 s{sTY}, 0
    s_waitcnt lgkmcnt(0)
    s_mov_b32 s{SX}, s34
    s_mov_b32 s{SX+1}, s35
    s_mov_b32 s{SW}, s36
    s_mov_b32 s{SW+1}, s37
    """)
    st(0)
    a("s_cbranch_scc1 L_GQ")
    def setup(kv, vm):
        a(f"""
        v_and_b32 v{vT+6}, 31, v2
        v_lshrrev_b32 v{vT+4}, 5, v2
        v_bfe_u32 v{vT+5}, v2, 1, 3
        v_xor_b32 v{vT+5}, v{vT+5}, v{vT+4}
        v_lshlrev_b32 v{vT+5}, 4, v{vT+5}
        v_lshl_add_u32 v{vT+5}, v{vT+6}, 7, v{vT+5}
        s_lshr_b32 s{sT0}, s{sWV}, 1
        s_lshl_b32 s{sT0}, s{sT0}, 13
        v_add_u32 v{vXA}, s{sT0}, v{vT+5}
        v_xor_b32 v{vXA+1}, 32, v{vXA}
        v_xor_b32 v{vXA+2}, 64, v{vXA}
        v_xor_b32 v{vXA+3}, 96, v{vXA}
        v_bfe_u32 v{vT+5}, v2, 2, 2
        v_lshl_add_u32 v{vT+5}, v{vT+4}, 3, v{vT+5}
        v_lshlrev_b32 v{vT+5}, 7, v{vT+5}
        v_and_b32 v{vT+9}, 3, v2
        v_lshlrev_b32 v{vT+10}, 3, v{vT+9}
        v_bfe_u32 v{vT+11}, v2, 4, 1
        v_lshl_add_u32 v{vT+10}, v{vT+11}, 5, v{vT+10}
        s_and_b32 s{sT0}, s{sWV}, 1
        s_mul_i32 s{sT0}, s{sT0}, 56
        v_add_u32 v{vT+10}, s{sT0}, v{vT+10}
        v_bfe_u32 v{vT+11}, v2, 3, 1
        v_lshlrev_b32 v{vT+11}, 6, v{vT+11}
        v_xor_b32 v{vT+10}, v{vT+10}, v{vT+11}
        v_add_u32 v{vT+5}, v{vT+5}, v{vT+10}
        v_add_u32 v{vWA}, 49152, v{vT+5}
        s_and_b32 s{sT0}, s2, 31
        s_lshl_b32 s{sT0}, s{sT0}, 4
        s_lshl_b32 s{sT1}, s{sWV}, 2
        s_add_u32 s{sT0}, s{sT0}, s{sT1}
        s_lshl_b32 s{sT0}, s{sT0}, 7
        s_add_u32 s{sT0}, s{sT0}, {F_Q}
        v_lshlrev_b32 v{vT+9}, 7, v{vT+9}
        v_add_u32 v{vFQ}, s{sT0}, v{vT+9}
        s_lshl_b32 s{sT0}, s{sWV}, 12
        s_add_u32 s{sT0}, s{sT0}, {F_KV}
        v_lshlrev_b32 v{vFK}, 7, v{vT+6}
        v_add_u32 v{vFK}, s{sT0}, v{vFK}
        v_lshlrev_b32 v{vT+8}, 4, v{vT+8}
        s_mul_i32 s{sT0}, s{sWV}, {112*896}
        s_lshr_b32 s{sT1}, s2, 5
        s_lshl_b32 s{sT1}, s{sT1}, 7
        s_add_u32 s{sT0}, s{sT0}, s{sT1}
        v_add3_u32 v{vWO}, v{vT+8}, v{vT+7}, s{sT0}
        v_add_u32 v{vWS}, s{sXM}, v3
        v_add_u32 v{vWS+1}, s{sWM}, v3
        s_mov_b32 s{sC1}, {LOG2E}
        s_mov_b32 s{sC1+1}, {LOG2E}
        """)
        srd(a, SWS, 44, 45, WS_SIZE)
        srd(a, SO, 40, 41, 2048 * 1792)
        if os.environ.get('TLB'):
            a(f"""
            v_lshlrev_b32 v{vT+10}, {os.environ['TLB']}, v2
            v_mul_u32_u24 v{vT+11}, 57344, v2
            s_lshl_b32 s{sT0}, s{sWV}, {int(os.environ['TLB'])-2}
            """)
            vm.op(f"buffer_load_dword v{vT+10}, v{vT+10}, {WSR}, s{sT0} offen", "tlb")
            vm.op(f"buffer_load_dword v{vT+11}, v{vT+11}, s[{SO}:{SO+3}], 0 offen", "tlb")
            vm.op(f"global_load_dword v{vT+9}, v3, s[38:39]", "tlb")
        if kv:
            a(f"""
            s_mul_i32 s{sT0}, s{sWV}, 20480
            s_add_u32 s{sT0}, s{sT0}, 16384
            v_add_u32 v{vEX}, s{sT0}, v3
            s_and_b32 s{sT0}, s{sWV}, 1
            s_lshr_b32 s{sT1}, s{sWV}, 1
            s_lshl_b32 s{sT1}, s{sT1}, 11
            s_mul_i32 s{sT2}, s{sT0}, 20480
            s_add_u32 s{sT2}, s{sT2}, s{sT1}
            s_add_u32 s{sT2}, s{sT2}, 16384
            s_and_b32 s{sT3}, s{sRB}, 7
            s_lshl_b32 s{sT3}, s{sT3}, 8
            s_add_u32 s{sT3}, s{sT3}, s{sT2}
            v_lshlrev_b32 v{vT+4}, 2, v2
            v_add_u32 v{vAT}, s{sT3}, v{vT+4}
            s_lshl_b32 s{sT0}, s{sT0}, 12
            s_add_u32 s{sT0}, s{sT0}, s{sT1}
            s_lshl_b32 s{sAT}, s{sP}, 13
            s_add_u32 s{sAT}, s{sAT}, s{sT0}
            s_add_u32 s{sAT}, s{sAT}, {WS_KVA}
            s_sub_u32 s{sAT}, s{sAT}, s{sT2}
            s_lshl_b32 s{sFL}, s{sP}, 4
            s_add_u32 s{sFL}, s{sFL}, s{sRB}
            s_lshl_b32 s{sFL}, s{sFL}, 7
            s_add_u32 s{sFL}, s{sFL}, {F_KV}
            """)
            for i in range(1, 8): a(f"v_xor_b32 v{vAT+i}, {i << 8}, v{vAT}")
            a(f"s_lshr_b32 s{sT0}, s{sWV}, 1\ns_lshl_b32 s{sT0}, s{sT0}, 3\ns_and_b32 s{sT1}, s{sRB}, 7\ns_or_b32 s{sT0}, s{sT0}, s{sT1}")
            for i in range(8):
                a(f"s_xor_b32 s{sT1}, s{sT0}, {i}\ns_cmp_ge_u32 s{sT1}, 14\ns_cselect_b32 s{sT1}, 0x7fff0000, 0\nv_add_u32 v{vAT+i}, s{sT1}, v{vAT+i}")
            a(f"v_and_b32 v{vFZ}, 3, v2\nv_lshlrev_b32 v{vFZ}, 7, v{vFZ}\nv_add_u32 v{vFZ}, {F_Z}, v{vFZ}")
        else:
            a(f"""
            s_lshl_b32 s{sT3}, s{sRB}, 1
            s_lshr_b32 s{sT1}, s{sWV}, 1
            s_add_u32 s{sT3}, s{sT3}, s{sT1}
            s_lshl_b32 s{sT3}, s{sT3}, 4
            s_lshl_b32 s{sT1}, s{sP}, 1
            s_add_u32 s{sT1}, s{sT1}, s{sT3}
            s_and_b32 s{sT2}, s{sWV}, 1
            s_add_u32 s{sT1}, s{sT1}, s{sT2}
            s_lshl_b32 s{sFL}, s{sT1}, 7
            s_add_u32 s{sFL}, s{sFL}, {F_Q}
            s_add_u32 s{sT1}, s{sT1}, s{sT3}
            s_lshl_b32 s{sAT}, s{sT1}, 11
            s_add_u32 s{sKX}, s{sAT}, 32768
            """)
        for i in range(32): a(f"v_mov_b32 v{GA+i}, {EPS}")
    def gemm(kv):
        vm, lg = Cnt(a, "vmcnt"), Cnt(a, "lgkmcnt")
        nt = 2 if kv else 1
        nws = 2 if kv else 4
        wsz = 16384 if kv else 8192
        stage = {}
        def ld(kind, c, regs=None):
            n = 4 if kind == "x" else 2 * nt
            vD, S, sO = (vXD, SX, sXO) if kind == "x" else (vWD, SW, sWO)
            step, end = (128, 896) if kind == "x" else (64 * 2688, 448 * 2688)
            if regs is not None: stage[(kind, c)] = regs
            T = []
            for j in range(n):
                def f(j=j):
                    if regs is None:
                        if j == 0: a(f"s_add_u32 m0, s{sXM if kind == 'x' else sWM}, {16384*(c%3) if kind == 'x' else wsz*(c%nws)}")
                        vm.op(f"buffer_load_dwordx4 v{vD+j}, s[{S}:{S+3}], s{sO} offen offset:{1024*j} {os.environ.get('NTG','')} lds", f"{kind}{c}")
                    else:
                        vm.op(f"buffer_load_dwordx4 {vr(regs[1]+4*j,4,regs[0])}, v{vD+j}, s[{S}:{S+3}], s{sO} offen offset:{1024*j} {os.environ.get('NTG','')}", f"{kind}{c}")
                    if j == n - 1: a(f"s_add_u32 s{sO}, s{sO}, {step}\ns_cmp_eq_u32 s{sO}, {end}\ns_cselect_b32 s{sO}, 0, s{sO}")
                T.append(f)
            return T
        def wr(kind, c):
            regs = stage[(kind, c)]
            n = 4 if kind == "x" else 2 * nt
            T = []
            for j in range(n):
                def f(j=j):
                    if j == 0: vm.wait(f"{kind}{c}")
                    off = (16384 * (c % 3) if kind == "x" else wsz * (c % nws)) + 1024 * j
                    lg.op(f"ds_write_b128 v{vWS + (0 if kind == 'x' else 1)}, {vr(regs[1]+4*j,4,regs[0])} offset:{off}", "wr")
                T.append(f)
            return T
        def F(c, ks):
            b = ks & 1
            for n in range(nt):
                for i in range(2):
                    lg.op(f"ds_read_b64_tr_b16 {vr(WF+8*b+4*n+2*i,2)}, v{vWA} offset:{wsz*(c%nws) + ks*2048 + i*512 + n*8192}", f"f{c}{ks}")
            for t in range(2):
                lg.op(f"ds_read_b128 {vr(XF+8*b+4*t,4)}, v{vXA+ks} offset:{16384*(c%3) + 4096*t}", f"f{c}{ks}")
        def M(c, ks, fill=()):
            b = ks & 1
            lg.wait(f"f{c}{ks}")
            T = []
            for n in range(nt):
                for t in range(2):
                    acc = vr(GA + 16 * (n * 2 + t), 16)
                    cin = "0" if (c == 0 and ks == 0 and n == 1) else acc
                    xf, wf = vr(XF + 8 * b + 4 * t, 4), vr(WF + 8 * b + 4 * n, 4)
                    T.append(lambda s=(f"v_mfma_f32_32x32x16_bf16 {acc}, {xf}, {wf}, {cin}" if kv else f"v_mfma_f32_32x32x16_bf16 {acc}, {wf}, {xf}, {cin}"): a(s))
            weave(T, list(fill))
        run = lambda T: [f() for f in T]
        if kv and not os.environ.get('KVREG'):
            for x in (("x", 0), ("w", 0), ("x", 1), ("w", 1)): run(ld(*x))
            R = [("a", 0), ("a", 16), ("a", 32)]
            lds_ = {0: [("w", 2, R[0]), ("x", 2), ("w", 3, R[1])], 1: [("x", 3), ("w", 4, R[2])], 2: [("x", 4), ("w", 5, R[0])],
                    3: [("x", 5), ("w", 6, R[1])], 4: [("x", 6)]}
            wrs = {c: [("w", c + 2)] for c in range(5)}
            if not kv:
                lds_ = {0: [("x", 2), ("w", 2), ("w", 3)], 1: [("x", 3), ("w", 4)], 2: [("x", 4), ("w", 5)], 3: [("x", 5), ("w", 6)], 4: [("x", 6)]}
                wrs = {}
            setup(kv, vm)
            vm.wait(["x0", "w0"]); a("s_barrier")
            st(1)
            F(0, 0); F(0, 1)
            pend = []
            for c in range(7):
                L = sum([ld(*l) for l in lds_.get(c, [])], [])
                if c == 3: L.append(lambda: k.init_issue(vm))
                if c == 5 and kv: L.append(lambda: (k.init_check(vm), vm.op(k.poll_ld(vFZ, vFT), "zp")))
                q = max(1, (len(L) + 2) // 3); w = max(1, (len(pend) + 2) // 3)
                M(c, 0, L[:q] + pend[:w]); F(c, 2)
                M(c, 1, L[q:2*q] + pend[w:2*w]); F(c, 3)
                M(c, 2, L[2*q:] + pend[2*w:])
                if c < 6:
                    dma = [f"{kd}{c+1}" for kd in "xw" if (kd, c + 1) not in stage]
                    if dma and vm.n_after(dma) is not None: vm.wait(dma, "lgkmcnt(0)")
                    else: a("s_waitcnt lgkmcnt(0)")
                    lg.drain()
                    a("s_barrier")
                    F(c + 1, 0)
                    pend = sum([wr(*x) for x in wrs.get(c, [])], [])
                    M(c, 3, pend[:1]); pend = pend[1:]
                    F(c + 1, 1)
                else:
                    lg.wait(f"f{c}3")
                    a("s_barrier")
                    M(c, 3)
            return vm
        if kv:
            RX = [("a", 0), ("a", 16), ("a", 32)]; RW = [("a", 48), ("v", 160), ("v", 176)]
        else:
            RX = [("a", 0), ("a", 16), ("a", 32), ("a", 48)]; RW = [("v", 160), ("v", 168), ("v", 176), ("v", 96)]
        NS = len(RX)
        for c in range(2): run(ld("x", c, RX[c])); run(ld("w", c, RW[c]))
        setup(kv, vm)
        run(wr("x", 0)); run(wr("w", 0))
        run(ld("x", 2, RX[2])); run(ld("w", 2, RW[2]))
        a("s_waitcnt lgkmcnt(0)\ns_barrier"); lg.drain()
        st(1)
        F(0, 0); F(0, 1)
        P = wr("x", 1) + wr("w", 1)
        nxt = 3
        for c in range(7):
            L = []
            while nxt < 7 and nxt - NS <= c:
                L += ld("x", nxt, RX[nxt % NS]) + ld("w", nxt, RW[nxt % NS]); nxt += 1
            if c == 3: L.append(lambda: k.init_issue(vm))
            if c == 5 and kv: L.append(lambda: (k.init_check(vm), vm.op(k.poll_ld(vFZ, vFT), "zp")))
            h = (len(P) + 1) // 2; q = (len(L) + 1) // 2
            M(c, 0, P[:h]); F(c, 2)
            M(c, 1, P[h:] + L[:q//2]); F(c, 3)
            M(c, 2, L[q//2:q])
            if c < 6:
                a("s_waitcnt lgkmcnt(0)\ns_barrier"); lg.drain()
                F(c + 1, 0)
                P = (wr("x", c + 2) + wr("w", c + 2)) if c + 2 < 7 else []
                n0 = len(P) // 4
                M(c, 3, L[q:] + P[:n0]); P = P[n0:]
                F(c + 1, 1)
            else:
                lg.wait(f"f{c}3")
                if kv: a("s_barrier")
                M(c, 3, L[q:])
        return vm
    def phi_t(base, n, dst, pk=True):
        T = []
        for i in range(0, n, 2):
            t = vT + 2 * ((i // 2) & 3)
            x = base + i
            if not pk:
                T.append(lambda t=t, x=x, i=i: a(f"""
                v_mul_f32 v{t}, s{sC1}, v{x}
                v_mul_f32 v{t+1}, s{sC1}, v{x+1}
                v_exp_f32_e64 v{t}, v{t} clamp
                v_exp_f32_e64 v{t+1}, v{t+1} clamp
                v_max_f32 v{x}, {EPS}, v{x}
                v_max_f32 v{x+1}, {EPS}, v{x+1}
                v_add_f32 v{x}, v{x}, v{t}
                v_add_f32 v{x+1}, v{x+1}, v{t+1}
                v_cvt_pk_bf16_f32 v{dst + i//2}, v{x}, v{x+1}
                """))
                continue
            T.append(lambda t=t, x=x, i=i: a(f"""
            v_pk_mul_f32 {vr(t,2)}, {vr(x,2)}, s[{sC1}:{sC1+1}]
            v_max_f32 v{x}, {EPS}, v{x}
            v_exp_f32_e64 v{t}, v{t} clamp
            v_exp_f32_e64 v{t+1}, v{t+1} clamp
            v_max_f32 v{x+1}, {EPS}, v{x+1}
            v_pk_add_f32 {vr(x,2)}, {vr(x,2)}, {vr(t,2)}
            v_cvt_pk_bf16_f32 v{dst + i//2}, v{x}, v{x+1}
            """))
        return T
    def wo_dma(vm):
        T = []
        for i in range(15):
            def f(i=i):
                if i == 0:
                    srd(a, SW, 38, 39, 448 * 896)
                    a(f"s_mul_i32 s{sT1}, s{sWV}, 20480\ns_mov_b32 s{sT0}, 0")
                a(f"s_add_u32 m0, s{sT1}, {1024*i}")
                if i: a(f"s_add_u32 s{sT0}, s{sT0}, 7168")
                vm.op(f"buffer_load_dwordx4 v{vWO}, s[{SW}:{SW+3}], s{sT0} offen lds", "wo")
            T.append(f)
        return T
    PK, PV, KVD = 128, 144, 48
    vm = gemm(True)
    if os.environ.get('GEARLY'):
        k.poll(vm, vFZ, vFT, issued=True, tag="zp")
        if os.environ.get('GATE'):
            a(f"s_lshl_b32 s{sT0}, s2, 7\ns_add_u32 s{sT0}, s{sT0}, {F_L}\ns_cmp_lg_u32 s{sWV}, 0\ns_cbranch_scc1 L_ngf")
            k.flag(Cnt(a, "vmcnt"), sT0)
            a("L_ngf:")
    st(3)
    a(f"s_setprio {os.environ.get('GPRIO1', 3)}")
    for f in phi_t(GA, 16, PK, os.environ.get('KVPK')): f()
    for t in range(2):
        for i in range(8):
            a(f"v_cvt_pk_bf16_f32 v{PV+8*t+i}, v{GA+32+16*t+2*i}, v{GA+32+16*t+2*i+1}")
    a(f"s_mov_b32 exec_lo, {1<<28}\ns_mov_b32 exec_hi, {1<<28}")
    for i in range(16): a(f"v_mov_b32 v{PV+i}, 0x3f803f80")
    a("s_mov_b64 exec, -1")
    for u in range(2):
        a(f"v_mfma_f32_32x32x16_bf16 {vr(KVD,16)}, {vr(PK+4*u,4)}, {vr(PV+4*u,4)}, {'0' if u == 0 else vr(KVD,16)}")
    for f in phi_t(GA + 16, 16, PK + 8, os.environ.get('KVPK')): f()
    for u in range(2):
        a(f"v_mfma_f32_32x32x16_bf16 {vr(KVD,16)}, {vr(PK+8+4*u,4)}, {vr(PV+8+4*u,4)}, {vr(KVD,16)}")
    st(4)
    if not os.environ.get('GEARLY'):
        k.poll(vm, vFZ, vFT, issued=True, tag="zp")
        if os.environ.get('GATE'):
            a(f"s_lshl_b32 s{sT0}, s2, 7\ns_add_u32 s{sT0}, s{sT0}, {F_L}\ns_cmp_lg_u32 s{sWV}, 0\ns_cbranch_scc1 L_ngf")
            k.flag(Cnt(a, "vmcnt"), sT0)
            a("L_ngf:")
    for q in range(4):
        a(f"ds_write_b128 v{vEX}, {vr(KVD+4*q,4)} offset:{1024*q}")
    a("s_waitcnt lgkmcnt(0)\ns_barrier")
    for i in range(8):
        a(f"ds_read2st64_b32 {vr(GA+2*i,2)}, v{vAT+i} offset0:0 offset1:160")
    for i in range(8):
        a(f"s_waitcnt lgkmcnt({7-i})")
        a(f"v_add_f32 v{GA+2*i}, v{GA+2*i}, v{GA+2*i+1}")
        a(f"buffer_atomic_add_f32 v{GA+2*i}, v{vAT+i}, {WSR}, s{sAT} offen sc1")
    st(5)
    vm.drain()
    k.poll_issue(vm, vFQ, vFT)
    W = wo_dma(vm)
    a("s_cmp_ge_u32 s2, 224\ns_cbranch_scc1 L_kvw")
    for f in W[:6]: f()
    a("s_waitcnt vmcnt(7)\nL_kvw:\ns_cbranch_scc0 L_kvw2\ns_waitcnt vmcnt(1)\nL_kvw2:")
    a(f"s_barrier\ns_cmp_lg_u32 s{sWV}, 0\ns_cbranch_scc1 L_kvf")
    k.flag(vm, sFL, 1)
    a("L_kvf:")
    st(6)
    a("s_cmp_ge_u32 s2, 224\ns_cbranch_scc1 L_kvend")
    for f in W[6:]: f()
    a("s_waitcnt vmcnt(9)\ns_branch L_fin3")
    a("L_GQ:")
    if os.environ.get('QPRIO'): a(f"s_setprio {os.environ['QPRIO']}")
    vm = gemm(False)
    st(3)
    a(f"s_setprio {os.environ.get('GPRIO1', 3)}")
    for t in range(2):
        for f in phi_t(GA + 16 * t, 16, PK + 8 * t, False): f()
        for ks in range(2):
            vm.op(f"buffer_store_dwordx4 {vr(PK+8*t+4*ks,4)}, v3, {WSR}, s{sAT if t == 0 else sKX} offen offset:{WS_PQ + 1024*ks} {SC}", "pqs")
    st(4)
    k.init_check(vm, vFT)
    st(5)
    vm.wait("pqs")
    k.flag(vm, sFL, 1)
    a("s_cmp_ge_u32 s2, 224\ns_cbranch_scc1 L_kvend\ns_barrier")
    st(6)
    if os.environ.get('WOEARLY'):
        for f in wo_dma(Cnt(a, "vmcnt")): f()
    a(k.poll_ld(vFQ, vFT) + "\ns_waitcnt vmcnt(0)")
    A1, O, A2, KB, K23, WOFR = 16, 48, 64, 128, 144, 176
    vm = Cnt(a, "vmcnt"); lg = Cnt(a, "lgkmcnt")
    a("L_fin3:")
    a(f"s_setprio {os.environ.get('GPRIO2', 1)}")
    a(f"v_mov_b32 v12, v{vFK}")
    k.poll(vm, vFQ, vFT, issued=True)
    st(7)
    a(f"""
    s_and_b32 s{sT0}, s2, 31
    s_lshl_b32 s{sT0}, s{sT0}, 16
    s_lshl_b32 s{sT1}, s{sWV}, 13
    s_add_u32 s{sT0}, s{sT0}, s{sT1}
    s_add_u32 s{sT1}, s{sT0}, 32768
    s_add_u32 s{sT2}, s{sT0}, 4096
    s_add_u32 s{sT3}, s{sT1}, 4096
    """)
    for hl in range(4):
        for t in range(2):
            for ks in range(2):
                so = [[sT0, sT1], [sT2, sT3]][hl >> 1][t]
                vm.op(f"buffer_load_dwordx4 {ar(16*hl+8*t+4*ks,4)}, v3, {WSR}, s{so} offen offset:{WS_PQ + 2048*(hl&1) + 1024*ks} {SC}", "pq")
    if not os.environ.get('WOEARLY'):
        a(f"s_cmp_lg_u32 s{sTY}, 0\ns_cbranch_scc1 L_havewo")
        for f in wo_dma(Cnt(a, "vmcnt")): f()
        a("L_havewo:")
    k.poll_issue(vm, 12, 8)
    a(f"""
    s_lshl_b32 s{sT0}, s{sWV}, 14
    s_add_u32 s{sT0}, s{sT0}, {WS_KVA}
    s_mul_i32 s{sT1}, s{sWV}, 20480
    v_bfe_u32 v5, v2, 2, 2
    v_lshrrev_b32 v6, 5, v2
    v_lshl_add_u32 v5, v6, 2, v5
    v_lshlrev_b32 v5, 7, v5
    v_and_b32 v7, 1, v2
    v_lshl_add_u32 v5, v7, 5, v5
    v_bfe_u32 v7, v2, 4, 1
    v_lshl_add_u32 v5, v7, 4, v5
    v_bfe_u32 v7, v2, 1, 1
    v_lshl_add_u32 v5, v7, 3, v5
    v_bfe_u32 v7, v2, 3, 1
    v_lshl_add_u32 v5, v7, 6, v5
    v_xor_b32 v15, 64, v5
    v_add_u32 v5, s{sT1}, v5
    v_add_u32 v15, s{sT1}, v15
    s_mov_b32 s{sT2}, {EPS}
    s_mov_b32 s{sC1}, -1
    s_mov_b32 s{sC1+1}, 0
    v_and_b32 v13, 31, v2
    v_mul_u32_u24 v13, 272, v13
    v_lshl_add_u32 v13, v6, 6, v13
    v_add_u32 v13, s{sT1}, v13
    v_lshrrev_b32 v7, 3, v0
    v_and_b32 v14, 7, v0
    v_mul_u32_u24 v10, 272, v7
    v_lshl_add_u32 v10, v14, 5, v10
    v_mul_u32_u24 v11, 1792, v7
    v_lshl_add_u32 v11, v14, 4, v11
    s_and_b32 s{sT3}, s2, 31
    s_mul_i32 s{sT3}, s{sT3}, {64*1792}
    s_lshr_b32 s{sT4}, s2, 5
    s_lshl_b32 s{sT4}, s{sT4}, 7
    s_add_u32 s{sT3}, s{sT3}, s{sT4}
    s_add_u32 s{sT3}, s{sT3}, 896
    s_add_u32 s{sT4}, s{sT3}, {32*1792}
    v_mov_b32 v14, 0x7fff0000
    v_cndmask_b32 v14, v14, v3, s[{sC1}:{sC1+1}]
    """)
    def ldwo(hl):
        for ks in range(2):
            for ct in range(2):
                for i in range(2):
                    lg.op(f"ds_read_b64_tr_b16 {vr(WOFR+8*ks+4*ct+2*i,2)}, v{15 if ct else 5} offset:{128*(28*hl+16*ks+8*i)}", f"wo{hl}")
    k.poll(vm, 12, 8, issued=True)
    vm.drain()
    st(8)
    def kvsrc(hl): return A1 + 16 * hl if hl < 2 else K23 + 16 * (hl - 2)
    def kvb(hl): return KB + 8 * hl if hl < 2 else K23 + 16 * (hl - 2)
    for hl in range(4):
        for q in range(4):
            vm.op(f"buffer_load_dwordx4 {vr(kvsrc(hl)+4*q,4)}, v{14 if q == 3 else 3}, {WSR}, s{sT0} offen offset:{1024*q} {SC}", f"kv{hl}")
        if hl < 3: a(f"s_add_u32 s{sT0}, s{sT0}, 4096")
    ldwo(0)
    a(f"v_add_u32 v12, 40960, v10")
    def cvtkv(hl):
        T = []
        for i in range(8):
            def f(i=i):
                if i == 0: vm.wait(f"kv{hl}")
                a(f"v_cvt_pk_bf16_f32 v{kvb(hl)+i}, v{kvsrc(hl)+2*i}, v{kvsrc(hl)+2*i+1}")
            T.append(f)
        return T
    def s1(u):
        hl, t = u >> 1, u & 1
        A = vr(A1 + 16 * (u & 1), 16)
        return [lambda: a(f"v_mfma_f32_32x32x16_bf16 {A}, {vr(kvb(hl),4)}, {ar(16*hl+8*t,4)}, 0"),
                lambda: a(f"v_mfma_f32_32x32x16_bf16 {A}, {vr(kvb(hl)+4,4)}, {ar(16*hl+8*t+4,4)}, {A}")]
    DN = 6
    def scale(u):
        A = A1 + 16 * (u & 1); Ou = O + 8 * (u & 1)
        L = [f"v_mov_b32 v{DN}, v{A+12}", f"v_mov_b32 v{DN+2}, v{A+12}", f"v_permlane32_swap_b32 v{DN}, v{DN+2}",
             f"v_add_f32 v{DN+2}, s{sT2}, v{DN+2}", f"v_rcp_f32 v{DN+2}, v{DN+2}"]
        for i in range(8):
            L.append(f"v_mul_f32 v{A+2*i}, v{A+2*i}, v{DN+2}")
            L.append(f"v_mul_f32 v{A+2*i+1}, v{A+2*i+1}, v{DN+2}")
            L.append(f"v_cvt_pk_bf16_f32 v{Ou+i}, v{A+2*i}, v{A+2*i+1}")
        L += [f"v_cndmask_b32 v{Ou+6}, 0, v{Ou+6}, s[{sC1}:{sC1+1}]", f"v_cndmask_b32 v{Ou+7}, 0, v{Ou+7}, s[{sC1}:{sC1+1}]"]
        return [lambda s=s: a(s) for s in L]
    def s2(u):
        hl, t = u >> 1, u & 1
        Ou = O + 8 * (u & 1); T = []
        for ks in range(2):
            for ct in range(2):
                acc = vr(A2 + 32 * t + 16 * ct, 16)
                cin = "0" if (hl == 0 and ks == 0) else acc
                def f(s=f"v_mfma_f32_32x32x16_bf16 {acc}, {vr(WOFR+8*ks+4*ct,4)}, {vr(Ou+4*ks,4)}, {cin}", first=(ks == 0 and ct == 0), last=(ks == 1 and ct == 1)):
                    if first and t == 0: lg.wait(f"wo{hl}")
                    a(s)
                    if last and t == 1 and hl < 3: ldwo(hl + 1)
                T.append(f)
        return T
    run = lambda T: [f() for f in T]
    run(cvtkv(0)); run(cvtkv(1))
    run(s1(0)); run(s1(1)); run(scale(0))
    for u in range(8):
        main = s2(u)
        fill = scale(u + 1) if u + 1 < 8 else []
        if u + 2 < 8:
            if u + 2 in (4, 6): run(cvtkv((u + 2) >> 1))
            main = s1(u + 2) + main
        if u == 7:
            fill = [lambda ct=ct, i=i: a(f"ds_write_b128 v13, {vr(A2+16*ct+4*i,4)} offset:{128*ct + 16*i}") for ct in range(2) for i in range(4)]
            weave(main, fill, start=1)
        else:
            weave(main, fill)
    st(9)
    for ct in range(2):
        for i in range(4):
            a(f"ds_write_b128 v13, {vr(A2+32+16*ct+4*i,4)} offset:{32*272 + 128*ct + 16*i}")
    a("s_waitcnt lgkmcnt(0)\ns_barrier")
    st(10)
    R = 64
    for t in range(2):
        for w in range(4):
            for h in range(2):
                a(f"ds_read_b128 {vr(R+32*t+8*w+4*h,4)}, v{10 if w < 2 else 12} offset:{20480*(w&1) + 32*272*t + 16*h}")
    for t in range(2):
        b = R + 32 * t
        a(f"s_waitcnt lgkmcnt({8 if t == 0 else 0})")
        for i in range(8):
            a(f"v_add_f32 v{b+i}, v{b+i}, v{b+8+i}")
            a(f"v_add_f32 v{b+16+i}, v{b+16+i}, v{b+24+i}")
        for i in range(8):
            a(f"v_add_f32 v{b+i}, v{b+i}, v{b+16+i}")
        for i in range(4):
            a(f"v_cvt_pk_bf16_f32 v{b+8+i}, v{b+2*i}, v{b+2*i+1}")
        a(f"buffer_store_dwordx4 {vr(b+8,4)}, v11, s[{SO}:{SO+3}], s{sT3 if t == 0 else sT4} offen {os.environ.get('NTO','')}")
    a("L_kvend:")
    st.end(1)
    a("s_endpgm")

from v6s import gen_S
```

```python
import os
from asmlib import *
from v6 import *

ROWB = 272
WREG = 53 * ROWB
KS, KSL = 4160, 16640
UBASE, UB, U0, U1 = 33280, 8256, 16, 16 + 4096 + 32
TTAB, TSTR = 66304, 1536
USTG = 57664

def gen_S(k, st):
    a = k.a
    sJB, sIDX, sCG, sHH, sKB, sFU, sIT, sPH, sKG, sFK = sA, sB, sC, sD, sE, sF, sG, sH, sI, sJ
    vm = Cnt(a, "vmcnt")
    P0 = 8
    UG, UG2 = 24, 32
    vT = 40
    IN = 56
    KA, KB_ = 60, 61
    ACC = 64; FR = 96
    E1, E8, E256, E2, E4, Wc, X0, X1, G0, G1, Y0, Y1 = [112 + 2 * i for i in range(12)]
    t0, t1, t2, t3, pk = 136, 137, 138, 139, 140
    EA = 144; AD = 153
    vFU, vFP, vGS, vGR, vGO = 157, 158, 159, 62, 63
    UR = 160
    vPW, vRR, vZF, vZU, vCW, vC4, vUW = 176, 177, 178, 179, 180, 181, 185
    vKL, vUL, vZL, vKS, vU2 = 188, 189, 59, 58, 187
    a(f"""
    L_S:
    s_setprio 3
    """)
    if os.environ.get('XMAP'):
        lo = os.environ['XMAP'] in '15'
        a(f"""
        s_lshr_b32 s{sT0}, s2, 3
        s_bfe_u32 s{sHH}, s2, 0x10002
        {f's_xor_b32 s{sHH}, s{sHH}, 1' if lo else ''}
        s_and_b32 s{sT1}, s2, 3
        s_lshl_b32 s{sIDX}, s{sT0}, 3
        s_and_b32 s{sT2}, s2, 7
        s_add_u32 s{sIDX}, s{sIDX}, s{sT2}
        s_sub_u32 s{sIDX}, s{sIDX}, 224
        s_cmp_ge_u32 s{sT0}, 28
        s_cbranch_scc1 L_aux
        {'s_endpgm' if os.environ.get('SKIP_S') else ''}
        s_mul_i32 s{sCG}, s{sT1}, 28
        s_add_u32 s{sCG}, s{sCG}, s{sT0}
        s_lshr_b32 s{sJB}, s{sCG}, 4
        s_and_b32 s{sIDX}, s{sCG}, 15
        s_lshl_b32 s{sT0}, s{sHH}, 4
        s_add_u32 s{sIDX}, s{sIDX}, s{sT0}
        """)
    else:
        a(f"""
    s_and_b32 s{sJB}, s2, 7
    s_lshr_b32 s{sIDX}, s2, 3
    s_cmp_eq_u32 s{sJB}, 7
    s_cbranch_scc1 L_aux
    {'s_endpgm' if os.environ.get('SKIP_S') else ''}
    s_lshl_b32 s{sT0}, s{sJB}, 4
    s_and_b32 s{sCG}, s{sIDX}, 15
    s_add_u32 s{sCG}, s{sCG}, s{sT0}
    s_lshr_b32 s{sHH}, s{sIDX}, 4
        """)
    a(f"""
    s_lshl_b32 s{sKG}, s{sCG}, 1
    s_add_u32 s{sKG}, s{sKG}, s{sHH}
    v_and_b32 v{t0}, 31, v2
    """)
    a(f"""
    s_cmp_eq_u32 s{sWV}, 1
    s_cselect_b32 s{sT0}, 4, 8
    s_cselect_b32 s{sT3}, 2, 8
    s_cselect_b32 s{sT4}, 256, 0
    s_cselect_b32 s{sPH}, 384, 4
    s_cmp_eq_u32 s{sWV}, 2
    s_cselect_b32 s{sT0}, 1, s{sT0}
    s_cselect_b32 s{sT3}, 1, s{sT3}
    s_cselect_b32 s{sT4}, 512, s{sT4}
    s_cselect_b32 s{sPH}, 640, s{sPH}
    s_cselect_b32 s{sIT}, 32, 1
    v_mul_u32_u24 v{AD}, s{sT0}, v{t0}
    v_add_u32 v{AD}, s{sT4}, v{AD}
    v_mul_u32_u24 v{AD+1}, s{sT3}, v{t0}
    v_add_u32 v{AD+1}, s{sPH}, v{AD+1}
    v_cmp_gt_u32 vcc, 32, v2
    s_lshl_b32 s{sT0}, s{sIT}, 1
    s_cmp_eq_u32 s{sWV}, 0
    s_cselect_b32 s{sT3}, 2, 64
    v_mov_b32 v{t2}, s{sT3}
    v_mov_b32 v{t3}, s{sT0}
    v_cndmask_b32 v{AD}, v{AD+1}, v{AD}, vcc
    v_cndmask_b32 v{t3}, v{t2}, v{t3}, vcc
    v_add_u32 v{AD+1}, s{sIT}, v{AD}
    v_add_u32 v{AD+2}, v{AD}, v{t3}
    v_add_u32 v{AD+3}, s{sIT}, v{AD+2}
    v_mov_b32 v{t3}, {TTAB}
    """)
    for i in range(4): a(f"v_lshl_add_u32 v{AD+i}, v{AD+i}, 1, v{t3}")
    a(f"v_lshlrev_b32 v{t2}, 3, v0\nv_sub_u32 v{t2}, 2047, v{t2}")
    for e in range(9):
        a(f"v_subrev_u32 v{EA+e}, {e}, v{t2}")
        a(f"v_cvt_f32_i32 v{FR+e}, v{EA+e}")
    for e in range(0, 10, 2):
        a(f"v_cvt_pk_bf16_f32 v{FR+e}, v{FR+e}, v{FR+min(e+1,8)}")
        if e < 8: a(f"v_lshrrev_b32 v{FR+e+1}, 16, v{FR+e}")
        a(f"v_and_b32 v{FR+e}, 0xffff, v{FR+e}")
    for e in range(9):
        if e in (0, 8): a(f"v_cmp_gt_i32 vcc, 128, v{EA+e}")
        a(f"v_subrev_u32 v{FR+e}, 17024, v{FR+e}")
        a(f"v_cndmask_b32 v{EA+e}, v{FR+e}, v{EA+e}, vcc")
        a(f"v_lshl_add_u32 v{EA+e}, v{EA+e}, 1, v{t3}")
    a(f"""
    v_and_b32 v5, 3, v2
    v_sub_u32 v5, 3, v5
    v_mul_u32_u24 v{vKL}, {KS}, v5
    v_lshrrev_b32 v6, 4, v2
    v_lshl_add_u32 v{vKL}, v6, 4, v{vKL}
    v_bfe_u32 v7, v2, 2, 2
    v_lshlrev_b32 v7, 4, v7
    v_sub_u32 v{vKL}, v{vKL}, v7
    s_and_b32 s{sT0}, s{sWV}, 1
    s_lshl_b32 s{sT0}, s{sT0}, 8
    s_lshr_b32 s{sT3}, s{sWV}, 1
    s_mul_i32 s{sT3}, s{sT3}, {KSL}
    s_add_u32 s{sT3}, s{sT3}, {2*(2040-1792)}
    s_sub_u32 s{sT3}, s{sT3}, s{sT0}
    v_add_u32 v{vKL}, s{sT3}, v{vKL}
    v_and_b32 v5, 1, v2
    v_sub_u32 v5, 1, v5
    v_mul_u32_u24 v{vZL}, {U1-U0}, v5
    v_add_u32 v{vZL}, {UBASE}, v{vZL}
    v_bfe_u32 v5, v2, 1, 3
    v_lshl_add_u32 v{vUL}, v5, 6, v{vZL}
    v_lshl_add_u32 v{vUL}, v6, 4, v{vUL}
    s_sub_u32 s{sT3}, 16, s{sT0}
    v_add_u32 v{vUL}, s{sT3}, v{vUL}
    """)
    a(f"""
    s_lshl_b32 s{sT1}, s{sKG}, 10
    s_lshl_b32 s{sT2}, s{sWV}, 7
    s_add_u32 s{sT1}, s{sT1}, s{sT2}
    v_lshrrev_b32 v7, 5, v2
    v_lshlrev_b32 v5, 2, v{t0}
    v_lshl_add_u32 v6, v7, 9, v5
    v_add_u32 v{vT}, s{sT1}, v6
    s_lshl_b32 s{sT1}, s{sKG}, 2
    v_lshl_add_u32 v6, v7, 1, s{sT1}
    s_lshl_b32 s{sT1}, s{sIDX}, 2
    s_add_u32 s{sT1}, s{sT1}, s{sWV}
    s_mul_i32 s{sT1}, s{sT1}, {16*896}
    s_lshl_b32 s{sT2}, s{sJB}, 7
    s_add_u32 s{sT1}, s{sT1}, s{sT2}
    v_mul_u32_u24 v7, {8*896}, v7
    v_add3_u32 v7, v7, v5, s{sT1}
    v_add_u32 v5, {4*896}, v7
    s_waitcnt lgkmcnt(0)
    """)
    st(0)
    PR = P0 + 8
    a(f"global_load_short_d16_hi v{P0+6}, v6, s[30:31]")
    for i in range(6): a(f"global_load_dword v{PR+i}, v{vT}, s[{18+2*i}:{19+2*i}] nt")
    a(f"global_load_short_d16_hi v{P0+7}, v6, s[32:33]")
    k.init_issue(vm)
    UG, UG2 = 160, 80
    for i in range(8): a(f"global_load_dword v{UG2+i}, v{7 if i < 4 else 5}, s[16:17] offset:{(i%4)*896} nt")
    a(f"s_setprio {os.environ.get('SPRIO', 2)}")
    srd(a, SWS, 44, 45, WS_SIZE)
    srd(a, SO, 40, 41, 2048 * 1792)
    a(f"""
    s_mul_i32 s{sKB}, s{sWV}, {WREG}
    v_and_b32 v{t0}, 31, v2
    v_lshrrev_b32 v{t1}, 5, v2
    v_lshlrev_b32 v{t1}, 4, v{t1}
    v_add_u32 v{t1}, s{sKB}, v{t1}
    v_min_u32 v{t2}, 20, v{t0}
    v_mul_u32_u24 v{t2}, {ROWB}, v{t2}
    v_add_u32 v{KA}, v{t2}, v{t1}
    v_mul_u32_u24 v{t2}, {ROWB}, v{t0}
    v_add_u32 v{KB_}, v{t2}, v{t1}
    s_mov_b32 m0, s{sKB}
    v_add_u32 v{vPW}, s{sKB}, v3
    s_lshl_b32 s{sT0}, s{sWV}, 10
    v_add_u32 v{vRR}, s{sT0}, v3
    v_mul_u32_u24 v{vGS}, 288, v{t0}
    v_lshrrev_b32 v{t2}, 5, v2
    v_lshl_add_u32 v{vGS}, v{t2}, 4, v{vGS}
    s_mov_b32 s{sFK}, 0x05040100
    v_mov_b32 v{PR+6}, s{sFK}
    s_mov_b32 s{sFK}, 0x07060302
    v_mov_b32 v{PR+7}, s{sFK}
    s_lshl_b32 s{sT0}, s{sWV}, 5
    s_add_u32 s{sT0}, s{sT0}, {USTG}
    v_add_u32 v{vGS}, s{sT0}, v{vGS}
    v_lshrrev_b32 v{t2}, 3, v2
    v_and_b32 v{t3}, 7, v2
    v_lshrrev_b32 v{vGO}, 3, v2
    v_and_b32 v{vZF}, 7, v2
    v_mul_u32_u24 v{vGR}, 144, v{vGO}
    v_lshl_add_u32 v{vGR}, v{vZF}, 4, v{vGR}
    s_mul_i32 s{sT0}, s{sWV}, {16*144}
    s_add_u32 s{sT0}, s{sT0}, {USTG}
    v_add_u32 v{vGR}, s{sT0}, v{vGR}
    v_lshlrev_b32 v{vGO}, 12, v{vGO}
    v_lshl_add_u32 v{vGO}, v{vZF}, 4, v{vGO}
    v_mul_u32_u24 v{vZF}, {KS}, v{t2}
    v_lshl_add_u32 v{vZF}, v{t3}, 3, v{vZF}
    v_add_u32 v{vZF}, 4088, v{vZF}
    v_and_b32 v{t3}, 23, v2
    v_cmp_eq_u32 vcc, 0, v{t3}
    v_add_u32 v{t3}, 56, v{vZF}
    v_bfe_u32 v{vZU}, v2, 1, 2
    v_mul_u32_u24 v{vZU}, {UB}, v{vZU}
    v_cndmask_b32 v{vZF}, v{vZF}, v{t3}, vcc
    v_and_b32 v{t3}, 1, v2
    v_mul_u32_u24 v{t3}, {U1-U0}, v{t3}
    v_add3_u32 v{vZU}, v{vZU}, v{t3}, s{sT0}
    s_add_u32 s{sT0}, s{sT0}, {-UBASE & 0xffffffff}
    v_subrev_u32 v{vZU}, s{sT0}, v{vZU}
    s_lshl_b32 s{sT0}, s{sJB}, 2
    s_add_u32 s{sT0}, s{sT0}, s{sWV}
    s_lshl_b32 s{sT1}, s{sT0}, 16
    s_lshl_b32 s{sT2}, s{sIDX}, 7
    s_add_u32 s{sT1}, s{sT1}, s{sT2}
    s_add_u32 s{sT1}, s{sT1}, {WS_UT}
    s_lshl_b32 s{sT0}, s{sT0}, 5
    s_add_u32 s{sT0}, s{sT0}, s{sIDX}
    s_lshl_b32 s{sT0}, s{sT0}, 7
    s_add_u32 s{sFU}, s{sT0}, {F_UT}
    s_lshr_b32 s{sT0}, s{sCG}, 2
    s_lshl_b32 s{sT0}, s{sT0}, 12
    s_add_u32 s{sT0}, s{sT0}, {F_UT}
    s_cmp_eq_u32 s{sHH}, 1
    s_cselect_b32 s{sT3}, {31 if os.environ.get('TSB') else 15}, 31
    v_and_b32 v{vFU}, s{sT3}, v2
    v_lshlrev_b32 v{vFU}, 7, v{vFU}
    v_add_u32 v{vFU}, s{sT0}, v{vFU}
    s_xor_b32 s{sT0}, s{sKG}, 1
    s_lshl_b32 s{sT0}, s{sT0}, 9
    s_add_u32 s{sT0}, s{sT0}, {F_KF}
    v_and_b32 v{vFP}, 3, v2
    v_lshlrev_b32 v{vFP}, 7, v{vFP}
    v_add_u32 v{vFP}, s{sT0}, v{vFP}
    s_lshl_b32 s{sT0}, s{sKG}, 2
    s_add_u32 s{sT0}, s{sT0}, s{sWV}
    s_lshl_b32 s{sT0}, s{sT0}, 7
    s_add_u32 s{sFK}, s{sT0}, {F_KF}
    v_lshlrev_b32 v{vCW}, 4, v0
    s_mul_i32 s{sT3}, s{sHH}, 0x7fff0000
    v_add_u32 v{vU2}, s{sT3}, v3
    s_cmp_eq_u32 s{sHH}, 0
    s_cselect_b32 s{sT3}, 2048, 0
    v_mov_b32 v{vKS}, 0x7fff0000
    v_cmp_le_u32 vcc, s{sT3}, v{vCW}
    v_cndmask_b32 v{vKS}, v{vKS}, v{vCW}, vcc
    v_add_u32 v{vC4}, {2*KS-8}, v{vCW}
    v_add_u32 v{vC4+1}, {3*KS-8}, v{vCW}
    v_add_u32 v{vC4+2}, {KSL+2*KS-8}, v{vCW}
    v_add_u32 v{vC4+3}, {KSL+3*KS-8}, v{vCW}
    s_mul_i32 s{sT0}, s{sWV}, {UB}
    s_add_u32 s{sT0}, s{sT0}, {UBASE}
    v_add_u32 v{vUW}, s{sT0}, v3
    """)
    st(1)
    X = os.environ.get('SX', '')
    if X == '1': a('s_waitcnt vmcnt(0)\ns_endpgm')
    def kgen(c):
        P = P0 + 8 * c
        AC = ACC + 16 * c
        P = P0
        if c == 0:
            a(f"""
            s_waitcnt vmcnt(9)
            v_mul_f32 v{P+6}, {LOG2E}, v{P+6}
            v_exp_f32 v{P+6}, v{P+6}
            v_cvt_pk_bf16_f32 v{P+6}, v{P+6}, v{P+6}
            v_lshlrev_b32 v{P+6}, 16, v{P+6}
            """)
        for i in range(6):
            a(f"v_lshlrev_b32 v{P+i}, 16, v{PR+i}" if c == 0 else f"v_and_b32 v{P+i}, 0xffff0000, v{PR+i}")
        a(f"""
        v_mul_f32 v{t1}, v{P+6}, v{P}
        v_mul_f32 v{t2}, v{P+6}, v{P+1}
        v_mul_f32 v{t1}, {LOG2E}, v{t1}
        v_mul_f32 v{t2}, {INV2PI}, v{t2}
        v_mul_f32 v{P+2}, v{P+6}, v{P+2}
        v_mul_f32 v{P+3}, v{P+6}, v{P+3}
        """)
        cmul(a, Wc, P + 4, P + 2)
        for (E, m, cj) in ((E8, 8.0, True), (E1, 1.0, False), (E256, 256.0, False)):
            if m != 1.0:
                a(f"v_mul_f32 v{t0}, {f2u(m)}, v{t1}\nv_mul_f32 v{t3}, {f2u(m)}, v{t2}\nv_exp_f32 v{t0}, v{t0}\nv_fract_f32 v{t3}, v{t3}")
            else:
                a(f"v_exp_f32 v{t0}, v{t1}\nv_fract_f32 v{t3}, v{t2}")
            a(f"""
            v_cos_f32 v{E}, v{t3}
            v_sin_f32 v{E+1}, v{t3}
            v_mul_f32 v{E}, v{E}, v{t0}
            v_mul_f32_e64 v{E+1}, {'-' if cj else ''}v{E+1}, v{t0}
            """)
        cmul(a, E2, E1, E1); cmul(a, E4, E2, E2)
        yield "head"
        cnt = [0]
        def put(row, src):
            r = pk + (cnt[0] & 3); cnt[0] += 1
            a(f"v_cvt_pk_bf16_f32 v{r}, v{src}, v{src+1}")
            a(f"ds_write_addtid_b32 v{r} offset:{row * ROWB}")
        if c == 0:
            a(f"v_mov_b32 v{t0}, 0x3f80")
            a(f"ds_write_addtid_b32 v{t0} offset:{21*ROWB}")
        put(22, E8); put(0, Wc)
        fine, cur = [], E8
        for f in range(2, 32):
            nxt = X0 if cur != X0 else X1
            fine.append((nxt, cur, E8, 21 + f)); cur = nxt
        coarse, cur = [], Wc
        for cc in range(1, 8):
            nxt = Y0 if cur != Y0 else Y1
            coarse.append((nxt, cur, E1, cc)); cur = nxt
        coarse.append((G0, Wc, E256, 8)); cur = G0
        for cc in range(1, 4):
            nxt = Y0 if cur != Y0 else Y1
            coarse.append((nxt, cur, E2, 8 + cc)); cur = nxt
        coarse += [(G1, G0, E256, 12), (Y0, G1, E4, 13), (G0, G1, E256, 14), (Y0, G0, E4, 15)]
        g = G0
        for i in range(5):
            n = G1 if g == G0 else G0
            coarse.append((n, g, E256, 16 + i)); g = n
        seq = []
        for i in range(max(len(fine), len(coarse))):
            if i < len(fine): seq.append(fine[i])
            if i < len(coarse): seq.append(coarse[i])
        for n, (d, x, y, row) in enumerate(seq):
            cmul(a, d, x, y); put(row, d)
            if n == (int(os.environ.get('MID', 16)) if c == 0 else 24): yield "mid"
        if c == 0: yield "end"
        a("s_waitcnt lgkmcnt(0)")
        bufs = [FR, FR + 8, vT, vT + 8]
        for jj in range(4):
            a(f"ds_read_b128 {vr(bufs[jj],4)}, v{KA} offset:{32*jj}")
            a(f"ds_read_b128 {vr(bufs[jj]+4,4)}, v{KB_} offset:{21*ROWB+32*jj}")
        yield "reads"
        for j in range(8):
            fb = bufs[j & 3]
            a(f"s_waitcnt lgkmcnt({6 if j < 5 else 2*(7-j)})")
            AC = ACC + 16 * (j >> 2)
            a(f"v_mfma_f32_32x32x16_bf16 {vr(AC,16)}, {vr(fb,4)}, {vr(fb+4,4)}, {'0' if (c == 0 and j & 3 == 0) else vr(AC,16)}")
            if j + 4 < 8:
                a(f"ds_read_b128 {vr(fb,4)}, v{KA} offset:{32*(j+4)}")
                a(f"ds_read_b128 {vr(fb+4,4)}, v{KB_} offset:{21*ROWB+32*(j+4)}")
        yield "done"
    def gate(n):
        if os.environ.get('GATE') != str(n): return
        a(f"s_cmp_eq_u32 s{sHH}, 0\ns_cbranch_scc1 L_gate\ns_lshl_b32 s{sT0}, s2, 7\ns_add_u32 s{sT0}, s{sT0}, {F_L}\nv_mov_b32 v{vT+14}, s{sT0}")
        k.poll(Cnt(a, "vmcnt"), vT + 14, vT + 12, slp=4)
        a("L_gate:")
    g0, g1 = kgen(0), kgen(1)
    next(g0)
    next(g0)
    a("s_waitcnt vmcnt(0)")
    vm.drain()
    k.init_check(vm)
    for i in range(4):
        a(f"v_perm_b32 v{UG+i}, v{UG2+2*i+1}, v{UG2+2*i}, v{PR+6}")
        a(f"v_perm_b32 v{UG+4+i}, v{UG2+2*i+1}, v{UG2+2*i}, v{PR+7}")
    for i in range(2): a(f"ds_write_b128 v{vGS}, {vr(UG+4*i,4)} offset:{144*i}")
    a("s_waitcnt lgkmcnt(0)\ns_barrier")
    for i in range(2): a(f"ds_read_b128 {vr(UG+4*i,4)}, v{vGR} offset:{8*144*i}")
    for i in range(2):
        a(f"s_waitcnt lgkmcnt({1-i})")
        a(f"buffer_store_dwordx4 {vr(UG+4*i,4)}, v{vGO}, {WSR}, s{sT1} offen {SC}")
        if i < 1: a(f"s_add_u32 s{sT1}, s{sT1}, 32768")
    next(g0)
    a("s_waitcnt vmcnt(0)")
    k.flag(Cnt(a, "vmcnt"), sFU)
    if os.environ.get('SKP'): a(f"s_cmp_eq_u32 s{sHH}, 0\ns_cbranch_scc1 L_skp\ns_setprio {os.environ['SKP']}\nL_skp:")
    next(g0)
    st(2)
    if X == '2': a('s_endpgm')
    next(g1)
    a(f"v_readlane_b32 s{sT0}, v{P0+7}, 32\nv_cmp_eq_u32 vcc, 0, v0\nv_mov_b32 v{PR+7}, s{sT0}\nv_cndmask_b32 v{P0+7}, 0, v{P0+7}, vcc\nv_cndmask_b32 v{PR+7}, 0, v{PR+7}, vcc")
    next(g0)
    st(3)
    gate(2)
    next(g1)
    gate(4)
    a(f"""
    s_lshl_b32 s{sT0}, s{sCG}, 2
    s_add_u32 s{sT0}, s{sT0}, s{sWV}
    s_lshl_b32 s{sT0}, s{sT0}, 12
    s_add_u32 s{sT4}, s{sT0}, {WS_UT}
    """)
    next(g1)
    st(4)
    a(k.poll_ld(vFU, IN))
    ul = "\n".join(f"buffer_load_dwordx4 {vr(UR+4*i,4)}, v{3 if i < 2 else vU2}, {WSR}, s{sT4} offen offset:{1024*i} {SC}" for i in range(4))
    next(g1)
    st(6)
    gate(3)
    if X == '3': a('s_endpgm')
    for c in range(2):
        for q in range(3):
            a(f"ds_write_b128 v{vPW}, {vr(ACC+16*c+4*q,4)} offset:{(3*c+q)*1024}")
    a(f"""
    s_waitcnt vmcnt(0)
    {k.poll_cmp(IN)}
    s_mov_b64 s[{sC1}:{sC1+1}], vcc
    s_cmp_eq_u64 vcc, 0
    s_cbranch_scc0 L_ulate
    {ul}
    s_branch L_nopoll2
    L_ulate:
    {k.poll_ld(vFU, IN)}
    L_nopoll2:
    """)
    a(f"""
    s_lshl_b32 s{sT1}, s{sKG}, 13
    s_add_u32 s{sT1}, s{sT1}, {WS_KF}
    s_add_u32 s{sT2}, s{sT1}, 4096
    s_cmp_eq_u32 s{sWV}, 3
    s_waitcnt lgkmcnt(0)
    s_barrier
    s_cbranch_scc1 L_nored
    """)
    RD = ACC
    for c in range(2):
        for w in range(4):
            a(f"ds_read_b128 {vr(RD+16*c+4*w,4)}, v{vRR} offset:{w*WREG + c*3072}")
    for c in range(2):
        a("s_waitcnt lgkmcnt(4)")
        b = RD + 16 * c
        a(f"""
        v_add_f32 v{b}, v{P0+8*c+7}, v{b}
        v_add_f32 v{b+0}, v{b+0}, v{b+4}
        v_add_f32 v{b+8}, v{b+8}, v{b+12}
        v_add_f32 v{b+1}, v{b+1}, v{b+5}
        v_add_f32 v{b+9}, v{b+9}, v{b+13}
        v_add_f32 v{b+2}, v{b+2}, v{b+6}
        v_add_f32 v{b+10}, v{b+10}, v{b+14}
        v_add_f32 v{b+3}, v{b+3}, v{b+7}
        v_add_f32 v{b+11}, v{b+11}, v{b+15}
        v_add_f32 v{b+0}, v{b+0}, v{b+8}
        v_add_f32 v{b+1}, v{b+1}, v{b+9}
        v_add_f32 v{b+2}, v{b+2}, v{b+10}
        v_add_f32 v{b+3}, v{b+3}, v{b+11}
        v_cvt_pk_bf16_f32 v{b}, v{b}, v{b+1}
        v_cvt_pk_bf16_f32 v{b+1}, v{b+2}, v{b+3}
        ds_write_b16 v{AD}, v{b} offset:{c*TSTR}
        ds_write_b16_d16_hi v{AD+1}, v{b} offset:{c*TSTR}
        ds_write_b16 v{AD+2}, v{b+1} offset:{c*TSTR}
        ds_write_b16_d16_hi v{AD+3}, v{b+1} offset:{c*TSTR}
        """)
    a(f"""
    L_nored:
    v_mov_b32 v{vT}, 0
    v_mov_b32 v{vT+1}, 0
    v_mov_b32 v{vT+2}, 0
    v_mov_b32 v{vT+3}, 0
    v_cmp_eq_u32 vcc, 255, v0
    s_waitcnt lgkmcnt(0)
    s_barrier
    """)
    GE = 96
    CW = 64
    for c in range(2):
        for e in range(9):
            a(f"ds_read_u16 v{GE+10*c+e}, v{EA+e} offset:{c*TSTR}")
    a(f"ds_write_b64 v{vZF}, {vr(vT,2)}\nds_write_b128 v{vZU}, {vr(vT,4)}")
    a(f"s_lshl_b32 s{sT0}, s{sHH}, 1\ns_cmp_lt_u32 s{sWV}, s{sT0}")
    def kwrite(addr, a4, q0, q1, off, off8=0):
        a(f"ds_write_b128 v{addr}, {vr(q0,4)} offset:{off}")
        a(f"ds_write2_b64 v{a4}, {vr(q0,2)}, {vr(q0+2,2)} offset0:{off8} offset1:{off8+1}")
        a(f"ds_write_b128 v{addr}, {vr(q1,4)} offset:{off+KS}")
        a(f"ds_write2_b64 v{a4+1}, {vr(q1,2)}, {vr(q1+2,2)} offset0:{off8} offset1:{off8+1}")
    for c in range(2):
        g = GE + 10 * c
        a(f"s_waitcnt lgkmcnt({11 if c == 0 else 2})")
        for i in range(4): a(f"v_lshl_or_b32 v{CW+8*c+i}, v{g+2*i+1}, 16, v{g+2*i}")
        a(f"s_mov_b64 exec, s[{sC1+0}:{sC1+1}]" if False else "")
        a(f"buffer_store_dwordx4 {vr(CW+8*c,4)}, v{vKS}, {WSR}, s{sT1 if c == 0 else sT2} offen {SC}")
        a(f"v_cndmask_b32 v{g+8}, v{g+8}, 0, vcc")
        for i in range(4): a(f"v_lshl_or_b32 v{CW+8*c+4+i}, v{g+2*i+2}, 16, v{g+2*i+1}")
        a(f"s_cbranch_scc1 L_skw{c}")
        kwrite(vCW, vC4 + 2 * c, CW + 8 * c, CW + 8 * c + 4, c * KSL)
        a(f"L_skw{c}:")
    a(f"s_cmp_eq_u64 s[{sC1}:{sC1+1}], 0\ns_cbranch_scc1 L_haveu")
    vm.drain(); vm.q = ["poll"]
    k.poll(vm, vFU, IN, issued=True)
    a(ul + "\nL_haveu:\ns_waitcnt vmcnt(0)")
    k.flag(Cnt(a, "vmcnt"), sFK)
    st(5)
    UB_ = 80
    for i in range(4):
        b = UR + 4 * i; d = UB_ + 4 * i
        if i == 2: a(f"s_cmp_eq_u32 s{sHH}, 1\ns_cbranch_scc1 L_sku")
        a(f"ds_write_b128 v{vUW}, {vr(b,4)} offset:{U0 + 1024*i}")
        if i == 0: a(f"v_mov_b32 v{d}, 0")
        else: a(f"v_readlane_b32 s{sT0}, v{b-1}, 63")
        for q in range(3): a(f"v_mov_b32 v{d+1+q}, v{b+q}")
        if i: a(f"v_mov_b32 v{d}, s{sT0}")
        a(f"v_mov_b32_dpp v{d}, v{b+3} wave_shr:1 row_mask:0xf bank_mask:0xf")
        a(f"ds_write_b128 v{vUW}, {vr(d,4)} offset:{U1 + 1024*i}")
    a("L_sku:")
    vKA, vUA, vU0, vZ, vXS, vXR, vSG, vPL = 5, 6, 7, 8, 9, 10, 11, 12
    A = 16; KF0, UF0 = 48, 112
    PKR = 176
    STG, SS = 66304, 2112
    sMK = sIDX
    a(f"""
    s_setprio {os.environ.get('SPRIO2', 1)}
    {f"s_cmp_eq_u32 s{sHH}, 0" if os.environ.get('SKP2') else ''}
    {"s_cbranch_scc1 L_skp2" if os.environ.get('SKP2') else ''}
    {f"s_setprio {os.environ.get('SKP2')}" if os.environ.get('SKP2') else ''}
    L_skp2:
    v_mov_b32 v{vPL}, v{vFP}
    v_mov_b32 v32, v{vZL}
    s_lshr_b32 s{sT0}, s{sWV}, 1
    s_lshl_b32 s{sT2}, s{sHH}, 1
    s_add_u32 s{sJB}, s{sT0}, s{sT2}
    s_mul_i32 s{sKB}, s{sJB}, {UB}
    s_and_b32 s{sT1}, s{sWV}, 1
    s_lshl_b32 s{sT2}, s{sT1}, 11
    s_add_u32 s{sT3}, s{sKB}, {UBASE}
    s_add_u32 s{sT4}, s{sT3}, s{sT2}
    v_add_u32 v{vXS}, s{sT4}, v3
    s_add_u32 s{sT3}, s{sT3}, 2048
    s_sub_u32 s{sT3}, s{sT3}, s{sT2}
    v_add_u32 v{vXR}, s{sT3}, v3
    v_bfe_u32 v{vSG}, v2, 1, 3
    v_lshlrev_b32 v{vSG}, 6, v{vSG}
    v_lshrrev_b32 v13, 4, v2
    v_lshl_add_u32 v{vSG}, v13, 4, v{vSG}
    v_and_b32 v13, 1, v2
    v_lshl_add_u32 v{vSG}, v13, 2, v{vSG}
    s_lshl_b32 s{sT4}, s{sT1}, 10
    s_add_u32 s{sT4}, s{sT4}, {STG}
    v_add_u32 v{vSG}, s{sT4}, v{vSG}
    s_xor_b32 s{sFU}, s{sKG}, 1
    s_lshl_b32 s{sFU}, s{sFU}, 13
    s_lshl_b32 s{sT3}, s{sWV}, 11
    s_add_u32 s{sFU}, s{sFU}, s{sT3}
    s_add_u32 s{sFU}, s{sFU}, {WS_KF}
    s_mul_i32 s{sFK}, s{sT0}, {KSL}
    s_add_u32 s{sFK}, s{sFK}, s{sT2}
    s_sub_u32 s{sMK}, s{sT1}, 1
    s_and_b32 s{sT3}, s{sMK}, {0 if os.environ.get('TSB') else 's%d' % sHH}
    s_mul_i32 s{sT4}, s{sT3}, 4096
    s_mul_i32 s{sT3}, s{sT3}, 0x7fff0000
    v_add_u32 v38, s{sT3}, v3
    v_mov_b32 v39, 0x7fff0000
    v_cmp_le_u32 vcc, s{sT4}, v3
    v_cndmask_b32 v39, v39, v3, vcc
    s_mov_b32 s{sPH}, 0
    v_mov_b32 v{vKA}, v{vKL}
    v_add_u32 v{vUA}, s{sKB}, v{vUL}
    v_add_u32 v{vZ}, s{sKB}, v32
    v_max_i32 v{vU0}, v{vZ}, v{vUA}
    s_mov_b32 s{sIT}, 0
    {k.poll_ld(vPL, 14)}
    s_cmp_eq_u32 s{sHH}, 1
    s_waitcnt lgkmcnt(0)
    s_barrier
    """)
    st(7)
    if X == '4': a('s_endpgm')
    a("s_cbranch_scc1 L_cv1pre")
    TS = {0: [4, 5, 6, 7], 1: [0, 1, 2, 3]} if not os.environ.get('TSB') else {0: [2, 5, 6, 7], 1: [0, 1, 3, 4]}
    def loadlist(s, H):
        L = []; K_, U_ = KF0 + 32 * s, UF0 + 32 * s
        for x in range(max(TS[H]) + 1):
            L.append(f"ds_read_b128 {vr(U_+4*x,4)}, v{vU0 if x == 0 else vUA} offset:{512*x}")
            L.append(f"ds_read_b128 {vr(K_+4*x,4)}, v{vKA} offset:{512*(7-x)}")
        return L
    stepL = [f"v_subrev_u32 v{vKA}, 64, v{vKA}", f"v_subrev_u32 v{vUA}, 64, v{vUA}", f"v_max_i32 v{vU0}, v{vZ}, v{vUA}"]
    kl = f"""
    buffer_load_dwordx4 {vr(PKR,4)}, v38, {WSR}, s{sFU} offen {SC}
    buffer_load_dwordx4 {vr(PKR+6,4)}, v39, {WSR}, s{sFU} offen offset:1024 {SC}
    buffer_load_dword v{PKR+11}, off, {WSR}, s{sFU} offset:2048 {SC}
    """
    for H in (0, 1):
        a(f"L_cv{H}pre:")
        if H == 0: pass
        for l in loadlist(0, H) + stepL: a(l)
        for i in range(16): a(f"v_mov_b32 v{A+i}, 0")
        a(f"L_cv{H}:")
        for s_ in range(2):
            L = loadlist(1 - s_, H); nl = len(L)
            K_, U_ = KF0 + 32 * s_, UF0 + 32 * s_
            prs = [(c, mt - c, n) for n, mt in enumerate(TS[H]) for c in range(mt + 1)]
            prs.sort(key=lambda x: (max(x[0], x[1]), x[2]))
            issued = 0; done = -1
            L2 = L + stepL
            st0 = 4 if H == 0 else 0
            for n, (c, m, tn) in enumerate(prs):
                need = max(c, m)
                if need > done:
                    a(f"s_waitcnt lgkmcnt({min(15, nl - 2*(need+1) + min(issued, nl))})"); done = need
                acc = vr(A + 4 * tn, 4)
                a(f"v_mfma_f32_16x16x32_bf16 {acc}, {vr(K_+4*c,4)}, {vr(U_+4*m,4)}, {acc}")
                if n >= st0 and issued < len(L2): a(L2[issued]); issued += 1
            while issued < len(L2): a(L2[issued]); issued += 1
        a(f"""
        s_add_u32 s{sIT}, s{sIT}, 1
        s_cmp_eq_u32 s{sIT}, 2
        s_cbranch_scc1 L_cvdone
        s_cmp_eq_u32 s{sPH}, 1
        s_cbranch_scc1 L_cv{H}
        s_waitcnt vmcnt(0)
        {k.poll_cmp(14)}
        s_mov_b64 s[{sC1}:{sC1+1}], vcc
        s_cmp_eq_u64 vcc, 0
        s_cbranch_scc0 L_late{H}
        {kl}
        s_branch L_cv{H}
        L_late{H}:
        {k.poll_ld(vPL, 14)}
        s_branch L_cv{H}
        """)
    a(f"""
    L_cvdone:
    s_cmp_eq_u32 s{sPH}, 1
    s_cbranch_scc1 L_ph1
    s_cmp_eq_u64 s[{sC1}:{sC1+1}], 0
    s_cbranch_scc1 L_havek
    """)
    vm.drain(); vm.q = ["poll"]
    k.poll(vm, vPL, 14, issued=True)
    a(kl + "L_havek:")
    st(8)
    a("s_waitcnt lgkmcnt(0)\ns_barrier\nL_ph1:")
    a(f"s_mul_i32 s{sT0}, s{sJB}, {SS}\nv_add_u32 v33, s{sT0}, v{vSG}")
    a(f"s_bitcmp1_b32 s{sWV}, 0\ns_cbranch_scc1 L_xodd")
    def exch(keep, send):
        for q in range(2): a(f"ds_write_b128 v{vXS}, {vr(send+4*q,4)} offset:{1024*q}")
        a(f"s_cmp_eq_u32 s{sPH}, 1\ns_cbranch_scc1 L_nok{keep}")
        if keep == A: a(f"s_cmp_eq_u32 s{sHH}, 1\ns_cbranch_scc1 L_nok{keep}")
        a(f"""
        v_add_u32 v13, s{sFK}, v3
        v_add_u32 v14, {2*KS-8}, v13
        v_add_u32 v15, {3*KS-8}, v13
        s_waitcnt vmcnt(0)
        v_and_b32 v{PKR+10}, s{sMK}, v{PKR+11}
        v_readlane_b32 s{sT0}, v{PKR+6}, 0
        v_mov_b32_dpp v{PKR+10}, v{PKR+6} wave_shl:1 row_mask:0xf bank_mask:0xf
        v_mov_b32 v{PKR+4}, s{sT0}
        v_mov_b32_dpp v{PKR+4}, v{PKR} wave_shl:1 row_mask:0xf bank_mask:0xf
        """)
        for i in (1, 0):
            b = PKR + 6 * i
            for q in range(4): a(f"v_alignbit_b32 v{KF0+4*i+q}, v{b+q+1}, v{b+q}, 16")
            kwrite(13, 14, b, KF0 + 4 * i, 1024 * i, 128 * i)
        a(f"L_nok{keep}:\ns_waitcnt lgkmcnt(0)\ns_barrier")
        for q in range(2): a(f"ds_read_b128 {vr(send+4*q,4)}, v{vXR} offset:{1024*q}")
        for q in range(2):
            a(f"s_waitcnt lgkmcnt(1)")
            for i in range(4): a(f"v_add_f32 v{keep+4*q+i}, v{keep+4*q+i}, v{send+4*q+i}")
            a(f"v_cvt_pk_bf16_f32 v{34+2*q}, v{keep+4*q}, v{keep+4*q+1}")
            a(f"v_cvt_pk_bf16_f32 v{35+2*q}, v{keep+4*q+2}, v{keep+4*q+3}")
            a(f"ds_write2_b32 v33, v{34+2*q}, v{35+2*q} offset0:{128*q} offset1:{128*q+2}")
    exch(A, A + 8)
    a("s_branch L_xdone\nL_xodd:")
    exch(A + 8, A)
    a(f"""
    L_xdone:
    s_cmp_eq_u32 s{sPH}, 1
    s_cbranch_scc1 L_cvend
    s_mov_b32 s{sPH}, 1
    s_xor_b32 s{sJB}, s{sJB}, 2
    s_mul_i32 s{sKB}, s{sJB}, {UB}
    """)
    st(9)
    a(f"""
    v_mov_b32 v{vKA}, v{vKL}
    v_add_u32 v{vUA}, s{sKB}, v{vUL}
    v_add_u32 v{vZ}, s{sKB}, v32
    v_max_i32 v{vU0}, v{vZ}, v{vUA}
    s_mov_b32 s{sIT}, 0
    s_cmp_eq_u32 s{sHH}, 1
    s_cbranch_scc1 L_cv1pre
    s_branch L_cv0pre
    L_cvend:
    v_bfe_u32 v10, v2, 2, 2
    v_mul_u32_u24 v10, {SS}, v10
    v_lshrrev_b32 v8, 4, v2
    v_lshl_add_u32 v10, v8, 5, v10
    v_and_b32 v8, 3, v2
    v_lshl_add_u32 v10, v8, 3, v10
    s_lshl_b32 s{sT0}, s{sWV}, 9
    s_add_u32 s{sT0}, s{sT0}, {STG}
    v_add_u32 v10, s{sT0}, v10
    v_mul_u32_u24 v11, 1792, v2
    s_lshl_b32 s{sT2}, s{sHH}, 4
    s_lshl_b32 s{sT3}, s{sWV}, 2
    s_add_u32 s{sT2}, s{sT2}, s{sT3}
    s_lshr_b32 s{sT2}, {sum(t << (4*i) for i, t in enumerate(TS[0] + TS[1]))}, s{sT2}
    s_and_b32 s{sT2}, s{sT2}, 15
    s_mul_i32 s{sT2}, s{sT2}, {256*1792}
    s_lshl_b32 s{sT3}, s{sCG}, 3
    s_add_u32 s{sT2}, s{sT2}, s{sT3}
    s_waitcnt lgkmcnt(0)
    s_barrier
    """)
    st(10)
    if X == '5': a('s_endpgm')
    for it in range(4): a(f"ds_read_b64_tr_b16 {vr(KF0+2*it,2)}, v10 offset:{128*it}")
    for it in range(4):
        a(f"s_waitcnt lgkmcnt({3-it})")
        a(f"buffer_store_dwordx2 {vr(KF0+2*it,2)}, v11, s[{SO}:{SO+3}], s{sT2} offen")
        if it < 3: a(f"s_add_u32 s{sT2}, s{sT2}, {64*1792}")
    a("L_send:")
    st.end(0)
    a("s_endpgm")
    a(f"""
    L_aux:
    s_cmp_ge_u32 s{sIDX}, 5
    s_cbranch_scc1 L_end
    s_cmp_lg_u32 s{sIDX}, 0
    s_cbranch_scc1 L_zkv
    s_cmp_lg_u32 s{sWV}, 0
    s_cbranch_scc1 L_end
    s_memrealtime s[{sN}:{sN+1}]
    s_waitcnt lgkmcnt(0)
    s_or_b32 s{sN}, s{sN}, 1
    v_mov_b32 v8, s{sN}
    v_mov_b32 v9, s{sN+1}
    s_mov_b64 exec, 1
    global_store_dwordx2 v4, v[8:9], s[42:43] {SC}
    s_endpgm
    L_zkv:
    v_mov_b32 v8, 0
    v_mov_b32 v9, 0
    v_mov_b32 v10, 0
    v_mov_b32 v11, 0
    v_lshlrev_b32 v5, 4, v0
    s_lshl_b32 s{sT0}, s{sIDX}, 7
    s_add_u32 s{sT0}, s{sT0}, {F_Z - 128}
    s_lshl_b32 s{sT1}, s{sIDX}, 14
    s_add_u32 s{sT1}, s{sT1}, {WS_KVA - 16384}
    s_waitcnt lgkmcnt(0)
    """)
    srd(a, SWS, 44, 45, WS_SIZE)
    for i in range(4):
        a(f"buffer_store_dwordx4 v[8:11], v5, {WSR}, s{sT1} offen {SC}")
        if i < 3: a(f"s_add_u32 s{sT1}, s{sT1}, 4096")
    vm = Cnt(a, "vmcnt")
    k.init_issue(vm); k.init_check(vm)
    a(f"s_barrier\ns_cmp_lg_u32 s{sWV}, 0\ns_cbranch_scc1 L_send")
    k.flag(vm, sT0)
    a("s_branch L_send")
```

```python
import build, sys, stamp
if "--stamp" in sys.argv:
    stamp.ENABLED = True; sys.argv.remove("--stamp")
if '--dbg' in sys.argv:
    stamp.ENABLED = True; stamp.DBG = True; sys.argv.remove('--dbg')
if '--dbg2' in sys.argv:
    stamp.ENABLED = True; stamp.DBG = 2; sys.argv.remove('--dbg2')
import v6 as v2

DOC = """; ---------------------------------------------------------------------------------------------
; ---------------------------------------------------------------------------------------------
"""
hdr = open("cdna_kernels/" + build.NAME + ".s.ref").read().split("; Override launch geometry")[0]
name = build.NAME + "_kernel"
body, kd = build.kernel(name, v2.gen())
s = hdr + f"; @launch grid=(512,1,1) block=(256,1,1) lds={v2.LDS}\n" + DOC + '.amdgcn_target "amdgcn-amd-amdhsa--gfx950"\n.text\n' + body + '.section .rodata,"a"\n.p2align 6\n' + kd
out = sys.argv[1] if len(sys.argv) > 1 else "cdna_kernels/" + build.NAME + ".s"
open(out, "w").write(s)
```

```python
STAMP_OFF = 0x800000
ENABLED = False
DBG = False
SLOTS = [88, 90, 92, 94, 96, 98, 4, 6, 8, 10, 80]
class Stamper:
    def __init__(self, a, kidx, wsreg, wave_sreg):
        self.a, self.k, self.n, self.ws, self.wv = a, kidx, 0, wsreg, wave_sreg
    def start(self):
        if not ENABLED: return
        self.a("s_memrealtime s[84:85]\ns_memtime s[86:87]\ns_mov_b32 s14, s2")
    def __call__(self, i):
        if not ENABLED: return
        r = SLOTS[i]; self.a(f"s_memtime s[{r}:{r+1}]")
    def end(self, role=0):
        if not ENABLED: return
        a = self.a
        if DBG == 2:
            a("s_waitcnt vmcnt(0)\ns_memrealtime s[82:83]\ns_and_b32 s3, s14, 127\ns_cmp_lt_u32 s3, 4\ns_cbranch_scc0 L_end")
            a("s_lshr_b32 s4, s14, 7\ns_cmp_eq_u32 s4, 2\ns_cbranch_scc1 L_end\ns_lshl_b32 s3, s3, 2\ns_add_u32 s4, s4, 2\ns_and_b32 s4, s4, 3\ns_lshl_b32 s4, s4, 4")
            a("s_add_u32 s4, s4, s3\nv_mov_b32 v0, s4\nv_mov_b32 v3, s3\ns_waitcnt lgkmcnt(0)\nv_mov_b32 v1, s84\nv_mov_b32 v2, s82\ns_mov_b64 exec, 1")
            a("global_atomic_umax v0, v2, s[42:43] sc1")
            if role == 1: a("global_store_dword v3, v1, s[42:43]")
            return
        if DBG:
            a("s_waitcnt vmcnt(0)\ns_memtime s[100:101]\ns_memrealtime s[82:83]\ns_waitcnt lgkmcnt(0)")
            a("s_not_b32 s3, s84\ns_mov_b64 exec, 1\nv_mov_b32 v0, 0")
            items = [(0, "s82"), (1, "s3"), (2, "s84")]
            for w, r in items:
                a(f"v_mov_b32 v1, {r}\nglobal_atomic_umax v0, v1, s[42:43] offset:{4*w} sc1")
            sel = [(3, 1), (4, 7), (5, 9), (6, -1)] if role == 0 else [(7, 0), (8, 1), (9, 3), (10, 5), (11, 6), (12, 8), (13, 9), (14, -1)]
            for w, i in sel:
                r = SLOTS[i] if i >= 0 else 100
                a(f"s_sub_u32 s3, s{r}, s86\nv_mov_b32 v1, s3\nglobal_atomic_umax v0, v1, s[42:43] offset:{4*w} sc1")
            return
        a("s_waitcnt vmcnt(0)\ns_memtime s[100:101]\ns_memrealtime s[82:83]\ns_waitcnt lgkmcnt(0)")
        a(f"s_lshl_b32 s3, s14, 2\ns_add_u32 s3, s3, s{self.wv}\ns_lshl_b32 s3, s3, 7\ns_add_u32 s3, s3, {STAMP_OFF + self.k*0x40000}")
        a("v_mov_b32 v0, s3")
        vals = [84, 82, 86] + SLOTS + [100]
        for j, s in enumerate(vals):
            a(f"v_mov_b32 v1, s{s}")
            a(f"global_store_dword v0, v1, s[{self.ws}:{self.ws+1}] offset:{4*j}")
        a("s_getreg_b32 s3, hwreg(HW_REG_XCC_ID)\nv_mov_b32 v1, s3")
        a(f"global_store_dword v0, v1, s[{self.ws}:{self.ws+1}] offset:64")
        a("s_getreg_b32 s3, hwreg(HW_REG_HW_ID)\nv_mov_b32 v1, s3")
        a(f"global_store_dword v0, v1, s[{self.ws}:{self.ws+1}] offset:68")
```

```python
import os
from asmlib import *
from v6 import *

ROWB = 272
WREG = 53 * ROWB
KS, KSL = 4160, 16640
UBASE, UB, U0, U1 = 33280, 8256, 16, 16 + 4096 + 32
TTAB, TSTR = 66304, 1536
USTG = 57664

def gen_S(k, st):
    a = k.a
    sJB, sIDX, sCG, sHH, sKB, sFU, sIT, sPH, sKG, sFK = sA, sB, sC, sD, sE, sF, sG, sH, sI, sJ
    vm = Cnt(a, "vmcnt")
    P0 = 8
    UG, UG2 = 24, 32
    vT = 40
    IN = 56
    KA, KB_ = 60, 61
    ACC = 64; FR = 96
    E1, E8, E256, E2, E4, Wc, X0, X1, G0, G1, Y0, Y1 = [112 + 2 * i for i in range(12)]
    t0, t1, t2, t3, pk = 136, 137, 138, 139, 140
    EA = 144; AD = 153
    vFU, vFP, vGS, vGR, vGO = 157, 158, 159, 62, 63
    UR = 160
    vPW, vRR, vZF, vZU, vCW, vC4, vUW = 176, 177, 178, 179, 180, 181, 185
    vKL, vUL, vZL, vKS, vU2 = 188, 189, 59, 58, 187
    a(f"""
    L_S:
    s_setprio 3
    """)
    if os.environ.get('XMAP'):
        lo = os.environ['XMAP'] in '15'
        a(f"""
        s_lshr_b32 s{sT0}, s2, 3
        s_bfe_u32 s{sHH}, s2, 0x10002
        {f's_xor_b32 s{sHH}, s{sHH}, 1' if lo else ''}
        s_and_b32 s{sT1}, s2, 3
        s_lshl_b32 s{sIDX}, s{sT0}, 3
        s_and_b32 s{sT2}, s2, 7
        s_add_u32 s{sIDX}, s{sIDX}, s{sT2}
        s_sub_u32 s{sIDX}, s{sIDX}, 224
        s_cmp_ge_u32 s{sT0}, 28
        s_cbranch_scc1 L_aux
        {'s_endpgm' if os.environ.get('SKIP_S') else ''}
        s_mul_i32 s{sCG}, s{sT1}, 28
        s_add_u32 s{sCG}, s{sCG}, s{sT0}
        s_lshr_b32 s{sJB}, s{sCG}, 4
        s_and_b32 s{sIDX}, s{sCG}, 15
        s_lshl_b32 s{sT0}, s{sHH}, 4
        s_add_u32 s{sIDX}, s{sIDX}, s{sT0}
        """)
    else:
        a(f"""
    s_and_b32 s{sJB}, s2, 7
    s_lshr_b32 s{sIDX}, s2, 3
    s_cmp_eq_u32 s{sJB}, 7
    s_cbranch_scc1 L_aux
    {'s_endpgm' if os.environ.get('SKIP_S') else ''}
    s_lshl_b32 s{sT0}, s{sJB}, 4
    s_and_b32 s{sCG}, s{sIDX}, 15
    s_add_u32 s{sCG}, s{sCG}, s{sT0}
    s_lshr_b32 s{sHH}, s{sIDX}, 4
        """)
    a(f"""
    s_lshl_b32 s{sKG}, s{sCG}, 1
    s_add_u32 s{sKG}, s{sKG}, s{sHH}
    v_and_b32 v{t0}, 31, v2
    """)
    a(f"""
    s_cmp_eq_u32 s{sWV}, 1
    s_cselect_b32 s{sT0}, 4, 8
    s_cselect_b32 s{sT3}, 2, 8
    s_cselect_b32 s{sT4}, 256, 0
    s_cselect_b32 s{sPH}, 384, 4
    s_cmp_eq_u32 s{sWV}, 2
    s_cselect_b32 s{sT0}, 1, s{sT0}
    s_cselect_b32 s{sT3}, 1, s{sT3}
    s_cselect_b32 s{sT4}, 512, s{sT4}
    s_cselect_b32 s{sPH}, 640, s{sPH}
    s_cselect_b32 s{sIT}, 32, 1
    v_mul_u32_u24 v{AD}, s{sT0}, v{t0}
    v_add_u32 v{AD}, s{sT4}, v{AD}
    v_mul_u32_u24 v{AD+1}, s{sT3}, v{t0}
    v_add_u32 v{AD+1}, s{sPH}, v{AD+1}
    v_cmp_gt_u32 vcc, 32, v2
    s_lshl_b32 s{sT0}, s{sIT}, 1
    s_cmp_eq_u32 s{sWV}, 0
    s_cselect_b32 s{sT3}, 2, 64
    v_mov_b32 v{t2}, s{sT3}
    v_mov_b32 v{t3}, s{sT0}
    v_cndmask_b32 v{AD}, v{AD+1}, v{AD}, vcc
    v_cndmask_b32 v{t3}, v{t2}, v{t3}, vcc
    v_add_u32 v{AD+1}, s{sIT}, v{AD}
    v_add_u32 v{AD+2}, v{AD}, v{t3}
    v_add_u32 v{AD+3}, s{sIT}, v{AD+2}
    v_mov_b32 v{t3}, {TTAB}
    """)
    for i in range(4): a(f"v_lshl_add_u32 v{AD+i}, v{AD+i}, 1, v{t3}")
    a(f"v_lshlrev_b32 v{t2}, 3, v0\nv_sub_u32 v{t2}, 2047, v{t2}")
    for e in range(9):
        a(f"v_subrev_u32 v{EA+e}, {e}, v{t2}")
        a(f"v_cvt_f32_i32 v{FR+e}, v{EA+e}")
    for e in range(0, 10, 2):
        a(f"v_cvt_pk_bf16_f32 v{FR+e}, v{FR+e}, v{FR+min(e+1,8)}")
        if e < 8: a(f"v_lshrrev_b32 v{FR+e+1}, 16, v{FR+e}")
        a(f"v_and_b32 v{FR+e}, 0xffff, v{FR+e}")
    for e in range(9):
        if e in (0, 8): a(f"v_cmp_gt_i32 vcc, 128, v{EA+e}")
        a(f"v_subrev_u32 v{FR+e}, 17024, v{FR+e}")
        a(f"v_cndmask_b32 v{EA+e}, v{FR+e}, v{EA+e}, vcc")
        a(f"v_lshl_add_u32 v{EA+e}, v{EA+e}, 1, v{t3}")
    a(f"""
    v_and_b32 v5, 3, v2
    v_sub_u32 v5, 3, v5
    v_mul_u32_u24 v{vKL}, {KS}, v5
    v_lshrrev_b32 v6, 4, v2
    v_lshl_add_u32 v{vKL}, v6, 4, v{vKL}
    v_bfe_u32 v7, v2, 2, 2
    v_lshlrev_b32 v7, 4, v7
    v_sub_u32 v{vKL}, v{vKL}, v7
    s_and_b32 s{sT0}, s{sWV}, 1
    s_lshl_b32 s{sT0}, s{sT0}, 8
    s_lshr_b32 s{sT3}, s{sWV}, 1
    s_mul_i32 s{sT3}, s{sT3}, {KSL}
    s_add_u32 s{sT3}, s{sT3}, {2*(2040-1792)}
    s_sub_u32 s{sT3}, s{sT3}, s{sT0}
    v_add_u32 v{vKL}, s{sT3}, v{vKL}
    v_and_b32 v5, 1, v2
    v_sub_u32 v5, 1, v5
    v_mul_u32_u24 v{vZL}, {U1-U0}, v5
    v_add_u32 v{vZL}, {UBASE}, v{vZL}
    v_bfe_u32 v5, v2, 1, 3
    v_lshl_add_u32 v{vUL}, v5, 6, v{vZL}
    v_lshl_add_u32 v{vUL}, v6, 4, v{vUL}
    s_sub_u32 s{sT3}, 16, s{sT0}
    v_add_u32 v{vUL}, s{sT3}, v{vUL}
    """)
    a(f"""
    s_lshl_b32 s{sT1}, s{sKG}, 10
    s_lshl_b32 s{sT2}, s{sWV}, 7
    s_add_u32 s{sT1}, s{sT1}, s{sT2}
    v_lshrrev_b32 v7, 5, v2
    v_lshlrev_b32 v5, 2, v{t0}
    v_lshl_add_u32 v6, v7, 9, v5
    v_add_u32 v{vT}, s{sT1}, v6
    s_lshl_b32 s{sT1}, s{sKG}, 2
    v_lshl_add_u32 v6, v7, 1, s{sT1}
    s_lshl_b32 s{sT1}, s{sIDX}, 2
    s_add_u32 s{sT1}, s{sT1}, s{sWV}
    s_mul_i32 s{sT1}, s{sT1}, {16*896}
    s_lshl_b32 s{sT2}, s{sJB}, 7
    s_add_u32 s{sT1}, s{sT1}, s{sT2}
    v_mul_u32_u24 v7, {8*896}, v7
    v_add3_u32 v7, v7, v5, s{sT1}
    v_add_u32 v5, {4*896}, v7
    s_waitcnt lgkmcnt(0)
    """)
    st(0)
    PR = P0 + 8
    a(f"global_load_short_d16_hi v{P0+6}, v6, s[30:31]")
    for i in range(6): a(f"global_load_dword v{PR+i}, v{vT}, s[{18+2*i}:{19+2*i}] nt")
    a(f"global_load_short_d16_hi v{P0+7}, v6, s[32:33]")
    k.init_issue(vm)
    UG, UG2 = 160, 80
    for i in range(8): a(f"global_load_dword v{UG2+i}, v{7 if i < 4 else 5}, s[16:17] offset:{(i%4)*896} nt")
    a(f"s_setprio {os.environ.get('SPRIO', 2)}")
    srd(a, SWS, 44, 45, WS_SIZE)
    srd(a, SO, 40, 41, 2048 * 1792)
    a("s_memrealtime s[12:13]")
    a(f"""
    s_mul_i32 s{sKB}, s{sWV}, {WREG}
    v_and_b32 v{t0}, 31, v2
    v_lshrrev_b32 v{t1}, 5, v2
    v_lshlrev_b32 v{t1}, 4, v{t1}
    v_add_u32 v{t1}, s{sKB}, v{t1}
    v_min_u32 v{t2}, 20, v{t0}
    v_mul_u32_u24 v{t2}, {ROWB}, v{t2}
    v_add_u32 v{KA}, v{t2}, v{t1}
    v_mul_u32_u24 v{t2}, {ROWB}, v{t0}
    v_add_u32 v{KB_}, v{t2}, v{t1}
    s_mov_b32 m0, s{sKB}
    v_add_u32 v{vPW}, s{sKB}, v3
    s_lshl_b32 s{sT0}, s{sWV}, 10
    v_add_u32 v{vRR}, s{sT0}, v3
    v_mul_u32_u24 v{vGS}, 288, v{t0}
    v_lshrrev_b32 v{t2}, 5, v2
    v_lshl_add_u32 v{vGS}, v{t2}, 4, v{vGS}
    s_mov_b32 s{sFK}, 0x05040100
    v_mov_b32 v{PR+6}, s{sFK}
    s_mov_b32 s{sFK}, 0x07060302
    v_mov_b32 v{PR+7}, s{sFK}
    s_lshl_b32 s{sT0}, s{sWV}, 5
    s_add_u32 s{sT0}, s{sT0}, {USTG}
    v_add_u32 v{vGS}, s{sT0}, v{vGS}
    v_lshrrev_b32 v{t2}, 3, v2
    v_and_b32 v{t3}, 7, v2
    v_lshrrev_b32 v{vGO}, 3, v2
    v_and_b32 v{vZF}, 7, v2
    v_mul_u32_u24 v{vGR}, 144, v{vGO}
    v_lshl_add_u32 v{vGR}, v{vZF}, 4, v{vGR}
    s_mul_i32 s{sT0}, s{sWV}, {16*144}
    s_add_u32 s{sT0}, s{sT0}, {USTG}
    v_add_u32 v{vGR}, s{sT0}, v{vGR}
    v_lshlrev_b32 v{vGO}, 12, v{vGO}
    v_lshl_add_u32 v{vGO}, v{vZF}, 4, v{vGO}
    v_mul_u32_u24 v{vZF}, {KS}, v{t2}
    v_lshl_add_u32 v{vZF}, v{t3}, 3, v{vZF}
    v_add_u32 v{vZF}, 4088, v{vZF}
    v_and_b32 v{t3}, 23, v2
    v_cmp_eq_u32 vcc, 0, v{t3}
    v_add_u32 v{t3}, 56, v{vZF}
    v_bfe_u32 v{vZU}, v2, 1, 2
    v_mul_u32_u24 v{vZU}, {UB}, v{vZU}
    v_cndmask_b32 v{vZF}, v{vZF}, v{t3}, vcc
    v_and_b32 v{t3}, 1, v2
    v_mul_u32_u24 v{t3}, {U1-U0}, v{t3}
    v_add3_u32 v{vZU}, v{vZU}, v{t3}, s{sT0}
    s_add_u32 s{sT0}, s{sT0}, {-UBASE & 0xffffffff}
    v_subrev_u32 v{vZU}, s{sT0}, v{vZU}
    s_lshl_b32 s{sT0}, s{sJB}, 2
    s_add_u32 s{sT0}, s{sT0}, s{sWV}
    s_lshl_b32 s{sT1}, s{sT0}, 16
    s_lshl_b32 s{sT2}, s{sIDX}, 7
    s_add_u32 s{sT1}, s{sT1}, s{sT2}
    s_add_u32 s{sT1}, s{sT1}, {WS_UT}
    s_lshl_b32 s{sT0}, s{sT0}, 5
    s_add_u32 s{sT0}, s{sT0}, s{sIDX}
    s_lshl_b32 s{sT0}, s{sT0}, 7
    s_add_u32 s{sFU}, s{sT0}, {F_UT}
    s_lshr_b32 s{sT0}, s{sCG}, 2
    s_lshl_b32 s{sT0}, s{sT0}, 12
    s_add_u32 s{sT0}, s{sT0}, {F_UT}
    s_cmp_eq_u32 s{sHH}, 1
    s_cselect_b32 s{sT3}, {31 if os.environ.get('TSB') else 15}, 31
    v_and_b32 v{vFU}, s{sT3}, v2
    v_lshlrev_b32 v{vFU}, 7, v{vFU}
    v_add_u32 v{vFU}, s{sT0}, v{vFU}
    s_xor_b32 s{sT0}, s{sKG}, 1
    s_lshl_b32 s{sT0}, s{sT0}, 9
    s_add_u32 s{sT0}, s{sT0}, {F_KF}
    v_and_b32 v{vFP}, 3, v2
    v_lshlrev_b32 v{vFP}, 7, v{vFP}
    v_add_u32 v{vFP}, s{sT0}, v{vFP}
    s_lshl_b32 s{sT0}, s{sKG}, 2
    s_add_u32 s{sT0}, s{sT0}, s{sWV}
    s_lshl_b32 s{sT0}, s{sT0}, 7
    s_add_u32 s{sFK}, s{sT0}, {F_KF}
    v_lshlrev_b32 v{vCW}, 4, v0
    s_mul_i32 s{sT3}, s{sHH}, 0x7fff0000
    v_add_u32 v{vU2}, s{sT3}, v3
    s_cmp_eq_u32 s{sHH}, 0
    s_cselect_b32 s{sT3}, 2048, 0
    v_mov_b32 v{vKS}, 0x7fff0000
    v_cmp_le_u32 vcc, s{sT3}, v{vCW}
    v_cndmask_b32 v{vKS}, v{vKS}, v{vCW}, vcc
    v_add_u32 v{vC4}, {2*KS-8}, v{vCW}
    v_add_u32 v{vC4+1}, {3*KS-8}, v{vCW}
    v_add_u32 v{vC4+2}, {KSL+2*KS-8}, v{vCW}
    v_add_u32 v{vC4+3}, {KSL+3*KS-8}, v{vCW}
    s_mul_i32 s{sT0}, s{sWV}, {UB}
    s_add_u32 s{sT0}, s{sT0}, {UBASE}
    v_add_u32 v{vUW}, s{sT0}, v3
    """)
    st(1)
    X = os.environ.get('SX', '')
    if X == '1': a('s_waitcnt vmcnt(0)\ns_endpgm')
    def kgen(c):
        P = P0 + 8 * c
        AC = ACC + 16 * c
        P = P0
        if c == 0:
            a(f"""
            s_waitcnt vmcnt(9)
            v_mul_f32 v{P+6}, {LOG2E}, v{P+6}
            v_exp_f32 v{P+6}, v{P+6}
            v_cvt_pk_bf16_f32 v{P+6}, v{P+6}, v{P+6}
            v_lshlrev_b32 v{P+6}, 16, v{P+6}
            """)
        for i in range(6):
            a(f"v_lshlrev_b32 v{P+i}, 16, v{PR+i}" if c == 0 else f"v_and_b32 v{P+i}, 0xffff0000, v{PR+i}")
        a(f"""
        v_mul_f32 v{t1}, v{P+6}, v{P}
        v_mul_f32 v{t2}, v{P+6}, v{P+1}
        v_mul_f32 v{t1}, {LOG2E}, v{t1}
        v_mul_f32 v{t2}, {INV2PI}, v{t2}
        v_mul_f32 v{P+2}, v{P+6}, v{P+2}
        v_mul_f32 v{P+3}, v{P+6}, v{P+3}
        """)
        cmul(a, Wc, P + 4, P + 2)
        for (E, m, cj) in ((E8, 8.0, True), (E1, 1.0, False), (E256, 256.0, False)):
            if m != 1.0:
                a(f"v_mul_f32 v{t0}, {f2u(m)}, v{t1}\nv_mul_f32 v{t3}, {f2u(m)}, v{t2}\nv_exp_f32 v{t0}, v{t0}\nv_fract_f32 v{t3}, v{t3}")
            else:
                a(f"v_exp_f32 v{t0}, v{t1}\nv_fract_f32 v{t3}, v{t2}")
            a(f"""
            v_cos_f32 v{E}, v{t3}
            v_sin_f32 v{E+1}, v{t3}
            v_mul_f32 v{E}, v{E}, v{t0}
            v_mul_f32_e64 v{E+1}, {'-' if cj else ''}v{E+1}, v{t0}
            """)
        cmul(a, E2, E1, E1); cmul(a, E4, E2, E2)
        yield "head"
        cnt = [0]
        def put(row, src):
            r = pk + (cnt[0] & 3); cnt[0] += 1
            a(f"v_cvt_pk_bf16_f32 v{r}, v{src}, v{src+1}")
            a(f"ds_write_addtid_b32 v{r} offset:{row * ROWB}")
        if c == 0:
            a(f"v_mov_b32 v{t0}, 0x3f80")
            a(f"ds_write_addtid_b32 v{t0} offset:{21*ROWB}")
        put(22, E8); put(0, Wc)
        fine, cur = [], E8
        for f in range(2, 32):
            nxt = X0 if cur != X0 else X1
            fine.append((nxt, cur, E8, 21 + f)); cur = nxt
        coarse, cur = [], Wc
        for cc in range(1, 8):
            nxt = Y0 if cur != Y0 else Y1
            coarse.append((nxt, cur, E1, cc)); cur = nxt
        coarse.append((G0, Wc, E256, 8)); cur = G0
        for cc in range(1, 4):
            nxt = Y0 if cur != Y0 else Y1
            coarse.append((nxt, cur, E2, 8 + cc)); cur = nxt
        coarse += [(G1, G0, E256, 12), (Y0, G1, E4, 13), (G0, G1, E256, 14), (Y0, G0, E4, 15)]
        g = G0
        for i in range(5):
            n = G1 if g == G0 else G0
            coarse.append((n, g, E256, 16 + i)); g = n
        seq = []
        for i in range(max(len(fine), len(coarse))):
            if i < len(fine): seq.append(fine[i])
            if i < len(coarse): seq.append(coarse[i])
        for n, (d, x, y, row) in enumerate(seq):
            cmul(a, d, x, y); put(row, d)
            if n == (int(os.environ.get('MID', 16)) if c == 0 else int(os.environ.get('MID1', 24))): yield "mid"
            if c == 0 and n == int(os.environ.get('FLG', 49)): yield "end"
        a("s_waitcnt lgkmcnt(0)")
        bufs = [FR, FR + 8, vT, vT + 8]
        for jj in range(4):
            a(f"ds_read_b128 {vr(bufs[jj],4)}, v{KA} offset:{32*jj}")
            a(f"ds_read_b128 {vr(bufs[jj]+4,4)}, v{KB_} offset:{21*ROWB+32*jj}")
        yield "reads"
        for j in range(8):
            fb = bufs[j & 3]
            a(f"s_waitcnt lgkmcnt({6 if j < 5 else 2*(7-j)})")
            AC = ACC + 16 * (j >> 2)
            a(f"v_mfma_f32_32x32x16_bf16 {vr(AC,16)}, {vr(fb,4)}, {vr(fb+4,4)}, {'0' if (c == 0 and j & 3 == 0) else vr(AC,16)}")
            if j + 4 < 8:
                a(f"ds_read_b128 {vr(fb,4)}, v{KA} offset:{32*(j+4)}")
                a(f"ds_read_b128 {vr(fb+4,4)}, v{KB_} offset:{21*ROWB+32*(j+4)}")
        yield "done"
    def gate(n):
        if os.environ.get('GATE') != str(n): return
        a(f"s_cmp_eq_u32 s{sHH}, 0\ns_cbranch_scc1 L_gate\ns_lshl_b32 s{sT0}, s2, 7\ns_add_u32 s{sT0}, s{sT0}, {F_L}\nv_mov_b32 v{vT+14}, s{sT0}")
        k.poll(Cnt(a, "vmcnt"), vT + 14, vT + 12, slp=4)
        a("L_gate:")
    g0, g1 = kgen(0), kgen(1)
    next(g0)
    next(g0)
    a("s_waitcnt vmcnt(0)")
    vm.drain()
    k.init_check(vm)
    for i in range(4):
        a(f"v_perm_b32 v{UG+i}, v{UG2+2*i+1}, v{UG2+2*i}, v{PR+6}")
        a(f"v_perm_b32 v{UG+4+i}, v{UG2+2*i+1}, v{UG2+2*i}, v{PR+7}")
    for i in range(2): a(f"ds_write_b128 v{vGS}, {vr(UG+4*i,4)} offset:{144*i}")
    a("s_waitcnt lgkmcnt(0)\ns_barrier")
    for i in range(2): a(f"ds_read_b128 {vr(UG+4*i,4)}, v{vGR} offset:{8*144*i}")
    for i in range(2):
        a(f"s_waitcnt lgkmcnt({1-i})")
        a(f"buffer_store_dwordx4 {vr(UG+4*i,4)}, v{vGO}, {WSR}, s{sT1} offen {SC}")
        if i < 1: a(f"s_add_u32 s{sT1}, s{sT1}, 32768")
    next(g0)
    a("s_waitcnt vmcnt(0)")
    k.flag(Cnt(a, "vmcnt"), sFU)
    if os.environ.get('SKP'): a(f"s_cmp_eq_u32 s{sHH}, 0\ns_cbranch_scc1 L_skp\ns_setprio {os.environ['SKP']}\nL_skp:")
    next(g0)
    st(2)
    if X == '2': a('s_endpgm')
    next(g1)
    a(f"v_readlane_b32 s{sT0}, v{P0+7}, 32\nv_cmp_eq_u32 vcc, 0, v0\nv_mov_b32 v{PR+7}, s{sT0}\nv_cndmask_b32 v{P0+7}, 0, v{P0+7}, vcc\nv_cndmask_b32 v{PR+7}, 0, v{PR+7}, vcc")
    next(g0)
    st(3)
    gate(2)
    next(g1)
    gate(4)
    a(f"""
    s_lshl_b32 s{sT0}, s{sCG}, 2
    s_add_u32 s{sT0}, s{sT0}, s{sWV}
    s_lshl_b32 s{sT0}, s{sT0}, 12
    s_add_u32 s{sT4}, s{sT0}, {WS_UT}
    """)
    if os.environ.get('UEARLY'): a(k.poll_ld(vFU, IN))
    next(g1)
    st(4)
    ul = "\n".join(f"buffer_load_dwordx4 {vr(UR+4*i,4)}, v{3 if i < 2 else vU2}, {WSR}, s{sT4} offen offset:{1024*i} {SC}" for i in range(4))
    if not os.environ.get('UEARLY'): a(k.poll_ld(vFU, IN))
    else:
        a(f"""
    s_waitcnt vmcnt(0)
    {k.poll_cmp(IN)}
    s_mov_b64 s[{sC1}:{sC1+1}], vcc
    s_cmp_eq_u64 vcc, 0
    s_cbranch_scc0 L_ulate
    {ul}
    s_branch L_nopoll2
    L_ulate:
    {k.poll_ld(vFU, IN)}
    L_nopoll2:
    """)
    next(g1)
    st(6)
    gate(3)
    if X == '3': a('s_endpgm')
    for c in range(2):
        for q in range(3):
            a(f"ds_write_b128 v{vPW}, {vr(ACC+16*c+4*q,4)} offset:{(3*c+q)*1024}")
    if not os.environ.get('UEARLY'):
        a(f"""
    s_waitcnt vmcnt(0)
    {k.poll_cmp(IN)}
    s_mov_b64 s[{sC1}:{sC1+1}], vcc
    s_cmp_eq_u64 vcc, 0
    s_cbranch_scc0 L_ulate
    {ul}
    s_branch L_nopoll2
    L_ulate:
    {k.poll_ld(vFU, IN)}
    L_nopoll2:
    """)
    a(f"""
    s_lshl_b32 s{sT1}, s{sKG}, 13
    s_add_u32 s{sT1}, s{sT1}, {WS_KF}
    s_add_u32 s{sT2}, s{sT1}, 4096
    s_cmp_eq_u32 s{sWV}, 3
    s_waitcnt lgkmcnt(0)
    s_barrier
    s_cbranch_scc1 L_nored
    """)
    RD = ACC
    for c in range(2):
        for w in range(4):
            a(f"ds_read_b128 {vr(RD+16*c+4*w,4)}, v{vRR} offset:{w*WREG + c*3072}")
    for c in range(2):
        a("s_waitcnt lgkmcnt(4)")
        b = RD + 16 * c
        a(f"""
        v_add_f32 v{b}, v{P0+8*c+7}, v{b}
        v_add_f32 v{b+0}, v{b+0}, v{b+4}
        v_add_f32 v{b+8}, v{b+8}, v{b+12}
        v_add_f32 v{b+1}, v{b+1}, v{b+5}
        v_add_f32 v{b+9}, v{b+9}, v{b+13}
        v_add_f32 v{b+2}, v{b+2}, v{b+6}
        v_add_f32 v{b+10}, v{b+10}, v{b+14}
        v_add_f32 v{b+3}, v{b+3}, v{b+7}
        v_add_f32 v{b+11}, v{b+11}, v{b+15}
        v_add_f32 v{b+0}, v{b+0}, v{b+8}
        v_add_f32 v{b+1}, v{b+1}, v{b+9}
        v_add_f32 v{b+2}, v{b+2}, v{b+10}
        v_add_f32 v{b+3}, v{b+3}, v{b+11}
        v_cvt_pk_bf16_f32 v{b}, v{b}, v{b+1}
        v_cvt_pk_bf16_f32 v{b+1}, v{b+2}, v{b+3}
        ds_write_b16 v{AD}, v{b} offset:{c*TSTR}
        ds_write_b16_d16_hi v{AD+1}, v{b} offset:{c*TSTR}
        ds_write_b16 v{AD+2}, v{b+1} offset:{c*TSTR}
        ds_write_b16_d16_hi v{AD+3}, v{b+1} offset:{c*TSTR}
        """)
    a(f"""
    L_nored:
    v_mov_b32 v{vT}, 0
    v_mov_b32 v{vT+1}, 0
    v_mov_b32 v{vT+2}, 0
    v_mov_b32 v{vT+3}, 0
    v_cmp_eq_u32 vcc, 255, v0
    s_waitcnt lgkmcnt(0)
    s_barrier
    """)
    GE = 96
    CW = 64
    for c in range(2):
        for e in range(9):
            a(f"ds_read_u16 v{GE+10*c+e}, v{EA+e} offset:{c*TSTR}")
    a(f"ds_write_b64 v{vZF}, {vr(vT,2)}\nds_write_b128 v{vZU}, {vr(vT,4)}")
    a(f"s_lshl_b32 s{sT0}, s{sHH}, 1\ns_cmp_lt_u32 s{sWV}, s{sT0}")
    def kwrite(addr, a4, q0, q1, off, off8=0):
        a(f"ds_write_b128 v{addr}, {vr(q0,4)} offset:{off}")
        a(f"ds_write2_b64 v{a4}, {vr(q0,2)}, {vr(q0+2,2)} offset0:{off8} offset1:{off8+1}")
        a(f"ds_write_b128 v{addr}, {vr(q1,4)} offset:{off+KS}")
        a(f"ds_write2_b64 v{a4+1}, {vr(q1,2)}, {vr(q1+2,2)} offset0:{off8} offset1:{off8+1}")
    for c in range(2):
        g = GE + 10 * c
        a(f"s_waitcnt lgkmcnt({11 if c == 0 else 2})")
        for i in range(4): a(f"v_lshl_or_b32 v{CW+8*c+i}, v{g+2*i+1}, 16, v{g+2*i}")
        a(f"s_mov_b64 exec, s[{sC1+0}:{sC1+1}]" if False else "")
        a(f"buffer_store_dwordx4 {vr(CW+8*c,4)}, v{vKS}, {WSR}, s{sT1 if c == 0 else sT2} offen {SC}")
        a(f"v_cndmask_b32 v{g+8}, v{g+8}, 0, vcc")
        for i in range(4): a(f"v_lshl_or_b32 v{CW+8*c+4+i}, v{g+2*i+2}, 16, v{g+2*i+1}")
        a(f"s_cbranch_scc1 L_skw{c}")
        kwrite(vCW, vC4 + 2 * c, CW + 8 * c, CW + 8 * c + 4, c * KSL)
        a(f"L_skw{c}:")
    a(f"s_cmp_eq_u64 s[{sC1}:{sC1+1}], 0\ns_cbranch_scc1 L_haveu")
    vm.drain(); vm.q = ["poll"]
    k.poll(vm, vFU, IN, issued=True)
    a(ul + "\nL_haveu:\ns_waitcnt vmcnt(0)")
    k.flag(Cnt(a, "vmcnt"), sFK)
    st(5)
    UB_ = 80
    for i in range(4):
        b = UR + 4 * i; d = UB_ + 4 * i
        if i == 2: a(f"s_cmp_eq_u32 s{sHH}, 1\ns_cbranch_scc1 L_sku")
        a(f"ds_write_b128 v{vUW}, {vr(b,4)} offset:{U0 + 1024*i}")
        if i == 0: a(f"v_mov_b32 v{d}, 0")
        else: a(f"v_readlane_b32 s{sT0}, v{b-1}, 63")
        for q in range(3): a(f"v_mov_b32 v{d+1+q}, v{b+q}")
        if i: a(f"v_mov_b32 v{d}, s{sT0}")
        a(f"v_mov_b32_dpp v{d}, v{b+3} wave_shr:1 row_mask:0xf bank_mask:0xf")
        a(f"ds_write_b128 v{vUW}, {vr(d,4)} offset:{U1 + 1024*i}")
    a("L_sku:")
    vKA, vUA, vU0, vZ, vXS, vXR, vSG, vPL = 5, 6, 7, 8, 9, 10, 11, 12
    A = 16; KF0, UF0 = 48, 112
    PKR = 176
    STG, SS = 66304, 2112
    sMK = sIDX
    a(f"""
    s_setprio {os.environ.get('SPRIO2', 1)}
    {f"s_cmp_eq_u32 s{sHH}, 0" if os.environ.get('SKP2') else ''}
    {"s_cbranch_scc1 L_skp2" if os.environ.get('SKP2') else ''}
    {f"s_setprio {os.environ.get('SKP2')}" if os.environ.get('SKP2') else ''}
    L_skp2:
    v_mov_b32 v{vPL}, v{vFP}
    v_mov_b32 v32, v{vZL}
    s_lshr_b32 s{sT0}, s{sWV}, 1
    s_lshl_b32 s{sT2}, s{sHH}, 1
    s_add_u32 s{sJB}, s{sT0}, s{sT2}
    s_mul_i32 s{sKB}, s{sJB}, {UB}
    s_and_b32 s{sT1}, s{sWV}, 1
    s_lshl_b32 s{sT2}, s{sT1}, 11
    s_add_u32 s{sT3}, s{sKB}, {UBASE}
    s_add_u32 s{sT4}, s{sT3}, s{sT2}
    v_add_u32 v{vXS}, s{sT4}, v3
    s_add_u32 s{sT3}, s{sT3}, 2048
    s_sub_u32 s{sT3}, s{sT3}, s{sT2}
    v_add_u32 v{vXR}, s{sT3}, v3
    v_bfe_u32 v{vSG}, v2, 1, 3
    v_lshlrev_b32 v{vSG}, 6, v{vSG}
    v_lshrrev_b32 v13, 4, v2
    v_lshl_add_u32 v{vSG}, v13, 4, v{vSG}
    v_and_b32 v13, 1, v2
    v_lshl_add_u32 v{vSG}, v13, 2, v{vSG}
    s_lshl_b32 s{sT4}, s{sT1}, 10
    s_add_u32 s{sT4}, s{sT4}, {STG}
    v_add_u32 v{vSG}, s{sT4}, v{vSG}
    s_xor_b32 s{sFU}, s{sKG}, 1
    s_lshl_b32 s{sFU}, s{sFU}, 13
    s_lshl_b32 s{sT3}, s{sWV}, 11
    s_add_u32 s{sFU}, s{sFU}, s{sT3}
    s_add_u32 s{sFU}, s{sFU}, {WS_KF}
    s_mul_i32 s{sFK}, s{sT0}, {KSL}
    s_add_u32 s{sFK}, s{sFK}, s{sT2}
    s_sub_u32 s{sMK}, s{sT1}, 1
    s_and_b32 s{sT3}, s{sMK}, {0 if os.environ.get('TSB') else 's%d' % sHH}
    s_mul_i32 s{sT4}, s{sT3}, 4096
    s_mul_i32 s{sT3}, s{sT3}, 0x7fff0000
    v_add_u32 v38, s{sT3}, v3
    v_mov_b32 v39, 0x7fff0000
    v_cmp_le_u32 vcc, s{sT4}, v3
    v_cndmask_b32 v39, v39, v3, vcc
    s_mov_b32 s{sPH}, 0
    v_mov_b32 v{vKA}, v{vKL}
    v_add_u32 v{vUA}, s{sKB}, v{vUL}
    v_add_u32 v{vZ}, s{sKB}, v32
    v_max_i32 v{vU0}, v{vZ}, v{vUA}
    s_mov_b32 s{sIT}, 0
    {k.poll_ld(vPL, 14)}
    s_cmp_eq_u32 s{sHH}, 1
    s_waitcnt lgkmcnt(0)
    s_barrier
    """)
    st(7)
    if X == '4': a('s_endpgm')
    a("s_cbranch_scc1 L_cv1pre")
    TS = {0: [4, 5, 6, 7], 1: [0, 1, 2, 3]} if not os.environ.get('TSB') else {0: [2, 5, 6, 7], 1: [0, 1, 3, 4]}
    def loadlist(s, H):
        L = []; K_, U_ = KF0 + 32 * s, UF0 + 32 * s
        for x in range(max(TS[H]) + 1):
            L.append(f"ds_read_b128 {vr(U_+4*x,4)}, v{vU0 if x == 0 else vUA} offset:{512*x}")
            L.append(f"ds_read_b128 {vr(K_+4*x,4)}, v{vKA} offset:{512*(7-x)}")
        return L
    stepL = [f"v_subrev_u32 v{vKA}, 64, v{vKA}", f"v_subrev_u32 v{vUA}, 64, v{vUA}", f"v_max_i32 v{vU0}, v{vZ}, v{vUA}"]
    kl = f"""
    buffer_load_dwordx4 {vr(PKR,4)}, v38, {WSR}, s{sFU} offen {SC}
    buffer_load_dwordx4 {vr(PKR+6,4)}, v39, {WSR}, s{sFU} offen offset:1024 {SC}
    buffer_load_dword v{PKR+11}, off, {WSR}, s{sFU} offset:2048 {SC}
    """
    for H in (0, 1):
        a(f"L_cv{H}pre:")
        if H == 0: pass
        for l in loadlist(0, H) + stepL: a(l)
        for i in range(16): a(f"v_mov_b32 v{A+i}, 0")
        a(f"L_cv{H}:")
        for s_ in range(2):
            L = loadlist(1 - s_, H); nl = len(L)
            K_, U_ = KF0 + 32 * s_, UF0 + 32 * s_
            prs = [(c, mt - c, n) for n, mt in enumerate(TS[H]) for c in range(mt + 1)]
            prs.sort(key=lambda x: (max(x[0], x[1]), x[2]))
            issued = 0; done = -1
            L2 = L + stepL
            st0 = 4 if H == 0 else 0
            for n, (c, m, tn) in enumerate(prs):
                need = max(c, m)
                if need > done:
                    a(f"s_waitcnt lgkmcnt({min(15, nl - 2*(need+1) + min(issued, nl))})"); done = need
                acc = vr(A + 4 * tn, 4)
                a(f"v_mfma_f32_16x16x32_bf16 {acc}, {vr(K_+4*c,4)}, {vr(U_+4*m,4)}, {acc}")
                if n >= st0 and issued < len(L2): a(L2[issued]); issued += 1
            while issued < len(L2): a(L2[issued]); issued += 1
        a(f"""
        s_add_u32 s{sIT}, s{sIT}, 1
        s_cmp_eq_u32 s{sIT}, 2
        s_cbranch_scc1 L_cvdone
        s_cmp_eq_u32 s{sPH}, 1
        s_cbranch_scc1 L_cv{H}
        s_waitcnt vmcnt(0)
        {k.poll_cmp(14)}
        s_mov_b64 s[{sC1}:{sC1+1}], vcc
        s_cmp_eq_u64 vcc, 0
        s_cbranch_scc0 L_late{H}
        {kl}
        s_branch L_cv{H}
        L_late{H}:
        {k.poll_ld(vPL, 14)}
        s_branch L_cv{H}
        """)
    a(f"""
    L_cvdone:
    s_cmp_eq_u32 s{sPH}, 1
    s_cbranch_scc1 L_ph1
    s_cmp_eq_u64 s[{sC1}:{sC1+1}], 0
    s_cbranch_scc1 L_havek
    """)
    vm.drain(); vm.q = ["poll"]
    k.poll(vm, vPL, 14, issued=True)
    a(kl + "L_havek:")
    st(8)
    a("s_waitcnt lgkmcnt(0)\ns_barrier\nL_ph1:")
    a(f"s_mul_i32 s{sT0}, s{sJB}, {SS}\nv_add_u32 v33, s{sT0}, v{vSG}")
    a(f"s_bitcmp1_b32 s{sWV}, 0\ns_cbranch_scc1 L_xodd")
    def exch(keep, send):
        for q in range(2): a(f"ds_write_b128 v{vXS}, {vr(send+4*q,4)} offset:{1024*q}")
        a(f"s_cmp_eq_u32 s{sPH}, 1\ns_cbranch_scc1 L_nok{keep}")
        if keep == A: a(f"s_cmp_eq_u32 s{sHH}, 1\ns_cbranch_scc1 L_nok{keep}")
        a(f"""
        v_add_u32 v13, s{sFK}, v3
        v_add_u32 v14, {2*KS-8}, v13
        v_add_u32 v15, {3*KS-8}, v13
        s_waitcnt vmcnt(0)
        v_and_b32 v{PKR+10}, s{sMK}, v{PKR+11}
        v_readlane_b32 s{sT0}, v{PKR+6}, 0
        v_mov_b32_dpp v{PKR+10}, v{PKR+6} wave_shl:1 row_mask:0xf bank_mask:0xf
        v_mov_b32 v{PKR+4}, s{sT0}
        v_mov_b32_dpp v{PKR+4}, v{PKR} wave_shl:1 row_mask:0xf bank_mask:0xf
        """)
        for i in (1, 0):
            b = PKR + 6 * i
            for q in range(4): a(f"v_alignbit_b32 v{KF0+4*i+q}, v{b+q+1}, v{b+q}, 16")
            kwrite(13, 14, b, KF0 + 4 * i, 1024 * i, 128 * i)
        a(f"L_nok{keep}:\ns_waitcnt lgkmcnt(0)\ns_barrier")
        for q in range(2): a(f"ds_read_b128 {vr(send+4*q,4)}, v{vXR} offset:{1024*q}")
        for q in range(2):
            a(f"s_waitcnt lgkmcnt(1)")
            for i in range(4): a(f"v_add_f32 v{keep+4*q+i}, v{keep+4*q+i}, v{send+4*q+i}")
            a(f"v_cvt_pk_bf16_f32 v{34+2*q}, v{keep+4*q}, v{keep+4*q+1}")
            a(f"v_cvt_pk_bf16_f32 v{35+2*q}, v{keep+4*q+2}, v{keep+4*q+3}")
            a(f"ds_write2_b32 v33, v{34+2*q}, v{35+2*q} offset0:{128*q} offset1:{128*q+2}")
    exch(A, A + 8)
    a("s_branch L_xdone\nL_xodd:")
    exch(A + 8, A)
    a(f"""
    L_xdone:
    s_cmp_eq_u32 s{sPH}, 1
    s_cbranch_scc1 L_cvend
    s_mov_b32 s{sPH}, 1
    s_xor_b32 s{sJB}, s{sJB}, 2
    s_mul_i32 s{sKB}, s{sJB}, {UB}
    """)
    st(9)
    a(f"""
    v_mov_b32 v{vKA}, v{vKL}
    v_add_u32 v{vUA}, s{sKB}, v{vUL}
    v_add_u32 v{vZ}, s{sKB}, v32
    v_max_i32 v{vU0}, v{vZ}, v{vUA}
    s_mov_b32 s{sIT}, 0
    s_cmp_eq_u32 s{sHH}, 1
    s_cbranch_scc1 L_cv1pre
    s_branch L_cv0pre
    L_cvend:
    v_bfe_u32 v10, v2, 2, 2
    v_mul_u32_u24 v10, {SS}, v10
    v_lshrrev_b32 v8, 4, v2
    v_lshl_add_u32 v10, v8, 5, v10
    v_and_b32 v8, 3, v2
    v_lshl_add_u32 v10, v8, 3, v10
    s_lshl_b32 s{sT0}, s{sWV}, 9
    s_add_u32 s{sT0}, s{sT0}, {STG}
    v_add_u32 v10, s{sT0}, v10
    v_mul_u32_u24 v11, 1792, v2
    s_lshl_b32 s{sT2}, s{sHH}, 4
    s_lshl_b32 s{sT3}, s{sWV}, 2
    s_add_u32 s{sT2}, s{sT2}, s{sT3}
    s_lshr_b32 s{sT2}, {sum(t << (4*i) for i, t in enumerate(TS[0] + TS[1]))}, s{sT2}
    s_and_b32 s{sT2}, s{sT2}, 15
    s_mul_i32 s{sT2}, s{sT2}, {256*1792}
    s_lshl_b32 s{sT3}, s{sCG}, 3
    s_add_u32 s{sT2}, s{sT2}, s{sT3}
    s_waitcnt lgkmcnt(0)
    s_barrier
    """)
    st(10)
    if X == '5': a('s_endpgm')
    for it in range(4): a(f"ds_read_b64_tr_b16 {vr(KF0+2*it,2)}, v10 offset:{128*it}")
    for it in range(4):
        a(f"s_waitcnt lgkmcnt({3-it})")
        a(f"buffer_store_dwordx2 {vr(KF0+2*it,2)}, v11, s[{SO}:{SO+3}], s{sT2} offen")
        if it < 3: a(f"s_add_u32 s{sT2}, s{sT2}, {64*1792}")
    a("L_send:")
    st.end(0)
    a("s_endpgm")
    a(f"""
    L_aux:
    s_cmp_ge_u32 s{sIDX}, 5
    s_cbranch_scc1 L_end
    s_cmp_lg_u32 s{sIDX}, 0
    s_cbranch_scc1 L_zkv
    s_cmp_lg_u32 s{sWV}, 0
    s_cbranch_scc1 L_end
    s_memrealtime s[{sN}:{sN+1}]
    s_waitcnt lgkmcnt(0)
    s_or_b32 s{sN}, s{sN}, 1
    v_mov_b32 v8, s{sN}
    v_mov_b32 v9, s{sN+1}
    s_mov_b64 exec, 1
    global_store_dwordx2 v4, v[8:9], s[42:43] {SC}
    s_endpgm
    L_zkv:
    v_mov_b32 v8, 0
    v_mov_b32 v9, 0
    v_mov_b32 v10, 0
    v_mov_b32 v11, 0
    v_lshlrev_b32 v5, 4, v0
    s_lshl_b32 s{sT0}, s{sIDX}, 7
    s_add_u32 s{sT0}, s{sT0}, {F_Z - 128}
    s_lshl_b32 s{sT1}, s{sIDX}, 14
    s_add_u32 s{sT1}, s{sT1}, {WS_KVA - 16384}
    s_waitcnt lgkmcnt(0)
    """)
    srd(a, SWS, 44, 45, WS_SIZE)
    for i in range(4):
        a(f"buffer_store_dwordx4 v[8:11], v5, {WSR}, s{sT1} offen {SC}")
        if i < 3: a(f"s_add_u32 s{sT1}, s{sT1}, 4096")
    vm = Cnt(a, "vmcnt")
    a("s_memrealtime s[12:13]")
    k.init_issue(vm); k.init_check(vm)
    a(f"s_barrier\ns_cmp_lg_u32 s{sWV}, 0\ns_cbranch_scc1 L_send")
    k.flag(vm, sT0)
    a("s_branch L_send")
```

```python
import struct, os
from asmlib import *
from stamp import Stamper

WS_PQ  = 0x000000
WS_KVA = 0x200000
WS_FLG = 0x210000
WS_KF  = 0x300000
WS_UT  = 0x500000
WS_SIZE = 0x700000
F_UT, F_KF, F_Q, F_KV, F_Z, F_L = [WS_FLG + 128 * x for x in (0, 896, 1792, 2304, 2432, 2560)]
LDS = 81920
LOG2E = 0x3fb8aa3b
INV2PI = 0x3e22f983
def f2u(x): return hex(struct.unpack("<I", struct.pack("<f", x))[0])
EPS = f2u(1e-6)
SC = "sc1"

def cmul(a, d, x, y):
    assert d != x and d != y
    if os.environ.get('PK', '0') == '0':
        a(f"v_mul_f32 v{d}, v{x}, v{y}\nv_mul_f32 v{d+1}, v{x}, v{y+1}\nv_fma_f32 v{d}, -v{x+1}, v{y+1}, v{d}\nv_fmac_f32 v{d+1}, v{x+1}, v{y}")
        return
    a(f"v_pk_mul_f32 {vr(d,2)}, {vr(x,2)}, {vr(y,2)} op_sel:[0,0] op_sel_hi:[0,1]")
    a(f"v_pk_fma_f32 {vr(d,2)}, {vr(x,2)}, {vr(y,2)}, {vr(d,2)} op_sel:[1,1,0] op_sel_hi:[1,0,1] neg_lo:[1,0,0]")
def srd(a, S, lo, hi, n):
    a(f"s_mov_b32 s{S}, s{lo}\ns_mov_b32 s{S+1}, s{hi}\ns_mov_b32 s{S+2}, {n}\ns_mov_b32 s{S+3}, 0x20000")
def weave(main, fill, start=0):
    n, m, j = len(main), len(fill), 0
    for i, f in enumerate(main):
        f()
        tgt = 0 if i < start else min(m, ((i - start + 1) * m + (n - start) - 1) // (n - start))
        while j < tgt: fill[j](); j += 1
    while j < m: fill[j](); j += 1

SWS, SX, SW, SO = 48, 52, 56, 60
sC1 = 64
sN = 46
NV = 190
sWV, sT0, sT1, sT2, sT3, sT4, sA, sB, sC, sD, sE, sF, sG, sH, sI, sJ = range(66, 82)
WSR = f"s[{SWS}:{SWS+3}]"

class K:
    def __init__(self):
        self.a = Asm(); self.nl = 0; self.NV = NV
    def lab(self, p="L"):
        self.nl += 1; return f"{p}_{self.nl}"
    def _spin(self, vm, tag, cmp, ld, post="", slp=None):
        a = self.a; L, Lok = self.lab("Lp"), self.lab("Lpo")
        vm.wait(tag)
        one = os.environ.get('ONE', '1') == '1'
        a(f"""{'s_mov_b64 s[16:17], 0' if one else ''}
        {L}:
        {cmp}
        s_cmp_eq_u64 vcc, 0
        s_cbranch_scc1 {Lok}
        s_sub_u32 s15, s15, 1
        s_cbranch_scc1 L_end
        """)
        if one:
            a(f"""
            s_sub_u32 s18, vcc_lo, 1
            s_subb_u32 s19, vcc_hi, 0
            s_andn2_b64 s[18:19], vcc, s[18:19]
            s_cmp_eq_u64 vcc, s[16:17]
            s_mov_b64 s[16:17], vcc
            s_cselect_b64 exec, s[18:19], vcc
            """)
        else: a("s_mov_b64 exec, vcc")
        a(f"""
        s_sleep {slp or os.environ.get('SLP', 1)}
        {ld}
        s_mov_b64 exec, -1
        s_waitcnt vmcnt(0)
        s_branch {L}
        {Lok}:
        s_mov_b64 exec, -1
        {post}""")
    def init_issue(self, vm, t=None): vm.op(f"global_load_dwordx2 {vr(self.NV,2)}, v4, s[42:43] {SC}", "init")
    def init_check(self, vm, t=None):
        a = self.a; L, Lok, Lr = self.lab("Li"), self.lab("Lio"), self.lab("Lir")
        vm.wait("init")
        a(f"""
        s_waitcnt lgkmcnt(0)
        s_mov_b32 s13, 200
        {L}:
        v_readfirstlane_b32 s{sN}, v{self.NV}
        v_readfirstlane_b32 s{sN+1}, v{self.NV+1}
        s_sub_u32 s3, s{sN}, s12
        s_cmp_eq_u32 s{sN}, 0
        s_cbranch_scc1 {Lr}
        s_cmp_gt_i32 s3, -900
        s_cbranch_scc1 {Lok}
        s_sub_u32 s13, s13, 1
        s_cbranch_scc1 {Lok}
        {Lr}:
        s_sub_u32 s15, s15, 1
        s_cbranch_scc1 L_end
        s_sleep 1
        global_load_dwordx2 {vr(self.NV,2)}, v4, s[42:43] {SC}
        s_waitcnt vmcnt(0)
        s_branch {L}
        {Lok}:""")
    def poll_ld(self, vaddr, t): return f"buffer_load_dwordx2 {vr(t,2)}, v{vaddr}, {WSR}, 0 offen {SC}"
    def poll_cmp(self, t): return f"v_cmp_ne_u64 vcc, s[{sN}:{sN+1}], {vr(t,2)}"
    def poll_issue(self, vm, vaddr, t): vm.op(self.poll_ld(vaddr, t), "poll")
    def poll(self, vm, vaddr, t, issued=False, tag="poll", slp=None):
        if not issued: self.poll_issue(vm, vaddr, t)
        self._spin(vm, tag, self.poll_cmp(t), self.poll_ld(vaddr, t), slp=slp)
    def flag(self, vm, soff, vone=None):
        self.a("s_mov_b64 exec, 1")
        vm.op(f"buffer_store_dwordx2 {vr(self.NV,2)}, off, {WSR}, s{soff} {SC}", "flag")
        self.a("s_mov_b64 exec, -1")

def gen():
    k = K(); a = k.a
    st = Stamper(a, 0, 44, sWV)
    a("s_cmp_ge_u32 s2, 512\ns_cbranch_scc1 L_end")
    st.start()
    a(f"""
    s_load_dwordx16 s[16:31], s[0:1], 0
    s_load_dwordx8 s[32:39], s[0:1], 64
    s_load_dwordx4 s[40:43], s[0:1], 96
    s_load_dwordx2 s[44:45], s[0:1], 112
    v_lshrrev_b32 v1, 6, v0
    v_and_b32 v2, 63, v0
    v_readfirstlane_b32 s{sWV}, v1
    v_lshlrev_b32 v3, 4, v2
    v_mov_b32 v4, 64
    s_mov_b32 s15, 40000
    {'s_xor_b32 s2, s2, 256' if os.environ.get('GFIRST') else ''}
    s_cmp_lt_u32 s2, 256
    s_cbranch_scc1 L_S
    s_sub_u32 s2, s2, 256
    """)
    k.NV = 46
    gen_G(k, st)
    k.NV = NV
    gen_S(k, st)
    a("L_end:\ns_endpgm")
    return a

def gen_G(k, st):
    a = k.a
    if os.environ.get('SKIP_G'): a('s_endpgm')
    sRB, sP, sKX, sFL, sXO, sWO, sXM, sWM, sTY, sAT = sA, sB, sC, sD, sE, sF, sG, sH, sI, sJ
    vXD, vWD, vXA, vWA = 8, 12, 16, 20
    vWO, vFQ, vFK, vWS = 21, 22, 23, 24
    vFT, vEX, vFZ = 26, 5, 6
    vAT = 28
    vT = 36
    GA = 64; XF, WF = 128, 144
    a(f"""
    s_setprio {os.environ.get('GPRIO', 1)}
    """)
    if os.environ.get('XMAP', '4') in '123':
        lo = os.environ['XMAP'] in '13'
        a(f"""
        s_bfe_u32 s{sTY}, s2, 0x10002
        {f's_xor_b32 s{sTY}, s{sTY}, 1' if lo else ''}
        s_and_b32 s{sRB}, s2, 3
        s_lshl_b32 s{sRB}, s{sRB}, 2
        s_lshr_b32 s{sT2}, s2, 6
        s_add_u32 s{sRB}, s{sRB}, s{sT2}
        s_bfe_u32 s{sP}, s2, 0x30003
        """)
    else:
        a(f"""
    s_and_b32 s{sT0}, s2, 7
    s_lshr_b32 s{sT1}, s2, 3
    s_lshr_b32 s{sTY}, s2, 7
    s_lshr_b32 s{sRB}, s{sT0}, 1
    s_lshl_b32 s{sRB}, s{sRB}, 2
    s_bfe_u32 s{sT2}, s{sT1}, 0x20002
    s_add_u32 s{sRB}, s{sRB}, s{sT2}
    s_and_b32 s{sP}, s{sT0}, 1
    s_lshl_b32 s{sP}, s{sP}, 2
    s_and_b32 s{sT3}, s{sT1}, 3
    s_add_u32 s{sP}, s{sP}, s{sT3}
    s_lshl_b32 s{sKX}, s{sT3}, 1
    s_add_u32 s{sKX}, s{sKX}, s{sTY}
    s_mul_i32 s{sT2}, s{sT2}, 3
    s_add_u32 s{sKX}, s{sKX}, s{sT2}
    s_cmp_ge_u32 s{sKX}, 14
    s_cselect_b32 s{sT2}, 14, 0
    s_sub_u32 s{sKX}, s{sKX}, s{sT2}
    s_cmp_ge_u32 s{sKX}, 7
    s_cselect_b32 s{sT2}, 7, 0
    s_sub_u32 s{sKX}, s{sKX}, s{sT2}
        """)
    a(f"""
    {f's_mov_b32 s{sKX}, 0' if not os.environ.get('ROT') else ''}
    s_lshl_b32 s{sXO}, s{sKX}, 7
    s_mul_i32 s{sWO}, s{sKX}, {64*2688}
    v_lshrrev_b32 v{vT+1}, 3, v2
    v_and_b32 v{vT+2}, 7, v2
    v_lshrrev_b32 v{vT+3}, 4, v2
    v_xor_b32 v{vT+6}, v{vT+2}, v{vT+3}
    v_lshlrev_b32 v{vT+6}, 4, v{vT+6}
    v_mul_u32_u24 v{vT+7}, 896, v{vT+1}
    s_lshl_b32 s{sT0}, s{sRB}, 2
    s_add_u32 s{sT0}, s{sT0}, s{sWV}
    s_mul_i32 s{sT0}, s{sT0}, {32*896}
    v_add3_u32 v{vXD}, v{vT+6}, v{vT+7}, s{sT0}
    v_xor_b32 v{vT+6}, 64, v{vT+6}
    v_add3_u32 v{vXD+1}, v{vT+6}, v{vT+7}, s{sT0}
    v_add_u32 v{vXD+1}, {7168-1024}, v{vXD+1}
    v_add_u32 v{vXD+2}, {2*(7168-1024)}, v{vXD}
    v_add_u32 v{vXD+3}, {2*(7168-1024)}, v{vXD+1}
    v_and_b32 v{vT+6}, 1, v{vT+3}
    v_lshlrev_b32 v{vT+6}, 2, v{vT+6}
    v_xor_b32 v{vT+8}, v{vT+6}, v{vT+2}
    v_min_u32 v{vT+6}, 6, v{vT+8}
    v_lshlrev_b32 v{vT+6}, 4, v{vT+6}
    v_mul_u32_u24 v{vT+9}, 2688, v{vT+1}
    s_lshr_b32 s{sT0}, s{sWV}, 1
    s_add_u32 s{sT0}, s{sT0}, 1
    s_mul_i32 s{sT0}, s{sT0}, 896
    s_and_b32 s{sT1}, s{sWV}, 1
    s_mul_i32 s{sT1}, s{sT1}, {32*2688}
    s_add_u32 s{sT0}, s{sT0}, s{sT1}
    s_mul_i32 s{sT1}, s{sWV}, {16*2688}
    s_lshl_b32 s{sXM}, s{sWV}, 12
    s_lshl_b32 s{sT2}, s{sWV}, 11
    s_cmp_eq_u32 s{sTY}, 0
    s_cselect_b32 s{sT0}, s{sT1}, s{sT0}
    s_cselect_b32 s{sWM}, s{sT2}, s{sXM}
    s_add_u32 s{sWM}, s{sWM}, 49152
    s_mul_i32 s{sT1}, s{sP}, 112
    s_add_u32 s{sT0}, s{sT0}, s{sT1}
    v_add3_u32 v{vWD}, v{vT+6}, v{vT+9}, s{sT0}
    v_add_u32 v{vWD+1}, {8*2688-1024}, v{vWD}
    v_add_u32 v{vWD+2}, {2*(8*2688-1024)}, v{vWD}
    v_add_u32 v{vWD+3}, {3*(8*2688-1024)}, v{vWD}
    s_mov_b32 s{SX+2}, {2048*896}
    s_mov_b32 s{SX+3}, 0x20000
    s_mov_b32 s{SW+2}, {448*2688}
    s_mov_b32 s{SW+3}, 0x20000
    s_cmp_eq_u32 s{sTY}, 0
    s_waitcnt lgkmcnt(0)
    s_mov_b32 s{SX}, s34
    s_mov_b32 s{SX+1}, s35
    s_mov_b32 s{SW}, s36
    s_mov_b32 s{SW+1}, s37
    """)
    st(0)
    a("s_cbranch_scc1 L_GQ")
    def setup(kv, vm):
        a(f"""
        v_and_b32 v{vT+6}, 31, v2
        v_lshrrev_b32 v{vT+4}, 5, v2
        v_bfe_u32 v{vT+5}, v2, 1, 3
        v_xor_b32 v{vT+5}, v{vT+5}, v{vT+4}
        v_lshlrev_b32 v{vT+5}, 4, v{vT+5}
        v_lshl_add_u32 v{vT+5}, v{vT+6}, 7, v{vT+5}
        s_lshr_b32 s{sT0}, s{sWV}, 1
        s_lshl_b32 s{sT0}, s{sT0}, 13
        v_add_u32 v{vXA}, s{sT0}, v{vT+5}
        v_xor_b32 v{vXA+1}, 32, v{vXA}
        v_xor_b32 v{vXA+2}, 64, v{vXA}
        v_xor_b32 v{vXA+3}, 96, v{vXA}
        v_bfe_u32 v{vT+5}, v2, 2, 2
        v_lshl_add_u32 v{vT+5}, v{vT+4}, 3, v{vT+5}
        v_lshlrev_b32 v{vT+5}, 7, v{vT+5}
        v_and_b32 v{vT+9}, 3, v2
        v_lshlrev_b32 v{vT+10}, 3, v{vT+9}
        v_bfe_u32 v{vT+11}, v2, 4, 1
        v_lshl_add_u32 v{vT+10}, v{vT+11}, 5, v{vT+10}
        s_and_b32 s{sT0}, s{sWV}, 1
        s_mul_i32 s{sT0}, s{sT0}, 56
        v_add_u32 v{vT+10}, s{sT0}, v{vT+10}
        v_bfe_u32 v{vT+11}, v2, 3, 1
        v_lshlrev_b32 v{vT+11}, 6, v{vT+11}
        v_xor_b32 v{vT+10}, v{vT+10}, v{vT+11}
        v_add_u32 v{vT+5}, v{vT+5}, v{vT+10}
        v_add_u32 v{vWA}, 49152, v{vT+5}
        s_and_b32 s{sT0}, s2, 31
        s_lshl_b32 s{sT0}, s{sT0}, 4
        s_lshl_b32 s{sT1}, s{sWV}, 2
        s_add_u32 s{sT0}, s{sT0}, s{sT1}
        s_lshl_b32 s{sT0}, s{sT0}, 7
        s_add_u32 s{sT0}, s{sT0}, {F_Q}
        v_lshlrev_b32 v{vT+9}, 7, v{vT+9}
        v_add_u32 v{vFQ}, s{sT0}, v{vT+9}
        s_lshl_b32 s{sT0}, s{sWV}, 12
        s_add_u32 s{sT0}, s{sT0}, {F_KV}
        v_lshlrev_b32 v{vFK}, 7, v{vT+6}
        v_add_u32 v{vFK}, s{sT0}, v{vFK}
        v_lshlrev_b32 v{vT+8}, 4, v{vT+8}
        s_mul_i32 s{sT0}, s{sWV}, {112*896}
        s_lshr_b32 s{sT1}, s2, 5
        s_lshl_b32 s{sT1}, s{sT1}, 7
        s_add_u32 s{sT0}, s{sT0}, s{sT1}
        v_add3_u32 v{vWO}, v{vT+8}, v{vT+7}, s{sT0}
        v_add_u32 v{vWS}, s{sXM}, v3
        v_add_u32 v{vWS+1}, s{sWM}, v3
        s_mov_b32 s{sC1}, {LOG2E}
        s_mov_b32 s{sC1+1}, {LOG2E}
        """)
        srd(a, SWS, 44, 45, WS_SIZE)
        srd(a, SO, 40, 41, 2048 * 1792)
        a("s_memrealtime s[12:13]")
        if os.environ.get('TLB'):
            a(f"""
            v_lshlrev_b32 v{vT+10}, {os.environ['TLB']}, v2
            v_mul_u32_u24 v{vT+11}, 57344, v2
            s_lshl_b32 s{sT0}, s{sWV}, {int(os.environ['TLB'])-2}
            """)
            vm.op(f"buffer_load_dword v{vT+10}, v{vT+10}, {WSR}, s{sT0} offen", "tlb")
            vm.op(f"buffer_load_dword v{vT+11}, v{vT+11}, s[{SO}:{SO+3}], 0 offen", "tlb")
            vm.op(f"global_load_dword v{vT+9}, v3, s[38:39]", "tlb")
        if kv:
            a(f"""
            s_mul_i32 s{sT0}, s{sWV}, 20480
            s_add_u32 s{sT0}, s{sT0}, 16384
            v_add_u32 v{vEX}, s{sT0}, v3
            s_and_b32 s{sT0}, s{sWV}, 1
            s_lshr_b32 s{sT1}, s{sWV}, 1
            s_lshl_b32 s{sT1}, s{sT1}, 11
            s_mul_i32 s{sT2}, s{sT0}, 20480
            s_add_u32 s{sT2}, s{sT2}, s{sT1}
            s_add_u32 s{sT2}, s{sT2}, 16384
            s_and_b32 s{sT3}, s{sRB}, 7
            s_lshl_b32 s{sT3}, s{sT3}, 8
            s_add_u32 s{sT3}, s{sT3}, s{sT2}
            v_lshlrev_b32 v{vT+4}, 2, v2
            v_add_u32 v{vAT}, s{sT3}, v{vT+4}
            s_lshl_b32 s{sT0}, s{sT0}, 12
            s_add_u32 s{sT0}, s{sT0}, s{sT1}
            s_lshl_b32 s{sAT}, s{sP}, 13
            s_add_u32 s{sAT}, s{sAT}, s{sT0}
            s_add_u32 s{sAT}, s{sAT}, {WS_KVA}
            s_sub_u32 s{sAT}, s{sAT}, s{sT2}
            s_lshl_b32 s{sFL}, s{sP}, 4
            s_add_u32 s{sFL}, s{sFL}, s{sRB}
            s_lshl_b32 s{sFL}, s{sFL}, 7
            s_add_u32 s{sFL}, s{sFL}, {F_KV}
            """)
            for i in range(1, 8): a(f"v_xor_b32 v{vAT+i}, {i << 8}, v{vAT}")
            a(f"s_lshr_b32 s{sT0}, s{sWV}, 1\ns_lshl_b32 s{sT0}, s{sT0}, 3\ns_and_b32 s{sT1}, s{sRB}, 7\ns_or_b32 s{sT0}, s{sT0}, s{sT1}")
            for i in range(8):
                a(f"s_xor_b32 s{sT1}, s{sT0}, {i}\ns_cmp_ge_u32 s{sT1}, 14\ns_cselect_b32 s{sT1}, 0x7fff0000, 0\nv_add_u32 v{vAT+i}, s{sT1}, v{vAT+i}")
            a(f"v_and_b32 v{vFZ}, 3, v2\nv_lshlrev_b32 v{vFZ}, 7, v{vFZ}\nv_add_u32 v{vFZ}, {F_Z}, v{vFZ}")
        else:
            a(f"""
            s_lshl_b32 s{sT3}, s{sRB}, 1
            s_lshr_b32 s{sT1}, s{sWV}, 1
            s_add_u32 s{sT3}, s{sT3}, s{sT1}
            s_lshl_b32 s{sT3}, s{sT3}, 4
            s_lshl_b32 s{sT1}, s{sP}, 1
            s_add_u32 s{sT1}, s{sT1}, s{sT3}
            s_and_b32 s{sT2}, s{sWV}, 1
            s_add_u32 s{sT1}, s{sT1}, s{sT2}
            s_lshl_b32 s{sFL}, s{sT1}, 7
            s_add_u32 s{sFL}, s{sFL}, {F_Q}
            s_add_u32 s{sT1}, s{sT1}, s{sT3}
            s_lshl_b32 s{sAT}, s{sT1}, 11
            s_add_u32 s{sKX}, s{sAT}, 32768
            """)
        for i in range(32): a(f"v_mov_b32 v{GA+i}, {EPS}")
    def gemm(kv):
        vm, lg = Cnt(a, "vmcnt"), Cnt(a, "lgkmcnt")
        nt = 2 if kv else 1
        nws = 2 if kv else 4
        wsz = 16384 if kv else 8192
        stage = {}
        def ld(kind, c, regs=None):
            n = 4 if kind == "x" else 2 * nt
            vD, S, sO = (vXD, SX, sXO) if kind == "x" else (vWD, SW, sWO)
            step, end = (128, 896) if kind == "x" else (64 * 2688, 448 * 2688)
            if regs is not None: stage[(kind, c)] = regs
            T = []
            for j in range(n):
                def f(j=j):
                    if regs is None:
                        if j == 0: a(f"s_add_u32 m0, s{sXM if kind == 'x' else sWM}, {16384*(c%3) if kind == 'x' else wsz*(c%nws)}")
                        vm.op(f"buffer_load_dwordx4 v{vD+j}, s[{S}:{S+3}], s{sO} offen offset:{1024*j} {os.environ.get('NTG','')} lds", f"{kind}{c}")
                    else:
                        vm.op(f"buffer_load_dwordx4 {vr(regs[1]+4*j,4,regs[0])}, v{vD+j}, s[{S}:{S+3}], s{sO} offen offset:{1024*j} {os.environ.get('NTG','')}", f"{kind}{c}")
                    if j == n - 1: a(f"s_add_u32 s{sO}, s{sO}, {step}\ns_cmp_eq_u32 s{sO}, {end}\ns_cselect_b32 s{sO}, 0, s{sO}")
                T.append(f)
            return T
        def wr(kind, c):
            regs = stage[(kind, c)]
            n = 4 if kind == "x" else 2 * nt
            T = []
            for j in range(n):
                def f(j=j):
                    if j == 0: vm.wait(f"{kind}{c}")
                    off = (16384 * (c % 3) if kind == "x" else wsz * (c % nws)) + 1024 * j
                    lg.op(f"ds_write_b128 v{vWS + (0 if kind == 'x' else 1)}, {vr(regs[1]+4*j,4,regs[0])} offset:{off}", "wr")
                T.append(f)
            return T
        def F(c, ks):
            b = ks & 1
            for n in range(nt):
                for i in range(2):
                    lg.op(f"ds_read_b64_tr_b16 {vr(WF+8*b+4*n+2*i,2)}, v{vWA} offset:{wsz*(c%nws) + ks*2048 + i*512 + n*8192}", f"f{c}{ks}")
            for t in range(2):
                lg.op(f"ds_read_b128 {vr(XF+8*b+4*t,4)}, v{vXA+ks} offset:{16384*(c%3) + 4096*t}", f"f{c}{ks}")
        def M(c, ks, fill=()):
            b = ks & 1
            lg.wait(f"f{c}{ks}")
            T = []
            for n in range(nt):
                for t in range(2):
                    acc = vr(GA + 16 * (n * 2 + t), 16)
                    cin = "0" if (c == 0 and ks == 0 and n == 1) else acc
                    xf, wf = vr(XF + 8 * b + 4 * t, 4), vr(WF + 8 * b + 4 * n, 4)
                    T.append(lambda s=(f"v_mfma_f32_32x32x16_bf16 {acc}, {xf}, {wf}, {cin}" if kv else f"v_mfma_f32_32x32x16_bf16 {acc}, {wf}, {xf}, {cin}"): a(s))
            weave(T, list(fill))
        run = lambda T: [f() for f in T]
        if kv and not os.environ.get('KVREG'):
            for x in (("x", 0), ("w", 0), ("x", 1), ("w", 1)): run(ld(*x))
            R = [("a", 0), ("a", 16), ("a", 32)]
            lds_ = {0: [("w", 2, R[0]), ("x", 2), ("w", 3, R[1])], 1: [("x", 3), ("w", 4, R[2])], 2: [("x", 4), ("w", 5, R[0])],
                    3: [("x", 5), ("w", 6, R[1])], 4: [("x", 6)]}
            wrs = {c: [("w", c + 2)] for c in range(5)}
            if not kv:
                lds_ = {0: [("x", 2), ("w", 2), ("w", 3)], 1: [("x", 3), ("w", 4)], 2: [("x", 4), ("w", 5)], 3: [("x", 5), ("w", 6)], 4: [("x", 6)]}
                wrs = {}
            setup(kv, vm)
            vm.wait(["x0", "w0"]); a("s_barrier")
            st(1)
            F(0, 0); F(0, 1)
            pend = []
            for c in range(7):
                L = sum([ld(*l) for l in lds_.get(c, [])], [])
                if c == 3: L.append(lambda: k.init_issue(vm))
                if c == 5 and kv: L.append(lambda: (k.init_check(vm), vm.op(k.poll_ld(vFZ, vFT), "zp")))
                q = max(1, (len(L) + 2) // 3); w = max(1, (len(pend) + 2) // 3)
                M(c, 0, L[:q] + pend[:w]); F(c, 2)
                M(c, 1, L[q:2*q] + pend[w:2*w]); F(c, 3)
                M(c, 2, L[2*q:] + pend[2*w:])
                if c < 6:
                    dma = [f"{kd}{c+1}" for kd in "xw" if (kd, c + 1) not in stage]
                    if dma and vm.n_after(dma) is not None: vm.wait(dma, "lgkmcnt(0)")
                    else: a("s_waitcnt lgkmcnt(0)")
                    lg.drain()
                    a("s_barrier")
                    F(c + 1, 0)
                    pend = sum([wr(*x) for x in wrs.get(c, [])], [])
                    M(c, 3, pend[:1]); pend = pend[1:]
                    F(c + 1, 1)
                else:
                    lg.wait(f"f{c}3")
                    a("s_barrier")
                    M(c, 3)
            return vm
        if kv:
            RX = [("a", 0), ("a", 16), ("a", 32)]; RW = [("a", 48), ("v", 160), ("v", 176)]
        else:
            RX = [("a", 0), ("a", 16), ("a", 32), ("a", 48)]; RW = [("v", 160), ("v", 168), ("v", 176), ("v", 96)]
        NS = len(RX)
        for c in range(2): run(ld("x", c, RX[c])); run(ld("w", c, RW[c]))
        setup(kv, vm)
        run(wr("x", 0)); run(wr("w", 0))
        run(ld("x", 2, RX[2])); run(ld("w", 2, RW[2]))
        a("s_waitcnt lgkmcnt(0)\ns_barrier"); lg.drain()
        st(1)
        F(0, 0); F(0, 1)
        P = wr("x", 1) + wr("w", 1)
        nxt = 3
        for c in range(7):
            L = []
            while nxt < 7 and nxt - NS <= c:
                L += ld("x", nxt, RX[nxt % NS]) + ld("w", nxt, RW[nxt % NS]); nxt += 1
            if c == 3: L.append(lambda: k.init_issue(vm))
            if c == 5 and kv: L.append(lambda: (k.init_check(vm), vm.op(k.poll_ld(vFZ, vFT), "zp")))
            h = (len(P) + 1) // 2; q = (len(L) + 1) // 2
            M(c, 0, P[:h]); F(c, 2)
            M(c, 1, P[h:] + L[:q//2]); F(c, 3)
            M(c, 2, L[q//2:q])
            if c < 6:
                a("s_waitcnt lgkmcnt(0)\ns_barrier"); lg.drain()
                F(c + 1, 0)
                P = (wr("x", c + 2) + wr("w", c + 2)) if c + 2 < 7 else []
                n0 = len(P) // 4
                M(c, 3, L[q:] + P[:n0]); P = P[n0:]
                F(c + 1, 1)
            else:
                lg.wait(f"f{c}3")
                if kv: a("s_barrier")
                M(c, 3, L[q:])
        return vm
    def phi_t(base, n, dst, pk=True):
        T = []
        for i in range(0, n, 2):
            t = vT + 2 * ((i // 2) & 3)
            x = base + i
            if not pk:
                T.append(lambda t=t, x=x, i=i: a(f"""
                v_mul_f32 v{t}, s{sC1}, v{x}
                v_mul_f32 v{t+1}, s{sC1}, v{x+1}
                v_exp_f32_e64 v{t}, v{t} clamp
                v_exp_f32_e64 v{t+1}, v{t+1} clamp
                v_max_f32 v{x}, {EPS}, v{x}
                v_max_f32 v{x+1}, {EPS}, v{x+1}
                v_add_f32 v{x}, v{x}, v{t}
                v_add_f32 v{x+1}, v{x+1}, v{t+1}
                v_cvt_pk_bf16_f32 v{dst + i//2}, v{x}, v{x+1}
                """))
                continue
            T.append(lambda t=t, x=x, i=i: a(f"""
            v_pk_mul_f32 {vr(t,2)}, {vr(x,2)}, s[{sC1}:{sC1+1}]
            v_max_f32 v{x}, {EPS}, v{x}
            v_exp_f32_e64 v{t}, v{t} clamp
            v_exp_f32_e64 v{t+1}, v{t+1} clamp
            v_max_f32 v{x+1}, {EPS}, v{x+1}
            v_pk_add_f32 {vr(x,2)}, {vr(x,2)}, {vr(t,2)}
            v_cvt_pk_bf16_f32 v{dst + i//2}, v{x}, v{x+1}
            """))
        return T
    def wo_dma(vm):
        T = []
        for i in range(15):
            def f(i=i):
                if i == 0:
                    srd(a, SW, 38, 39, 448 * 896)
                    a(f"s_mul_i32 s{sT1}, s{sWV}, 20480\ns_mov_b32 s{sT0}, 0")
                a(f"s_add_u32 m0, s{sT1}, {1024*i}")
                if i: a(f"s_add_u32 s{sT0}, s{sT0}, 7168")
                vm.op(f"buffer_load_dwordx4 v{vWO}, s[{SW}:{SW+3}], s{sT0} offen lds", "wo")
            T.append(f)
        return T
    PK, PV, KVD = 128, 144, 48
    vm = gemm(True)
    if os.environ.get('GEARLY'):
        k.poll(vm, vFZ, vFT, issued=True, tag="zp")
        if os.environ.get('GATE'):
            a(f"s_lshl_b32 s{sT0}, s2, 7\ns_add_u32 s{sT0}, s{sT0}, {F_L}\ns_cmp_lg_u32 s{sWV}, 0\ns_cbranch_scc1 L_ngf")
            k.flag(Cnt(a, "vmcnt"), sT0)
            a("L_ngf:")
    st(3)
    a(f"s_setprio {os.environ.get('GPRIO1', 3)}")
    for f in phi_t(GA, 16, PK, os.environ.get('KVPK')): f()
    for t in range(2):
        for i in range(8):
            a(f"v_cvt_pk_bf16_f32 v{PV+8*t+i}, v{GA+32+16*t+2*i}, v{GA+32+16*t+2*i+1}")
    a(f"s_mov_b32 exec_lo, {1<<28}\ns_mov_b32 exec_hi, {1<<28}")
    for i in range(16): a(f"v_mov_b32 v{PV+i}, 0x3f803f80")
    a("s_mov_b64 exec, -1")
    for u in range(2):
        a(f"v_mfma_f32_32x32x16_bf16 {vr(KVD,16)}, {vr(PK+4*u,4)}, {vr(PV+4*u,4)}, {'0' if u == 0 else vr(KVD,16)}")
    for f in phi_t(GA + 16, 16, PK + 8, os.environ.get('KVPK')): f()
    for u in range(2):
        a(f"v_mfma_f32_32x32x16_bf16 {vr(KVD,16)}, {vr(PK+8+4*u,4)}, {vr(PV+8+4*u,4)}, {vr(KVD,16)}")
    st(4)
    if not os.environ.get('GEARLY'):
        k.poll(vm, vFZ, vFT, issued=True, tag="zp")
        if os.environ.get('GATE'):
            a(f"s_lshl_b32 s{sT0}, s2, 7\ns_add_u32 s{sT0}, s{sT0}, {F_L}\ns_cmp_lg_u32 s{sWV}, 0\ns_cbranch_scc1 L_ngf")
            k.flag(Cnt(a, "vmcnt"), sT0)
            a("L_ngf:")
    for q in range(4):
        a(f"ds_write_b128 v{vEX}, {vr(KVD+4*q,4)} offset:{1024*q}")
    a("s_waitcnt lgkmcnt(0)\ns_barrier")
    for i in range(8):
        a(f"ds_read2st64_b32 {vr(GA+2*i,2)}, v{vAT+i} offset0:0 offset1:160")
    for i in range(8):
        a(f"s_waitcnt lgkmcnt({7-i})")
        a(f"v_add_f32 v{GA+2*i}, v{GA+2*i}, v{GA+2*i+1}")
        a(f"buffer_atomic_add_f32 v{GA+2*i}, v{vAT+i}, {WSR}, s{sAT} offen sc1")
    st(5)
    vm.drain()
    k.poll_issue(vm, vFQ, vFT)
    W = wo_dma(vm)
    a("s_cmp_ge_u32 s2, 224\ns_cbranch_scc1 L_kvw")
    for f in W[:6]: f()
    a("s_waitcnt vmcnt(7)\nL_kvw:\ns_cbranch_scc0 L_kvw2\ns_waitcnt vmcnt(1)\nL_kvw2:")
    a(f"s_barrier\ns_cmp_lg_u32 s{sWV}, 0\ns_cbranch_scc1 L_kvf")
    k.flag(vm, sFL, 1)
    a("L_kvf:")
    st(6)
    a("s_cmp_ge_u32 s2, 224\ns_cbranch_scc1 L_kvend")
    for f in W[6:]: f()
    a("s_waitcnt vmcnt(9)\ns_branch L_fin3")
    a("L_GQ:")
    if os.environ.get('QPRIO'): a(f"s_setprio {os.environ['QPRIO']}")
    vm = gemm(False)
    st(3)
    a(f"s_setprio {os.environ.get('GPRIO1', 3)}")
    for t in range(2):
        for f in phi_t(GA + 16 * t, 16, PK + 8 * t, False): f()
        for ks in range(2):
            vm.op(f"buffer_store_dwordx4 {vr(PK+8*t+4*ks,4)}, v3, {WSR}, s{sAT if t == 0 else sKX} offen offset:{WS_PQ + 1024*ks} {SC}", "pqs")
    st(4)
    k.init_check(vm, vFT)
    st(5)
    vm.wait("pqs")
    k.flag(vm, sFL, 1)
    a("s_cmp_ge_u32 s2, 224\ns_cbranch_scc1 L_kvend\ns_barrier")
    st(6)
    if os.environ.get('WOEARLY'):
        for f in wo_dma(Cnt(a, "vmcnt")): f()
    a(k.poll_ld(vFQ, vFT) + "\ns_waitcnt vmcnt(0)")
    A1, O, A2, KB, K23, WOFR = 16, 48, 64, 128, 144, 176
    vm = Cnt(a, "vmcnt"); lg = Cnt(a, "lgkmcnt")
    a("L_fin3:")
    a(f"s_setprio {os.environ.get('GPRIO2', 1)}")
    a(f"v_mov_b32 v12, v{vFK}")
    k.poll(vm, vFQ, vFT, issued=True)
    st(7)
    a(f"""
    s_and_b32 s{sT0}, s2, 31
    s_lshl_b32 s{sT0}, s{sT0}, 16
    s_lshl_b32 s{sT1}, s{sWV}, 13
    s_add_u32 s{sT0}, s{sT0}, s{sT1}
    s_add_u32 s{sT1}, s{sT0}, 32768
    s_add_u32 s{sT2}, s{sT0}, 4096
    s_add_u32 s{sT3}, s{sT1}, 4096
    """)
    for hl in range(4):
        for t in range(2):
            for ks in range(2):
                so = [[sT0, sT1], [sT2, sT3]][hl >> 1][t]
                vm.op(f"buffer_load_dwordx4 {ar(16*hl+8*t+4*ks,4)}, v3, {WSR}, s{so} offen offset:{WS_PQ + 2048*(hl&1) + 1024*ks} {SC}", "pq")
    if not os.environ.get('WOEARLY'):
        a(f"s_cmp_lg_u32 s{sTY}, 0\ns_cbranch_scc1 L_havewo")
        for f in wo_dma(Cnt(a, "vmcnt")): f()
        a("L_havewo:")
    k.poll_issue(vm, 12, 8)
    a(f"""
    s_lshl_b32 s{sT0}, s{sWV}, 14
    s_add_u32 s{sT0}, s{sT0}, {WS_KVA}
    s_mul_i32 s{sT1}, s{sWV}, 20480
    v_bfe_u32 v5, v2, 2, 2
    v_lshrrev_b32 v6, 5, v2
    v_lshl_add_u32 v5, v6, 2, v5
    v_lshlrev_b32 v5, 7, v5
    v_and_b32 v7, 1, v2
    v_lshl_add_u32 v5, v7, 5, v5
    v_bfe_u32 v7, v2, 4, 1
    v_lshl_add_u32 v5, v7, 4, v5
    v_bfe_u32 v7, v2, 1, 1
    v_lshl_add_u32 v5, v7, 3, v5
    v_bfe_u32 v7, v2, 3, 1
    v_lshl_add_u32 v5, v7, 6, v5
    v_xor_b32 v15, 64, v5
    v_add_u32 v5, s{sT1}, v5
    v_add_u32 v15, s{sT1}, v15
    s_mov_b32 s{sT2}, {EPS}
    s_mov_b32 s{sC1}, -1
    s_mov_b32 s{sC1+1}, 0
    v_and_b32 v13, 31, v2
    v_mul_u32_u24 v13, 272, v13
    v_lshl_add_u32 v13, v6, 6, v13
    v_add_u32 v13, s{sT1}, v13
    v_lshrrev_b32 v7, 3, v0
    v_and_b32 v14, 7, v0
    v_mul_u32_u24 v10, 272, v7
    v_lshl_add_u32 v10, v14, 5, v10
    v_mul_u32_u24 v11, 1792, v7
    v_lshl_add_u32 v11, v14, 4, v11
    s_and_b32 s{sT3}, s2, 31
    s_mul_i32 s{sT3}, s{sT3}, {64*1792}
    s_lshr_b32 s{sT4}, s2, 5
    s_lshl_b32 s{sT4}, s{sT4}, 7
    s_add_u32 s{sT3}, s{sT3}, s{sT4}
    s_add_u32 s{sT3}, s{sT3}, 896
    s_add_u32 s{sT4}, s{sT3}, {32*1792}
    v_mov_b32 v14, 0x7fff0000
    v_cndmask_b32 v14, v14, v3, s[{sC1}:{sC1+1}]
    """)
    def ldwo(hl):
        for ks in range(2):
            for ct in range(2):
                for i in range(2):
                    lg.op(f"ds_read_b64_tr_b16 {vr(WOFR+8*ks+4*ct+2*i,2)}, v{15 if ct else 5} offset:{128*(28*hl+16*ks+8*i)}", f"wo{hl}")
    k.poll(vm, 12, 8, issued=True)
    vm.drain()
    st(8)
    def kvsrc(hl): return A1 + 16 * hl if hl < 2 else K23 + 16 * (hl - 2)
    def kvb(hl): return KB + 8 * hl if hl < 2 else K23 + 16 * (hl - 2)
    for hl in range(4):
        for q in range(4):
            vm.op(f"buffer_load_dwordx4 {vr(kvsrc(hl)+4*q,4)}, v{14 if q == 3 else 3}, {WSR}, s{sT0} offen offset:{1024*q} {SC}", f"kv{hl}")
        if hl < 3: a(f"s_add_u32 s{sT0}, s{sT0}, 4096")
    ldwo(0)
    a(f"v_add_u32 v12, 40960, v10")
    def cvtkv(hl):
        T = []
        for i in range(8):
            def f(i=i):
                if i == 0: vm.wait(f"kv{hl}")
                a(f"v_cvt_pk_bf16_f32 v{kvb(hl)+i}, v{kvsrc(hl)+2*i}, v{kvsrc(hl)+2*i+1}")
            T.append(f)
        return T
    def s1(u):
        hl, t = u >> 1, u & 1
        A = vr(A1 + 16 * (u & 1), 16)
        return [lambda: a(f"v_mfma_f32_32x32x16_bf16 {A}, {vr(kvb(hl),4)}, {ar(16*hl+8*t,4)}, 0"),
                lambda: a(f"v_mfma_f32_32x32x16_bf16 {A}, {vr(kvb(hl)+4,4)}, {ar(16*hl+8*t+4,4)}, {A}")]
    DN = 6
    def scale(u):
        A = A1 + 16 * (u & 1); Ou = O + 8 * (u & 1)
        L = [f"v_mov_b32 v{DN}, v{A+12}", f"v_mov_b32 v{DN+2}, v{A+12}", f"v_permlane32_swap_b32 v{DN}, v{DN+2}",
             f"v_add_f32 v{DN+2}, s{sT2}, v{DN+2}", f"v_rcp_f32 v{DN+2}, v{DN+2}"]
        for i in range(8):
            L.append(f"v_mul_f32 v{A+2*i}, v{A+2*i}, v{DN+2}")
            L.append(f"v_mul_f32 v{A+2*i+1}, v{A+2*i+1}, v{DN+2}")
            L.append(f"v_cvt_pk_bf16_f32 v{Ou+i}, v{A+2*i}, v{A+2*i+1}")
        L += [f"v_cndmask_b32 v{Ou+6}, 0, v{Ou+6}, s[{sC1}:{sC1+1}]", f"v_cndmask_b32 v{Ou+7}, 0, v{Ou+7}, s[{sC1}:{sC1+1}]"]
        return [lambda s=s: a(s) for s in L]
    def s2(u):
        hl, t = u >> 1, u & 1
        Ou = O + 8 * (u & 1); T = []
        for ks in range(2):
            for ct in range(2):
                acc = vr(A2 + 32 * t + 16 * ct, 16)
                cin = "0" if (hl == 0 and ks == 0) else acc
                def f(s=f"v_mfma_f32_32x32x16_bf16 {acc}, {vr(WOFR+8*ks+4*ct,4)}, {vr(Ou+4*ks,4)}, {cin}", first=(ks == 0 and ct == 0), last=(ks == 1 and ct == 1)):
                    if first and t == 0: lg.wait(f"wo{hl}")
                    a(s)
                    if last and t == 1 and hl < 3: ldwo(hl + 1)
                T.append(f)
        return T
    run = lambda T: [f() for f in T]
    run(cvtkv(0)); run(cvtkv(1))
    run(s1(0)); run(s1(1)); run(scale(0))
    for u in range(8):
        main = s2(u)
        fill = scale(u + 1) if u + 1 < 8 else []
        if u + 2 < 8:
            if u + 2 in (4, 6): run(cvtkv((u + 2) >> 1))
            main = s1(u + 2) + main
        if u == 7:
            fill = [lambda ct=ct, i=i: a(f"ds_write_b128 v13, {vr(A2+16*ct+4*i,4)} offset:{128*ct + 16*i}") for ct in range(2) for i in range(4)]
            weave(main, fill, start=1)
        else:
            weave(main, fill)
    st(9)
    for ct in range(2):
        for i in range(4):
            a(f"ds_write_b128 v13, {vr(A2+32+16*ct+4*i,4)} offset:{32*272 + 128*ct + 16*i}")
    a("s_waitcnt lgkmcnt(0)\ns_barrier")
    st(10)
    R = 64
    for t in range(2):
        for w in range(4):
            for h in range(2):
                a(f"ds_read_b128 {vr(R+32*t+8*w+4*h,4)}, v{10 if w < 2 else 12} offset:{20480*(w&1) + 32*272*t + 16*h}")
    for t in range(2):
        b = R + 32 * t
        a(f"s_waitcnt lgkmcnt({8 if t == 0 else 0})")
        for i in range(8):
            a(f"v_add_f32 v{b+i}, v{b+i}, v{b+8+i}")
            a(f"v_add_f32 v{b+16+i}, v{b+16+i}, v{b+24+i}")
        for i in range(8):
            a(f"v_add_f32 v{b+i}, v{b+i}, v{b+16+i}")
        for i in range(4):
            a(f"v_cvt_pk_bf16_f32 v{b+8+i}, v{b+2*i}, v{b+2*i+1}")
        a(f"buffer_store_dwordx4 {vr(b+8,4)}, v11, s[{SO}:{SO+3}], s{sT3 if t == 0 else sT4} offen {os.environ.get('NTO','')}")
    a("L_kvend:")
    st.end(1)
    a("s_endpgm")

from v6s import gen_S
```
